```python
import torch

def _softmax(x, axis=-1):
    return torch.softmax(x, dim=axis)
def _gelu(x):
    return torch.nn.functional.gelu(x, approximate="tanh")
def _silu(x):
    return torch.nn.functional.silu(x)
def _sigmoid(x):
    return torch.sigmoid(x)
def _layernorm(x, axis=-1, eps=1e-5):
    m = x.mean(dim=axis, keepdim=True)
    v = x.var(dim=axis, keepdim=True, unbiased=False)
    return (x - m) / torch.sqrt(v + eps)
def _scatter_add(tgt, idx, src, axis=0):
    return tgt.clone().index_add_(axis, idx, src)
def _segment_sum(src, seg, n):
    out = torch.zeros((n,) + src.shape[1:], dtype=src.dtype)
    return out.index_add_(0, seg, src)
def _pad(x, pw):
    flat = tuple(v for pair in reversed(pw) for v in pair)
    return torch.nn.functional.pad(x, flat)

kernel_name = 'gated_mix__sliding_block_cached__sliding_block_cached__decode'

def setup_inputs():

    _w = (lambda a: (lambda t: t.to(torch.bfloat16) if t.is_floating_point() else t)(torch.as_tensor(a)))
    def _A_setup():
        B, Sq, D = 4, 1, 512
        Hq, Hkv, Sk, Dh = 32, 8, 8192, 128
        assert Hq % Hkv == 0, (Hq, Hkv)
        return {
            "x": _w((lambda *s: torch.randn(*s, dtype=torch.bfloat16) * 0.05)(B, Sq, D)),
            "k_cache": _w((lambda *s: torch.randn(*s, dtype=torch.bfloat16) * 6.4)(B, Hkv, Sk, Dh)),
            "v_cache": _w((lambda *s: torch.randn(*s, dtype=torch.bfloat16) * 0.05)(B, Hkv, Sk, Dh)),
            "wq": _w((lambda *s: torch.randn(*s, dtype=torch.bfloat16) * 6.4)(D, Hq * Dh) * (D ** -0.5)),
            "wo": _w((lambda *s: torch.randn(*s, dtype=torch.bfloat16) * 0.05)(Hq * Dh, D) * ((Hq * Dh) ** -0.5)),
        }
    _A_in = _A_setup()

    def _B_setup():
        B, Sq, D = 4, 1, 512
        Hq, Hkv, Sk, Dh = 32, 8, 8192, 128
        assert Hq % Hkv == 0, (Hq, Hkv)
        return {
            "x": _w((lambda *s: torch.randn(*s, dtype=torch.bfloat16) * 0.05)(B, Sq, D)),
            "k_cache": _w((lambda *s: torch.randn(*s, dtype=torch.bfloat16) * 6.4)(B, Hkv, Sk, Dh)),
            "v_cache": _w((lambda *s: torch.randn(*s, dtype=torch.bfloat16) * 0.05)(B, Hkv, Sk, Dh)),
            "wq": _w((lambda *s: torch.randn(*s, dtype=torch.bfloat16) * 6.4)(D, Hq * Dh) * (D ** -0.5)),
            "wo": _w((lambda *s: torch.randn(*s, dtype=torch.bfloat16) * 0.05)(Hq * Dh, D) * ((Hq * Dh) ** -0.5)),
        }
    _B_in = _B_setup()

    return {
        "A_x": _A_in["x"],
        "A_k_cache": _A_in["k_cache"],
        "A_v_cache": _A_in["v_cache"],
        "A_wq": _A_in["wq"],
        "A_wo": _A_in["wo"],
        "B_x": _B_in["x"],
        "B_k_cache": _B_in["k_cache"],
        "B_v_cache": _B_in["v_cache"],
        "B_wq": _B_in["wq"],
        "B_wo": _B_in["wo"],
        "gate_w": _w((lambda *s: torch.randn(*s, dtype=torch.bfloat16) * 0.05)(512) * 16.0),
    }

def reference(A_x, A_k_cache, A_v_cache, A_wq, A_wo, B_x, B_k_cache, B_v_cache, B_wq, B_wo, gate_w):
    def _A_ref(x, k_cache, v_cache, wq, wo):
        B, Sq, D = x.shape
        Hq, Dh = 32, 128
        Hkv, Sk = k_cache.shape[1], k_cache.shape[2]
        W = min(4096, max(256, Sk // 4))
        rep = Hq // Hkv
        q = (lambda x, *d: x.permute(*d))((x @ wq).reshape(B, Sq, Hq, Dh), 0, 2, 1, 3)
        k = (lambda x, n, axis: torch.repeat_interleave(x, n, dim=axis))(k_cache[:, :, Sk - W:, :], rep, axis=1)
        v = (lambda x, n, axis: torch.repeat_interleave(x, n, dim=axis))(v_cache[:, :, Sk - W:, :], rep, axis=1)
        scores = torch.einsum("bhqd,bhkd->bhqk", q, k) * (Dh ** -0.5)
        p = _softmax(scores, axis=-1)
        o = torch.einsum("bhqk,bhkd->bhqd", p, v)
        return (lambda x, *d: x.permute(*d))(o, 0, 2, 1, 3).reshape(B, Sq, Hq * Dh) @ wo

    def _B_ref(x, k_cache, v_cache, wq, wo):
        B, Sq, D = x.shape
        Hq, Dh = 32, 128
        Hkv, Sk = k_cache.shape[1], k_cache.shape[2]
        W = min(4096, max(256, Sk // 4))
        rep = Hq // Hkv
        q = (lambda x, *d: x.permute(*d))((x @ wq).reshape(B, Sq, Hq, Dh), 0, 2, 1, 3)
        k = (lambda x, n, axis: torch.repeat_interleave(x, n, dim=axis))(k_cache[:, :, Sk - W:, :], rep, axis=1)
        v = (lambda x, n, axis: torch.repeat_interleave(x, n, dim=axis))(v_cache[:, :, Sk - W:, :], rep, axis=1)
        scores = torch.einsum("bhqd,bhkd->bhqk", q, k) * (Dh ** -0.5)
        p = _softmax(scores, axis=-1)
        o = torch.einsum("bhqk,bhkd->bhqd", p, v)
        return (lambda x, *d: x.permute(*d))(o, 0, 2, 1, 3).reshape(B, Sq, Hq * Dh) @ wo

    x = A_x
    g = _sigmoid((x * gate_w).sum(-1, keepdims=True))
    a = _A_ref(x, A_k_cache, A_v_cache, A_wq, A_wo)
    b = _B_ref(x, B_k_cache, B_v_cache, B_wq, B_wo)
    return g * a + (1 - g) * b
```

```python
import sys
KN = "gated_mix__sliding_block_cached__sliding_block_cached__decode_kernel"
HDR = open("gated_mix__sliding_block_cached__sliding_block_cached__decode.s.ref").read().split("; Override launch")[0]

QP = 0x10000
OP = 0x40000
SP = 0xC0000
FP = 0x100000
WS_BYTES = 0x200000
STAMP_OFF = 0x4000000
L_Q = 0
QH = 272
L_M = 1280
L_L = 1408
L_F = 1536
L_QP = 2048
L_O = 10752
L_R = 27648
LDS_BYTES = 36096
LOG2E = 0x3fb8aa3b
SCALE = 0x3db504f3

class G:
    def __init__(self, stamps=False, nt=True, pol="sc1", spin=1 << 20):
        self.L = []
        self.stamps = stamps
        self.nt = " nt" if nt else ""
        self.pol = " " + pol
        self.spin = spin
        self.nlab = 0
    def A(self, s): self.L.append("    " + s)
    def lab(self, s): self.L.append(s + ":")
    def nop(self, n):
        while n > 0:
            k = min(n, 16); self.A(f"s_nop {k-1}"); n -= k
    def stamp(self, i):
        if self.stamps: self.A(f"s_memrealtime s[{64+2*i}:{65+2*i}]")
    def stamp_out(self, ns):
        if not self.stamps: return
        A = self.A
        A("s_waitcnt lgkmcnt(0)")
        A("s_mul_i32 s60, s2, 12"); A("s_add_u32 s60, s60, s33"); A(f"s_mul_i32 s60, s60, {ns*8}")
        A(f"s_add_u32 s60, s60, {STAMP_OFF}")
        A("s_add_u32 s62, s12, s60"); A("s_addc_u32 s63, s13, 0")
        A("s_mov_b64 exec, 1"); A("v_mov_b32 v4, 0")
        for i in range(ns):
            A(f"v_mov_b32 v2, s{64+2*i}"); A(f"v_mov_b32 v3, s{65+2*i}")
            A(f"global_store_dwordx2 v4, v[2:3], s[62:63] offset:{i*8}"); A("s_nop 1")
    def v4(self, r): return f"v[{r}:{r+3}]"
    def perms(self, dst, src, pairs=(0, 1, 2, 3)):
        for q in pairs:
            for w in range(4):
                for hh in range(2):
                    j = 2*w + hh
                    self.A(f"v_perm_b32 v{dst+4*j+q}, v{src+4*(2*q+1)+w}, v{src+4*(2*q)+w}, s{36+hh}")
    def allred_rows(self, op, v, t):
        A = self.A
        A(f"v_mov_b32 v{t}, v{v}"); self.nop(2)
        A(f"v_permlane32_swap_b32 v{v}, v{t}"); self.nop(1)
        A(f"{op} v{v}, v{v}, v{t}")
        A(f"v_mov_b32 v{t}, v{v}"); self.nop(2)
        A(f"v_permlane16_swap_b32 v{v}, v{t}"); self.nop(1)
        A(f"{op} v{v}, v{v}, v{t}")
    def dpp(self, op, d, a, b, ctl):
        self.A(f"{op}_dpp v{d}, v{a}, v{b} {ctl} row_mask:0xf bank_mask:0xf")
    def poll(self, name, loads, tagregs, acc):
        A = self.A
        A(f"s_mov_b32 s38, {self.spin}")
        self.lab(f"L_poll_{name}")
        for l in loads: A(l)
        A("s_waitcnt vmcnt(0)")
        A(f"v_xor_b32 v{acc}, s34, v{tagregs[0]}")
        for r in tagregs[1:]:
            A(f"v_bitop3_b32 v{acc}, v{r}, s34, v{acc} bitop3:0xbe")
        A(f"v_cmp_ne_u32 vcc, 0, v{acc}")
        A("s_cmp_eq_u64 vcc, 0")
        A(f"s_cbranch_scc1 L_done_{name}")
        A("s_sleep 1")
        A("s_sub_u32 s38, s38, 1")
        A("s_cmp_lg_u32 s38, 0")
        A(f"s_cbranch_scc1 L_poll_{name}")
        self.lab(f"L_done_{name}")

    def gen(self):
        A = self.A; nt = self.nt; pol = self.pol
        L = self.L
        L.append(HDR.rstrip("\n"))
        L.append(f"; @launch grid=(256,1,1) block=(768,1,1) lds={LDS_BYTES}")
        L.append('.amdgcn_target "amdgcn-amd-amdhsa--gfx950"')
        L.append(".text"); L.append(f".globl {KN}"); L.append(".p2align 8"); L.append(f".type {KN},@function"); L.append(f"{KN}:")
        self.stamp(0)
        if self.stamps:
            for i in range(1, 12): A(f"s_mov_b64 s[{64+2*i}:{65+2*i}], 0")
        A("s_cmp_ge_u32 s2, 256"); A("s_cbranch_scc1 L_end")
        A("s_bfe_u32 s29, s2, 0x10002")
        A("s_mul_i32 s3, s29, 40")
        A("s_load_dwordx2 s[4:5], s[0:1], s3 offset:8")
        A("s_load_dwordx2 s[8:9], s[0:1], s3 offset:16")
        A("s_load_dwordx2 s[12:13], s[0:1], 104")
        A("v_lshrrev_b32 v1, 6, v0")
        A("s_lshr_b32 s30, s2, 3")
        A("v_readfirstlane_b32 s33, v1")
        A("s_and_b32 s28, s2, 3"); A("s_lshl_b32 s28, s28, 1"); A("s_lshr_b32 s31, s30, 4"); A("s_or_b32 s28, s28, s31")
        A("s_and_b32 s30, s30, 15"); A("s_lshr_b32 s31, s30, 2"); A("s_and_b32 s32, s30, 3")
        A("s_mov_b32 s6, 0x4000000"); A("s_mov_b32 s7, 0x20000")
        A("s_mov_b32 s10, 0x4000000"); A("s_mov_b32 s11, 0x20000")
        A(f"s_mov_b32 s14, {WS_BYTES}"); A("s_mov_b32 s15, 0x20000")
        A("s_mov_b32 s36, 0x05040100"); A("s_mov_b32 s37, 0x07060302")
        A("v_and_b32 v0, 63, v0")
        A("v_and_b32 v3, 15, v0")
        A("v_lshrrev_b32 v4, 4, v0")
        A("s_cmp_lt_u32 s33, 4"); A("s_cbranch_scc1 L_C")
        KB, VB, QB, SB = 8, 72, 136, 152
        A("s_lshl_b32 s35, s31, 3"); A("s_add_u32 s35, s35, s28"); A("s_lshl_b32 s35, s35, 21")
        A("s_lshl_b32 s3, s32, 17"); A("s_add_u32 s35, s35, s3")
        A("s_lshl_b32 s3, s33, 14"); A("s_add_u32 s35, s35, s3")
        A(f"s_add_u32 s35, s35, {0x180000 - 4*16384}")
        A("v_lshlrev_b32 v1, 8, v3"); A("v_lshl_add_u32 v1, v4, 4, v1")
        A("v_lshlrev_b32 v2, 4, v3"); A("v_lshl_add_u32 v2, v4, 10, v2")
        A("s_barrier")
        A("s_waitcnt lgkmcnt(0)")
        self.stamp(1)
        A("s_load_dword s34, s[12:13], 0")
        A("s_mov_b32 s39, s35")
        for T in range(4):
            for t in range(4):
                A(f"buffer_load_dwordx4 {self.v4(KB+16*T+4*t)}, v1, s[4:7], s39 offen offset:{64*t}{nt}")
            if T < 3: A("s_add_u32 s39, s39, 4096")
        for T in range(4):
            for e in range(4):
                A(f"buffer_load_dwordx4 {self.v4(VB+16*T+4*e)}, v2, s[8:11], s35 offen offset:{256*e}{nt}")
            if T < 3: A("s_add_u32 s35, s35, 4096")
        self.stamp(2)
        A("v_and_b32 v5, 3, v0"); A(f"v_mul_u32_u24 v6, {QH}, v5"); A("v_lshl_add_u32 v6, v4, 4, v6")
        A("s_waitcnt lgkmcnt(0)")
        A("s_mul_i32 s34, s34, 1664525"); A("s_add_u32 s34, s34, 1013904223")
        A("s_barrier")
        self.stamp(3)
        for t in range(4):
            A(f"ds_read_b128 {self.v4(QB+4*t)}, v6 offset:{L_Q+64*t}")
        A("s_waitcnt vmcnt(16) lgkmcnt(0)")
        for t in range(4):
            for T in range(4):
                c = "0" if t == 0 else self.v4(SB+4*T)
                A(f"v_mfma_f32_16x16x32_bf16 {self.v4(SB+4*T)}, {self.v4(KB+16*T+4*t)}, {self.v4(QB+4*t)}, {c}")
        A(f"s_mov_b32 s40, {SCALE}"); A(f"s_mov_b32 s41, {LOG2E}")
        A("v_lshlrev_b32 v5, 5, v5"); A("s_lshl_b32 s3, s33, 2"); A("s_sub_u32 s3, s3, 16"); A("v_add_u32 v7, s3, v5")
        self.nop(2)
        for i in range(8):
            A(f"v_cvt_pk_bf16_f32 v{QB+i}, v{SB+2*i}, v{SB+2*i+1}")
        for i in range(8):
            A(f"v_lshlrev_b32 v{SB+2*i}, 16, v{QB+i}"); A(f"v_and_b32 v{SB+2*i+1}, 0xffff0000, v{QB+i}")
        for i in range(8):
            A(f"v_pk_mul_f32 v[{SB+2*i}:{SB+2*i+1}], v[{SB+2*i}:{SB+2*i+1}], s[40:41] op_sel_hi:[1,0]")
        for i in range(8):
            A(f"v_cvt_pk_bf16_f32 v{QB+i}, v{SB+2*i}, v{SB+2*i+1}")
        for i in range(8):
            A(f"v_lshlrev_b32 v{SB+2*i}, 16, v{QB+i}"); A(f"v_and_b32 v{SB+2*i+1}, 0xffff0000, v{QB+i}")
        A(f"v_max3_f32 v1, v{SB}, v{SB+1}, v{SB+2}")
        A(f"v_max3_f32 v2, v{SB+3}, v{SB+4}, v{SB+5}")
        A(f"v_max3_f32 v1, v1, v{SB+6}, v{SB+7}")
        A(f"v_max3_f32 v2, v2, v{SB+8}, v{SB+9}")
        A(f"v_max3_f32 v1, v1, v{SB+10}, v{SB+11}")
        A(f"v_max3_f32 v2, v2, v{SB+12}, v{SB+13}")
        A(f"v_max3_f32 v1, v1, v{SB+14}, v{SB+15}")
        A("v_max_f32 v1, v1, v2")
        self.allred_rows("v_max_f32", 1, 2)
        A("s_mov_b64 exec, 15")
        A(f"ds_write_b32 v7, v1 offset:{L_M}")
        A("s_mov_b64 exec, -1")
        A("s_waitcnt lgkmcnt(0)")
        A("s_barrier")
        self.stamp(4)
        A(f"ds_read_b128 {self.v4(QB)}, v5 offset:{L_M}")
        A(f"ds_read_b128 {self.v4(QB+4)}, v5 offset:{L_M+16}")
        A("s_waitcnt lgkmcnt(0)")
        A(f"v_max3_f32 v1, v{QB}, v{QB+1}, v{QB+2}")
        A(f"v_max3_f32 v2, v{QB+3}, v{QB+4}, v{QB+5}")
        A(f"v_max3_f32 v1, v1, v{QB+6}, v{QB+7}")
        A("v_max_f32 v1, v1, v2")
        A("v_mul_f32 v1, s41, v1")
        for i in range(16):
            A(f"v_fma_f32 v{SB+i}, v{SB+i}, s41, -v1")
        for i in range(16):
            A(f"v_exp_f32 v{SB+i}, v{SB+i}")
        self.nop(1)
        for i in range(8):
            A(f"v_cvt_pk_bf16_f32 v{QB+i}, v{SB+2*i}, v{SB+2*i+1}")
        for i in range(4):
            A(f"v_pk_add_f32 v[{SB+2*i}:{SB+2*i+1}], v[{SB+2*i}:{SB+2*i+1}], v[{SB+8+2*i}:{SB+9+2*i}]")
        for i in range(2):
            A(f"v_pk_add_f32 v[{SB+2*i}:{SB+2*i+1}], v[{SB+2*i}:{SB+2*i+1}], v[{SB+4+2*i}:{SB+5+2*i}]")
        A(f"v_pk_add_f32 v[{SB}:{SB+1}], v[{SB}:{SB+1}], v[{SB+2}:{SB+3}]")
        A(f"v_add_f32 v2, v{SB}, v{SB+1}")
        self.allred_rows("v_add_f32", 2, SB)
        A("s_mov_b64 exec, 15")
        A(f"ds_write_b32 v7, v2 offset:{L_L}")
        A("s_mov_b64 exec, -1")
        OB, P0, P1 = 8, 40, 72
        A("v_and_b32 v5, 3, v0"); A("v_mul_u32_u24 v6, 528, v5"); A("v_lshl_add_u32 v6, v4, 7, v6")
        A("s_mul_i32 s3, s33, 2112"); A(f"s_add_u32 s3, s3, {L_O - 4*2112}"); A("v_add_u32 v6, s3, v6")
        A("s_waitcnt vmcnt(8)")
        self.perms(P0, VB)
        self.nop(2)
        for j in range(8):
            A(f"v_mfma_f32_16x16x32_bf16 {self.v4(OB+4*j)}, {self.v4(P0+4*j)}, {self.v4(QB)}, 0")
        self.stamp(5)
        for q in range(4):
            A(f"s_waitcnt vmcnt({6-2*q})")
            self.perms(P1, VB+32, pairs=(q,))
        self.stamp(6)
        for j in range(8):
            A(f"v_mfma_f32_16x16x32_bf16 {self.v4(OB+4*j)}, {self.v4(P1+4*j)}, {self.v4(QB+4)}, {self.v4(OB+4*j)}")
        A("s_mov_b32 s42, 0x000f000f"); A("s_mov_b32 s43, 0x000f000f")
        A("s_mov_b64 exec, s[42:43]")
        for j in range(8):
            if j == 0: self.nop(0)
            A(f"ds_write_b128 v6, {self.v4(OB+4*j)} offset:{16*j}")
            if j < 7: self.nop(0)
            if j == 3: self.nop(0)
        A("s_mov_b64 exec, -1")
        A("s_waitcnt lgkmcnt(0)")
        A("s_barrier")
        self.stamp(7)
        A("s_cmp_ge_u32 s33, 8"); A("s_cbranch_scc1 L_S_exit")
        A("s_mul_i32 s3, s33, 528"); A(f"s_add_u32 s3, s3, {L_O - 4*528}")
        A("v_lshl_add_u32 v6, v0, 3, s3")
        A("s_lshl_b32 s3, s33, 5"); A("s_sub_u32 s3, s3, 128"); A("v_mov_b32 v7, s3")
        for w in range(8):
            A(f"ds_read_b64 v[{8+2*w}:{9+2*w}], v6 offset:{2112*w}")
        A(f"ds_read_b128 v[24:27], v7 offset:{L_L}")
        A(f"ds_read_b128 v[28:31], v7 offset:{L_L+16}")
        A("s_lshl_b32 s3, s29, 3"); A("s_add_u32 s3, s3, s28"); A("s_lshl_b32 s3, s3, 2"); A("s_add_u32 s3, s3, s33"); A("s_sub_u32 s3, s3, 4")
        A("s_lshl_b32 s3, s3, 2"); A("s_add_u32 s3, s3, s32"); A("s_lshl_b32 s3, s3, 2"); A("s_add_u32 s3, s3, s31")
        A("s_lshl_b32 s39, s3, 9"); A(f"s_add_u32 s39, s39, {OP}")
        A("s_lshl_b32 s35, s3, 4"); A(f"s_add_u32 s35, s35, {SP}")
        A("v_lshlrev_b32 v6, 3, v0")
        A("v_mov_b32 v33, s34"); A("v_mov_b32 v35, s34")
        A("s_sub_u32 s3, s33, 4"); self.nop(1)
        A("v_readlane_b32 s44, v1, s3")
        A("s_waitcnt lgkmcnt(0)")
        for w in (0, 1, 2, 3):
            A(f"v_pk_add_f32 v[{8+2*w}:{9+2*w}], v[{8+2*w}:{9+2*w}], v[{16+2*w}:{17+2*w}]")
        A("v_pk_add_f32 v[8:9], v[8:9], v[12:13]"); A("v_pk_add_f32 v[10:11], v[10:11], v[14:15]")
        A("v_pk_add_f32 v[8:9], v[8:9], v[10:11]")
        A("v_pk_add_f32 v[24:25], v[24:25], v[28:29]")
        A("v_cvt_pk_bf16_f32 v32, v8, v9")
        A("v_pk_add_f32 v[26:27], v[26:27], v[30:31]")
        A(f"buffer_store_dwordx2 v[32:33], v6, s[12:15], s39 offen{pol}")
        A("v_pk_add_f32 v[24:25], v[24:25], v[26:27]")
        A("v_mov_b32 v36, s44"); A("v_mov_b32 v37, s34"); A("v_mov_b32 v39, s34")
        A("v_add_f32 v38, v24, v25")
        A("v_mov_b32 v7, 0")
        A("s_mov_b64 exec, 1")
        A(f"buffer_store_dwordx4 v[36:39], v7, s[12:15], s35 offen{pol}")
        self.lab("L_S_exit")
        self.stamp(8)
        self.stamp_out(12)
        A("s_endpgm")
        self.lab("L_C")
        WB, PB, DB, XB = 8, 40, 72, 104
        A("v_lshlrev_b32 v1, 2, v1"); A("v_mov_b32 v2, 0")
        A(f"ds_write_b32 v1, v2 offset:{L_F}")
        A("s_mul_i32 s3, s29, 40")
        A("s_load_dwordx2 s[16:17], s[0:1], s3 offset:24")
        A("s_load_dwordx2 s[20:21], s[0:1], s3 offset:32")
        A("s_load_dwordx2 s[24:25], s[0:1], 0")
        A("s_load_dwordx4 s[48:51], s[0:1], 80")
        A("s_mov_b32 s18, 0x400000"); A("s_mov_b32 s19, 0x20000")
        A("s_mov_b32 s22, 0x400000"); A("s_mov_b32 s23, 0x20000")
        A("s_mov_b32 s26, 4096"); A("s_mov_b32 s27, 0x20000")
        A("v_lshrrev_b32 v5, 2, v3")
        A("v_and_b32 v6, 3, v0")
        A("v_lshlrev_b32 v1, 18, v5"); A("v_lshl_add_u32 v1, v4, 16, v1"); A("v_lshl_add_u32 v1, v6, 4, v1")
        A("v_lshlrev_b32 v2, 10, v6"); A("v_lshl_add_u32 v2, v5, 6, v2"); A("v_lshl_add_u32 v2, v4, 4, v2")
        A("s_lshl_b32 s35, s33, 20"); A("s_lshl_b32 s3, s28, 10"); A("s_add_u32 s35, s35, s3")
        A("s_lshl_b32 s3, s30, 6"); A("s_add_u32 s35, s35, s3")
        A("s_lshl_b32 s39, s33, 8")
        A("s_waitcnt lgkmcnt(0)")
        A("s_barrier")
        self.stamp(1)
        A("s_load_dword s34, s[12:13], 0")
        for e in range(8):
            A(f"buffer_load_dwordx4 {self.v4(WB+4*e)}, v1, s[16:19], s35 offen{nt}")
            if e < 7: A("s_add_u32 s35, s35, 8192")
        A(f"buffer_load_dwordx4 {self.v4(XB)}, v2, s[24:27], s39 offen")
        A("s_mov_b32 s52, s48"); A("s_mov_b32 s53, s49"); A("s_mov_b32 s54, 1024"); A("s_mov_b32 s55, 0x20000")
        A("s_mov_b32 s56, s50"); A("s_mov_b32 s57, s51"); A("s_mov_b32 s58, 4096"); A("s_mov_b32 s59, 0x20000")
        A("s_lshl_b32 s45, s29, 1"); A("s_lshr_b32 s3, s28, 2"); A("s_add_u32 s45, s45, s3")
        A("s_lshl_b32 s3, s45, 10")
        A("v_lshlrev_b32 v7, 4, v0")
        A("buffer_load_dwordx4 v[112:115], v7, s[24:27], s3 offen")
        A("buffer_load_dwordx4 v[116:119], v7, s[52:55], 0 offen")
        A("s_mul_i32 s3, s33, 2112"); A(f"s_add_u32 s3, s3, {L_QP}")
        A("v_mul_u32_u24 v1, 528, v5"); A("v_lshl_add_u32 v1, v6, 7, v1"); A("v_add_u32 v1, s3, v1")
        A("v_cmp_eq_u32 s[46:47], v4, v5")
        A("s_waitcnt lgkmcnt(0)")
        A("s_mul_i32 s34, s34, 1664525"); A("s_add_u32 s34, s34, 1013904223")
        A("s_waitcnt vmcnt(2)")
        self.stamp(2)
        self.perms(PB, WB)
        self.nop(2)
        for j in range(8):
            A(f"v_mfma_f32_16x16x32_bf16 {self.v4(DB+4*j)}, {self.v4(PB+4*j)}, {self.v4(XB)}, 0")
        A("s_mov_b64 exec, s[46:47]")
        self.nop(8)
        for j in range(8):
            A(f"ds_write_b128 v1, {self.v4(DB+4*j)} offset:{16*j}")
        A("s_mov_b64 exec, -1")
        A("s_lshl_b32 s3, s33, 2"); A("v_mov_b32 v1, s3"); A("v_mov_b32 v2, 1")
        A("s_waitcnt lgkmcnt(0)")
        A(f"ds_write_b32 v1, v2 offset:{L_F}")
        A("s_cmp_eq_u32 s33, 1"); A("s_cbranch_scc1 L_C_qpoll")
        A("s_cmp_lg_u32 s33, 0"); A("s_cbranch_scc1 L_C_b1")
        A("v_mov_b32 v1, 0")
        A(f"s_mov_b32 s38, {self.spin}")
        self.lab("L_fl")
        A(f"ds_read_b128 v[8:11], v1 offset:{L_F}")
        A("s_waitcnt lgkmcnt(0)")
        A("v_and_b32 v12, v8, v9"); A("v_and_b32 v13, v10, v11"); A("v_and_b32 v12, v12, v13")
        A("v_cmp_ne_u32 vcc, 1, v12"); A("s_cmp_eq_u64 vcc, 0"); A("s_cbranch_scc1 L_fl_done")
        A("s_sub_u32 s38, s38, 1"); A("s_cmp_lg_u32 s38, 0"); A("s_cbranch_scc1 L_fl")
        self.lab("L_fl_done")
        A("v_lshlrev_b32 v1, 7, v4"); A("v_lshl_add_u32 v1, v6, 5, v1"); A("v_lshl_add_u32 v1, v5, 2, v1")
        A(f"v_add_u32 v1, {L_QP}, v1")
        for p in range(16):
            if p % 2 == 0:
                A(f"ds_read2_b32 v[{8+2*p}:{9+2*p}], v1 offset0:0 offset1:4")
            else:
                A(f"ds_read2_b32 v[{8+2*p}:{9+2*p}], v1 offset0:132 offset1:136")
                if p < 15: A("v_add_u32 v1, 1056, v1")
        A("s_lshl_b32 s3, s29, 5"); A("s_add_u32 s3, s3, s28"); A("s_lshl_b32 s3, s3, 11"); A("s_lshl_b32 s39, s30, 7")
        A("s_add_u32 s39, s39, s3"); A(f"s_add_u32 s39, s39, {QP}")
        A("v_lshlrev_b32 v2, 14, v4"); A("v_lshl_add_u32 v2, v3, 3, v2")
        A("v_mov_b32 v41, s34")
        A("s_waitcnt lgkmcnt(0)")
        st = 8
        while st >= 1:
            for p in range(st):
                A(f"v_pk_add_f32 v[{8+2*p}:{9+2*p}], v[{8+2*p}:{9+2*p}], v[{8+2*(p+st)}:{9+2*(p+st)}]")
            st //= 2
        A("v_cvt_pk_bf16_f32 v40, v8, v9")
        A(f"buffer_store_dwordx2 v[40:41], v2, s[12:15], s39 offen{pol}")
        self.stamp(3)
        A("s_waitcnt vmcnt(1)")
        for i in range(4):
            A(f"v_lshlrev_b32 v{8+2*i}, 16, v{112+i}"); A(f"v_and_b32 v{9+2*i}, 0xffff0000, v{112+i}")
            A(f"v_lshlrev_b32 v{16+2*i}, 16, v{116+i}"); A(f"v_and_b32 v{17+2*i}, 0xffff0000, v{116+i}")
        for i in range(4):
            A(f"v_pk_mul_f32 v[{8+2*i}:{9+2*i}], v[{8+2*i}:{9+2*i}], v[{16+2*i}:{17+2*i}]")
        for i in range(4):
            A(f"v_cvt_pk_bf16_f32 v{16+i}, v{8+2*i}, v{9+2*i}")
        for i in range(4):
            A(f"v_lshlrev_b32 v{8+2*i}, 16, v{16+i}"); A(f"v_and_b32 v{9+2*i}, 0xffff0000, v{16+i}")
        A("v_pk_add_f32 v[8:9], v[8:9], v[12:13]"); A("v_pk_add_f32 v[10:11], v[10:11], v[14:15]")
        A("v_pk_add_f32 v[8:9], v[8:9], v[10:11]"); A("v_add_f32 v8, v8, v9")
        for ror in (8, 4, 2, 1):
            self.nop(2); self.dpp("v_add_f32", 8, 8, 8, f"row_ror:{ror}")
        self.allred_rows("v_add_f32", 8, 9)
        A("v_cvt_pk_bf16_f32 v8, v8, v8"); A("v_lshlrev_b32 v8, 16, v8")
        A(f"v_mul_f32 v8, {0xbfb8aa3b}, v8"); A("v_exp_f32 v8, v8"); self.nop(1)
        A("v_add_f32 v8, 1.0, v8"); A("v_rcp_f32 v8, v8"); self.nop(1)
        A("v_cvt_pk_bf16_f32 v8, v8, v8"); A("v_lshlrev_b32 v8, 16, v8")
        A("v_sub_f32 v9, 1.0, v8"); A("v_cvt_pk_bf16_f32 v9, v9, v9"); A("v_lshlrev_b32 v9, 16, v9")
        A("v_cmp_gt_u32 vcc, 32, v0"); self.nop(2)
        A("v_cndmask_b32 v120, v9, v8, vcc")
        A("s_branch L_C_b1")
        self.lab("L_C_qpoll")
        A("s_lshl_b32 s3, s29, 2"); A("s_add_u32 s3, s3, s31"); A("s_lshl_b32 s3, s3, 3"); A("s_add_u32 s3, s3, s28")
        A("s_lshl_b32 s39, s3, 11"); A(f"s_add_u32 s39, s39, {QP}")
        A("v_lshlrev_b32 v2, 5, v0")
        self.poll("q", [f"buffer_load_dwordx4 v[8:11], v2, s[12:15], s39 offen{pol}",
                        f"buffer_load_dwordx4 v[12:15], v2, s[12:15], s39 offen offset:16{pol}"], [9, 11, 13, 15], 16)
        A("v_mov_b32 v9, v10"); A("v_mov_b32 v10, v12"); A("v_mov_b32 v11, v14")
        A(f"v_mul_u32_u24 v2, {QH}, v4"); A("v_lshl_add_u32 v2, v3, 4, v2")
        A(f"ds_write_b128 v2, v[8:11] offset:{L_Q}")
        self.stamp(3)
        self.lab("L_C_b1")
        A("v_lshlrev_b32 v1, 11, v4"); A("v_lshl_add_u32 v1, v3, 4, v1")
        A("s_lshl_b32 s44, s28, 2"); A("s_add_u32 s44, s44, s31")
        A("s_lshl_b32 s35, s44, 17"); A("s_lshl_b32 s3, s33, 15"); A("s_add_u32 s35, s35, s3")
        A("s_lshl_b32 s3, s32, 8"); A("s_add_u32 s35, s35, s3")
        A("s_waitcnt vmcnt(0) lgkmcnt(0)")
        A("s_barrier")
        A("s_barrier")
        self.stamp(4)
        for r in range(4):
            A(f"buffer_load_dwordx4 {self.v4(WB+4*r)}, v1, s[20:23], s35 offen{nt}")
            A(f"buffer_load_dwordx4 {self.v4(WB+4*(r+4))}, v1, s[20:23], s35 offen offset:1024{nt}")
            if r < 3: A("s_add_u32 s35, s35, 8192")
        A("s_lshl_b32 s3, s29, 5"); A("s_add_u32 s44, s44, s3")
        A("s_lshl_b32 s39, s44, 13"); A("s_lshl_b32 s3, s33, 7"); A("s_add_u32 s39, s39, s3"); A(f"s_add_u32 s39, s39, {OP}")
        A("s_lshl_b32 s35, s44, 8"); A(f"s_add_u32 s35, s35, {SP}")
        A("v_lshlrev_b32 v1, 9, v3"); A("v_lshl_add_u32 v1, v4, 5, v1")
        A("v_lshlrev_b32 v2, 4, v3")
        A("v_mul_u32_u24 v7, 528, v6"); A("v_lshl_add_u32 v7, v4, 7, v7")
        A("s_mul_i32 s3, s33, 2112"); A(f"s_add_u32 s3, s3, {L_R}"); A("v_add_u32 v7, s3, v7")
        A("s_barrier")
        self.stamp(5)
        A("s_waitcnt vmcnt(0)")
        self.perms(PB, WB)
        self.stamp(6)
        self.poll("o", [f"buffer_load_dwordx4 v[8:11], v1, s[12:15], s39 offen{pol}",
                        f"buffer_load_dwordx4 v[12:15], v1, s[12:15], s39 offen offset:16{pol}",
                        f"buffer_load_dwordx4 v[16:19], v2, s[12:15], s35 offen{pol}"], [9, 11, 13, 15, 17, 19], 20)
        self.stamp(7)
        self.dpp("v_max_f32", 20, 16, 16, "row_ror:4")
        A("v_lshlrev_b32 v24, 16, v8"); A("v_and_b32 v25, 0xffff0000, v8")
        self.dpp("v_max_f32", 20, 20, 20, "row_ror:8")
        A("v_lshlrev_b32 v26, 16, v10"); A("v_and_b32 v27, 0xffff0000, v10")
        A("v_sub_f32 v16, v16, v20")
        A("v_exp_f32 v16, v16")
        A("v_lshlrev_b32 v28, 16, v12"); A("v_and_b32 v29, 0xffff0000, v12")
        A("v_mul_f32 v18, v18, v16")
        A("v_lshlrev_b32 v30, 16, v14"); A("v_and_b32 v31, 0xffff0000, v14")
        self.dpp("v_add_f32", 18, 18, 18, "row_ror:4"); self.nop(2)
        self.dpp("v_add_f32", 18, 18, 18, "row_ror:8")
        A("v_rcp_f32 v18, v18"); self.nop(1)
        A("v_mul_f32 v16, v16, v18")
        for i in range(8): A(f"v_mul_f32 v{24+i}, v{24+i}, v16")
        for i in range(8): self.dpp("v_add_f32", 24+i, 24+i, 24+i, "row_ror:4")
        for i in range(8): self.dpp("v_add_f32", 24+i, 24+i, 24+i, "row_ror:8")
        for i in range(4): A(f"v_cvt_pk_bf16_f32 v{XB+i}, v{24+2*i}, v{25+2*i}")
        self.nop(2)
        for j in range(8):
            A(f"v_mfma_f32_16x16x32_bf16 {self.v4(DB+4*j)}, {self.v4(PB+4*j)}, {self.v4(XB)}, 0")
        A("s_mov_b32 s42, 0x000f000f"); A("s_mov_b32 s43, 0x000f000f")
        A("s_mov_b64 exec, s[42:43]")
        for j in range(8):
            A(f"ds_write_b128 v7, {self.v4(DB+4*j)} offset:{16*j}")
        A("s_mov_b64 exec, -1")
        A("v_lshlrev_b32 v1, 7, v4"); A("v_lshl_add_u32 v1, v6, 5, v1"); A("v_lshl_add_u32 v1, v5, 2, v1")
        A("s_mul_i32 s3, s33, 528"); A(f"s_add_u32 s3, s3, {L_R}"); A("v_add_u32 v1, s3, v1")
        A("v_add_u32 v2, 2112, v1"); A("v_add_u32 v8, 4224, v1"); A("v_add_u32 v9, 6336, v1")
        A("s_lshl_b32 s39, s32, 18"); A(f"s_add_u32 s39, s39, {FP}")
        A("s_lshl_b32 s3, s44, 12"); A("s_add_u32 s35, s39, s3"); A("s_lshl_b32 s3, s33, 10"); A("s_add_u32 s35, s35, s3")
        A("v_lshlrev_b32 v10, 4, v0")
        A("v_mov_b32 v21, s34"); A("v_mov_b32 v23, s34")
        A("s_waitcnt lgkmcnt(0)")
        A("s_barrier")
        A("ds_read2_b32 v[12:13], v1 offset0:0 offset1:4")
        A("ds_read2_b32 v[14:15], v2 offset0:0 offset1:4")
        A("ds_read2_b32 v[16:17], v8 offset0:0 offset1:4")
        A("ds_read2_b32 v[18:19], v9 offset0:0 offset1:4")
        A("s_waitcnt lgkmcnt(0)")
        A("v_pk_add_f32 v[12:13], v[12:13], v[14:15]"); A("v_pk_add_f32 v[16:17], v[16:17], v[18:19]")
        A("v_add_f32 v20, v12, v16"); A("v_add_f32 v22, v13, v17")
        A(f"buffer_store_dwordx4 v[20:23], v10, s[12:15], s35 offen{pol}")
        self.stamp(8)
        A("s_cmp_lg_u32 s33, 0"); A("s_cbranch_scc1 L_C_exit")
        A("v_lshrrev_b32 v1, 2, v0"); A("v_lshlrev_b32 v1, 12, v1"); A("v_lshl_add_u32 v1, v6, 4, v1")
        A("s_lshl_b32 s3, s44, 6"); A("s_add_u32 s39, s39, s3")
        A("s_add_u32 s40, s39, 0x10000"); A("s_add_u32 s41, s39, 0x20000"); A("s_add_u32 s42, s39, 0x30000")
        self.poll("f", [f"buffer_load_dwordx4 v[{24+4*i}:{27+4*i}], v1, s[12:15], s{39+i} offen{pol}" for i in range(4)],
                  [25, 27, 29, 31, 33, 35, 37, 39], 40)
        self.stamp(9)
        A("v_add_f32 v24, v24, v28"); A("v_add_f32 v26, v26, v30")
        A("v_add_f32 v32, v32, v36"); A("v_add_f32 v34, v34, v38")
        self.nop(1)
        A("v_permlane32_swap_b32 v24, v32"); A("v_permlane32_swap_b32 v26, v34"); self.nop(1)
        A("v_add_f32 v24, v24, v32"); A("v_add_f32 v26, v26, v34"); self.nop(2)
        A("v_permlane16_swap_b32 v24, v26"); self.nop(1)
        A("v_add_f32 v24, v24, v26"); self.nop(2)
        self.dpp("v_add_f32", 24, 24, 24, "row_ror:4"); self.nop(2)
        self.dpp("v_add_f32", 24, 24, 24, "row_ror:8")
        A("v_cvt_pk_bf16_f32 v24, v24, v24"); A("v_lshlrev_b32 v24, 16, v24")
        A("v_mul_f32 v24, v24, v120")
        A("v_cvt_pk_bf16_f32 v24, v24, v24"); A("v_lshlrev_b32 v24, 16, v24")
        A("v_mov_b32 v25, v24"); self.nop(2)
        A("v_permlane32_swap_b32 v24, v25"); self.nop(1)
        A("v_add_f32 v24, v24, v25")
        A("v_cvt_pk_bf16_f32 v24, v24, v24")
        A("s_lshl_b32 s3, s45, 10"); A("s_lshl_b32 s39, s32, 8"); A("s_add_u32 s3, s3, s39")
        A("s_and_b32 s39, s44, 15"); A("s_lshl_b32 s39, s39, 4"); A("s_add_u32 s3, s3, s39")
        A("v_lshlrev_b32 v1, 2, v6"); A("v_lshl_add_u32 v1, v4, 1, v1")
        A("s_mov_b64 exec, 0x000f000f")
        A("buffer_store_short v24, v1, s[56:59], s3 offen")
        A("s_cmp_lg_u32 s2, 0"); A("s_cbranch_scc1 L_C_exit")
        A("s_mov_b64 exec, 1"); A("v_mov_b32 v1, 0"); A("v_mov_b32 v2, s34")
        A("buffer_store_dword v2, v1, s[12:15], 0 offen")
        self.lab("L_C_exit")
        self.stamp(10)
        if self.stamps:
            A("s_waitcnt vmcnt(0)")
            self.stamp(11)
        self.stamp_out(12)
        self.lab("L_end")
        A("s_endpgm")
        L.append('.section .rodata,"a"'); L.append(".p2align 6"); L.append(f".amdhsa_kernel {KN}")
        L.append("  .amdhsa_next_free_vgpr 168"); L.append("  .amdhsa_next_free_sgpr 96"); L.append("  .amdhsa_accum_offset 168")
        L.append("  .amdhsa_group_segment_fixed_size 0"); L.append("  .amdhsa_kernarg_size 112"); L.append("  .amdhsa_user_sgpr_count 2")
        L.append("  .amdhsa_user_sgpr_kernarg_segment_ptr 1"); L.append("  .amdhsa_system_sgpr_workgroup_id_x 1")
        L.append("  .amdhsa_float_denorm_mode_32 3")
        L.append(".end_amdhsa_kernel")
        return "\n".join(L) + "\n"

if __name__ == "__main__":
    out = sys.argv[1]
    kw = {}
    for a in sys.argv[2:]:
        k, v = a.split("=")
        if k in ("stamps", "nt"): v = bool(int(v))
        elif k == "spin": v = int(v)
        elif k == "pol": v = v.replace("+", " ")
        kw[k] = v
    open(out, "w").write(G(**kw).gen())
```

```python
import sys
KN = "gated_mix__sliding_block_cached__sliding_block_cached__decode_kernel"
HDR = open("gated_mix__sliding_block_cached__sliding_block_cached__decode.s.ref").read().split("; Override launch")[0]

QP = 0x10000
OP = 0x40000
SP = 0xC0000
FP = 0x100000
WS_BYTES = 0x200000
STAMP_OFF = 0x4000000
L_Q = 0
QH = 272
L_M = 1280
L_L = 1408
L_F = 1536
L_QP = 2048
L_O = 10752
L_R = 27648
LDS_BYTES = 36096
LOG2E = 0x3fb8aa3b
SCALE = 0x3db504f3

class G:
    def __init__(self, dbg=False, stamps=False, nt=True, pol="sc1", spin=1 << 20):
        self.L = []
        self.stamps = stamps
        self.dbg = dbg
        self.nt = " nt" if nt else ""
        self.pol = " " + pol
        self.spin = spin
        self.nlab = 0
    def A(self, s): self.L.append("    " + s)
    def lab(self, s): self.L.append(s + ":")
    def nop(self, n):
        while n > 0:
            k = min(n, 16); self.A(f"s_nop {k-1}"); n -= k
    def stamp(self, i):
        if self.stamps: self.A(f"s_memrealtime s[{64+2*i}:{65+2*i}]")
    def stamp_out(self, ns):
        if not self.stamps: return
        A = self.A
        A("s_waitcnt lgkmcnt(0)")
        A("s_mul_i32 s60, s2, 12"); A("s_add_u32 s60, s60, s33"); A(f"s_mul_i32 s60, s60, {ns*8}")
        A(f"s_add_u32 s60, s60, {STAMP_OFF}")
        A("s_add_u32 s62, s12, s60"); A("s_addc_u32 s63, s13, 0")
        A("s_mov_b64 exec, 1"); A("v_mov_b32 v4, 0")
        for i in range(ns):
            A(f"v_mov_b32 v2, s{64+2*i}"); A(f"v_mov_b32 v3, s{65+2*i}")
            A(f"global_store_dwordx2 v4, v[2:3], s[62:63] offset:{i*8}"); A("s_nop 1")
    def v4(self, r): return f"v[{r}:{r+3}]"
    def perms(self, dst, src, pairs=(0, 1, 2, 3)):
        for q in pairs:
            for w in range(4):
                for hh in range(2):
                    j = 2*w + hh
                    self.A(f"v_perm_b32 v{dst+4*j+q}, v{src+4*(2*q+1)+w}, v{src+4*(2*q)+w}, s{36+hh}")
    def allred_rows(self, op, v, t):
        A = self.A
        A(f"v_mov_b32 v{t}, v{v}"); self.nop(2)
        A(f"v_permlane32_swap_b32 v{v}, v{t}"); self.nop(1)
        A(f"{op} v{v}, v{v}, v{t}")
        A(f"v_mov_b32 v{t}, v{v}"); self.nop(2)
        A(f"v_permlane16_swap_b32 v{v}, v{t}"); self.nop(1)
        A(f"{op} v{v}, v{v}, v{t}")
    def dpp(self, op, d, a, b, ctl):
        self.A(f"{op}_dpp v{d}, v{a}, v{b} {ctl} row_mask:0xf bank_mask:0xf")
    def poll(self, name, loads, tagregs, acc):
        A = self.A
        A(f"s_mov_b32 s38, {self.spin}")
        self.lab(f"L_poll_{name}")
        for l in loads: A(l)
        A("s_waitcnt vmcnt(0)")
        A(f"v_xor_b32 v{acc}, s34, v{tagregs[0]}")
        for r in tagregs[1:]:
            A(f"v_bitop3_b32 v{acc}, v{r}, s34, v{acc} bitop3:0xbe")
        A(f"v_cmp_ne_u32 vcc, 0, v{acc}")
        A("s_cmp_eq_u64 vcc, 0")
        A(f"s_cbranch_scc1 L_done_{name}")
        A("s_sleep 1")
        A("s_sub_u32 s38, s38, 1")
        A("s_cmp_lg_u32 s38, 0")
        A(f"s_cbranch_scc1 L_poll_{name}")
        self.lab(f"L_done_{name}")

    def gen(self):
        A = self.A; nt = self.nt; pol = self.pol
        L = self.L
        L.append(HDR.rstrip("\n"))
        L.append(f"; @launch grid=(256,1,1) block=(768,1,1) lds={LDS_BYTES}")
        L.append('.amdgcn_target "amdgcn-amd-amdhsa--gfx950"')
        L.append(".text"); L.append(f".globl {KN}"); L.append(".p2align 8"); L.append(f".type {KN},@function"); L.append(f"{KN}:")
        self.stamp(0)
        if self.dbg: A("s_memrealtime s[90:91]")
        if self.stamps:
            for i in range(1, 12): A(f"s_mov_b64 s[{64+2*i}:{65+2*i}], 0")
        A("s_cmp_ge_u32 s2, 256"); A("s_cbranch_scc1 L_end")
        A("s_bfe_u32 s29, s2, 0x10002")
        A("s_mul_i32 s3, s29, 40")
        A("s_load_dwordx2 s[4:5], s[0:1], s3 offset:8")
        A("s_load_dwordx2 s[8:9], s[0:1], s3 offset:16")
        A("s_load_dwordx2 s[12:13], s[0:1], 104")
        A("v_lshrrev_b32 v1, 6, v0")
        A("s_lshr_b32 s30, s2, 3")
        A("v_readfirstlane_b32 s33, v1")
        A("s_and_b32 s28, s2, 3"); A("s_lshl_b32 s28, s28, 1"); A("s_lshr_b32 s31, s30, 4"); A("s_or_b32 s28, s28, s31")
        A("s_and_b32 s30, s30, 15"); A("s_lshr_b32 s31, s30, 2"); A("s_and_b32 s32, s30, 3")
        A("s_mov_b32 s6, 0x4000000"); A("s_mov_b32 s7, 0x20000")
        A("s_mov_b32 s10, 0x4000000"); A("s_mov_b32 s11, 0x20000")
        A(f"s_mov_b32 s14, {WS_BYTES}"); A("s_mov_b32 s15, 0x20000")
        A("s_mov_b32 s36, 0x05040100"); A("s_mov_b32 s37, 0x07060302")
        A("v_and_b32 v0, 63, v0")
        A("v_and_b32 v3, 15, v0")
        A("v_lshrrev_b32 v4, 4, v0")
        A("s_cmp_lt_u32 s33, 4"); A("s_cbranch_scc1 L_C")
        KB, VB, QB, SB = 8, 72, 136, 152
        A("s_lshl_b32 s35, s31, 3"); A("s_add_u32 s35, s35, s28"); A("s_lshl_b32 s35, s35, 21")
        A("s_lshl_b32 s3, s32, 17"); A("s_add_u32 s35, s35, s3")
        A("s_lshl_b32 s3, s33, 14"); A("s_add_u32 s35, s35, s3")
        A(f"s_add_u32 s35, s35, {0x180000 - 4*16384}")
        A("v_lshlrev_b32 v1, 8, v3"); A("v_lshl_add_u32 v1, v4, 4, v1")
        A("v_lshlrev_b32 v2, 4, v3"); A("v_lshl_add_u32 v2, v4, 10, v2")
        A("s_barrier")
        A("s_waitcnt lgkmcnt(0)")
        self.stamp(1)
        A("s_load_dword s34, s[12:13], 0")
        A("s_mov_b32 s39, s35")
        for T in range(4):
            for t in range(4):
                A(f"buffer_load_dwordx4 {self.v4(KB+16*T+4*t)}, v1, s[4:7], s39 offen offset:{64*t}{nt}")
            if T < 3: A("s_add_u32 s39, s39, 4096")
        for T in range(4):
            for e in range(4):
                A(f"buffer_load_dwordx4 {self.v4(VB+16*T+4*e)}, v2, s[8:11], s35 offen offset:{256*e}{nt}")
            if T < 3: A("s_add_u32 s35, s35, 4096")
        self.stamp(2)
        A("v_and_b32 v5, 3, v0"); A(f"v_mul_u32_u24 v6, {QH}, v5"); A("v_lshl_add_u32 v6, v4, 4, v6")
        A("s_waitcnt lgkmcnt(0)")
        A("s_mul_i32 s34, s34, 1664525"); A("s_add_u32 s34, s34, 1013904223")
        A("s_barrier")
        self.stamp(3)
        for t in range(4):
            A(f"ds_read_b128 {self.v4(QB+4*t)}, v6 offset:{L_Q+64*t}")
        A("s_waitcnt vmcnt(16) lgkmcnt(0)")
        for t in range(4):
            for T in range(4):
                c = "0" if t == 0 else self.v4(SB+4*T)
                A(f"v_mfma_f32_16x16x32_bf16 {self.v4(SB+4*T)}, {self.v4(KB+16*T+4*t)}, {self.v4(QB+4*t)}, {c}")
        A(f"s_mov_b32 s40, {SCALE}"); A(f"s_mov_b32 s41, {LOG2E}")
        A("v_lshlrev_b32 v5, 5, v5"); A("s_lshl_b32 s3, s33, 2"); A("s_sub_u32 s3, s3, 16"); A("v_add_u32 v7, s3, v5")
        self.nop(2)
        for i in range(8):
            A(f"v_cvt_pk_bf16_f32 v{QB+i}, v{SB+2*i}, v{SB+2*i+1}")
        for i in range(8):
            A(f"v_lshlrev_b32 v{SB+2*i}, 16, v{QB+i}"); A(f"v_and_b32 v{SB+2*i+1}, 0xffff0000, v{QB+i}")
        for i in range(8):
            A(f"v_pk_mul_f32 v[{SB+2*i}:{SB+2*i+1}], v[{SB+2*i}:{SB+2*i+1}], s[40:41] op_sel_hi:[1,0]")
        for i in range(8):
            A(f"v_cvt_pk_bf16_f32 v{QB+i}, v{SB+2*i}, v{SB+2*i+1}")
        for i in range(8):
            A(f"v_lshlrev_b32 v{SB+2*i}, 16, v{QB+i}"); A(f"v_and_b32 v{SB+2*i+1}, 0xffff0000, v{QB+i}")
        A(f"v_max3_f32 v1, v{SB}, v{SB+1}, v{SB+2}")
        A(f"v_max3_f32 v2, v{SB+3}, v{SB+4}, v{SB+5}")
        A(f"v_max3_f32 v1, v1, v{SB+6}, v{SB+7}")
        A(f"v_max3_f32 v2, v2, v{SB+8}, v{SB+9}")
        A(f"v_max3_f32 v1, v1, v{SB+10}, v{SB+11}")
        A(f"v_max3_f32 v2, v2, v{SB+12}, v{SB+13}")
        A(f"v_max3_f32 v1, v1, v{SB+14}, v{SB+15}")
        A("v_max_f32 v1, v1, v2")
        self.allred_rows("v_max_f32", 1, 2)
        A("s_mov_b64 exec, 15")
        A(f"ds_write_b32 v7, v1 offset:{L_M}")
        A("s_mov_b64 exec, -1")
        A("s_waitcnt lgkmcnt(0)")
        A("s_barrier")
        self.stamp(4)
        A(f"ds_read_b128 {self.v4(QB)}, v5 offset:{L_M}")
        A(f"ds_read_b128 {self.v4(QB+4)}, v5 offset:{L_M+16}")
        A("s_waitcnt lgkmcnt(0)")
        A(f"v_max3_f32 v1, v{QB}, v{QB+1}, v{QB+2}")
        A(f"v_max3_f32 v2, v{QB+3}, v{QB+4}, v{QB+5}")
        A(f"v_max3_f32 v1, v1, v{QB+6}, v{QB+7}")
        A("v_max_f32 v1, v1, v2")
        A("v_mul_f32 v1, s41, v1")
        for i in range(16):
            A(f"v_fma_f32 v{SB+i}, v{SB+i}, s41, -v1")
        for i in range(16):
            A(f"v_exp_f32 v{SB+i}, v{SB+i}")
        self.nop(1)
        for i in range(8):
            A(f"v_cvt_pk_bf16_f32 v{QB+i}, v{SB+2*i}, v{SB+2*i+1}")
        for i in range(4):
            A(f"v_pk_add_f32 v[{SB+2*i}:{SB+2*i+1}], v[{SB+2*i}:{SB+2*i+1}], v[{SB+8+2*i}:{SB+9+2*i}]")
        for i in range(2):
            A(f"v_pk_add_f32 v[{SB+2*i}:{SB+2*i+1}], v[{SB+2*i}:{SB+2*i+1}], v[{SB+4+2*i}:{SB+5+2*i}]")
        A(f"v_pk_add_f32 v[{SB}:{SB+1}], v[{SB}:{SB+1}], v[{SB+2}:{SB+3}]")
        A(f"v_add_f32 v2, v{SB}, v{SB+1}")
        self.allred_rows("v_add_f32", 2, SB)
        A("s_mov_b64 exec, 15")
        A(f"ds_write_b32 v7, v2 offset:{L_L}")
        A("s_mov_b64 exec, -1")
        OB, P0, P1 = 8, 40, 72
        A("v_and_b32 v5, 3, v0"); A("v_mul_u32_u24 v6, 528, v5"); A("v_lshl_add_u32 v6, v4, 7, v6")
        A("s_mul_i32 s3, s33, 2112"); A(f"s_add_u32 s3, s3, {L_O - 4*2112}"); A("v_add_u32 v6, s3, v6")
        A("s_waitcnt vmcnt(8)")
        self.perms(P0, VB)
        self.nop(2)
        for j in range(8):
            A(f"v_mfma_f32_16x16x32_bf16 {self.v4(OB+4*j)}, {self.v4(P0+4*j)}, {self.v4(QB)}, 0")
        self.stamp(5)
        for q in range(4):
            A(f"s_waitcnt vmcnt({6-2*q})")
            self.perms(P1, VB+32, pairs=(q,))
        self.stamp(6)
        for j in range(8):
            A(f"v_mfma_f32_16x16x32_bf16 {self.v4(OB+4*j)}, {self.v4(P1+4*j)}, {self.v4(QB+4)}, {self.v4(OB+4*j)}")
        A("s_mov_b32 s42, 0x000f000f"); A("s_mov_b32 s43, 0x000f000f")
        A("s_mov_b64 exec, s[42:43]")
        for j in range(8):
            if j == 0: self.nop(0)
            A(f"ds_write_b128 v6, {self.v4(OB+4*j)} offset:{16*j}")
            if j < 7: self.nop(0)
            if j == 3: self.nop(0)
        A("s_mov_b64 exec, -1")
        A("s_waitcnt lgkmcnt(0)")
        A("s_barrier")
        self.stamp(7)
        A("s_cmp_ge_u32 s33, 8"); A("s_cbranch_scc1 L_S_exit")
        A("s_mul_i32 s3, s33, 528"); A(f"s_add_u32 s3, s3, {L_O - 4*528}")
        A("v_lshl_add_u32 v6, v0, 3, s3")
        A("s_lshl_b32 s3, s33, 5"); A("s_sub_u32 s3, s3, 128"); A("v_mov_b32 v7, s3")
        for w in range(8):
            A(f"ds_read_b64 v[{8+2*w}:{9+2*w}], v6 offset:{2112*w}")
        A(f"ds_read_b128 v[24:27], v7 offset:{L_L}")
        A(f"ds_read_b128 v[28:31], v7 offset:{L_L+16}")
        A("s_lshl_b32 s3, s29, 3"); A("s_add_u32 s3, s3, s28"); A("s_lshl_b32 s3, s3, 2"); A("s_add_u32 s3, s3, s33"); A("s_sub_u32 s3, s3, 4")
        A("s_lshl_b32 s3, s3, 2"); A("s_add_u32 s3, s3, s32"); A("s_lshl_b32 s3, s3, 2"); A("s_add_u32 s3, s3, s31")
        A("s_lshl_b32 s39, s3, 9"); A(f"s_add_u32 s39, s39, {OP}")
        A("s_lshl_b32 s35, s3, 4"); A(f"s_add_u32 s35, s35, {SP}")
        A("v_lshlrev_b32 v6, 3, v0")
        A("v_mov_b32 v33, s34"); A("v_mov_b32 v35, s34")
        A("s_sub_u32 s3, s33, 4"); self.nop(1)
        A("v_readlane_b32 s44, v1, s3")
        A("s_waitcnt lgkmcnt(0)")
        for w in (0, 1, 2, 3):
            A(f"v_pk_add_f32 v[{8+2*w}:{9+2*w}], v[{8+2*w}:{9+2*w}], v[{16+2*w}:{17+2*w}]")
        A("v_pk_add_f32 v[8:9], v[8:9], v[12:13]"); A("v_pk_add_f32 v[10:11], v[10:11], v[14:15]")
        A("v_pk_add_f32 v[8:9], v[8:9], v[10:11]")
        A("v_pk_add_f32 v[24:25], v[24:25], v[28:29]")
        A("v_cvt_pk_bf16_f32 v32, v8, v9")
        A("v_pk_add_f32 v[26:27], v[26:27], v[30:31]")
        A(f"buffer_store_dwordx2 v[32:33], v6, s[12:15], s39 offen{pol}")
        A("v_pk_add_f32 v[24:25], v[24:25], v[26:27]")
        A("v_mov_b32 v36, s44"); A("v_mov_b32 v37, s34"); A("v_mov_b32 v39, s34")
        A("v_add_f32 v38, v24, v25")
        A("v_mov_b32 v7, 0")
        A("s_mov_b64 exec, 1")
        A(f"buffer_store_dwordx4 v[36:39], v7, s[12:15], s35 offen{pol}")
        self.lab("L_S_exit")
        self.stamp(8)
        self.stamp_out(12)
        A("s_endpgm")
        self.lab("L_C")
        WB, PB, DB, XB = 8, 40, 72, 104
        A("v_lshlrev_b32 v1, 2, v1"); A("v_mov_b32 v2, 0")
        A(f"ds_write_b32 v1, v2 offset:{L_F}")
        A("s_mul_i32 s3, s29, 40")
        A("s_load_dwordx2 s[16:17], s[0:1], s3 offset:24")
        A("s_load_dwordx2 s[20:21], s[0:1], s3 offset:32")
        A("s_load_dwordx2 s[24:25], s[0:1], 0")
        A("s_load_dwordx4 s[48:51], s[0:1], 80")
        A("s_mov_b32 s18, 0x400000"); A("s_mov_b32 s19, 0x20000")
        A("s_mov_b32 s22, 0x400000"); A("s_mov_b32 s23, 0x20000")
        A("s_mov_b32 s26, 4096"); A("s_mov_b32 s27, 0x20000")
        A("v_lshrrev_b32 v5, 2, v3")
        A("v_and_b32 v6, 3, v0")
        A("v_lshlrev_b32 v1, 18, v5"); A("v_lshl_add_u32 v1, v4, 16, v1"); A("v_lshl_add_u32 v1, v6, 4, v1")
        A("v_lshlrev_b32 v2, 10, v6"); A("v_lshl_add_u32 v2, v5, 6, v2"); A("v_lshl_add_u32 v2, v4, 4, v2")
        A("s_lshl_b32 s35, s33, 20"); A("s_lshl_b32 s3, s28, 10"); A("s_add_u32 s35, s35, s3")
        A("s_lshl_b32 s3, s30, 6"); A("s_add_u32 s35, s35, s3")
        A("s_lshl_b32 s39, s33, 8")
        A("s_waitcnt lgkmcnt(0)")
        A("s_barrier")
        self.stamp(1)
        A("s_load_dword s34, s[12:13], 0")
        for e in range(8):
            A(f"buffer_load_dwordx4 {self.v4(WB+4*e)}, v1, s[16:19], s35 offen{nt}")
            if e < 7: A("s_add_u32 s35, s35, 8192")
        A(f"buffer_load_dwordx4 {self.v4(XB)}, v2, s[24:27], s39 offen")
        A("s_mov_b32 s52, s48"); A("s_mov_b32 s53, s49"); A("s_mov_b32 s54, 1024"); A("s_mov_b32 s55, 0x20000")
        A("s_mov_b32 s56, s50"); A("s_mov_b32 s57, s51"); A("s_mov_b32 s58, 4096"); A("s_mov_b32 s59, 0x20000")
        A("s_lshl_b32 s45, s29, 1"); A("s_lshr_b32 s3, s28, 2"); A("s_add_u32 s45, s45, s3")
        A("s_lshl_b32 s3, s45, 10")
        A("v_lshlrev_b32 v7, 4, v0")
        A("buffer_load_dwordx4 v[112:115], v7, s[24:27], s3 offen")
        A("buffer_load_dwordx4 v[116:119], v7, s[52:55], 0 offen")
        A("s_mul_i32 s3, s33, 2112"); A(f"s_add_u32 s3, s3, {L_QP}")
        A("v_mul_u32_u24 v1, 528, v5"); A("v_lshl_add_u32 v1, v6, 7, v1"); A("v_add_u32 v1, s3, v1")
        A("v_cmp_eq_u32 s[46:47], v4, v5")
        A("s_waitcnt lgkmcnt(0)")
        A("s_mul_i32 s34, s34, 1664525"); A("s_add_u32 s34, s34, 1013904223")
        A("s_waitcnt vmcnt(2)")
        self.stamp(2)
        self.perms(PB, WB)
        self.nop(2)
        for j in range(8):
            A(f"v_mfma_f32_16x16x32_bf16 {self.v4(DB+4*j)}, {self.v4(PB+4*j)}, {self.v4(XB)}, 0")
        A("s_mov_b64 exec, s[46:47]")
        self.nop(8)
        for j in range(8):
            A(f"ds_write_b128 v1, {self.v4(DB+4*j)} offset:{16*j}")
        A("s_mov_b64 exec, -1")
        A("s_lshl_b32 s3, s33, 2"); A("v_mov_b32 v1, s3"); A("v_mov_b32 v2, 1")
        A("s_waitcnt lgkmcnt(0)")
        A(f"ds_write_b32 v1, v2 offset:{L_F}")
        A("s_cmp_eq_u32 s33, 1"); A("s_cbranch_scc1 L_C_qpoll")
        A("s_cmp_lg_u32 s33, 0"); A("s_cbranch_scc1 L_C_b1")
        A("v_mov_b32 v1, 0")
        A(f"s_mov_b32 s38, {self.spin}")
        self.lab("L_fl")
        A(f"ds_read_b128 v[8:11], v1 offset:{L_F}")
        A("s_waitcnt lgkmcnt(0)")
        A("v_and_b32 v12, v8, v9"); A("v_and_b32 v13, v10, v11"); A("v_and_b32 v12, v12, v13")
        A("v_cmp_ne_u32 vcc, 1, v12"); A("s_cmp_eq_u64 vcc, 0"); A("s_cbranch_scc1 L_fl_done")
        A("s_sub_u32 s38, s38, 1"); A("s_cmp_lg_u32 s38, 0"); A("s_cbranch_scc1 L_fl")
        self.lab("L_fl_done")
        A("v_lshlrev_b32 v1, 7, v4"); A("v_lshl_add_u32 v1, v6, 5, v1"); A("v_lshl_add_u32 v1, v5, 2, v1")
        A(f"v_add_u32 v1, {L_QP}, v1")
        for p in range(16):
            if p % 2 == 0:
                A(f"ds_read2_b32 v[{8+2*p}:{9+2*p}], v1 offset0:0 offset1:4")
            else:
                A(f"ds_read2_b32 v[{8+2*p}:{9+2*p}], v1 offset0:132 offset1:136")
                if p < 15: A("v_add_u32 v1, 1056, v1")
        A("s_lshl_b32 s3, s29, 5"); A("s_add_u32 s3, s3, s28"); A("s_lshl_b32 s3, s3, 11"); A("s_lshl_b32 s39, s30, 7")
        A("s_add_u32 s39, s39, s3"); A(f"s_add_u32 s39, s39, {QP}")
        A("v_lshlrev_b32 v2, 14, v4"); A("v_lshl_add_u32 v2, v3, 3, v2")
        A("v_mov_b32 v41, s34")
        A("s_waitcnt lgkmcnt(0)")
        st = 8
        while st >= 1:
            for p in range(st):
                A(f"v_pk_add_f32 v[{8+2*p}:{9+2*p}], v[{8+2*p}:{9+2*p}], v[{8+2*(p+st)}:{9+2*(p+st)}]")
            st //= 2
        A("v_cvt_pk_bf16_f32 v40, v8, v9")
        A(f"buffer_store_dwordx2 v[40:41], v2, s[12:15], s39 offen{pol}")
        self.stamp(3)
        A("s_waitcnt vmcnt(1)")
        for i in range(4):
            A(f"v_lshlrev_b32 v{8+2*i}, 16, v{112+i}"); A(f"v_and_b32 v{9+2*i}, 0xffff0000, v{112+i}")
            A(f"v_lshlrev_b32 v{16+2*i}, 16, v{116+i}"); A(f"v_and_b32 v{17+2*i}, 0xffff0000, v{116+i}")
        for i in range(4):
            A(f"v_pk_mul_f32 v[{8+2*i}:{9+2*i}], v[{8+2*i}:{9+2*i}], v[{16+2*i}:{17+2*i}]")
        for i in range(4):
            A(f"v_cvt_pk_bf16_f32 v{16+i}, v{8+2*i}, v{9+2*i}")
        for i in range(4):
            A(f"v_lshlrev_b32 v{8+2*i}, 16, v{16+i}"); A(f"v_and_b32 v{9+2*i}, 0xffff0000, v{16+i}")
        A("v_pk_add_f32 v[8:9], v[8:9], v[12:13]"); A("v_pk_add_f32 v[10:11], v[10:11], v[14:15]")
        A("v_pk_add_f32 v[8:9], v[8:9], v[10:11]"); A("v_add_f32 v8, v8, v9")
        for ror in (8, 4, 2, 1):
            self.nop(2); self.dpp("v_add_f32", 8, 8, 8, f"row_ror:{ror}")
        self.allred_rows("v_add_f32", 8, 9)
        A("v_cvt_pk_bf16_f32 v8, v8, v8"); A("v_lshlrev_b32 v8, 16, v8")
        A(f"v_mul_f32 v8, {0xbfb8aa3b}, v8"); A("v_exp_f32 v8, v8"); self.nop(1)
        A("v_add_f32 v8, 1.0, v8"); A("v_rcp_f32 v8, v8"); self.nop(1)
        A("v_cvt_pk_bf16_f32 v8, v8, v8"); A("v_lshlrev_b32 v8, 16, v8")
        A("v_sub_f32 v9, 1.0, v8"); A("v_cvt_pk_bf16_f32 v9, v9, v9"); A("v_lshlrev_b32 v9, 16, v9")
        A("v_cmp_gt_u32 vcc, 32, v0"); self.nop(2)
        A("v_cndmask_b32 v120, v9, v8, vcc")
        A("s_branch L_C_b1")
        self.lab("L_C_qpoll")
        A("s_lshl_b32 s3, s29, 2"); A("s_add_u32 s3, s3, s31"); A("s_lshl_b32 s3, s3, 3"); A("s_add_u32 s3, s3, s28")
        A("s_lshl_b32 s39, s3, 11"); A(f"s_add_u32 s39, s39, {QP}")
        A("v_lshlrev_b32 v2, 5, v0")
        self.poll("q", [f"buffer_load_dwordx4 v[8:11], v2, s[12:15], s39 offen{pol}",
                        f"buffer_load_dwordx4 v[12:15], v2, s[12:15], s39 offen offset:16{pol}"], [9, 11, 13, 15], 16)
        A("v_mov_b32 v9, v10"); A("v_mov_b32 v10, v12"); A("v_mov_b32 v11, v14")
        A(f"v_mul_u32_u24 v2, {QH}, v4"); A("v_lshl_add_u32 v2, v3, 4, v2")
        A(f"ds_write_b128 v2, v[8:11] offset:{L_Q}")
        self.stamp(3)
        self.lab("L_C_b1")
        A("v_lshlrev_b32 v1, 11, v4"); A("v_lshl_add_u32 v1, v3, 4, v1")
        A("s_lshl_b32 s44, s28, 2"); A("s_add_u32 s44, s44, s31")
        A("s_lshl_b32 s35, s44, 17"); A("s_lshl_b32 s3, s33, 15"); A("s_add_u32 s35, s35, s3")
        A("s_lshl_b32 s3, s32, 8"); A("s_add_u32 s35, s35, s3")
        A("s_waitcnt vmcnt(0) lgkmcnt(0)")
        A("s_barrier")
        A("s_barrier")
        self.stamp(4)
        for r in range(4):
            A(f"buffer_load_dwordx4 {self.v4(WB+4*r)}, v1, s[20:23], s35 offen{nt}")
            A(f"buffer_load_dwordx4 {self.v4(WB+4*(r+4))}, v1, s[20:23], s35 offen offset:1024{nt}")
            if r < 3: A("s_add_u32 s35, s35, 8192")
        A("s_lshl_b32 s3, s29, 5"); A("s_add_u32 s44, s44, s3")
        A("s_lshl_b32 s39, s44, 13"); A("s_lshl_b32 s3, s33, 7"); A("s_add_u32 s39, s39, s3"); A(f"s_add_u32 s39, s39, {OP}")
        A("s_lshl_b32 s35, s44, 8"); A(f"s_add_u32 s35, s35, {SP}")
        A("v_lshlrev_b32 v1, 9, v3"); A("v_lshl_add_u32 v1, v4, 5, v1")
        A("v_lshlrev_b32 v2, 4, v3")
        A("v_mul_u32_u24 v7, 528, v6"); A("v_lshl_add_u32 v7, v4, 7, v7")
        A("s_mul_i32 s3, s33, 2112"); A(f"s_add_u32 s3, s3, {L_R}"); A("v_add_u32 v7, s3, v7")
        A("s_barrier")
        self.stamp(5)
        A("s_waitcnt vmcnt(0)")
        self.perms(PB, WB)
        self.stamp(6)
        self.poll("o", [f"buffer_load_dwordx4 v[8:11], v1, s[12:15], s39 offen{pol}",
                        f"buffer_load_dwordx4 v[12:15], v1, s[12:15], s39 offen offset:16{pol}",
                        f"buffer_load_dwordx4 v[16:19], v2, s[12:15], s35 offen{pol}"], [9, 11, 13, 15, 17, 19], 20)
        self.stamp(7)
        self.dpp("v_max_f32", 20, 16, 16, "row_ror:4")
        A("v_lshlrev_b32 v24, 16, v8"); A("v_and_b32 v25, 0xffff0000, v8")
        self.dpp("v_max_f32", 20, 20, 20, "row_ror:8")
        A("v_lshlrev_b32 v26, 16, v10"); A("v_and_b32 v27, 0xffff0000, v10")
        A("v_sub_f32 v16, v16, v20")
        A("v_exp_f32 v16, v16")
        A("v_lshlrev_b32 v28, 16, v12"); A("v_and_b32 v29, 0xffff0000, v12")
        A("v_mul_f32 v18, v18, v16")
        A("v_lshlrev_b32 v30, 16, v14"); A("v_and_b32 v31, 0xffff0000, v14")
        self.dpp("v_add_f32", 18, 18, 18, "row_ror:4"); self.nop(2)
        self.dpp("v_add_f32", 18, 18, 18, "row_ror:8")
        A("v_rcp_f32 v18, v18"); self.nop(1)
        A("v_mul_f32 v16, v16, v18")
        for i in range(8): A(f"v_mul_f32 v{24+i}, v{24+i}, v16")
        for i in range(8): self.dpp("v_add_f32", 24+i, 24+i, 24+i, "row_ror:4")
        for i in range(8): self.dpp("v_add_f32", 24+i, 24+i, 24+i, "row_ror:8")
        for i in range(4): A(f"v_cvt_pk_bf16_f32 v{XB+i}, v{24+2*i}, v{25+2*i}")
        self.nop(2)
        for j in range(8):
            A(f"v_mfma_f32_16x16x32_bf16 {self.v4(DB+4*j)}, {self.v4(PB+4*j)}, {self.v4(XB)}, 0")
        A("s_mov_b32 s42, 0x000f000f"); A("s_mov_b32 s43, 0x000f000f")
        A("s_mov_b64 exec, s[42:43]")
        for j in range(8):
            A(f"ds_write_b128 v7, {self.v4(DB+4*j)} offset:{16*j}")
        A("s_mov_b64 exec, -1")
        A("v_lshlrev_b32 v1, 7, v4"); A("v_lshl_add_u32 v1, v6, 5, v1"); A("v_lshl_add_u32 v1, v5, 2, v1")
        A("s_mul_i32 s3, s33, 528"); A(f"s_add_u32 s3, s3, {L_R}"); A("v_add_u32 v1, s3, v1")
        A("v_add_u32 v2, 2112, v1"); A("v_add_u32 v8, 4224, v1"); A("v_add_u32 v9, 6336, v1")
        A("s_lshl_b32 s39, s32, 18"); A(f"s_add_u32 s39, s39, {FP}")
        A("s_lshl_b32 s3, s44, 12"); A("s_add_u32 s35, s39, s3"); A("s_lshl_b32 s3, s33, 10"); A("s_add_u32 s35, s35, s3")
        A("v_lshlrev_b32 v10, 4, v0")
        A("v_mov_b32 v21, s34"); A("v_mov_b32 v23, s34")
        A("s_waitcnt lgkmcnt(0)")
        A("s_barrier")
        A("ds_read2_b32 v[12:13], v1 offset0:0 offset1:4")
        A("ds_read2_b32 v[14:15], v2 offset0:0 offset1:4")
        A("ds_read2_b32 v[16:17], v8 offset0:0 offset1:4")
        A("ds_read2_b32 v[18:19], v9 offset0:0 offset1:4")
        A("s_waitcnt lgkmcnt(0)")
        A("v_pk_add_f32 v[12:13], v[12:13], v[14:15]"); A("v_pk_add_f32 v[16:17], v[16:17], v[18:19]")
        A("v_add_f32 v20, v12, v16"); A("v_add_f32 v22, v13, v17")
        A(f"buffer_store_dwordx4 v[20:23], v10, s[12:15], s35 offen{pol}")
        self.stamp(8)
        A("s_cmp_lg_u32 s33, 0"); A("s_cbranch_scc1 L_C_exit")
        A("v_lshrrev_b32 v1, 2, v0"); A("v_lshlrev_b32 v1, 12, v1"); A("v_lshl_add_u32 v1, v6, 4, v1")
        A("s_lshl_b32 s3, s44, 6"); A("s_add_u32 s39, s39, s3")
        A("s_add_u32 s40, s39, 0x10000"); A("s_add_u32 s41, s39, 0x20000"); A("s_add_u32 s42, s39, 0x30000")
        self.poll("f", [f"buffer_load_dwordx4 v[{24+4*i}:{27+4*i}], v1, s[12:15], s{39+i} offen{pol}" for i in range(4)],
                  [25, 27, 29, 31, 33, 35, 37, 39], 40)
        self.stamp(9)
        A("v_add_f32 v24, v24, v28"); A("v_add_f32 v26, v26, v30")
        A("v_add_f32 v32, v32, v36"); A("v_add_f32 v34, v34, v38")
        self.nop(1)
        A("v_permlane32_swap_b32 v24, v32"); A("v_permlane32_swap_b32 v26, v34"); self.nop(1)
        A("v_add_f32 v24, v24, v32"); A("v_add_f32 v26, v26, v34"); self.nop(2)
        A("v_permlane16_swap_b32 v24, v26"); self.nop(1)
        A("v_add_f32 v24, v24, v26"); self.nop(2)
        self.dpp("v_add_f32", 24, 24, 24, "row_ror:4"); self.nop(2)
        self.dpp("v_add_f32", 24, 24, 24, "row_ror:8")
        A("v_cvt_pk_bf16_f32 v24, v24, v24"); A("v_lshlrev_b32 v24, 16, v24")
        A("v_mul_f32 v24, v24, v120")
        A("v_cvt_pk_bf16_f32 v24, v24, v24"); A("v_lshlrev_b32 v24, 16, v24")
        A("v_mov_b32 v25, v24"); self.nop(2)
        A("v_permlane32_swap_b32 v24, v25"); self.nop(1)
        A("v_add_f32 v24, v24, v25")
        A("v_cvt_pk_bf16_f32 v24, v24, v24")
        A("s_lshl_b32 s3, s45, 10"); A("s_lshl_b32 s39, s32, 8"); A("s_add_u32 s3, s3, s39")
        A("s_and_b32 s39, s44, 15"); A("s_lshl_b32 s39, s39, 4"); A("s_add_u32 s3, s3, s39")
        A("v_lshlrev_b32 v1, 2, v6"); A("v_lshl_add_u32 v1, v4, 1, v1")
        A("s_mov_b64 exec, 0x000f000f")
        A("buffer_store_short v24, v1, s[56:59], s3 offen")
        if self.dbg:
            A("s_load_dwordx2 s[92:93], s[0:1], 96")
            A("s_waitcnt vmcnt(0)")
            A("s_memrealtime s[94:95]")
            A("s_waitcnt lgkmcnt(0)")
            A("s_mov_b64 exec, 1"); A("v_mov_b32 v1, 0")
            A("s_not_b32 s90, s90"); A("v_mov_b32 v2, s90"); A("v_mov_b32 v3, s94")
            A("global_atomic_umax v1, v2, s[92:93]")
            A("global_atomic_umax v1, v3, s[92:93] offset:4")
        A("s_cmp_lg_u32 s2, 0"); A("s_cbranch_scc1 L_C_exit")
        A("s_mov_b64 exec, 1"); A("v_mov_b32 v1, 0"); A("v_mov_b32 v2, s34")
        A("buffer_store_dword v2, v1, s[12:15], 0 offen")
        self.lab("L_C_exit")
        self.stamp(10)
        if self.stamps:
            A("s_waitcnt vmcnt(0)")
            self.stamp(11)
        self.stamp_out(12)
        self.lab("L_end")
        A("s_endpgm")
        L.append('.section .rodata,"a"'); L.append(".p2align 6"); L.append(f".amdhsa_kernel {KN}")
        L.append("  .amdhsa_next_free_vgpr 168"); L.append("  .amdhsa_next_free_sgpr 96"); L.append("  .amdhsa_accum_offset 168")
        L.append("  .amdhsa_group_segment_fixed_size 0"); L.append("  .amdhsa_kernarg_size 112"); L.append("  .amdhsa_user_sgpr_count 2")
        L.append("  .amdhsa_user_sgpr_kernarg_segment_ptr 1"); L.append("  .amdhsa_system_sgpr_workgroup_id_x 1")
        L.append("  .amdhsa_float_denorm_mode_32 3")
        L.append(".end_amdhsa_kernel")
        return "\n".join(L) + "\n"

if __name__ == "__main__":
    out = sys.argv[1]
    kw = {}
    for a in sys.argv[2:]:
        k, v = a.split("=")
        if k in ("stamps", "nt", "dbg"): v = bool(int(v))
        elif k == "spin": v = int(v)
        elif k == "pol": v = v.replace("+", " ")
        kw[k] = v
    open(out, "w").write(G(**kw).gen())
```

```python
import sys
KN = "gated_mix__sliding_block_cached__sliding_block_cached__decode_kernel"
HDR = open("gated_mix__sliding_block_cached__sliding_block_cached__decode.s.ref").read().split("; Override launch")[0]

QP = 0x10000
OP = 0x40000
SP = 0xC0000
FP = 0x100000
WS_BYTES = 0x200000
STAMP_OFF = 0x4000000
L_Q = 0
QH = 272
L_M = 1280
L_L = 1408
L_F = 1536
L_QP = 2048
L_O = 10752
L_R = 27648
LDS_BYTES = 36096
LOG2E = 0x3fb8aa3b
SCALE = 0x3db504f3

class G:
    def __init__(self, padk=-1, pad=0, dbg=False, stamps=False, nt=True, pol="sc1", spin=1 << 20):
        self.L = []
        self.stamps = stamps
        self.dbg = dbg
        self.pad = pad
        self.padk = padk
        self.nt = " nt" if nt else ""
        self.pol = " " + pol
        self.spin = spin
        self.nlab = 0
    def A(self, s): self.L.append("    " + s)
    def lab(self, s): self.L.append(s + ":")
    def nop(self, n):
        while n > 0:
            k = min(n, 16); self.A(f"s_nop {k-1}"); n -= k
    def stamp(self, i):
        if self.padk == i: self.A("s_memrealtime s[92:93]")
        if self.stamps: self.A(f"s_memrealtime s[{64+2*i}:{65+2*i}]")
    def stamp_out(self, ns):
        if not self.stamps: return
        A = self.A
        A("s_waitcnt lgkmcnt(0)")
        A("s_mul_i32 s60, s2, 12"); A("s_add_u32 s60, s60, s33"); A(f"s_mul_i32 s60, s60, {ns*8}")
        A(f"s_add_u32 s60, s60, {STAMP_OFF}")
        A("s_add_u32 s62, s12, s60"); A("s_addc_u32 s63, s13, 0")
        A("s_mov_b64 exec, 1"); A("v_mov_b32 v4, 0")
        for i in range(ns):
            A(f"v_mov_b32 v2, s{64+2*i}"); A(f"v_mov_b32 v3, s{65+2*i}")
            A(f"global_store_dwordx2 v4, v[2:3], s[62:63] offset:{i*8}"); A("s_nop 1")
    def v4(self, r): return f"v[{r}:{r+3}]"
    def perms(self, dst, src, pairs=(0, 1, 2, 3)):
        for q in pairs:
            for w in range(4):
                for hh in range(2):
                    j = 2*w + hh
                    self.A(f"v_perm_b32 v{dst+4*j+q}, v{src+4*(2*q+1)+w}, v{src+4*(2*q)+w}, s{36+hh}")
    def allred_rows(self, op, v, t):
        A = self.A
        A(f"v_mov_b32 v{t}, v{v}"); self.nop(2)
        A(f"v_permlane32_swap_b32 v{v}, v{t}"); self.nop(1)
        A(f"{op} v{v}, v{v}, v{t}")
        A(f"v_mov_b32 v{t}, v{v}"); self.nop(2)
        A(f"v_permlane16_swap_b32 v{v}, v{t}"); self.nop(1)
        A(f"{op} v{v}, v{v}, v{t}")
    def dpp(self, op, d, a, b, ctl):
        self.A(f"{op}_dpp v{d}, v{a}, v{b} {ctl} row_mask:0xf bank_mask:0xf")
    def poll(self, name, loads, tagregs, acc):
        A = self.A
        A(f"s_mov_b32 s38, {self.spin}")
        self.lab(f"L_poll_{name}")
        for l in loads: A(l)
        A("s_waitcnt vmcnt(0)")
        A(f"v_xor_b32 v{acc}, s34, v{tagregs[0]}")
        for r in tagregs[1:]:
            A(f"v_bitop3_b32 v{acc}, v{r}, s34, v{acc} bitop3:0xbe")
        A(f"v_cmp_ne_u32 vcc, 0, v{acc}")
        A("s_cmp_eq_u64 vcc, 0")
        A(f"s_cbranch_scc1 L_done_{name}")
        A("s_sleep 1")
        A("s_sub_u32 s38, s38, 1")
        A("s_cmp_lg_u32 s38, 0")
        A(f"s_cbranch_scc1 L_poll_{name}")
        self.lab(f"L_done_{name}")

    def gen(self):
        A = self.A; nt = self.nt; pol = self.pol
        L = self.L
        L.append(HDR.rstrip("\n"))
        L.append(f"; @launch grid=(256,1,1) block=(768,1,1) lds={LDS_BYTES}")
        L.append('.amdgcn_target "amdgcn-amd-amdhsa--gfx950"')
        L.append(".text"); L.append(f".globl {KN}"); L.append(".p2align 8"); L.append(f".type {KN},@function"); L.append(f"{KN}:")
        self.stamp(0)
        if self.dbg or self.pad: A("s_memrealtime s[90:91]")
        if self.stamps:
            for i in range(1, 12): A(f"s_mov_b64 s[{64+2*i}:{65+2*i}], 0")
        A("s_cmp_ge_u32 s2, 256"); A("s_cbranch_scc1 L_end")
        A("s_bfe_u32 s29, s2, 0x10002")
        A("s_mul_i32 s3, s29, 40")
        A("s_load_dwordx2 s[4:5], s[0:1], s3 offset:8")
        A("s_load_dwordx2 s[8:9], s[0:1], s3 offset:16")
        A("s_load_dwordx2 s[12:13], s[0:1], 104")
        A("v_lshrrev_b32 v1, 6, v0")
        A("s_lshr_b32 s30, s2, 3")
        A("v_readfirstlane_b32 s33, v1")
        A("s_and_b32 s28, s2, 3"); A("s_lshl_b32 s28, s28, 1"); A("s_lshr_b32 s31, s30, 4"); A("s_or_b32 s28, s28, s31")
        A("s_and_b32 s30, s30, 15"); A("s_lshr_b32 s31, s30, 2"); A("s_and_b32 s32, s30, 3")
        A("s_mov_b32 s6, 0x4000000"); A("s_mov_b32 s7, 0x20000")
        A("s_mov_b32 s10, 0x4000000"); A("s_mov_b32 s11, 0x20000")
        A(f"s_mov_b32 s14, {WS_BYTES}"); A("s_mov_b32 s15, 0x20000")
        A("s_mov_b32 s36, 0x05040100"); A("s_mov_b32 s37, 0x07060302")
        A("v_and_b32 v0, 63, v0")
        A("v_and_b32 v3, 15, v0")
        A("v_lshrrev_b32 v4, 4, v0")
        A("s_cmp_lt_u32 s33, 4"); A("s_cbranch_scc1 L_C")
        KB, VB, QB, SB = 8, 72, 136, 152
        A("s_lshl_b32 s35, s31, 3"); A("s_add_u32 s35, s35, s28"); A("s_lshl_b32 s35, s35, 21")
        A("s_lshl_b32 s3, s32, 17"); A("s_add_u32 s35, s35, s3")
        A("s_lshl_b32 s3, s33, 14"); A("s_add_u32 s35, s35, s3")
        A(f"s_add_u32 s35, s35, {0x180000 - 4*16384}")
        A("v_lshlrev_b32 v1, 8, v3"); A("v_lshl_add_u32 v1, v4, 4, v1")
        A("v_lshlrev_b32 v2, 4, v3"); A("v_lshl_add_u32 v2, v4, 10, v2")
        A("s_barrier")
        A("s_waitcnt lgkmcnt(0)")
        self.stamp(1)
        A("s_load_dword s34, s[12:13], 0")
        A("s_mov_b32 s39, s35")
        for T in range(4):
            for t in range(4):
                A(f"buffer_load_dwordx4 {self.v4(KB+16*T+4*t)}, v1, s[4:7], s39 offen offset:{64*t}{nt}")
            if T < 3: A("s_add_u32 s39, s39, 4096")
        for T in range(4):
            for e in range(4):
                A(f"buffer_load_dwordx4 {self.v4(VB+16*T+4*e)}, v2, s[8:11], s35 offen offset:{256*e}{nt}")
            if T < 3: A("s_add_u32 s35, s35, 4096")
        self.stamp(2)
        A("v_and_b32 v5, 3, v0"); A(f"v_mul_u32_u24 v6, {QH}, v5"); A("v_lshl_add_u32 v6, v4, 4, v6")
        A("s_waitcnt lgkmcnt(0)")
        A("s_mul_i32 s34, s34, 1664525"); A("s_add_u32 s34, s34, 1013904223")
        A("s_barrier")
        self.stamp(3)
        for t in range(4):
            A(f"ds_read_b128 {self.v4(QB+4*t)}, v6 offset:{L_Q+64*t}")
        A("s_waitcnt vmcnt(16) lgkmcnt(0)")
        for t in range(4):
            for T in range(4):
                c = "0" if t == 0 else self.v4(SB+4*T)
                A(f"v_mfma_f32_16x16x32_bf16 {self.v4(SB+4*T)}, {self.v4(KB+16*T+4*t)}, {self.v4(QB+4*t)}, {c}")
        A(f"s_mov_b32 s40, {SCALE}"); A(f"s_mov_b32 s41, {LOG2E}")
        A("v_lshlrev_b32 v5, 5, v5"); A("s_lshl_b32 s3, s33, 2"); A("s_sub_u32 s3, s3, 16"); A("v_add_u32 v7, s3, v5")
        self.nop(2)
        for i in range(8):
            A(f"v_cvt_pk_bf16_f32 v{QB+i}, v{SB+2*i}, v{SB+2*i+1}")
        for i in range(8):
            A(f"v_lshlrev_b32 v{SB+2*i}, 16, v{QB+i}"); A(f"v_and_b32 v{SB+2*i+1}, 0xffff0000, v{QB+i}")
        for i in range(8):
            A(f"v_pk_mul_f32 v[{SB+2*i}:{SB+2*i+1}], v[{SB+2*i}:{SB+2*i+1}], s[40:41] op_sel_hi:[1,0]")
        for i in range(8):
            A(f"v_cvt_pk_bf16_f32 v{QB+i}, v{SB+2*i}, v{SB+2*i+1}")
        for i in range(8):
            A(f"v_lshlrev_b32 v{SB+2*i}, 16, v{QB+i}"); A(f"v_and_b32 v{SB+2*i+1}, 0xffff0000, v{QB+i}")
        A(f"v_max3_f32 v1, v{SB}, v{SB+1}, v{SB+2}")
        A(f"v_max3_f32 v2, v{SB+3}, v{SB+4}, v{SB+5}")
        A(f"v_max3_f32 v1, v1, v{SB+6}, v{SB+7}")
        A(f"v_max3_f32 v2, v2, v{SB+8}, v{SB+9}")
        A(f"v_max3_f32 v1, v1, v{SB+10}, v{SB+11}")
        A(f"v_max3_f32 v2, v2, v{SB+12}, v{SB+13}")
        A(f"v_max3_f32 v1, v1, v{SB+14}, v{SB+15}")
        A("v_max_f32 v1, v1, v2")
        self.allred_rows("v_max_f32", 1, 2)
        A("s_mov_b64 exec, 15")
        A(f"ds_write_b32 v7, v1 offset:{L_M}")
        A("s_mov_b64 exec, -1")
        A("s_waitcnt lgkmcnt(0)")
        A("s_barrier")
        self.stamp(4)
        A(f"ds_read_b128 {self.v4(QB)}, v5 offset:{L_M}")
        A(f"ds_read_b128 {self.v4(QB+4)}, v5 offset:{L_M+16}")
        A("s_waitcnt lgkmcnt(0)")
        A(f"v_max3_f32 v1, v{QB}, v{QB+1}, v{QB+2}")
        A(f"v_max3_f32 v2, v{QB+3}, v{QB+4}, v{QB+5}")
        A(f"v_max3_f32 v1, v1, v{QB+6}, v{QB+7}")
        A("v_max_f32 v1, v1, v2")
        A("v_mul_f32 v1, s41, v1")
        for i in range(16):
            A(f"v_fma_f32 v{SB+i}, v{SB+i}, s41, -v1")
        for i in range(16):
            A(f"v_exp_f32 v{SB+i}, v{SB+i}")
        self.nop(1)
        for i in range(8):
            A(f"v_cvt_pk_bf16_f32 v{QB+i}, v{SB+2*i}, v{SB+2*i+1}")
        for i in range(4):
            A(f"v_pk_add_f32 v[{SB+2*i}:{SB+2*i+1}], v[{SB+2*i}:{SB+2*i+1}], v[{SB+8+2*i}:{SB+9+2*i}]")
        for i in range(2):
            A(f"v_pk_add_f32 v[{SB+2*i}:{SB+2*i+1}], v[{SB+2*i}:{SB+2*i+1}], v[{SB+4+2*i}:{SB+5+2*i}]")
        A(f"v_pk_add_f32 v[{SB}:{SB+1}], v[{SB}:{SB+1}], v[{SB+2}:{SB+3}]")
        A(f"v_add_f32 v2, v{SB}, v{SB+1}")
        self.allred_rows("v_add_f32", 2, SB)
        A("s_mov_b64 exec, 15")
        A(f"ds_write_b32 v7, v2 offset:{L_L}")
        A("s_mov_b64 exec, -1")
        OB, P0, P1 = 8, 40, 72
        A("v_and_b32 v5, 3, v0"); A("v_mul_u32_u24 v6, 528, v5"); A("v_lshl_add_u32 v6, v4, 7, v6")
        A("s_mul_i32 s3, s33, 2112"); A(f"s_add_u32 s3, s3, {L_O - 4*2112}"); A("v_add_u32 v6, s3, v6")
        A("s_waitcnt vmcnt(8)")
        self.perms(P0, VB)
        self.nop(2)
        for j in range(8):
            A(f"v_mfma_f32_16x16x32_bf16 {self.v4(OB+4*j)}, {self.v4(P0+4*j)}, {self.v4(QB)}, 0")
        self.stamp(5)
        for q in range(4):
            A(f"s_waitcnt vmcnt({6-2*q})")
            self.perms(P1, VB+32, pairs=(q,))
        self.stamp(6)
        for j in range(8):
            A(f"v_mfma_f32_16x16x32_bf16 {self.v4(OB+4*j)}, {self.v4(P1+4*j)}, {self.v4(QB+4)}, {self.v4(OB+4*j)}")
        A("s_mov_b32 s42, 0x000f000f"); A("s_mov_b32 s43, 0x000f000f")
        A("s_mov_b64 exec, s[42:43]")
        for j in range(8):
            if j == 0: self.nop(0)
            A(f"ds_write_b128 v6, {self.v4(OB+4*j)} offset:{16*j}")
            if j < 7: self.nop(0)
            if j == 3: self.nop(0)
        A("s_mov_b64 exec, -1")
        A("s_waitcnt lgkmcnt(0)")
        A("s_barrier")
        self.stamp(7)
        A("s_cmp_ge_u32 s33, 8"); A("s_cbranch_scc1 L_S_exit")
        A("s_mul_i32 s3, s33, 528"); A(f"s_add_u32 s3, s3, {L_O - 4*528}")
        A("v_lshl_add_u32 v6, v0, 3, s3")
        A("s_lshl_b32 s3, s33, 5"); A("s_sub_u32 s3, s3, 128"); A("v_mov_b32 v7, s3")
        for w in range(8):
            A(f"ds_read_b64 v[{8+2*w}:{9+2*w}], v6 offset:{2112*w}")
        A(f"ds_read_b128 v[24:27], v7 offset:{L_L}")
        A(f"ds_read_b128 v[28:31], v7 offset:{L_L+16}")
        A("s_lshl_b32 s3, s29, 3"); A("s_add_u32 s3, s3, s28"); A("s_lshl_b32 s3, s3, 2"); A("s_add_u32 s3, s3, s33"); A("s_sub_u32 s3, s3, 4")
        A("s_lshl_b32 s3, s3, 2"); A("s_add_u32 s3, s3, s32"); A("s_lshl_b32 s3, s3, 2"); A("s_add_u32 s3, s3, s31")
        A("s_lshl_b32 s39, s3, 9"); A(f"s_add_u32 s39, s39, {OP}")
        A("s_lshl_b32 s35, s3, 4"); A(f"s_add_u32 s35, s35, {SP}")
        A("v_lshlrev_b32 v6, 3, v0")
        A("v_mov_b32 v33, s34"); A("v_mov_b32 v35, s34")
        A("s_sub_u32 s3, s33, 4"); self.nop(1)
        A("v_readlane_b32 s44, v1, s3")
        A("s_waitcnt lgkmcnt(0)")
        for w in (0, 1, 2, 3):
            A(f"v_pk_add_f32 v[{8+2*w}:{9+2*w}], v[{8+2*w}:{9+2*w}], v[{16+2*w}:{17+2*w}]")
        A("v_pk_add_f32 v[8:9], v[8:9], v[12:13]"); A("v_pk_add_f32 v[10:11], v[10:11], v[14:15]")
        A("v_pk_add_f32 v[8:9], v[8:9], v[10:11]")
        A("v_pk_add_f32 v[24:25], v[24:25], v[28:29]")
        A("v_cvt_pk_bf16_f32 v32, v8, v9")
        A("v_pk_add_f32 v[26:27], v[26:27], v[30:31]")
        A(f"buffer_store_dwordx2 v[32:33], v6, s[12:15], s39 offen{pol}")
        A("v_pk_add_f32 v[24:25], v[24:25], v[26:27]")
        A("v_mov_b32 v36, s44"); A("v_mov_b32 v37, s34"); A("v_mov_b32 v39, s34")
        A("v_add_f32 v38, v24, v25")
        A("v_mov_b32 v7, 0")
        A("s_mov_b64 exec, 1")
        A(f"buffer_store_dwordx4 v[36:39], v7, s[12:15], s35 offen{pol}")
        self.lab("L_S_exit")
        self.stamp(8)
        self.stamp_out(12)
        A("s_endpgm")
        self.lab("L_C")
        WB, PB, DB, XB = 8, 40, 72, 104
        A("v_lshlrev_b32 v1, 2, v1"); A("v_mov_b32 v2, 0")
        A(f"ds_write_b32 v1, v2 offset:{L_F}")
        A("s_mul_i32 s3, s29, 40")
        A("s_load_dwordx2 s[16:17], s[0:1], s3 offset:24")
        A("s_load_dwordx2 s[20:21], s[0:1], s3 offset:32")
        A("s_load_dwordx2 s[24:25], s[0:1], 0")
        A("s_load_dwordx4 s[48:51], s[0:1], 80")
        A("s_mov_b32 s18, 0x400000"); A("s_mov_b32 s19, 0x20000")
        A("s_mov_b32 s22, 0x400000"); A("s_mov_b32 s23, 0x20000")
        A("s_mov_b32 s26, 4096"); A("s_mov_b32 s27, 0x20000")
        A("v_lshrrev_b32 v5, 2, v3")
        A("v_and_b32 v6, 3, v0")
        A("v_lshlrev_b32 v1, 18, v5"); A("v_lshl_add_u32 v1, v4, 16, v1"); A("v_lshl_add_u32 v1, v6, 4, v1")
        A("v_lshlrev_b32 v2, 10, v6"); A("v_lshl_add_u32 v2, v5, 6, v2"); A("v_lshl_add_u32 v2, v4, 4, v2")
        A("s_lshl_b32 s35, s33, 20"); A("s_lshl_b32 s3, s28, 10"); A("s_add_u32 s35, s35, s3")
        A("s_lshl_b32 s3, s30, 6"); A("s_add_u32 s35, s35, s3")
        A("s_lshl_b32 s39, s33, 8")
        A("s_waitcnt lgkmcnt(0)")
        A("s_barrier")
        self.stamp(1)
        A("s_load_dword s34, s[12:13], 0")
        for e in range(8):
            A(f"buffer_load_dwordx4 {self.v4(WB+4*e)}, v1, s[16:19], s35 offen{nt}")
            if e < 7: A("s_add_u32 s35, s35, 8192")
        A(f"buffer_load_dwordx4 {self.v4(XB)}, v2, s[24:27], s39 offen")
        A("s_mov_b32 s52, s48"); A("s_mov_b32 s53, s49"); A("s_mov_b32 s54, 1024"); A("s_mov_b32 s55, 0x20000")
        A("s_mov_b32 s56, s50"); A("s_mov_b32 s57, s51"); A("s_mov_b32 s58, 4096"); A("s_mov_b32 s59, 0x20000")
        A("s_lshl_b32 s45, s29, 1"); A("s_lshr_b32 s3, s28, 2"); A("s_add_u32 s45, s45, s3")
        A("s_lshl_b32 s3, s45, 10")
        A("v_lshlrev_b32 v7, 4, v0")
        A("buffer_load_dwordx4 v[112:115], v7, s[24:27], s3 offen")
        A("buffer_load_dwordx4 v[116:119], v7, s[52:55], 0 offen")
        A("s_mul_i32 s3, s33, 2112"); A(f"s_add_u32 s3, s3, {L_QP}")
        A("v_mul_u32_u24 v1, 528, v5"); A("v_lshl_add_u32 v1, v6, 7, v1"); A("v_add_u32 v1, s3, v1")
        A("v_cmp_eq_u32 s[46:47], v4, v5")
        A("s_waitcnt lgkmcnt(0)")
        A("s_mul_i32 s34, s34, 1664525"); A("s_add_u32 s34, s34, 1013904223")
        A("s_waitcnt vmcnt(2)")
        self.stamp(2)
        self.perms(PB, WB)
        self.nop(2)
        for j in range(8):
            A(f"v_mfma_f32_16x16x32_bf16 {self.v4(DB+4*j)}, {self.v4(PB+4*j)}, {self.v4(XB)}, 0")
        A("s_mov_b64 exec, s[46:47]")
        self.nop(8)
        for j in range(8):
            A(f"ds_write_b128 v1, {self.v4(DB+4*j)} offset:{16*j}")
        A("s_mov_b64 exec, -1")
        A("s_lshl_b32 s3, s33, 2"); A("v_mov_b32 v1, s3"); A("v_mov_b32 v2, 1")
        A("s_waitcnt lgkmcnt(0)")
        A(f"ds_write_b32 v1, v2 offset:{L_F}")
        A("s_cmp_eq_u32 s33, 1"); A("s_cbranch_scc1 L_C_qpoll")
        A("s_cmp_lg_u32 s33, 0"); A("s_cbranch_scc1 L_C_b1")
        A("v_mov_b32 v1, 0")
        A(f"s_mov_b32 s38, {self.spin}")
        self.lab("L_fl")
        A(f"ds_read_b128 v[8:11], v1 offset:{L_F}")
        A("s_waitcnt lgkmcnt(0)")
        A("v_and_b32 v12, v8, v9"); A("v_and_b32 v13, v10, v11"); A("v_and_b32 v12, v12, v13")
        A("v_cmp_ne_u32 vcc, 1, v12"); A("s_cmp_eq_u64 vcc, 0"); A("s_cbranch_scc1 L_fl_done")
        A("s_sub_u32 s38, s38, 1"); A("s_cmp_lg_u32 s38, 0"); A("s_cbranch_scc1 L_fl")
        self.lab("L_fl_done")
        A("v_lshlrev_b32 v1, 7, v4"); A("v_lshl_add_u32 v1, v6, 5, v1"); A("v_lshl_add_u32 v1, v5, 2, v1")
        A(f"v_add_u32 v1, {L_QP}, v1")
        for p in range(16):
            if p % 2 == 0:
                A(f"ds_read2_b32 v[{8+2*p}:{9+2*p}], v1 offset0:0 offset1:4")
            else:
                A(f"ds_read2_b32 v[{8+2*p}:{9+2*p}], v1 offset0:132 offset1:136")
                if p < 15: A("v_add_u32 v1, 1056, v1")
        A("s_lshl_b32 s3, s29, 5"); A("s_add_u32 s3, s3, s28"); A("s_lshl_b32 s3, s3, 11"); A("s_lshl_b32 s39, s30, 7")
        A("s_add_u32 s39, s39, s3"); A(f"s_add_u32 s39, s39, {QP}")
        A("v_lshlrev_b32 v2, 14, v4"); A("v_lshl_add_u32 v2, v3, 3, v2")
        A("v_mov_b32 v41, s34")
        A("s_waitcnt lgkmcnt(0)")
        st = 8
        while st >= 1:
            for p in range(st):
                A(f"v_pk_add_f32 v[{8+2*p}:{9+2*p}], v[{8+2*p}:{9+2*p}], v[{8+2*(p+st)}:{9+2*(p+st)}]")
            st //= 2
        A("v_cvt_pk_bf16_f32 v40, v8, v9")
        A(f"buffer_store_dwordx2 v[40:41], v2, s[12:15], s39 offen{pol}")
        self.stamp(3)
        A("s_waitcnt vmcnt(1)")
        for i in range(4):
            A(f"v_lshlrev_b32 v{8+2*i}, 16, v{112+i}"); A(f"v_and_b32 v{9+2*i}, 0xffff0000, v{112+i}")
            A(f"v_lshlrev_b32 v{16+2*i}, 16, v{116+i}"); A(f"v_and_b32 v{17+2*i}, 0xffff0000, v{116+i}")
        for i in range(4):
            A(f"v_pk_mul_f32 v[{8+2*i}:{9+2*i}], v[{8+2*i}:{9+2*i}], v[{16+2*i}:{17+2*i}]")
        for i in range(4):
            A(f"v_cvt_pk_bf16_f32 v{16+i}, v{8+2*i}, v{9+2*i}")
        for i in range(4):
            A(f"v_lshlrev_b32 v{8+2*i}, 16, v{16+i}"); A(f"v_and_b32 v{9+2*i}, 0xffff0000, v{16+i}")
        A("v_pk_add_f32 v[8:9], v[8:9], v[12:13]"); A("v_pk_add_f32 v[10:11], v[10:11], v[14:15]")
        A("v_pk_add_f32 v[8:9], v[8:9], v[10:11]"); A("v_add_f32 v8, v8, v9")
        for ror in (8, 4, 2, 1):
            self.nop(2); self.dpp("v_add_f32", 8, 8, 8, f"row_ror:{ror}")
        self.allred_rows("v_add_f32", 8, 9)
        A("v_cvt_pk_bf16_f32 v8, v8, v8"); A("v_lshlrev_b32 v8, 16, v8")
        A(f"v_mul_f32 v8, {0xbfb8aa3b}, v8"); A("v_exp_f32 v8, v8"); self.nop(1)
        A("v_add_f32 v8, 1.0, v8"); A("v_rcp_f32 v8, v8"); self.nop(1)
        A("v_cvt_pk_bf16_f32 v8, v8, v8"); A("v_lshlrev_b32 v8, 16, v8")
        A("v_sub_f32 v9, 1.0, v8"); A("v_cvt_pk_bf16_f32 v9, v9, v9"); A("v_lshlrev_b32 v9, 16, v9")
        A("v_cmp_gt_u32 vcc, 32, v0"); self.nop(2)
        A("v_cndmask_b32 v120, v9, v8, vcc")
        A("s_branch L_C_b1")
        self.lab("L_C_qpoll")
        A("s_lshl_b32 s3, s29, 2"); A("s_add_u32 s3, s3, s31"); A("s_lshl_b32 s3, s3, 3"); A("s_add_u32 s3, s3, s28")
        A("s_lshl_b32 s39, s3, 11"); A(f"s_add_u32 s39, s39, {QP}")
        A("v_lshlrev_b32 v2, 5, v0")
        self.poll("q", [f"buffer_load_dwordx4 v[8:11], v2, s[12:15], s39 offen{pol}",
                        f"buffer_load_dwordx4 v[12:15], v2, s[12:15], s39 offen offset:16{pol}"], [9, 11, 13, 15], 16)
        A("v_mov_b32 v9, v10"); A("v_mov_b32 v10, v12"); A("v_mov_b32 v11, v14")
        A(f"v_mul_u32_u24 v2, {QH}, v4"); A("v_lshl_add_u32 v2, v3, 4, v2")
        A(f"ds_write_b128 v2, v[8:11] offset:{L_Q}")
        self.stamp(3)
        self.lab("L_C_b1")
        A("v_lshlrev_b32 v1, 11, v4"); A("v_lshl_add_u32 v1, v3, 4, v1")
        A("s_lshl_b32 s44, s28, 2"); A("s_add_u32 s44, s44, s31")
        A("s_lshl_b32 s35, s44, 17"); A("s_lshl_b32 s3, s33, 15"); A("s_add_u32 s35, s35, s3")
        A("s_lshl_b32 s3, s32, 8"); A("s_add_u32 s35, s35, s3")
        A("s_waitcnt vmcnt(0) lgkmcnt(0)")
        A("s_barrier")
        A("s_barrier")
        self.stamp(4)
        for r in range(4):
            A(f"buffer_load_dwordx4 {self.v4(WB+4*r)}, v1, s[20:23], s35 offen{nt}")
            A(f"buffer_load_dwordx4 {self.v4(WB+4*(r+4))}, v1, s[20:23], s35 offen offset:1024{nt}")
            if r < 3: A("s_add_u32 s35, s35, 8192")
        A("s_lshl_b32 s3, s29, 5"); A("s_add_u32 s44, s44, s3")
        A("s_lshl_b32 s39, s44, 13"); A("s_lshl_b32 s3, s33, 7"); A("s_add_u32 s39, s39, s3"); A(f"s_add_u32 s39, s39, {OP}")
        A("s_lshl_b32 s35, s44, 8"); A(f"s_add_u32 s35, s35, {SP}")
        A("v_lshlrev_b32 v1, 9, v3"); A("v_lshl_add_u32 v1, v4, 5, v1")
        A("v_lshlrev_b32 v2, 4, v3")
        A("v_mul_u32_u24 v7, 528, v6"); A("v_lshl_add_u32 v7, v4, 7, v7")
        A("s_mul_i32 s3, s33, 2112"); A(f"s_add_u32 s3, s3, {L_R}"); A("v_add_u32 v7, s3, v7")
        A("s_barrier")
        self.stamp(5)
        A("s_waitcnt vmcnt(0)")
        self.perms(PB, WB)
        self.stamp(6)
        self.poll("o", [f"buffer_load_dwordx4 v[8:11], v1, s[12:15], s39 offen{pol}",
                        f"buffer_load_dwordx4 v[12:15], v1, s[12:15], s39 offen offset:16{pol}",
                        f"buffer_load_dwordx4 v[16:19], v2, s[12:15], s35 offen{pol}"], [9, 11, 13, 15, 17, 19], 20)
        self.stamp(7)
        self.dpp("v_max_f32", 20, 16, 16, "row_ror:4")
        A("v_lshlrev_b32 v24, 16, v8"); A("v_and_b32 v25, 0xffff0000, v8")
        self.dpp("v_max_f32", 20, 20, 20, "row_ror:8")
        A("v_lshlrev_b32 v26, 16, v10"); A("v_and_b32 v27, 0xffff0000, v10")
        A("v_sub_f32 v16, v16, v20")
        A("v_exp_f32 v16, v16")
        A("v_lshlrev_b32 v28, 16, v12"); A("v_and_b32 v29, 0xffff0000, v12")
        A("v_mul_f32 v18, v18, v16")
        A("v_lshlrev_b32 v30, 16, v14"); A("v_and_b32 v31, 0xffff0000, v14")
        self.dpp("v_add_f32", 18, 18, 18, "row_ror:4"); self.nop(2)
        self.dpp("v_add_f32", 18, 18, 18, "row_ror:8")
        A("v_rcp_f32 v18, v18"); self.nop(1)
        A("v_mul_f32 v16, v16, v18")
        for i in range(8): A(f"v_mul_f32 v{24+i}, v{24+i}, v16")
        for i in range(8): self.dpp("v_add_f32", 24+i, 24+i, 24+i, "row_ror:4")
        for i in range(8): self.dpp("v_add_f32", 24+i, 24+i, 24+i, "row_ror:8")
        for i in range(4): A(f"v_cvt_pk_bf16_f32 v{XB+i}, v{24+2*i}, v{25+2*i}")
        self.nop(2)
        for j in range(8):
            A(f"v_mfma_f32_16x16x32_bf16 {self.v4(DB+4*j)}, {self.v4(PB+4*j)}, {self.v4(XB)}, 0")
        A("s_mov_b32 s42, 0x000f000f"); A("s_mov_b32 s43, 0x000f000f")
        A("s_mov_b64 exec, s[42:43]")
        for j in range(8):
            A(f"ds_write_b128 v7, {self.v4(DB+4*j)} offset:{16*j}")
        A("s_mov_b64 exec, -1")
        A("v_lshlrev_b32 v1, 7, v4"); A("v_lshl_add_u32 v1, v6, 5, v1"); A("v_lshl_add_u32 v1, v5, 2, v1")
        A("s_mul_i32 s3, s33, 528"); A(f"s_add_u32 s3, s3, {L_R}"); A("v_add_u32 v1, s3, v1")
        A("v_add_u32 v2, 2112, v1"); A("v_add_u32 v8, 4224, v1"); A("v_add_u32 v9, 6336, v1")
        A("s_lshl_b32 s39, s32, 18"); A(f"s_add_u32 s39, s39, {FP}")
        A("s_lshl_b32 s3, s44, 12"); A("s_add_u32 s35, s39, s3"); A("s_lshl_b32 s3, s33, 10"); A("s_add_u32 s35, s35, s3")
        A("v_lshlrev_b32 v10, 4, v0")
        A("v_mov_b32 v21, s34"); A("v_mov_b32 v23, s34")
        A("s_waitcnt lgkmcnt(0)")
        A("s_barrier")
        A("ds_read2_b32 v[12:13], v1 offset0:0 offset1:4")
        A("ds_read2_b32 v[14:15], v2 offset0:0 offset1:4")
        A("ds_read2_b32 v[16:17], v8 offset0:0 offset1:4")
        A("ds_read2_b32 v[18:19], v9 offset0:0 offset1:4")
        A("s_waitcnt lgkmcnt(0)")
        A("v_pk_add_f32 v[12:13], v[12:13], v[14:15]"); A("v_pk_add_f32 v[16:17], v[16:17], v[18:19]")
        A("v_add_f32 v20, v12, v16"); A("v_add_f32 v22, v13, v17")
        A(f"buffer_store_dwordx4 v[20:23], v10, s[12:15], s35 offen{pol}")
        self.stamp(8)
        A("s_cmp_lg_u32 s33, 0"); A("s_cbranch_scc1 L_C_exit")
        A("v_lshrrev_b32 v1, 2, v0"); A("v_lshlrev_b32 v1, 12, v1"); A("v_lshl_add_u32 v1, v6, 4, v1")
        A("s_lshl_b32 s3, s44, 6"); A("s_add_u32 s39, s39, s3")
        A("s_add_u32 s40, s39, 0x10000"); A("s_add_u32 s41, s39, 0x20000"); A("s_add_u32 s42, s39, 0x30000")
        self.poll("f", [f"buffer_load_dwordx4 v[{24+4*i}:{27+4*i}], v1, s[12:15], s{39+i} offen{pol}" for i in range(4)],
                  [25, 27, 29, 31, 33, 35, 37, 39], 40)
        self.stamp(9)
        A("v_add_f32 v24, v24, v28"); A("v_add_f32 v26, v26, v30")
        A("v_add_f32 v32, v32, v36"); A("v_add_f32 v34, v34, v38")
        self.nop(1)
        A("v_permlane32_swap_b32 v24, v32"); A("v_permlane32_swap_b32 v26, v34"); self.nop(1)
        A("v_add_f32 v24, v24, v32"); A("v_add_f32 v26, v26, v34"); self.nop(2)
        A("v_permlane16_swap_b32 v24, v26"); self.nop(1)
        A("v_add_f32 v24, v24, v26"); self.nop(2)
        self.dpp("v_add_f32", 24, 24, 24, "row_ror:4"); self.nop(2)
        self.dpp("v_add_f32", 24, 24, 24, "row_ror:8")
        A("v_cvt_pk_bf16_f32 v24, v24, v24"); A("v_lshlrev_b32 v24, 16, v24")
        A("v_mul_f32 v24, v24, v120")
        A("v_cvt_pk_bf16_f32 v24, v24, v24"); A("v_lshlrev_b32 v24, 16, v24")
        A("v_mov_b32 v25, v24"); self.nop(2)
        A("v_permlane32_swap_b32 v24, v25"); self.nop(1)
        A("v_add_f32 v24, v24, v25")
        A("v_cvt_pk_bf16_f32 v24, v24, v24")
        A("s_lshl_b32 s3, s45, 10"); A("s_lshl_b32 s39, s32, 8"); A("s_add_u32 s3, s3, s39")
        A("s_and_b32 s39, s44, 15"); A("s_lshl_b32 s39, s39, 4"); A("s_add_u32 s3, s3, s39")
        A("v_lshlrev_b32 v1, 2, v6"); A("v_lshl_add_u32 v1, v4, 1, v1")
        A("s_mov_b64 exec, 0x000f000f")
        A("buffer_store_short v24, v1, s[56:59], s3 offen")
        if self.dbg:
            A("s_load_dwordx2 s[92:93], s[0:1], 96")
            A("s_waitcnt vmcnt(0)")
            A("s_memrealtime s[94:95]")
            A("s_waitcnt lgkmcnt(0)")
            A("s_mov_b64 exec, 1"); A("v_mov_b32 v1, 0")
            A("s_not_b32 s90, s90"); A("v_mov_b32 v2, s90"); A("v_mov_b32 v3, s94")
            A("global_atomic_umax v1, v2, s[92:93]")
            A("global_atomic_umax v1, v3, s[92:93] offset:4")
        if self.pad:
            if self.padk >= 0:
                A("s_waitcnt lgkmcnt(0)"); A("s_mov_b32 s90, s92")
            self.lab("L_pad")
            A("s_memrealtime s[94:95]")
            A("s_waitcnt lgkmcnt(0)")
            A("s_sub_u32 s94, s94, s90")
            A(f"s_cmp_lt_u32 s94, {self.pad}")
            A("s_cbranch_scc1 L_pad")
        A("s_cmp_lg_u32 s2, 0"); A("s_cbranch_scc1 L_C_exit")
        A("s_mov_b64 exec, 1"); A("v_mov_b32 v1, 0"); A("v_mov_b32 v2, s34")
        A("buffer_store_dword v2, v1, s[12:15], 0 offen")
        self.lab("L_C_exit")
        self.stamp(10)
        if self.stamps:
            A("s_waitcnt vmcnt(0)")
            self.stamp(11)
        self.stamp_out(12)
        self.lab("L_end")
        A("s_endpgm")
        L.append('.section .rodata,"a"'); L.append(".p2align 6"); L.append(f".amdhsa_kernel {KN}")
        L.append("  .amdhsa_next_free_vgpr 168"); L.append("  .amdhsa_next_free_sgpr 96"); L.append("  .amdhsa_accum_offset 168")
        L.append("  .amdhsa_group_segment_fixed_size 0"); L.append("  .amdhsa_kernarg_size 112"); L.append("  .amdhsa_user_sgpr_count 2")
        L.append("  .amdhsa_user_sgpr_kernarg_segment_ptr 1"); L.append("  .amdhsa_system_sgpr_workgroup_id_x 1")
        L.append("  .amdhsa_float_denorm_mode_32 3")
        L.append(".end_amdhsa_kernel")
        return "\n".join(L) + "\n"

if __name__ == "__main__":
    out = sys.argv[1]
    kw = {}
    for a in sys.argv[2:]:
        k, v = a.split("=")
        if k in ("stamps", "nt", "dbg"): v = bool(int(v))
        elif k in ("spin", "pad", "padk"): v = int(v)
        elif k == "pol": v = v.replace("+", " ")
        kw[k] = v
    open(out, "w").write(G(**kw).gen())
```

```python
import sys
KN = "gated_mix__sliding_block_cached__sliding_block_cached__decode_kernel"
HDR = open("gated_mix__sliding_block_cached__sliding_block_cached__decode.s.ref").read().split("; Override launch")[0]

FL = 0x1000
YD = 0x400000
OP = 0x40000
SP = 0xC0000
QP = 0x100000
FP = 0x200000
WS_BYTES = 0x600000
STAMP_OFF = 0x4000000
L_Q = 0
QH = 272
L_M = 1280
L_L = 1408
L_F = 1536
L_O = 2048
L_R = L_O + 8*2112
LDS_BYTES = L_R + 4*2112
LOG2E = 0x3fb8aa3b
SCALE = 0x3db504f3
NS = 16

class G:
    def __init__(self, padk=-1, pad=0, stamps=False, nt=True, pol="sc1", spin=1 << 16, pf=1, wo_early=6, qsleep=12, forcey=0, pretouch=1, n0=8, qdepth=4, skipq=0, noprio=0, lsplit=1, mask=1, osleep=0, fsleep=0, qpol=None, nogather=0):
        self.L = []
        self.stamps = stamps; self.pad = pad; self.padk = padk
        self.nt = " nt" if nt else ""
        self.pol = " " + pol
        self.spin = spin; self.pf = pf; self.wo_early = wo_early; self.qsleep = qsleep
        self.skipq = skipq; self.forcey = forcey; self.n0 = n0; self.qdepth = qdepth; self.pretouch = pretouch; self.noprio = noprio; self.lsplit = lsplit; self.mask = mask; self.osleep = osleep; self.fsleep = fsleep; self.nogather = nogather; self.qpol = self.pol if qpol is None else ' ' + qpol
    def A(self, s): self.L.append("    " + s)
    def lab(self, s): self.L.append(s + ":")
    def nop(self, n):
        while n > 0:
            k = min(n, 16); self.A(f"s_nop {k-1}"); n -= k
    def stamp(self, i):
        if self.padk == i: self.A("s_memrealtime s[92:93]")
        if self.stamps: self.A(f"s_memrealtime s[{64+2*i}:{65+2*i}]")
    def stamp_out(self):
        if not self.stamps: return
        A = self.A
        A("s_waitcnt lgkmcnt(0)")
        A("s_mul_i32 s60, s2, 12"); A("s_add_u32 s60, s60, s33"); A(f"s_mul_i32 s60, s60, {NS*8}")
        A(f"s_add_u32 s60, s60, {STAMP_OFF}")
        A("s_add_u32 s62, s12, s60"); A("s_addc_u32 s63, s13, 0")
        A("s_mov_b64 exec, 1"); A("v_mov_b32 v4, 0")
        for i in range(NS):
            A(f"v_mov_b32 v2, s{64+2*i}"); A(f"v_mov_b32 v3, s{65+2*i}")
            A(f"global_store_dwordx2 v4, v[2:3], s[62:63] offset:{i*8}"); A("s_nop 1")
    def v4(self, r): return f"v[{r}:{r+3}]"
    def perms(self, dst, src, pairs=(0, 1, 2, 3)):
        for q in pairs:
            for w in range(4):
                for hh in range(2):
                    j = 2*w + hh
                    self.A(f"v_perm_b32 v{dst+4*j+q}, v{src+4*(2*q+1)+w}, v{src+4*(2*q)+w}, s{36+hh}")
    def allred_rows(self, op, v, t):
        A = self.A
        A(f"v_mov_b32 v{t}, v{v}"); self.nop(2)
        A(f"v_permlane32_swap_b32 v{v}, v{t}")
        A(f"{op} v{v}, v{v}, v{t}")
        A(f"v_mov_b32 v{t}, v{v}"); self.nop(2)
        A(f"v_permlane16_swap_b32 v{v}, v{t}")
        A(f"{op} v{v}, v{v}, v{t}")
    def dpp(self, op, d, a, b, ctl):
        self.A(f"{op}_dpp v{d}, v{a}, v{b} {ctl} row_mask:0xf bank_mask:0xf")
    def poll(self, name, loads, tagregs, acc, first_issued=False, sleep=0):
        A = self.A
        A(f"s_mov_b32 s38, {self.spin}")
        if first_issued: A(f"s_branch L_chk_{name}")
        if sleep and not first_issued: A(f"s_branch L_ld_{name}")
        self.lab(f"L_poll_{name}")
        if sleep: A(f"s_sleep {sleep}")
        self.lab(f"L_ld_{name}")
        for l in loads: A(l)
        self.lab(f"L_chk_{name}")
        A("s_waitcnt vmcnt(0)")
        A(f"v_xor_b32 v{acc}, s34, v{tagregs[0]}")
        for r in tagregs[1:]:
            A(f"v_bitop3_b32 v{acc}, v{r}, s34, v{acc} bitop3:0xbe")
        A("s_sub_u32 s38, s38, 1")
        if self.mask:
            A(f"v_cmp_ne_u32 vcc, 0, v{acc}")
            A("s_cselect_b64 s[50:51], 0, -1")
            A("s_and_b64 exec, vcc, s[50:51]")
            A(f"s_cbranch_scc1 L_poll_{name}")
            A("s_mov_b64 exec, -1")
        else:
            A(f"v_cmp_ne_u32 vcc, 0, v{acc}")
            A("s_cselect_b64 s[50:51], 0, -1")
            A("s_and_b64 s[50:51], vcc, s[50:51]")
            A(f"s_cbranch_scc1 L_poll_{name}")
    def ldsspin(self, name, off, target, reads, sleep=1):
        A = self.A
        A(f"s_mov_b32 s38, {self.spin * 16}")
        self.lab(f"L_sp_{name}")
        A(f"ds_read_b32 v2, {self.vz} offset:{L_F+off}")
        for r in reads: A(r)
        A("s_waitcnt lgkmcnt(0)")
        A("v_readfirstlane_b32 s40, v2")
        A(f"s_cmp_ge_u32 s40, {target}")
        A(f"s_cbranch_scc1 L_spd_{name}")
        if sleep: A(f"s_sleep {sleep}")
        A("s_sub_u32 s38, s38, 1"); A("s_cmp_lg_u32 s38, 0")
        A(f"s_cbranch_scc1 L_sp_{name}")
        self.lab(f"L_spd_{name}")
    def vissue(self, VB, p):
        for T in (2*p, 2*p+1):
            for e in range(4):
                self.A(f"buffer_load_dwordx4 {self.v4(VB+16*T+4*e)}, v5, s[8:11], s35 offen offset:{256*e}{self.nt}")
            if T < 3: self.A("s_add_u32 s35, s35, 16384")
    def mspin(self, name, B, d):
        A = self.A
        self.ldsspin(name, 8, 8, [f"ds_read_b128 {self.v4(B)}, v6 offset:{L_M}", f"ds_read_b128 {self.v4(B+4)}, v6 offset:{L_M+16}"], sleep=2)
        A(f"v_max3_f32 v{B}, v{B}, v{B+1}, v{B+2}")
        A(f"v_max3_f32 v{B+3}, v{B+3}, v{B+4}, v{B+5}")
        A(f"v_max3_f32 v{B}, v{B}, v{B+6}, v{B+7}")
        A(f"v_max_f32 v{d}, v{B}, v{B+3}")

    def gen(self):
        A = self.A; nt = self.nt; pol = self.pol
        L = self.L
        L.append(HDR.rstrip("\n"))
        L.append(f"; @launch grid=(256,1,1) block=(768,1,1) lds={LDS_BYTES}")
        L.append('.amdgcn_target "amdgcn-amd-amdhsa--gfx950"')
        L.append(".text"); L.append(f".globl {KN}"); L.append(".p2align 12"); L.append(".p2align 8"); L.append(f".type {KN},@function"); L.append(f"{KN}:")
        self.stamp(0)
        if self.pad: A("s_memrealtime s[90:91]")
        if self.stamps:
            for i in range(1, NS): A(f"s_mov_b64 s[{64+2*i}:{65+2*i}], 0")
        A("s_cmp_ge_u32 s2, 256"); A("s_cbranch_scc1 L_end")
        A("s_bfe_u32 s29, s2, 0x10002")
        A("s_mul_i32 s3, s29, 40")
        A("s_load_dwordx2 s[16:17], s[0:1], s3 offset:24")
        A("s_load_dwordx2 s[4:5], s[0:1], s3 offset:8")
        A("s_load_dwordx2 s[8:9], s[0:1], s3 offset:16")
        A("s_load_dwordx2 s[12:13], s[0:1], 104")
        A("v_lshrrev_b32 v1, 6, v0")
        A("s_lshr_b32 s30, s2, 3")
        A("v_readfirstlane_b32 s33, v1")
        A("s_and_b32 s28, s2, 3"); A("s_lshl_b32 s28, s28, 1"); A("s_lshr_b32 s31, s30, 4"); A("s_or_b32 s28, s28, s31")
        A("s_bfe_u32 s31, s30, 0x20002"); A("s_and_b32 s32, s30, 3")
        A("v_and_b32 v0, 63, v0")
        A("v_and_b32 v3, 15, v0")
        A("v_lshrrev_b32 v4, 4, v0")
        A("s_cmp_ge_u32 s33, 4"); A("s_cbranch_scc1 L_S")
        WB, PB, DB, XB = 8, 40, 72, 104
        A("s_setprio 3")
        A("s_load_dwordx2 s[24:25], s[0:1], 0")
        A("s_load_dwordx2 s[20:21], s[0:1], s3 offset:32")
        A("s_load_dwordx4 s[48:51], s[0:1], 80")
        A("v_mov_b32 v8, 0"); A("v_mov_b32 v9, 0"); A("v_mov_b32 v10, 0"); A("v_mov_b32 v11, 0")
        A(f"ds_write_b128 v8, v[8:11] offset:{L_F}")
        A(f"ds_write_b32 v8, v8 offset:{L_F+16}")
        if self.pf:
            A("s_getpc_b64 s[42:43]")
            A("v_lshlrev_b32 v12, 7, v0"); A("v_min_u32 v12, L_end-L_pfbase, v12")
            self.lab("L_pfbase")
            A("global_load_dword v108, v12, s[42:43]")
        A("s_mov_b32 s18, 0x400000"); A("s_mov_b32 s19, 0x20000")
        A("s_mov_b32 s26, 4096"); A("s_mov_b32 s27, 0x20000")
        A("v_lshlrev_b32 v1, 16, v4"); A("v_lshl_add_u32 v1, v3, 4, v1")
        A("v_and_b32 v6, 3, v0")
        A("v_lshlrev_b32 v2, 10, v6"); A("v_lshl_add_u32 v2, v4, 4, v2")
        A("s_lshl_b32 s44, s28, 2"); A("s_add_u32 s44, s44, s31")
        A("s_lshl_b32 s39, s32, 2"); A("s_add_u32 s39, s39, s33")
        A("s_lshl_b32 s35, s39, 18"); A("s_lshl_b32 s3, s44, 8"); A("s_add_u32 s35, s35, s3")
        A("s_lshl_b32 s39, s39, 6")
        A("s_waitcnt lgkmcnt(0)")
        A("s_barrier")
        self.stamp(1)
        for e in range(8):
            A(f"buffer_load_dwordx4 {self.v4(WB+4*e)}, v1, s[16:19], s35 offen{nt}")
            if e < 7: A("s_add_u32 s35, s35, 8192")
        A(f"buffer_load_dwordx4 {self.v4(XB)}, v2, s[24:27], s39 offen")
        A("s_branch L_C")
        self.lab("L_S")
        KB, VB, QB, SB = 8, 72, 136, 152
        self.vz = "v7"
        A("s_setprio 1" if self.noprio else "s_setprio 2")
        A("s_mov_b32 s6, 0x4000000"); A("s_mov_b32 s7, 0x20000")
        A("s_mov_b32 s10, 0x4000000"); A("s_mov_b32 s11, 0x20000")
        A("s_lshl_b32 s35, s31, 3"); A("s_add_u32 s35, s35, s28"); A("s_lshl_b32 s35, s35, 4"); A("s_add_u32 s35, s35, s32")
        A("s_lshl_b32 s35, s35, 1"); A("s_lshr_b32 s3, s33, 3"); A("s_add_u32 s35, s35, s3")
        A("s_lshl_b32 s35, s35, 4"); A("s_and_b32 s3, s33, 3"); A("s_add_u32 s35, s35, s3")
        A("s_lshl_b32 s35, s35, 12"); A("s_add_u32 s35, s35, 0x180000")
        A("v_lshlrev_b32 v1, 8, v3"); A("v_lshl_add_u32 v1, v4, 4, v1")
        A("v_lshlrev_b32 v5, 4, v3"); A("v_lshl_add_u32 v5, v4, 10, v5")
        A("s_mov_b32 s39, s35")
        A("s_barrier")
        A("s_waitcnt lgkmcnt(0)")
        self.stamp(1)
        for T in range(4):
            for t in range(4):
                A(f"buffer_load_dwordx4 {self.v4(KB+16*T+4*t)}, v1, s[4:7], s39 offen offset:{64*t}{nt}")
            if T < 3: A("s_add_u32 s39, s39, 16384")
        A("s_setprio 1")
        self.stamp(2)
        self.vissue(VB, 0)
        A("s_load_dword s34, s[12:13], 0")
        A(f"s_mov_b32 s14, {WS_BYTES}"); A("s_mov_b32 s15, 0x20000")
        A("s_mov_b32 s36, 0x05040100"); A("s_mov_b32 s37, 0x07060302")
        A("v_mov_b32 v7, 0")
        A("v_and_b32 v1, 3, v0"); A(f"v_mul_u32_u24 v6, {QH}, v1"); A("v_lshl_add_u32 v6, v4, 4, v6")
        if self.lsplit:
            A("s_cmp_ge_u32 s33, 8"); A("s_cbranch_scc1 L_S_l1")
        self.vissue(VB, 1)
        A("s_waitcnt vmcnt(16)")
        if self.lsplit:
            A("s_branch L_S_qk")
            self.lab("L_S_l1")
            A("s_waitcnt vmcnt(8)")
        self.lab("L_S_qk")
        self.stamp(3)
        self.ldsspin("q", 4, 4, [f"ds_read_b128 {self.v4(QB+4*t)}, v6 offset:{L_Q+64*t}" for t in range(4)], sleep=4)
        self.stamp(4)
        for t in range(4):
            for T in range(4):
                c = "0" if t == 0 else self.v4(SB+4*T)
                A(f"v_mfma_f32_16x16x32_bf16 {self.v4(SB+4*T)}, {self.v4(KB+16*T+4*t)}, {self.v4(QB+4*t)}, {c}")
        A(f"s_mov_b32 s40, {SCALE}"); A(f"s_mov_b32 s41, {LOG2E}")
        A("s_mul_i32 s34, s34, 1664525"); A("s_add_u32 s34, s34, 1013904223")
        A("v_lshlrev_b32 v6, 5, v1"); A("s_lshl_b32 s3, s33, 2"); A("s_sub_u32 s3, s3, 16"); A("v_add_u32 v3, s3, v6")
        for i in range(8):
            A(f"v_cvt_pk_bf16_f32 v{QB+i}, v{SB+2*i}, v{SB+2*i+1}")
        for i in range(8):
            A(f"v_lshlrev_b32 v{SB+2*i}, 16, v{QB+i}"); A(f"v_and_b32 v{SB+2*i+1}, 0xffff0000, v{QB+i}")
        for i in range(8):
            A(f"v_pk_mul_f32 v[{SB+2*i}:{SB+2*i+1}], v[{SB+2*i}:{SB+2*i+1}], s[40:41] op_sel_hi:[1,0]")
        for i in range(8):
            A(f"v_cvt_pk_bf16_f32 v{QB+i}, v{SB+2*i}, v{SB+2*i+1}")
        for i in range(8):
            A(f"v_lshlrev_b32 v{SB+2*i}, 16, v{QB+i}"); A(f"v_and_b32 v{SB+2*i+1}, 0xffff0000, v{QB+i}")
        A(f"v_max3_f32 v1, v{SB}, v{SB+1}, v{SB+2}")
        A(f"v_max3_f32 v2, v{SB+3}, v{SB+4}, v{SB+5}")
        A(f"v_max3_f32 v1, v1, v{SB+6}, v{SB+7}")
        A(f"v_max3_f32 v2, v2, v{SB+8}, v{SB+9}")
        A(f"v_max3_f32 v1, v1, v{SB+10}, v{SB+11}")
        A(f"v_max3_f32 v2, v2, v{SB+12}, v{SB+13}")
        A(f"v_max3_f32 v1, v1, v{SB+14}, v{SB+15}")
        A("v_max_f32 v1, v1, v2")
        self.allred_rows("v_max_f32", 1, 2)
        A("v_mul_f32 v1, s41, v1")
        A("v_mov_b32 v2, 1")
        A("s_mov_b64 exec, 15")
        A(f"ds_write_b32 v3, v1 offset:{L_M}")
        A("s_mov_b64 exec, 1")
        A(f"ds_add_u32 v7, v2 offset:{L_F+8}")
        A("s_mov_b64 exec, -1")
        self.stamp(5)
        A("s_cmp_lt_u32 s33, 8"); A("s_cbranch_scc1 L_S_exp")
        if self.lsplit: self.vissue(VB, 1)
        A("s_setprio 2")
        self.stamp(6)
        self.mspin("m", QB, 1)
        self.lab("L_S_exp")
        for i in range(16):
            A(f"v_fma_f32 v{SB+i}, v{SB+i}, s41, -v1")
        for i in range(16):
            A(f"v_exp_f32 v{SB+i}, v{SB+i}")
        for i in range(8):
            A(f"v_cvt_pk_bf16_f32 v{QB+i}, v{SB+2*i}, v{SB+2*i+1}")
        for i in range(4):
            A(f"v_pk_add_f32 v[{SB+2*i}:{SB+2*i+1}], v[{SB+2*i}:{SB+2*i+1}], v[{SB+8+2*i}:{SB+9+2*i}]")
        for i in range(2):
            A(f"v_pk_add_f32 v[{SB+2*i}:{SB+2*i+1}], v[{SB+2*i}:{SB+2*i+1}], v[{SB+4+2*i}:{SB+5+2*i}]")
        A(f"v_pk_add_f32 v[{SB}:{SB+1}], v[{SB}:{SB+1}], v[{SB+2}:{SB+3}]")
        A(f"v_add_f32 v{SB+8}, v{SB}, v{SB+1}")
        self.allred_rows("v_add_f32", SB+8, SB)
        OB, P0, P1 = 8, 40, 72
        A("v_and_b32 v5, 3, v0"); A("v_mul_u32_u24 v5, 528, v5"); A("v_lshl_add_u32 v5, v4, 7, v5")
        A("s_mul_i32 s3, s33, 2112"); A(f"s_add_u32 s3, s3, {L_O - 4*2112}"); A("v_add_u32 v5, s3, v5")
        A("s_mov_b32 s42, 0x000f000f"); A("s_mov_b32 s43, 0x000f000f")
        A("s_cmp_lt_u32 s33, 8"); A("s_cbranch_scc1 L_S_pv")
        A("s_mov_b64 exec, 15")
        A(f"ds_write_b32 v3, v{SB+8} offset:{L_L}")
        A("s_mov_b64 exec, -1")
        self.lab("L_S_pv")
        self.stamp(7)
        A("s_waitcnt vmcnt(8)")
        self.perms(P0, VB)
        for j in range(8):
            A(f"v_mfma_f32_16x16x32_bf16 {self.v4(OB+4*j)}, {self.v4(P0+4*j)}, {self.v4(QB)}, 0")
        self.stamp(8)
        for q in range(4):
            A(f"s_waitcnt vmcnt({6-2*q})")
            if q == 3: self.stamp(9)
            self.perms(P1, VB+32, pairs=(q,))
        for j in range(8):
            A(f"v_mfma_f32_16x16x32_bf16 {self.v4(OB+4*j)}, {self.v4(P1+4*j)}, {self.v4(QB+4)}, {self.v4(OB+4*j)}")
        A("s_cmp_lt_u32 s33, 8"); A("s_cbranch_scc1 L_S_resc")
        A("s_mov_b64 exec, s[42:43]")
        for j in range(8):
            A(f"ds_write_b128 v5, {self.v4(OB+4*j)} offset:{16*j}")
        A("s_waitcnt lgkmcnt(0)")
        A("s_barrier")
        self.stamp(10)
        self.stamp_out()
        A("s_endpgm")
        self.lab("L_S_resc")
        self.mspin("m2", 40, 48)
        A("v_sub_f32 v1, v1, v48"); A("v_exp_f32 v1, v1")
        A("s_mul_i32 s3, s33, 528"); A(f"s_add_u32 s3, s3, {L_O - 4*528}")
        A("v_lshl_add_u32 v49, v0, 3, s3")
        A(f"v_mul_f32 v{SB+8}, v{SB+8}, v1")
        for i in range(32): A(f"v_mul_f32 v{OB+i}, v{OB+i}, v1")
        A("s_mov_b64 exec, 15")
        A(f"ds_write_b32 v3, v{SB+8} offset:{L_L}")
        A("s_mov_b64 exec, s[42:43]")
        for j in range(8):
            A(f"ds_write_b128 v5, {self.v4(OB+4*j)} offset:{16*j}")
        A("s_mov_b64 exec, -1")
        A(f"ds_read_b32 v51, v7 offset:{L_F+12}")
        A("s_lshl_b32 s3, s33, 5"); A("s_sub_u32 s3, s3, 128"); A("v_mov_b32 v7, s3")
        A("s_lshl_b32 s3, s29, 3"); A("s_add_u32 s3, s3, s28"); A("s_lshl_b32 s3, s3, 2"); A("s_add_u32 s3, s3, s33"); A("s_sub_u32 s3, s3, 4")
        A("s_lshl_b32 s3, s3, 2"); A("s_add_u32 s3, s3, s32"); A("s_lshl_b32 s3, s3, 2"); A("s_add_u32 s3, s3, s31")
        A("s_lshl_b32 s39, s3, 9"); A(f"s_add_u32 s39, s39, {OP}")
        A("s_lshl_b32 s35, s3, 4"); A(f"s_add_u32 s35, s35, {SP}")
        A("v_lshlrev_b32 v50, 3, v0")
        A("s_and_b32 s3, s33, 3")
        A("v_readlane_b32 s44, v48, s3")
        A("v_mov_b32 v53, s34"); A("v_mov_b32 v57, s34"); A("v_mov_b32 v59, s34")
        A("v_mov_b32 v56, s44"); A("v_mov_b32 v4, 0")
        A("s_setprio 3")
        A("s_waitcnt lgkmcnt(0)")
        A("v_readfirstlane_b32 s45, v51")
        A("s_barrier")
        self.stamp(10)
        for w in range(8):
            A(f"ds_read_b64 v[{8+2*w}:{9+2*w}], v49 offset:{2112*w}")
        A(f"ds_read_b128 v[24:27], v7 offset:{L_L}")
        A(f"ds_read_b128 v[28:31], v7 offset:{L_L+16}")
        A("s_waitcnt lgkmcnt(0)")
        for w in (0, 1, 2, 3):
            A(f"v_pk_add_f32 v[{8+2*w}:{9+2*w}], v[{8+2*w}:{9+2*w}], v[{16+2*w}:{17+2*w}]")
        A("v_pk_add_f32 v[8:9], v[8:9], v[12:13]"); A("v_pk_add_f32 v[10:11], v[10:11], v[14:15]")
        A("v_pk_add_f32 v[24:25], v[24:25], v[28:29]")
        A("v_pk_add_f32 v[8:9], v[8:9], v[10:11]")
        A("v_pk_add_f32 v[26:27], v[26:27], v[30:31]")
        A("v_cvt_pk_bf16_f32 v52, v8, v9")
        A("v_pk_add_f32 v[24:25], v[24:25], v[26:27]")
        A("s_cmp_lg_u32 s45, 0"); A("s_cbranch_scc1 L_S_y")
        A(f"buffer_store_dwordx2 v[52:53], v50, s[12:15], s39 offen")
        A("v_add_f32 v58, v24, v25")
        A("s_mov_b64 exec, 1")
        A(f"buffer_store_dwordx4 v[56:59], v4, s[12:15], s35 offen")
        self.stamp(11)
        self.stamp_out()
        A("s_endpgm")
        self.lab("L_S_y")
        A(f"s_add_u32 s39, s39, {YD}"); A(f"s_add_u32 s35, s35, {YD}")
        A(f"buffer_store_dwordx2 v[52:53], v50, s[12:15], s39 offen{pol}")
        A("v_add_f32 v58, v24, v25")
        A("s_mov_b64 exec, 1")
        A(f"buffer_store_dwordx4 v[56:59], v4, s[12:15], s35 offen{pol}")
        self.stamp(11)
        self.stamp_out()
        A("s_endpgm")
        self.lab("L_C")
        self.vz = "v110"
        A("s_load_dword s34, s[12:13], 0")
        A(f"s_mov_b32 s14, {WS_BYTES}"); A("s_mov_b32 s15, 0x20000")
        A("s_mov_b32 s22, 0x400000"); A("s_mov_b32 s23, 0x20000")
        A("s_mov_b32 s36, 0x05040100"); A("s_mov_b32 s37, 0x07060302")
        A("s_mov_b32 s52, s48"); A("s_mov_b32 s53, s49"); A("s_mov_b32 s54, 1024"); A("s_mov_b32 s55, 0x20000")
        A("s_mov_b32 s56, s50"); A("s_mov_b32 s57, s51"); A("s_mov_b32 s58, 4096"); A("s_mov_b32 s59, 0x20000")
        A("s_lshl_b32 s45, s29, 1"); A("s_lshr_b32 s3, s28, 2"); A("s_add_u32 s45, s45, s3")
        A("s_lshl_b32 s3, s45, 10")
        A("v_lshlrev_b32 v109, 4, v0")
        A("buffer_load_dwordx4 v[112:115], v109, s[24:27], s3 offen")
        A("buffer_load_dwordx4 v[116:119], v109, s[52:55], 0 offen")
        A("s_lshl_b32 s3, s29, 5"); A("s_add_u32 s47, s44, s3")
        A("v_lshrrev_b32 v5, 2, v3")
        A("v_mov_b32 v110, 0"); A("v_mov_b32 v111, 1"); A("v_mov_b32 v133, 1024")
        A("v_lshlrev_b32 v127, 3, v0")
        A("v_mul_u32_u24 v7, 528, v6"); A("v_lshl_add_u32 v7, v4, 7, v7")
        A("s_mul_i32 s3, s33, 2112"); A(f"s_add_u32 s3, s3, {L_R}"); A("v_add_u32 v7, s3, v7")
        A("v_lshlrev_b32 v122, 7, v4"); A("v_lshl_add_u32 v122, v6, 5, v122"); A("v_lshl_add_u32 v122, v5, 2, v122")
        A("s_mul_i32 s3, s33, 528"); A(f"s_add_u32 s3, s3, {L_R}"); A("v_add_u32 v122, s3, v122")
        A("v_add_u32 v123, 2112, v122"); A("v_add_u32 v124, 4224, v122"); A("v_add_u32 v125, 6336, v122")
        A("s_lshl_b32 s46, s47, 2"); A("s_add_u32 s46, s46, s32"); A("s_lshl_b32 s46, s46, 2"); A("s_add_u32 s46, s46, s33")
        A("s_lshl_b32 s46, s46, 9"); A(f"s_add_u32 s46, s46, {QP}")
        A("s_lshl_b32 s35, s47, 2"); A("s_add_u32 s35, s35, s33"); A("s_lshl_b32 s35, s35, 2"); A("s_add_u32 s35, s35, s32")
        A("s_lshl_b32 s35, s35, 2"); A(f"s_add_u32 s35, s35, {FL}")
        if self.pretouch:
            A("s_lshl_b32 s3, s32, 2"); A("s_add_u32 s3, s3, s33"); A("s_lshl_b32 s3, s3, 9")
            A("s_lshl_b32 s40, s47, 13"); A("s_add_u32 s3, s3, s40"); A(f"s_add_u32 s3, s3, {OP}")
            A("s_cmp_lg_u32 s32, 0"); A("s_cbranch_scc1 L_pt")
            A("s_lshl_b32 s40, s47, 8"); A("s_lshl_b32 s60, s33, 7"); A("s_add_u32 s40, s40, s60"); A(f"s_add_u32 s40, s40, {SP}")
            A("s_cmp_ge_u32 s33, 2"); A("s_cselect_b32 s40, s35, s40")
            A("s_load_dword s61, s[12:13], s40")
            self.lab("L_pt")
            for i in range(4): A(f"s_load_dword s61, s[12:13], s3 offset:{128*i}")
        A("s_mov_b32 s42, 0x000f000f"); A("s_mov_b32 s43, 0x000f000f")
        A("s_mov_b32 s41, 0")
        A("s_waitcnt lgkmcnt(0)")
        A("s_mul_i32 s34, s34, 1664525"); A("s_add_u32 s34, s34, 1013904223")
        A("v_mov_b32 v129, s34"); A("v_mov_b32 v131, s34")
        A("s_getreg_b32 s30, hwreg(HW_REG_XCC_ID, 0, 4)")
        if self.forcey: A("s_lshr_b32 s30, s2, 3"); A("s_and_b32 s30, s30, 1")
        A("s_add_u32 s30, s30, s34"); A("s_add_u32 s30, s30, 1")
        A("v_mov_b32 v132, s30")
        A("s_waitcnt vmcnt(0)")
        self.stamp(2)
        self.lab("L_tile")
        self.perms(PB, WB)
        A("s_cmp_eq_u32 s41, 0"); A("s_cbranch_scc1 L_mm")
        OG = 136
        self.poll("o", [f"buffer_load_dwordx4 v[{OG}:{OG+3}], v1, s[12:15], s39 offen{pol}",
                        f"buffer_load_dwordx4 v[{OG+4}:{OG+7}], v1, s[12:15], s39 offen offset:16{pol}",
                        f"buffer_load_dwordx4 v[{OG+8}:{OG+11}], v2, s[12:15], s35 offen{pol}"],
                  [OG+1, OG+3, OG+5, OG+7, OG+9, OG+11], 20, first_issued=True, sleep=self.osleep)
        self.stamp(8)
        m, l = OG+8, OG+10
        self.dpp("v_max_f32", 20, m, m, "row_ror:4")
        A(f"v_lshlrev_b32 v24, 16, v{OG}"); A(f"v_and_b32 v25, 0xffff0000, v{OG}")
        self.dpp("v_max_f32", 20, 20, 20, "row_ror:8")
        A(f"v_lshlrev_b32 v26, 16, v{OG+2}"); A(f"v_and_b32 v27, 0xffff0000, v{OG+2}")
        A(f"v_sub_f32 v16, v{m}, v20")
        A("v_exp_f32 v16, v16")
        A(f"v_lshlrev_b32 v28, 16, v{OG+4}"); A(f"v_and_b32 v29, 0xffff0000, v{OG+4}")
        A(f"v_mul_f32 v18, v{l}, v16")
        A(f"v_lshlrev_b32 v30, 16, v{OG+6}"); A(f"v_and_b32 v31, 0xffff0000, v{OG+6}")
        self.dpp("v_add_f32", 18, 18, 18, "row_ror:4"); self.nop(2)
        self.dpp("v_add_f32", 18, 18, 18, "row_ror:8")
        A("v_rcp_f32 v18, v18"); self.nop(1)
        A("v_mul_f32 v16, v16, v18")
        for i in range(8): A(f"v_mul_f32 v{24+i}, v{24+i}, v16")
        for i in range(8): self.dpp("v_add_f32", 24+i, 24+i, 24+i, "row_ror:4")
        for i in range(8): self.dpp("v_add_f32", 24+i, 24+i, 24+i, "row_ror:8")
        for i in range(4): A(f"v_cvt_pk_bf16_f32 v{XB+i}, v{24+2*i}, v{25+2*i}")
        self.nop(2)
        self.lab("L_mm")
        for j in range(8):
            A(f"v_mfma_f32_16x16x32_bf16 {self.v4(DB+4*j)}, {self.v4(PB+4*j)}, {self.v4(XB)}, 0")
        A("s_mov_b64 exec, s[42:43]")
        self.nop(1)
        for j in range(8):
            A(f"ds_write_b128 v7, {self.v4(DB+4*j)} offset:{16*j}")
        A("s_cmp_eq_u32 s41, 0"); A("s_cbranch_scc0 L_fin")
        A("s_mov_b64 exec, 1")
        A(f"ds_add_u32 v110, v111 offset:{L_F}")
        A("s_mov_b64 exec, -1")
        rd = [f"ds_read2_b32 v[{12+2*i}:{13+2*i}], v{122+i} offset0:0 offset1:4" for i in range(4)]
        self.ldsspin("c", 0, 4, rd, sleep=0)
        A("v_pk_add_f32 v[12:13], v[12:13], v[14:15]"); A("v_pk_add_f32 v[16:17], v[16:17], v[18:19]")
        A("v_pk_add_f32 v[148:149], v[12:13], v[16:17]")
        A(f"buffer_store_dwordx2 v[148:149], v127, s[12:15], s46 offen")
        self.stamp(3)
        for i in range(4):
            A(f"v_lshlrev_b32 v{24+2*i}, 16, v{112+i}"); A(f"v_and_b32 v{25+2*i}, 0xffff0000, v{112+i}")
            A(f"v_lshlrev_b32 v{32+2*i}, 16, v{116+i}"); A(f"v_and_b32 v{33+2*i}, 0xffff0000, v{116+i}")
        for i in range(4):
            A(f"v_pk_mul_f32 v[{24+2*i}:{25+2*i}], v[{24+2*i}:{25+2*i}], v[{32+2*i}:{33+2*i}]")
        for i in range(4):
            A(f"v_cvt_pk_bf16_f32 v{32+i}, v{24+2*i}, v{25+2*i}")
        for i in range(4):
            A(f"v_lshlrev_b32 v{24+2*i}, 16, v{32+i}"); A(f"v_and_b32 v{25+2*i}, 0xffff0000, v{32+i}")
        A("v_pk_add_f32 v[24:25], v[24:25], v[28:29]"); A("v_pk_add_f32 v[26:27], v[26:27], v[30:31]")
        A("v_pk_add_f32 v[24:25], v[24:25], v[26:27]"); A("v_add_f32 v8, v24, v25")
        for ror in (8, 4, 2, 1):
            self.nop(2); self.dpp("v_add_f32", 8, 8, 8, f"row_ror:{ror}")
        self.allred_rows("v_add_f32", 8, 9)
        A("v_cvt_pk_bf16_f32 v8, v8, v8"); A("v_lshlrev_b32 v8, 16, v8")
        A(f"v_mul_f32 v8, {0xbfb8aa3b}, v8"); A("v_exp_f32 v8, v8"); self.nop(1)
        A("v_add_f32 v8, 1.0, v8"); A("v_rcp_f32 v8, v8"); self.nop(1)
        A("v_cvt_pk_bf16_f32 v8, v8, v8"); A("v_lshlrev_b32 v8, 16, v8")
        A("v_sub_f32 v9, 1.0, v8"); A("v_cvt_pk_bf16_f32 v9, v9, v9"); A("v_lshlrev_b32 v9, 16, v9")
        A("v_cmp_gt_u32 vcc, 32, v0")
        A("s_lshl_b32 s39, s29, 3"); A("s_add_u32 s39, s39, s28"); A("s_lshl_b32 s39, s39, 2"); A("s_add_u32 s39, s39, s33")
        A("v_cndmask_b32 v120, v9, v8, vcc")
        A("s_lshl_b32 s40, s39, 2"); A("s_add_u32 s40, s40, s31"); A("s_lshl_b32 s40, s40, 4"); A(f"s_add_u32 s40, s40, {FL}")
        A("s_lshl_b32 s39, s39, 4"); A("s_add_u32 s39, s39, s31"); A("s_lshl_b32 s39, s39, 9"); A(f"s_add_u32 s39, s39, {QP}")
        A("s_add_u32 s60, s39, 4096")
        A("s_mov_b32 s63, 0")
        A("v_mov_b32 v18, 0")
        A("s_waitcnt vmcnt(0)")
        A("s_mov_b64 exec, 1")
        A(f"buffer_store_dword v132, v110, s[12:15], s35 offen")
        A("s_mov_b64 exec, -1")
        self.stamp(13)
        A(f"s_mov_b32 s38, {self.n0}"); A(f"s_mov_b32 s62, {self.spin}")
        if not self.skipq:
            A("v_lshlrev_b32 v19, 2, v6")
            D = self.qdepth
            ld = lambda i: A(f"buffer_load_dword v{20+i}, v19, s[12:15], s40 offen{pol}")
            for i in range(D - 1):
                ld(i); A(f"s_sleep {self.qsleep}")
            self.lab("L_qf")
            for i in range(D):
                ld((i + D - 1) % D)
                A(f"s_waitcnt vmcnt({D-1})")
                A(f"v_cmp_ne_u32 vcc, s30, v{20+i}")
                A("s_cmp_eq_u64 vcc, 0"); A("s_cbranch_scc1 L_qfd")
                if D == 1: A(f"s_sleep {self.qsleep}")
            A("s_sub_u32 s38, s38, 1")
            A("s_cbranch_scc0 L_qf")
            A("s_branch L_slow")
            self.lab("L_qfd")
            self.stamp(14)
            A(f"buffer_load_dwordx2 v[8:9], v127, s[12:15], s39 offen{pol}")
            A(f"buffer_load_dwordx2 v[10:11], v127, s[12:15], s39 offen offset:2048{pol}")
            A(f"buffer_load_dwordx2 v[12:13], v127, s[12:15], s60 offen{pol}")
            A(f"buffer_load_dwordx2 v[14:15], v127, s[12:15], s60 offen offset:2048{pol}")
        self.lab("L_qng")
        A(f"s_mul_i32 s3, s33, {QH}"); A("v_lshl_add_u32 v16, v0, 2, s3")
        A("v_lshlrev_b32 v1, 11, v4"); A("v_lshl_add_u32 v1, v3, 4, v1")
        A("s_lshl_b32 s48, s44, 17"); A("s_lshl_b32 s3, s33, 15"); A("s_add_u32 s48, s48, s3")
        A("s_lshl_b32 s3, s32, 8"); A("s_add_u32 s48, s48, s3")
        A("s_waitcnt vmcnt(0)")
        A("v_pk_add_f32 v[8:9], v[8:9], v[10:11]"); A("v_pk_add_f32 v[12:13], v[12:13], v[14:15]")
        A("v_pk_add_f32 v[8:9], v[8:9], v[12:13]")
        A("v_cvt_pk_bf16_f32 v17, v8, v9")
        A(f"ds_write_b32 v16, v17 offset:{L_Q}")
        A("s_mov_b64 exec, 1")
        A(f"ds_add_u32 v110, v18 offset:{L_F+12}")
        A(f"ds_add_u32 v110, v111 offset:{L_F+4}")
        A("s_mov_b64 exec, -1")
        self.stamp(4)
        for r in range(4):
            if 2*r == self.wo_early: A("s_setprio 0")
            A(f"buffer_load_dwordx4 {self.v4(WB+4*r)}, v1, s[20:23], s48 offen{nt}")
            A(f"buffer_load_dwordx4 {self.v4(WB+4*(r+4))}, v1, s[20:23], s48 offen offset:1024{nt}")
            if r < 3: A("s_add_u32 s48, s48, 8192")
        A("s_setprio 3")
        self.stamp(5)
        self.lab("L_vd")
        A(f"ds_read_b32 v2, v110 offset:{L_F+4}")
        A(f"ds_read2_b32 v[134:135], v110 offset0:{(L_F+12)//4 - 256} offset1:{(L_F+16)//4 - 256}".replace("v110", "v133"))
        A("s_waitcnt lgkmcnt(0)")
        A("v_readfirstlane_b32 s40, v2"); A("v_readfirstlane_b32 s3, v135"); A("v_readfirstlane_b32 s49, v134")
        A("s_andn2_b32 s3, s3, s63"); A("s_cbranch_scc1 L_puby2")
        A("s_cmp_ge_u32 s40, 4"); A("s_cbranch_scc1 L_vdd")
        A("s_sleep 2"); A("s_sub_u32 s62, s62, 1"); A("s_cbranch_scc0 L_vd")
        self.lab("L_vdd")
        A("s_cmp_lg_u32 s49, 0"); A(f"s_cselect_b32 s49, {YD}, 0")
        A("s_lshl_b32 s39, s47, 13"); A("s_lshl_b32 s3, s33, 7"); A("s_add_u32 s39, s39, s3"); A(f"s_add_u32 s39, s39, {OP}")
        A("s_lshl_b32 s35, s47, 8"); A(f"s_add_u32 s35, s35, {SP}")
        A("v_lshlrev_b32 v1, 9, v3"); A("v_lshl_add_u32 v1, v4, 5, v1")
        A("v_lshlrev_b32 v2, 4, v3")
        A("s_lshl_b32 s63, s32, 18"); A(f"s_add_u32 s63, s63, {FP}")
        A("s_lshl_b32 s3, s47, 12"); A("s_add_u32 s46, s63, s3"); A("s_lshl_b32 s3, s33, 10"); A("s_add_u32 s46, s46, s3")
        A("v_lshrrev_b32 v121, 2, v0"); A("v_lshlrev_b32 v121, 12, v121"); A("v_lshl_add_u32 v121, v6, 4, v121")
        A("s_lshl_b32 s3, s47, 6"); A("s_add_u32 s63, s63, s3")
        A("s_add_u32 s60, s63, 0x10000"); A("s_add_u32 s61, s63, 0x20000"); A("s_add_u32 s62, s63, 0x30000")
        A("s_lshl_b32 s45, s45, 10"); A("s_lshl_b32 s3, s32, 8"); A("s_add_u32 s45, s45, s3")
        A("s_and_b32 s3, s47, 15"); A("s_lshl_b32 s3, s3, 4"); A("s_add_u32 s45, s45, s3")
        A("v_lshlrev_b32 v126, 2, v6"); A("v_lshl_add_u32 v126, v4, 1, v126")
        A("s_mov_b32 s41, 1")
        A("s_add_u32 s39, s39, s49"); A("s_add_u32 s35, s35, s49")
        A("s_barrier")
        self.stamp(6)
        A(f"buffer_load_dwordx4 v[{OG}:{OG+3}], v1, s[12:15], s39 offen{pol}")
        A(f"buffer_load_dwordx4 v[{OG+4}:{OG+7}], v1, s[12:15], s39 offen offset:16{pol}")
        A(f"buffer_load_dwordx4 v[{OG+8}:{OG+11}], v2, s[12:15], s35 offen{pol}")
        A("s_waitcnt vmcnt(3)")
        self.stamp(7)
        A("s_branch L_tile")
        self.lab("L_fin")
        A("s_mov_b64 exec, -1")
        A("s_waitcnt lgkmcnt(0)")
        A("s_barrier")
        for r in rd: A(r)
        A("s_waitcnt lgkmcnt(0)")
        A("v_pk_add_f32 v[12:13], v[12:13], v[14:15]"); A("v_pk_add_f32 v[16:17], v[16:17], v[18:19]")
        A("v_add_f32 v128, v12, v16"); A("v_add_f32 v130, v13, v17")
        A(f"buffer_store_dwordx4 v[128:131], v109, s[12:15], s46 offen{pol}")
        self.stamp(9)
        A("s_cmp_lg_u32 s33, 0"); A("s_cbranch_scc1 L_C_exit")
        self.poll("f", [f"buffer_load_dwordx4 v[{24+4*i}:{27+4*i}], v121, s[12:15], s{(63,60,61,62)[i]} offen{pol}" for i in range(4)],
                  [25, 27, 29, 31, 33, 35, 37, 39], 40, sleep=self.fsleep)
        self.stamp(10)
        A("v_add_f32 v24, v24, v28"); A("v_add_f32 v26, v26, v30")
        A("v_add_f32 v32, v32, v36"); A("v_add_f32 v34, v34, v38")
        self.nop(1)
        A("v_permlane32_swap_b32 v24, v32"); A("v_permlane32_swap_b32 v26, v34")
        A("v_add_f32 v24, v24, v32"); A("v_add_f32 v26, v26, v34"); self.nop(2)
        A("v_permlane16_swap_b32 v24, v26")
        A("v_add_f32 v24, v24, v26"); self.nop(2)
        self.dpp("v_add_f32", 24, 24, 24, "row_ror:4"); self.nop(2)
        self.dpp("v_add_f32", 24, 24, 24, "row_ror:8")
        A("v_cvt_pk_bf16_f32 v24, v24, v24"); A("v_lshlrev_b32 v24, 16, v24")
        A("v_mul_f32 v24, v24, v120")
        A("v_cvt_pk_bf16_f32 v24, v24, v24"); A("v_lshlrev_b32 v24, 16, v24")
        A("v_mov_b32 v25, v24"); self.nop(2)
        A("v_permlane32_swap_b32 v24, v25")
        A("v_add_f32 v24, v24, v25")
        A("v_cvt_pk_bf16_f32 v24, v24, v24")
        A("s_mov_b64 exec, 0x000f000f")
        A("buffer_store_short v24, v126, s[56:59], s45 offen")
        if self.pad:
            if self.padk >= 0:
                A("s_waitcnt lgkmcnt(0)"); A("s_mov_b32 s90, s92")
            self.lab("L_pad")
            A("s_memrealtime s[94:95]"); A("s_waitcnt lgkmcnt(0)"); A("s_sub_u32 s94, s94, s90")
            A(f"s_cmp_lt_u32 s94, {self.pad}"); A("s_cbranch_scc1 L_pad")
        A("s_cmp_lg_u32 s2, 0"); A("s_cbranch_scc1 L_C_exit")
        A("s_mov_b64 exec, 1")
        A("buffer_store_dword v129, v110, s[12:15], 0 offen")
        self.lab("L_C_exit")
        self.stamp(11)
        if self.stamps:
            A("s_waitcnt vmcnt(0)")
            self.stamp(12)
        self.stamp_out()
        self.lab("L_end")
        A("s_endpgm")
        def puby():
            A(f"s_add_u32 s3, s46, {YD}")
            A(f"buffer_store_dwordx2 v[148:149], v127, s[12:15], s3 offen{pol}")
            A(f"s_add_u32 s3, s35, {YD}")
            A("s_waitcnt vmcnt(0)")
            A("s_mov_b64 exec, 1")
            A(f"buffer_store_dword v132, v110, s[12:15], s3 offen{pol}")
            A("s_mov_b64 exec, -1")
            A("s_mov_b32 s63, 1")
        self.lab("L_puby2")
        puby()
        A("s_branch L_vd")
        self.lab("L_slow")
        A("s_cmp_lg_u32 s63, 0"); A("s_cbranch_scc1 L_slow2")
        A(f"ds_write_b32 v110, v111 offset:{L_F+16}")
        puby()
        self.lab("L_slow2")
        A(f"s_add_u32 s3, s40, {YD}")
        A("s_load_dwordx4 s[48:51], s[12:13], s3 glc")
        A("s_waitcnt lgkmcnt(0)")
        A("s_add_u32 s3, s34, 1")
        A("s_sub_u32 s48, s48, s3"); A("s_sub_u32 s49, s49, s3"); A("s_sub_u32 s50, s50, s3"); A("s_sub_u32 s51, s51, s3")
        A("s_or_b32 s3, s48, s49"); A("s_or_b32 s3, s3, s50"); A("s_or_b32 s3, s3, s51")
        A("s_mov_b32 s38, 0")
        A("s_cmp_lt_u32 s3, 16"); A("s_cbranch_scc1 L_slow3")
        A("s_sub_u32 s62, s62, 1"); A("s_cbranch_scc0 L_qf")
        self.lab("L_slow3")
        A("s_sub_u32 s3, s30, s34"); A("s_sub_u32 s3, s3, 1")
        A("s_xor_b32 s48, s48, s3"); A("s_xor_b32 s49, s49, s3"); A("s_xor_b32 s50, s50, s3"); A("s_xor_b32 s51, s51, s3")
        A("s_or_b64 s[48:49], s[48:49], s[50:51]")
        A("s_cselect_b32 s3, 1, 0"); A("v_mov_b32 v18, s3")
        A(f"s_add_u32 s39, s39, {YD}"); A(f"s_add_u32 s60, s60, {YD}")
        A("s_branch L_qfd")
        L.append('.section .rodata,"a"'); L.append(".p2align 6"); L.append(f".amdhsa_kernel {KN}")
        L.append("  .amdhsa_next_free_vgpr 168"); L.append("  .amdhsa_next_free_sgpr 96"); L.append("  .amdhsa_accum_offset 168")
        L.append("  .amdhsa_group_segment_fixed_size 0"); L.append("  .amdhsa_kernarg_size 112"); L.append("  .amdhsa_user_sgpr_count 2")
        L.append("  .amdhsa_user_sgpr_kernarg_segment_ptr 1"); L.append("  .amdhsa_system_sgpr_workgroup_id_x 1")
        L.append("  .amdhsa_float_denorm_mode_32 3")
        L.append(".end_amdhsa_kernel")
        return "\n".join(L) + "\n"

if __name__ == "__main__":
    out = sys.argv[1]
    kw = {}
    for a in sys.argv[2:]:
        k, v = a.split("=")
        if k in ("stamps", "nt"): v = bool(int(v))
        elif k in ("pol", "qpol"): v = v.replace("+", " ").replace("none", "")
        else: v = int(v)
        kw[k] = v
    open(out, "w").write(G(**kw).gen())
```

```python
import sys
KN = "gated_mix__sliding_block_cached__sliding_block_cached__decode_kernel"
HDR = open("gated_mix__sliding_block_cached__sliding_block_cached__decode.s.ref").read().split("; Override launch")[0]

FL = 0x1000
YD = 0x400000
OP = 0x40000
SP = 0xC0000
EP = 0xD0000
QP = 0x100000
FP = 0x200000
WS_BYTES = 0x600000
STAMP_OFF = 0x4000000
L_Q = 0
QH = 272
L_M = 1280
L_L = 1408
L_F = 1536
L_O = 2048
L_R = L_O + 8*2112
LDS_BYTES = L_R + 4*2112
LOG2E = 0x3fb8aa3b
SCALE = 0x3db504f3
NS = 16

class G:
    def __init__(self, **kw):
        d = dict(padk=-1, pad=0, stamps=0, nt=1, pol="sc1", spin=1 << 16, pf=1, wo_early=0, qsleep=12, forcey=0, pretouch=1,
                 n0=8, qdepth=4, lsplit=1, osleep=0, fsleep=0, b4spin=0, fdelay=0, eta=1, edly=0)
        d.update(kw)
        self.__dict__.update(d)
        self.L = []
        self.nt = " nt" if self.nt else ""
        self.pol = " " + self.pol
    def A(self, s): self.L.append("    " + s)
    def lab(self, s): self.L.append(s + ":")
    def nop(self, n):
        while n > 0:
            k = min(n, 16); self.A(f"s_nop {k-1}"); n -= k
    def stamp(self, i):
        if self.padk == i: self.A("s_memrealtime s[92:93]")
        if self.stamps: self.A(f"s_memrealtime s[{64+2*i}:{65+2*i}]")
    def stamp_out(self):
        if not self.stamps: return
        A = self.A
        A("s_waitcnt lgkmcnt(0)")
        A("s_mul_i32 s60, s2, 12"); A("s_add_u32 s60, s60, s33"); A(f"s_mul_i32 s60, s60, {NS*8}")
        A(f"s_add_u32 s60, s60, {STAMP_OFF}")
        A("s_add_u32 s62, s12, s60"); A("s_addc_u32 s63, s13, 0")
        A("s_mov_b64 exec, 1"); A("v_mov_b32 v4, 0")
        for i in range(NS):
            A(f"v_mov_b32 v2, s{64+2*i}"); A(f"v_mov_b32 v3, s{65+2*i}")
            A(f"global_store_dwordx2 v4, v[2:3], s[62:63] offset:{i*8}"); A("s_nop 1")
    def v4(self, r): return f"v[{r}:{r+3}]"
    def v2(self, r): return f"v[{r}:{r+1}]"
    def perms(self, dst, src, pairs=(0, 1, 2, 3)):
        for q in pairs:
            for w in range(4):
                for hh in range(2):
                    j = 2*w + hh
                    self.A(f"v_perm_b32 v{dst+4*j+q}, v{src+4*(2*q+1)+w}, v{src+4*(2*q)+w}, s{36+hh}")
    def allred_rows(self, op, v, t):
        A = self.A
        A(f"v_mov_b32 v{t}, v{v}"); self.nop(2)
        A(f"v_permlane32_swap_b32 v{v}, v{t}")
        A(f"{op} v{v}, v{v}, v{t}")
        A(f"v_mov_b32 v{t}, v{v}"); self.nop(2)
        A(f"v_permlane16_swap_b32 v{v}, v{t}")
        A(f"{op} v{v}, v{v}, v{t}")
    def dpp(self, op, d, a, b, ctl):
        self.A(f"{op}_dpp v{d}, v{a}, v{b} {ctl} row_mask:0xf bank_mask:0xf")
    def poll(self, name, loads, tagregs, acc, first_issued=False, sleep=0):
        A = self.A
        A(f"s_mov_b32 s38, {self.spin}")
        if first_issued: A(f"s_branch L_chk_{name}")
        elif sleep: A(f"s_branch L_ld_{name}")
        self.lab(f"L_poll_{name}")
        if sleep: A(f"s_sleep {sleep}")
        self.lab(f"L_ld_{name}")
        for l in loads: A(l)
        self.lab(f"L_chk_{name}")
        A("s_waitcnt vmcnt(0)")
        A(f"v_xor_b32 v{acc}, s34, v{tagregs[0]}")
        for r in tagregs[1:]:
            A(f"v_bitop3_b32 v{acc}, v{r}, s34, v{acc} bitop3:0xbe")
        A("s_sub_u32 s38, s38, 1")
        A(f"v_cmp_ne_u32 vcc, 0, v{acc}")
        A("s_cselect_b64 s[50:51], 0, -1")
        A("s_and_b64 exec, vcc, s[50:51]")
        A(f"s_cbranch_scc1 L_poll_{name}")
        A("s_mov_b64 exec, -1")
    def ldsspin(self, name, off, target, reads, sleep=1):
        A = self.A
        A(f"s_mov_b32 s38, {self.spin * 16}")
        if sleep: A(f"s_branch L_spl_{name}")
        self.lab(f"L_sp_{name}")
        if sleep: A(f"s_sleep {sleep}")
        self.lab(f"L_spl_{name}")
        A(f"ds_read_b32 v2, {self.vz} offset:{L_F+off}")
        for r in reads: A(r)
        A("s_sub_u32 s38, s38, 1")
        A("s_cselect_b32 s3, 0, -1")
        A("s_waitcnt lgkmcnt(0)")
        A("v_readfirstlane_b32 s40, v2")
        A("s_orn2_b32 s40, s40, s3")
        A(f"s_cmp_lt_u32 s40, {target}")
        A(f"s_cbranch_scc1 L_sp_{name}")
    def cnt(self, off, one):
        A = self.A
        A("s_mov_b64 exec, 1")
        A(f"ds_add_u32 {self.vz}, {one} offset:{L_F+off}")
    def vissue(self, VB, p):
        for T in (2*p, 2*p+1):
            for e in range(4):
                self.A(f"buffer_load_dwordx4 {self.v4(VB+16*T+4*e)}, v5, s[8:11], s35 offen offset:{256*e}{self.nt}")
            if T < 3: self.A("s_add_u32 s35, s35, 16384")
    def mspin(self, name, B, d):
        A = self.A
        self.ldsspin(name, 8, 8, [f"ds_read_b128 {self.v4(B)}, v6 offset:{L_M}", f"ds_read_b128 {self.v4(B+4)}, v6 offset:{L_M+16}"], sleep=2)
        A(f"v_max3_f32 v{B}, v{B}, v{B+1}, v{B+2}")
        A(f"v_max3_f32 v{B+3}, v{B+3}, v{B+4}, v{B+5}")
        A(f"v_max3_f32 v{B}, v{B}, v{B+6}, v{B+7}")
        A(f"v_max_f32 v{d}, v{B}, v{B+3}")

    def gen(self):
        A = self.A; nt = self.nt; pol = self.pol; v4 = self.v4; v2 = self.v2
        L = self.L
        L.append(HDR.rstrip("\n"))
        L.append(f"; @launch grid=(256,1,1) block=(768,1,1) lds={LDS_BYTES}")
        L.append('.amdgcn_target "amdgcn-amd-amdhsa--gfx950"')
        L.append(".text"); L.append(f".globl {KN}"); L.append(".p2align 12"); L.append(".p2align 8"); L.append(f".type {KN},@function"); L.append(f"{KN}:")
        self.stamp(0)
        if self.pad: A("s_memrealtime s[90:91]")
        if self.stamps:
            for i in range(1, NS): A(f"s_mov_b64 s[{64+2*i}:{65+2*i}], 0")
        A("s_bfe_u32 s29, s2, 0x10002")
        A("s_mul_i32 s3, s29, 40")
        A("s_cmp_ge_u32 s2, 256"); A("s_cbranch_scc1 L_end")
        A("s_load_dwordx2 s[16:17], s[0:1], s3 offset:24")
        A("s_load_dwordx2 s[24:25], s[0:1], 0")
        A("s_load_dwordx2 s[4:5], s[0:1], s3 offset:8")
        A("s_load_dwordx2 s[8:9], s[0:1], s3 offset:16")
        A("s_load_dwordx2 s[12:13], s[0:1], 104")
        A("v_lshrrev_b32 v1, 6, v0")
        A("s_lshr_b32 s30, s2, 3")
        A("v_readfirstlane_b32 s33, v1")
        A("s_and_b32 s28, s2, 3"); A("s_lshl_b32 s28, s28, 1"); A("s_lshr_b32 s31, s30, 4"); A("s_or_b32 s28, s28, s31")
        A("s_bfe_u32 s31, s30, 0x20002"); A("s_and_b32 s32, s30, 3")
        A("v_and_b32 v0, 63, v0")
        A("v_and_b32 v3, 15, v0")
        A("v_lshrrev_b32 v4, 4, v0")
        A("v_bfe_u32 v5, v0, 2, 2")
        A("v_and_b32 v6, 3, v0")
        A("s_cmp_ge_u32 s33, 4"); A("s_cbranch_scc1 L_S")
        WB, PB, DB, XB = 8, 40, 72, 104
        A("s_setprio 3")
        if self.pf:
            A("s_getpc_b64 s[42:43]")
            A("v_lshlrev_b32 v12, 7, v0"); A("v_min_u32 v12, L_last-L_pfbase, v12")
            self.lab("L_pfbase")
            A("global_load_dword v108, v12, s[42:43]")
        A("s_mov_b32 s18, 0x400000"); A("s_mov_b32 s19, 0x20000")
        A("s_mov_b32 s26, 4096"); A("s_mov_b32 s27, 0x20000")
        A("v_lshlrev_b32 v1, 16, v4"); A("v_lshl_add_u32 v1, v3, 4, v1")
        A("v_lshlrev_b32 v2, 10, v5"); A("v_lshl_add_u32 v2, v4, 4, v2")
        A("s_lshl_b32 s44, s28, 2"); A("s_add_u32 s44, s44, s31")
        A("s_lshl_b32 s39, s32, 2"); A("s_add_u32 s39, s39, s33")
        A("s_lshl_b32 s35, s39, 18"); A("s_lshl_b32 s45, s44, 8"); A("s_add_u32 s35, s35, s45")
        A("s_lshl_b32 s39, s39, 6")
        A("s_waitcnt lgkmcnt(0)")
        self.stamp(1)
        A(f"buffer_load_dwordx4 {v4(XB)}, v2, s[24:27], s39 offen")
        for e in range(8):
            A(f"buffer_load_dwordx4 {v4(WB+4*e)}, v1, s[16:19], s35 offen{nt}")
            if e < 7: A("s_add_u32 s35, s35, 8192")
        A("v_mov_b32 v112, 0"); A("v_mov_b32 v113, 0"); A("v_mov_b32 v114, 0"); A("v_mov_b32 v115, 0")
        A(f"ds_write_b128 v112, v[112:115] offset:{L_F}")
        A(f"ds_write_b128 v112, v[112:115] offset:{L_F+16}")
        A("s_waitcnt lgkmcnt(0)")
        A("s_barrier")
        A("s_branch L_C")
        self.lab("L_S")
        KB, VB, QB, SB = 8, 72, 136, 152
        self.vz = "v7"
        A("s_setprio 2")
        A("s_mov_b32 s6, 0x4000000"); A("s_mov_b32 s7, 0x20000")
        A("s_mov_b32 s10, 0x4000000"); A("s_mov_b32 s11, 0x20000")
        A("s_lshl_b32 s35, s31, 3"); A("s_add_u32 s35, s35, s28"); A("s_lshl_b32 s35, s35, 4"); A("s_add_u32 s35, s35, s32")
        A("s_lshl_b32 s35, s35, 1"); A("s_lshr_b32 s3, s33, 3"); A("s_add_u32 s35, s35, s3")
        A("s_lshl_b32 s35, s35, 4"); A("s_and_b32 s3, s33, 3"); A("s_add_u32 s35, s35, s3")
        A("s_lshl_b32 s35, s35, 12"); A("s_add_u32 s35, s35, 0x180000")
        A("v_lshlrev_b32 v1, 10, v5"); A("v_lshl_add_u32 v1, v4, 6, v1"); A("v_lshl_add_u32 v1, v6, 4, v1")
        A(f"v_mul_u32_u24 v2, {QH}, v6"); A("v_lshl_add_u32 v2, v4, 6, v2"); A(f"v_lshl_add_u32 v{QB+12}, v5, 4, v2")
        A("v_lshlrev_b32 v5, 4, v3"); A("v_lshl_add_u32 v5, v4, 10, v5")
        A("s_mov_b32 s39, s35")
        A("s_barrier")
        A("s_waitcnt lgkmcnt(0)")
        self.stamp(1)
        for T in range(4):
            for e in range(4):
                A(f"buffer_load_dwordx4 {v4(KB+16*T+4*e)}, v1, s[4:7], s39 offen offset:{256*e}{nt}")
            if T < 3: A("s_add_u32 s39, s39, 16384")
        A("s_setprio 1")
        self.stamp(2)
        self.vissue(VB, 0)
        A("s_load_dword s34, s[12:13], 0")
        A(f"s_mov_b32 s14, {WS_BYTES}"); A("s_mov_b32 s15, 0x20000")
        A("s_mov_b32 s36, 0x05040100"); A("s_mov_b32 s37, 0x07060302")
        A("v_mov_b32 v7, 0")
        A("v_lshlrev_b32 v6, 5, v6"); A("s_lshl_b32 s3, s33, 2"); A("s_sub_u32 s3, s3, 16"); A("v_add_u32 v3, s3, v6")
        A("s_mov_b32 s45, 0")
        if self.lsplit:
            A("s_cmp_lt_u32 s33, 8"); A("s_cbranch_scc1 L_S_v1")
            A(f"ds_read_b32 v2, v7 offset:{L_F+4}")
            A("s_waitcnt vmcnt(8) lgkmcnt(0)")
            A("v_readfirstlane_b32 s40, v2")
            A("s_cmp_ge_u32 s40, 4"); A("s_cbranch_scc1 L_S_qk")
        self.lab("L_S_v1")
        self.vissue(VB, 1)
        A("s_mov_b32 s45, 1")
        A("s_waitcnt vmcnt(16)")
        self.lab("L_S_qk")
        self.stamp(3)
        self.ldsspin("q", 4, 4, [f"ds_read_b128 {v4(QB)}, v{QB+12} offset:{L_Q}"], sleep=4)
        self.stamp(4)
        Dj = lambda j: (QB + 4 + 4*j) if j < 2 else (KB + 4*(j-2))
        for j in range(16):
            A(f"v_mfma_f32_16x16x32_bf16 {v4(Dj(j))}, {v4(KB+4*j)}, {v4(QB)}, 0")
        A(f"s_mov_b32 s40, {SCALE}"); A(f"s_mov_b32 s41, {LOG2E}")
        A("s_mul_i32 s34, s34, 1664525"); A("s_add_u32 s34, s34, 1013904223")
        for j in range(16): self.dpp("v_add_f32", SB+j, Dj(j)+1, Dj(j), "row_ror:12")
        for j in range(16): self.dpp("v_add_f32", SB+j, Dj(j)+2, SB+j, "row_ror:8")
        for j in range(16): self.dpp("v_add_f32", SB+j, Dj(j)+3, SB+j, "row_ror:4")
        for i in range(8):
            A(f"v_cvt_pk_bf16_f32 v{QB+i}, v{SB+2*i}, v{SB+2*i+1}")
        for i in range(8):
            A(f"v_lshlrev_b32 v{SB+2*i}, 16, v{QB+i}"); A(f"v_and_b32 v{SB+2*i+1}, 0xffff0000, v{QB+i}")
        for i in range(8):
            A(f"v_pk_mul_f32 {v2(SB+2*i)}, {v2(SB+2*i)}, s[40:41] op_sel_hi:[1,0]")
        for i in range(8):
            A(f"v_cvt_pk_bf16_f32 v{QB+i}, v{SB+2*i}, v{SB+2*i+1}")
        for i in range(8):
            A(f"v_lshlrev_b32 v{SB+2*i}, 16, v{QB+i}"); A(f"v_and_b32 v{SB+2*i+1}, 0xffff0000, v{QB+i}")
        A(f"v_max3_f32 v1, v{SB}, v{SB+1}, v{SB+2}")
        A(f"v_max3_f32 v2, v{SB+3}, v{SB+4}, v{SB+5}")
        A(f"v_max3_f32 v1, v1, v{SB+6}, v{SB+7}")
        A(f"v_max3_f32 v2, v2, v{SB+8}, v{SB+9}")
        A(f"v_max3_f32 v1, v1, v{SB+10}, v{SB+11}")
        A(f"v_max3_f32 v2, v2, v{SB+12}, v{SB+13}")
        A(f"v_max3_f32 v1, v1, v{SB+14}, v{SB+15}")
        A("v_max_f32 v1, v1, v2")
        self.allred_rows("v_max_f32", 1, 2)
        A("v_mul_f32 v1, s41, v1")
        A(f"v_mov_b32 v{QB+15}, 1")
        A("s_mov_b64 exec, 15")
        A(f"ds_write_b32 v3, v1 offset:{L_M}")
        self.cnt(8, f"v{QB+15}")
        A("s_mov_b64 exec, -1")
        self.stamp(5)
        A("s_cmp_lt_u32 s33, 8"); A("s_cbranch_scc1 L_S_exp")
        if self.lsplit:
            A("s_cmp_lg_u32 s45, 0"); A("s_cbranch_scc1 L_S_v2")
            self.vissue(VB, 1)
            self.lab("L_S_v2")
        A("s_setprio 2")
        self.stamp(6)
        self.mspin("m", QB, 1)
        self.lab("L_S_exp")
        for i in range(16):
            A(f"v_fma_f32 v{SB+i}, v{SB+i}, s41, -v1")
        for i in range(16):
            A(f"v_exp_f32 v{SB+i}, v{SB+i}")
        for i in range(8):
            A(f"v_cvt_pk_bf16_f32 v{QB+i}, v{SB+2*i}, v{SB+2*i+1}")
        for i in range(4):
            A(f"v_pk_add_f32 {v2(SB+2*i)}, {v2(SB+2*i)}, {v2(SB+8+2*i)}")
        for i in range(2):
            A(f"v_pk_add_f32 {v2(SB+2*i)}, {v2(SB+2*i)}, {v2(SB+4+2*i)}")
        A(f"v_pk_add_f32 {v2(SB)}, {v2(SB)}, {v2(SB+2)}")
        A(f"v_add_f32 v{SB+8}, v{SB}, v{SB+1}")
        self.allred_rows("v_add_f32", SB+8, SB)
        OB, P0, P1 = 8, 40, 72
        A("v_and_b32 v5, 3, v0"); A("v_mul_u32_u24 v5, 528, v5"); A("v_lshl_add_u32 v5, v4, 7, v5")
        A("s_mul_i32 s3, s33, 2112"); A(f"s_add_u32 s3, s3, {L_O - 4*2112}"); A("v_add_u32 v5, s3, v5")
        A("s_mov_b32 s42, 0x000f000f"); A("s_mov_b32 s43, 0x000f000f")
        A("s_cmp_lt_u32 s33, 8"); A("s_cbranch_scc1 L_S_pv")
        A("s_mov_b64 exec, 15")
        A(f"ds_write_b32 v3, v{SB+8} offset:{L_L}")
        self.cnt(20, f"v{QB+15}")
        A("s_mov_b64 exec, -1")
        self.lab("L_S_pv")
        self.stamp(7)
        A("s_waitcnt vmcnt(8)")
        self.perms(P0, VB)
        for j in range(8):
            A(f"v_mfma_f32_16x16x32_bf16 {v4(OB+4*j)}, {v4(P0+4*j)}, {v4(QB)}, 0")
        self.stamp(8)
        for q in range(4):
            A(f"s_waitcnt vmcnt({6-2*q})")
            if q == 3: self.stamp(9)
            self.perms(P1, VB+32, pairs=(q,))
        for j in range(8):
            A(f"v_mfma_f32_16x16x32_bf16 {v4(OB+4*j)}, {v4(P1+4*j)}, {v4(QB+4)}, {v4(OB+4*j)}")
        A("s_cmp_lt_u32 s33, 8"); A("s_cbranch_scc1 L_S_resc")
        A("s_mov_b64 exec, s[42:43]")
        for j in range(8):
            A(f"ds_write_b128 v5, {v4(OB+4*j)} offset:{16*j}")
        A("s_waitcnt lgkmcnt(0)")
        A("s_barrier")
        self.stamp(10)
        self.stamp_out()
        A("s_endpgm")
        self.lab("L_S_resc")
        self.mspin("m2", 40, 48)
        A("v_sub_f32 v1, v1, v48"); A("v_exp_f32 v1, v1")
        A("s_mul_i32 s3, s33, 528"); A(f"s_add_u32 s3, s3, {L_O - 4*528}")
        A("v_lshl_add_u32 v49, v0, 3, s3")
        A(f"v_mul_f32 v{SB+8}, v{SB+8}, v1")
        for i in range(32): A(f"v_mul_f32 v{OB+i}, v{OB+i}, v1")
        A("s_mov_b64 exec, 15")
        A(f"ds_write_b32 v3, v{SB+8} offset:{L_L}")
        self.cnt(20, f"v{QB+15}")
        A("s_mov_b64 exec, s[42:43]")
        for j in range(8):
            A(f"ds_write_b128 v5, {v4(OB+4*j)} offset:{16*j}")
        A("s_mov_b64 exec, -1")
        A("s_lshl_b32 s3, s33, 5"); A("s_sub_u32 s3, s3, 128"); A("v_mov_b32 v60, s3")
        A("s_lshl_b32 s3, s29, 3"); A("s_add_u32 s3, s3, s28"); A("s_lshl_b32 s3, s3, 2"); A("s_add_u32 s3, s3, s33"); A("s_sub_u32 s3, s3, 4")
        A("s_lshl_b32 s3, s3, 2"); A("s_add_u32 s35, s3, s31"); A("s_add_u32 s3, s3, s32"); A("s_lshl_b32 s3, s3, 2"); A("s_add_u32 s3, s3, s31")
        A("s_lshl_b32 s39, s3, 9"); A(f"s_add_u32 s39, s39, {OP}")
        A("s_lshl_b32 s35, s35, 2"); A("s_add_u32 s35, s35, s32"); A("s_lshl_b32 s35, s35, 3"); A(f"s_add_u32 s35, s35, {SP}")
        A("v_lshlrev_b32 v50, 3, v0")
        A("s_and_b32 s3, s33, 3")
        A("v_readlane_b32 s44, v48, s3")
        A("v_mov_b32 v53, s34"); A("v_mov_b32 v57, s34")
        self.ldsspin("l", 20, 8, [f"ds_read_b128 v[24:27], v60 offset:{L_L}", f"ds_read_b128 v[28:31], v60 offset:{L_L+16}",
                                  f"ds_read_b32 v51, v7 offset:{L_F+12}"], sleep=2)
        A("v_readfirstlane_b32 s45, v51")
        A("v_pk_add_f32 v[24:25], v[24:25], v[28:29]"); A("v_pk_add_f32 v[26:27], v[26:27], v[30:31]")
        A("v_pk_add_f32 v[24:25], v[24:25], v[26:27]")
        A("v_add_f32 v58, v24, v25")
        A("v_log_f32 v56, v58"); A("v_rcp_f32 v62, v58")
        A("s_setprio 3")
        A("v_add_f32 v56, s44, v56")
        A("s_mov_b64 exec, 1")
        A("s_cmp_lg_u32 s45, 0"); A("s_cbranch_scc1 L_S_y1")
        A("buffer_store_dwordx2 v[56:57], v7, s[12:15], s35 offen")
        self.lab("L_S_y1r")
        A("s_mov_b64 exec, -1")
        self.stamp(6)
        A("s_barrier")
        self.stamp(10)
        for w in range(8): A(f"ds_read_b64 {v2(8+2*w)}, v49 offset:{2112*w}")
        A("s_waitcnt lgkmcnt(0)")
        for w in (0, 1, 2, 3):
            A(f"v_pk_add_f32 {v2(8+2*w)}, {v2(8+2*w)}, {v2(16+2*w)}")
        A("v_pk_add_f32 v[8:9], v[8:9], v[12:13]"); A("v_pk_add_f32 v[10:11], v[10:11], v[14:15]")
        A("s_cmp_lg_u32 s45, 0")
        A("v_pk_add_f32 v[8:9], v[8:9], v[10:11]")
        A("v_pk_mul_f32 v[8:9], v[8:9], v[62:63] op_sel_hi:[1,0]")
        A("v_cvt_pk_bf16_f32 v52, v8, v9")
        A("s_cbranch_scc1 L_S_y2")
        A("buffer_store_dwordx2 v[52:53], v50, s[12:15], s39 offen")
        self.lab("L_S_x")
        self.stamp(11)
        self.stamp_out()
        A("s_endpgm")
        self.lab("L_C")
        self.vz = "v110"
        A("s_load_dword s34, s[12:13], 0")
        A("s_load_dwordx2 s[20:21], s[0:1], s3 offset:32")
        A("s_load_dwordx2 s[52:53], s[0:1], 80")
        A("s_load_dwordx2 s[56:57], s[0:1], 88")
        A(f"s_mov_b32 s14, {WS_BYTES}"); A("s_mov_b32 s15, 0x20000")
        A("s_mov_b32 s22, 0x400000"); A("s_mov_b32 s23, 0x20000")
        A("s_mov_b32 s36, 0x05040100"); A("s_mov_b32 s37, 0x07060302")
        A("s_mov_b32 s54, 1024"); A("s_mov_b32 s55, 0x20000")
        A("s_mov_b32 s58, 4096"); A("s_mov_b32 s59, 0x20000")
        A("s_lshl_b32 s45, s29, 1"); A("s_lshr_b32 s3, s28, 2"); A("s_add_u32 s45, s45, s3")
        A("v_lshlrev_b32 v109, 4, v0")
        A("s_lshl_b32 s3, s29, 5"); A("s_add_u32 s47, s44, s3")
        A("v_mov_b32 v110, 0"); A("v_mov_b32 v111, 1"); A("v_mov_b32 v133, 1024")
        A("v_lshlrev_b32 v127, 3, v0")
        A("v_mul_u32_u24 v7, 528, v5"); A("v_lshl_add_u32 v7, v4, 7, v7")
        A("s_mul_i32 s3, s33, 2112"); A(f"s_add_u32 s3, s3, {L_R}"); A("v_add_u32 v7, s3, v7")
        A("v_lshlrev_b32 v122, 7, v4"); A("v_lshl_add_u32 v122, v6, 5, v122"); A("v_lshl_add_u32 v122, v5, 2, v122")
        A("s_mul_i32 s3, s33, 528"); A(f"s_add_u32 s3, s3, {L_R}"); A("v_add_u32 v122, s3, v122")
        A("v_add_u32 v123, 2112, v122"); A("v_add_u32 v124, 4224, v122"); A("v_add_u32 v125, 6336, v122")
        A("s_lshl_b32 s46, s47, 2"); A("s_add_u32 s46, s46, s32"); A("s_lshl_b32 s46, s46, 2"); A("s_add_u32 s46, s46, s33")
        A("s_lshl_b32 s46, s46, 10"); A(f"s_add_u32 s46, s46, {QP}")
        A("s_mov_b32 s42, 0x11111111"); A("s_mov_b32 s43, 0x11111111")
        A("s_mov_b32 s41, 0")
        A("s_getreg_b32 s30, hwreg(HW_REG_XCC_ID, 0, 4)")
        if self.forcey: A("s_lshr_b32 s30, s2, 3"); A("s_and_b32 s30, s30, 1")
        A("s_lshl_b32 s3, s45, 10")
        A("s_waitcnt lgkmcnt(0)")
        A("buffer_load_dwordx4 v[112:115], v109, s[24:27], s3 offen")
        A("buffer_load_dwordx4 v[116:119], v109, s[52:55], 0 offen")
        A("s_mul_i32 s34, s34, 1664525"); A("s_add_u32 s34, s34, 1013904223")
        A("v_mov_b32 v129, s34"); A("v_mov_b32 v131, s34")
        A("s_add_u32 s30, s30, s34"); A("s_add_u32 s30, s30, 1")
        A("v_mov_b32 v165, s30"); A("v_mov_b32 v167, s30")
        self.lab("L_tile")
        for q in range(4):
            A(f"s_waitcnt vmcnt({8-2*q})")
            self.perms(PB, WB, pairs=(q,))
        if self.stamps or self.padk in (2, 7):
            A("s_cmp_eq_u32 s41, 0"); A("s_cbranch_scc0 L_st7")
            self.stamp(2); A("s_branch L_st2")
            self.lab("L_st7"); self.stamp(7); self.lab("L_st2")
        A("s_cmp_eq_u32 s41, 0"); A("s_cbranch_scc1 L_mm")
        SG = 136
        OG = 152
        ol = [f"buffer_load_dwordx2 {v2(OG+2*s)}, v1, s[12:15], s{39 if s < 2 else 48} offen offset:{2048*(s&1)}{pol}" for s in range(4)]
        stl = [f"buffer_load_dwordx4 {v4(SG+4*s)}, v2, s[12:15], s35 offen offset:{16*s}{pol}" for s in range(2)]
        for l in ol: A(l)
        A(f"s_mov_b32 s38, {self.spin}"); A("s_mov_b32 s40, 0")
        A("s_mov_b64 s[50:51], -1")
        A("s_waitcnt vmcnt(4)")
        A("s_branch L_og1b")
        self.lab("L_og")
        A("s_waitcnt vmcnt(0)")
        A(f"v_xor_b32 v20, s34, v{OG+1}")
        for s in range(1, 4): A(f"v_bitop3_b32 v20, v{OG+1+2*s}, s34, v20 bitop3:0xbe")
        A("s_sub_u32 s38, s38, 1")
        A("v_cmp_ne_u32 vcc, 0, v20")
        A("s_cselect_b64 s[50:51], 0, -1")
        A("s_and_b64 exec, vcc, s[50:51]")
        A("s_cbranch_scc0 L_og1")
        if self.osleep: A(f"s_sleep {self.osleep}")
        for l in ol: A(l)
        A("s_cmp_lg_u32 s40, 0"); A("s_cbranch_scc1 L_og")
        self.lab("L_og1")
        A("s_cmp_lg_u32 s40, 0"); A("s_cbranch_scc1 L_ogd")
        self.lab("L_og1b")
        A("s_mov_b64 s[54:55], exec")
        A("s_mov_b64 exec, -1")
        A(f"v_xor_b32 v20, s34, v{SG+1}")
        for i in range(1, 4): A(f"v_bitop3_b32 v20, v{SG+1+2*i}, s34, v20 bitop3:0xbe")
        A("v_cmp_ne_u32 vcc, 0, v20")
        A("s_and_b64 vcc, vcc, s[50:51]")
        A("s_cbranch_scc0 L_og2")
        for l in stl: A(l)
        A("s_branch L_og")
        self.lab("L_og2")
        self.stamp(15)
        A(f"v_max3_f32 v20, v{SG}, v{SG+2}, v{SG+4}"); A(f"v_max_f32 v20, v20, v{SG+6}")
        for s in range(4): A(f"v_sub_f32 v{8+2*s}, v{SG+2*s}, v20")
        for s in range(4): A(f"v_exp_f32 v{8+2*s}, v{8+2*s}")
        A("v_add_f32 v20, v8, v10"); A("v_add_f32 v21, v12, v14".replace("v14", "v14")); A("v_add_f32 v20, v20, v21")
        A("v_rcp_f32 v20, v20")
        A("s_mov_b32 s40, 1")
        for s in range(4): A(f"v_mul_f32 v{8+2*s}, v{8+2*s}, v20")
        A("s_mov_b64 exec, s[54:55]")
        A("s_cbranch_execnz L_og")
        self.lab("L_ogd")
        if self.eta:
            A("s_mov_b64 exec, 1")
            A("s_cmp_lg_u32 s49, 0"); A("s_cbranch_scc1 L_ogn")
            A(f"buffer_store_dword v129, v135, s[12:15], 0 offen{pol}")
            self.lab("L_ogn")
        A("s_mov_b64 exec, -1")
        self.stamp(8)
        for s in range(4):
            A(f"v_lshlrev_b32 v{24+2*s}, 16, v{OG+2*s}"); A(f"v_and_b32 v{25+2*s}, 0xffff0000, v{OG+2*s}")
        A(f"v_pk_mul_f32 v[24:25], v[24:25], v[8:9] op_sel_hi:[1,0]")
        A(f"v_pk_mul_f32 v[28:29], v[28:29], v[12:13] op_sel_hi:[1,0]")
        A(f"v_pk_fma_f32 v[24:25], v[26:27], v[10:11], v[24:25] op_sel_hi:[1,0,1]")
        A(f"v_pk_fma_f32 v[28:29], v[30:31], v[14:15], v[28:29] op_sel_hi:[1,0,1]")
        A(f"v_pk_add_f32 v[24:25], v[24:25], v[28:29]")
        A("v_cvt_pk_bf16_f32 v24, v24, v25"); self.nop(2)
        for q in range(4):
            A(f"v_mov_b32_dpp v{XB+q}, v24 quad_perm:[{q},{q},{q},{q}] row_mask:0xf bank_mask:0xf")
        self.nop(2)
        self.lab("L_mm")
        for j in range(8):
            A(f"v_mfma_f32_16x16x32_bf16 {v4(DB+4*j)}, {v4(PB+4*j)}, {v4(XB)}, 0")
        A("s_mov_b64 exec, s[42:43]")
        A("s_cmp_eq_u32 s41, 0")
        for j in range(8):
            A(f"ds_write_b128 v7, {v4(DB+4*j)} offset:{16*j}")
        A("s_cbranch_scc0 L_fin")
        self.cnt(0, "v111")
        A("s_mov_b64 exec, -1")
        rd = [f"ds_read2_b32 {v2(12+2*i)}, v{122+i} offset0:0 offset1:4" for i in range(4)]
        self.ldsspin("c", 0, 4, rd, sleep=0)
        A("v_pk_add_f32 v[12:13], v[12:13], v[14:15]"); A("v_pk_add_f32 v[16:17], v[16:17], v[18:19]")
        A("v_add_f32 v164, v12, v16"); A("v_add_f32 v166, v13, v17")
        A("buffer_store_dwordx4 v[164:167], v109, s[12:15], s46 offen")
        self.stamp(3)
        if self.pretouch:
            A("s_lshl_b32 s3, s32, 2"); A("s_add_u32 s3, s3, s33"); A("s_lshl_b32 s3, s3, 9")
            A("s_lshl_b32 s40, s47, 13"); A("s_add_u32 s3, s3, s40"); A(f"s_add_u32 s3, s3, {OP}")
            A("s_or_b32 s40, s32, s33"); A("s_cbranch_scc1 L_pt")
            A("s_lshl_b32 s40, s47, 7"); A(f"s_add_u32 s40, s40, {SP}")
            A("s_load_dword s49, s[12:13], s40")
            self.lab("L_pt")
            for i in range(4): A(f"s_load_dword s49, s[12:13], s3 offset:{128*i}")
        A("s_waitcnt vmcnt(1)")
        for i in range(4):
            A(f"v_lshlrev_b32 v{24+2*i}, 16, v{112+i}"); A(f"v_and_b32 v{25+2*i}, 0xffff0000, v{112+i}")
            A(f"v_lshlrev_b32 v{32+2*i}, 16, v{116+i}"); A(f"v_and_b32 v{33+2*i}, 0xffff0000, v{116+i}")
        for i in range(4):
            A(f"v_pk_mul_f32 {v2(24+2*i)}, {v2(24+2*i)}, {v2(32+2*i)}")
        for i in range(4):
            A(f"v_cvt_pk_bf16_f32 v{32+i}, v{24+2*i}, v{25+2*i}")
        for i in range(4):
            A(f"v_lshlrev_b32 v{24+2*i}, 16, v{32+i}"); A(f"v_and_b32 v{25+2*i}, 0xffff0000, v{32+i}")
        A("v_pk_add_f32 v[24:25], v[24:25], v[28:29]"); A("v_pk_add_f32 v[26:27], v[26:27], v[30:31]")
        A("v_pk_add_f32 v[24:25], v[24:25], v[26:27]"); A("v_add_f32 v8, v24, v25")
        for ror in (8, 4, 2, 1):
            self.nop(2); self.dpp("v_add_f32", 8, 8, 8, f"row_ror:{ror}")
        self.allred_rows("v_add_f32", 8, 9)
        A("v_cvt_pk_bf16_f32 v8, v8, v8"); A("v_lshlrev_b32 v8, 16, v8")
        A(f"v_mul_f32 v8, {0xbfb8aa3b}, v8"); A("v_exp_f32 v8, v8"); self.nop(1)
        A("v_add_f32 v8, 1.0, v8"); A("v_rcp_f32 v8, v8"); self.nop(1)
        A("v_cvt_pk_bf16_f32 v8, v8, v8"); A("v_lshlrev_b32 v8, 16, v8")
        A("v_sub_f32 v9, 1.0, v8"); A("v_cvt_pk_bf16_f32 v9, v9, v9"); A("v_lshlrev_b32 v9, 16, v9")
        A("v_cmp_gt_u32 vcc, 32, v0")
        A("s_lshl_b32 s39, s29, 3"); A("s_add_u32 s39, s39, s28"); A("s_lshl_b32 s39, s39, 2"); A("s_add_u32 s39, s39, s33")
        A("v_cndmask_b32 v120, v9, v8, vcc")
        A("s_lshl_b32 s39, s39, 4"); A("s_add_u32 s39, s39, s31"); A("s_lshl_b32 s39, s39, 10"); A(f"s_add_u32 s39, s39, {QP}")
        A("s_add_u32 s60, s39, 4096"); A("s_add_u32 s61, s39, 8192"); A("s_add_u32 s40, s39, 12288")
        A("s_mov_b32 s63, 0")
        A("v_mov_b32 v18, 0")
        A("v_lshlrev_b32 v19, 12, v6")
        A(f"s_mov_b32 s38, {self.n0}"); A(f"s_mov_b32 s62, {self.spin}")
        self.stamp(13)
        D = self.qdepth
        ld = lambda i: A(f"buffer_load_dword v{20+i}, v19, s[12:15], s39 offen offset:4{pol}")
        for i in range(D - 1):
            ld(i); A(f"s_sleep {self.qsleep}")
        self.lab("L_qf")
        for i in range(D):
            ld((i + D - 1) % D)
            A(f"s_waitcnt vmcnt({D-1})")
            A(f"v_cmp_ne_u32 vcc, s30, v{20+i}")
            A("s_cmp_eq_u64 vcc, 0"); A("s_cbranch_scc1 L_qfd")
        self.lab("L_qfr")
        A("s_sub_u32 s38, s38, 1")
        A("s_cbranch_scc0 L_qf")
        A("s_branch L_slow")
        self.lab("L_qfd")
        self.stamp(14)
        for i in range(4):
            A(f"buffer_load_dwordx4 {v4(24+4*i)}, v109, s[12:15], s{(39,60,61,40)[i]} offen{pol}")
        A(f"s_mul_i32 s3, s33, {QH}"); A("v_lshl_add_u32 v16, v0, 2, s3")
        A("v_lshlrev_b32 v1, 11, v4"); A("v_lshl_add_u32 v1, v3, 4, v1")
        A("s_lshl_b32 s48, s44, 17"); A("s_lshl_b32 s3, s33, 15"); A("s_add_u32 s48, s48, s3")
        A("s_lshl_b32 s3, s32, 8"); A("s_add_u32 s48, s48, s3")
        A("s_waitcnt vmcnt(0) lgkmcnt(0)")
        A("v_xor_b32 v8, s30, v25")
        for r in (27, 29, 31, 33, 35, 37, 39): A(f"v_bitop3_b32 v8, v{r}, s30, v8 bitop3:0xbe")
        A("v_cmp_ne_u32 vcc, 0, v8"); A("s_cmp_eq_u64 vcc, 0"); A("s_cbranch_scc0 L_qfr")
        self.lab("L_qok")
        A("v_add_f32 v24, v24, v28"); A("v_add_f32 v32, v32, v36"); A("v_add_f32 v26, v26, v30"); A("v_add_f32 v34, v34, v38")
        A("v_add_f32 v24, v24, v32"); A("v_add_f32 v26, v26, v34")
        A("v_cvt_pk_bf16_f32 v17, v24, v26")
        A(f"ds_write_b32 v16, v17 offset:{L_Q}")
        self.cnt(12, "v18")
        A(f"ds_add_u32 v110, v111 offset:{L_F+4}")
        A("s_mov_b64 exec, -1")
        self.stamp(4)
        self.lab("L_vd")
        A(f"ds_read_b32 v2, v110 offset:{L_F+4}")
        A(f"ds_read2_b32 v[134:135], v133 offset0:{(L_F+12)//4 - 256} offset1:{(L_F+16)//4 - 256}")
        A("s_waitcnt lgkmcnt(0)")
        A("v_readfirstlane_b32 s40, v2"); A("v_readfirstlane_b32 s3, v135"); A("v_readfirstlane_b32 s49, v134")
        A("s_andn2_b32 s3, s3, s63"); A("s_cbranch_scc1 L_puby2")
        A("s_cmp_ge_u32 s40, 4"); A("s_cbranch_scc1 L_vdd")
        A("s_sleep 2"); A("s_sub_u32 s62, s62, 1"); A("s_cbranch_scc0 L_vd")
        self.lab("L_vdd")
        for e in range(8):
            if e == self.wo_early: A("s_setprio 0")
            A(f"buffer_load_dwordx4 {v4(WB+4*e)}, v1, s[20:23], s48 offen offset:{1024*(e>>2)}{nt}")
            if e == 3: A("s_sub_u32 s48, s48, 24576")
            elif e < 7: A("s_add_u32 s48, s48, 8192")
        A("s_setprio 3")
        self.stamp(5)
        A("s_cmp_lg_u32 s49, 0"); A(f"s_cselect_b32 s49, {YD}, 0")
        A("s_lshl_b32 s35, s47, 7"); A(f"s_add_u32 s35, s35, {SP}"); A("s_add_u32 s35, s35, s49")
        A("v_lshlrev_b32 v2, 5, v5")
        for l in stl: A(l)
        A("s_lshl_b32 s39, s47, 13"); A("s_lshl_b32 s3, s33, 7"); A("s_add_u32 s39, s39, s3"); A(f"s_add_u32 s39, s39, {OP}")
        A("s_add_u32 s39, s39, s49"); A("s_add_u32 s48, s39, 4096")
        A("v_lshlrev_b32 v1, 9, v5"); A("v_lshl_add_u32 v1, v4, 5, v1"); A("v_lshl_add_u32 v1, v6, 3, v1")
        A("s_lshl_b32 s63, s32, 18"); A(f"s_add_u32 s63, s63, {FP}")
        A("s_lshl_b32 s3, s47, 12"); A("s_add_u32 s46, s63, s3"); A("s_lshl_b32 s3, s33, 10"); A("s_add_u32 s46, s46, s3")
        A("v_lshrrev_b32 v121, 2, v0"); A("v_lshlrev_b32 v121, 12, v121"); A("v_lshl_add_u32 v121, v6, 4, v121")
        A("s_lshl_b32 s3, s47, 6"); A("s_add_u32 s63, s63, s3")
        A("s_add_u32 s60, s63, 0x10000"); A("s_add_u32 s61, s63, 0x20000"); A("s_add_u32 s62, s63, 0x30000")
        A("s_lshl_b32 s45, s45, 10"); A("s_lshl_b32 s3, s32, 8"); A("s_add_u32 s45, s45, s3")
        A("s_and_b32 s3, s47, 15"); A("s_lshl_b32 s3, s3, 4"); A("s_add_u32 s45, s45, s3")
        A("v_lshlrev_b32 v126, 2, v6"); A("v_lshl_add_u32 v126, v4, 1, v126")
        A("s_mov_b32 s41, 1")
        A("s_or_b32 s49, s31, s32"); A("s_or_b32 s49, s49, s33")
        A("s_lshr_b32 s3, s47, 2"); A("s_lshl_b32 s3, s3, 8"); A(f"s_add_u32 s3, s3, {EP}"); A("v_mov_b32 v135, s3")
        A("v_lshlrev_b32 v134, 8, v3"); A(f"v_add_u32 v134, {EP}, v134")
        A("s_barrier")
        self.stamp(6)
        A("s_branch L_tile")
        self.lab("L_fin")
        if self.b4spin:
            self.cnt(28, "v111")
            A("s_mov_b64 exec, -1")
            self.ldsspin("c2", 28, 4, rd, sleep=0)
        else:
            A("s_mov_b64 exec, -1")
            A("s_waitcnt lgkmcnt(0)")
            A("s_barrier")
            for r in rd: A(r)
            A("s_waitcnt lgkmcnt(0)")
        A("v_pk_add_f32 v[12:13], v[12:13], v[14:15]"); A("v_pk_add_f32 v[16:17], v[16:17], v[18:19]")
        A("v_add_f32 v128, v12, v16"); A("v_add_f32 v130, v13, v17")
        A(f"buffer_store_dwordx4 v[128:131], v109, s[12:15], s46 offen{pol}")
        self.stamp(9)
        A("s_cmp_lg_u32 s33, 0"); A("s_cbranch_scc1 L_C_exit")
        if self.fdelay: A(f"s_sleep {self.fdelay}")
        if self.eta:
            self.poll("e", [f"buffer_load_dword v41, v134, s[12:15], 0 offen{pol}"], [41], 40)
            if self.edly: A(f"s_sleep {self.edly}")
        self.poll("f", [f"buffer_load_dwordx4 {v4(24+4*i)}, v121, s[12:15], s{(63,60,61,62)[i]} offen{pol}" for i in range(4)],
                  [25, 27, 29, 31, 33, 35, 37, 39], 40, sleep=self.fsleep)
        self.stamp(10)
        A("v_add_f32 v24, v24, v28"); A("v_add_f32 v26, v26, v30")
        A("v_add_f32 v32, v32, v36"); A("v_add_f32 v34, v34, v38")
        self.nop(1)
        A("v_permlane32_swap_b32 v24, v32"); A("v_permlane32_swap_b32 v26, v34")
        A("v_add_f32 v24, v24, v32"); A("v_add_f32 v26, v26, v34"); self.nop(2)
        A("v_permlane16_swap_b32 v24, v26")
        A("v_add_f32 v24, v24, v26"); self.nop(2)
        self.dpp("v_add_f32", 24, 24, 24, "row_ror:4"); self.nop(2)
        self.dpp("v_add_f32", 24, 24, 24, "row_ror:8")
        A("v_cvt_pk_bf16_f32 v24, v24, v24"); A("v_lshlrev_b32 v24, 16, v24")
        A("v_mul_f32 v24, v24, v120")
        A("v_cvt_pk_bf16_f32 v24, v24, v24"); A("v_lshlrev_b32 v24, 16, v24")
        A("v_mov_b32 v25, v24"); self.nop(2)
        A("v_permlane32_swap_b32 v24, v25")
        A("v_add_f32 v24, v24, v25")
        A("v_cvt_pk_bf16_f32 v24, v24, v24")
        A("s_mov_b64 exec, 0x000f000f")
        A("buffer_store_short v24, v126, s[56:59], s45 offen")
        if self.pad:
            if self.padk >= 0:
                A("s_waitcnt lgkmcnt(0)"); A("s_mov_b32 s90, s92")
            self.lab("L_pad")
            A("s_memrealtime s[94:95]"); A("s_waitcnt lgkmcnt(0)"); A("s_sub_u32 s94, s94, s90")
            A(f"s_cmp_lt_u32 s94, {self.pad}"); A("s_cbranch_scc1 L_pad")
        A("s_cmp_lg_u32 s2, 0"); A("s_cbranch_scc1 L_C_exit")
        A("s_mov_b64 exec, 1")
        A("buffer_store_dword v129, v110, s[12:15], 0 offen")
        self.lab("L_C_exit")
        self.stamp(11)
        if self.stamps:
            A("s_waitcnt vmcnt(0)")
            self.stamp(12)
        self.stamp_out()
        self.lab("L_end")
        A("s_endpgm")
        self.lab("L_last")
        self.lab("L_S_y1")
        A(f"s_add_u32 s35, s35, {YD}")
        A(f"buffer_store_dwordx2 v[56:57], v7, s[12:15], s35 offen{pol}")
        A("s_branch L_S_y1r")
        self.lab("L_S_y2")
        A(f"s_add_u32 s39, s39, {YD}")
        A(f"buffer_store_dwordx2 v[52:53], v50, s[12:15], s39 offen{pol}")
        A("s_branch L_S_x")
        def puby():
            A(f"s_add_u32 s3, s46, {YD}")
            A(f"buffer_store_dwordx4 v[164:167], v109, s[12:15], s3 offen{pol}")
            A("s_mov_b32 s63, 1")
        self.lab("L_puby2")
        puby()
        A("s_branch L_vd")
        self.lab("L_slow")
        A("s_cmp_lg_u32 s63, 0"); A("s_cbranch_scc1 L_slow2")
        A(f"ds_write_b32 v110, v111 offset:{L_F+16}")
        puby()
        self.lab("L_slow2")
        A(f"v_add_u32 v9, {YD}, v109")
        for i in range(4):
            A(f"buffer_load_dwordx4 {v4(24+4*i)}, v9, s[12:15], s{(39,60,61,40)[i]} offen{pol}")
        A("s_add_u32 s3, s34, 1")
        A("s_waitcnt vmcnt(0)")
        A("v_subrev_u32 v8, s3, v25"); A("v_xor_b32 v10, s30, v25")
        for r in (27, 29, 31, 33, 35, 37, 39):
            A(f"v_subrev_u32 v9, s3, v{r}"); A("v_or_b32 v8, v8, v9"); A(f"v_bitop3_b32 v10, v{r}, s30, v10 bitop3:0xbe")
        A("s_mov_b32 s38, 0")
        A("v_cmp_lt_u32 vcc, 15, v8"); A("s_cmp_eq_u64 vcc, 0"); A("s_cbranch_scc1 L_slow3")
        A("s_sleep 8")
        A("s_sub_u32 s62, s62, 1"); A("s_cbranch_scc0 L_qf")
        self.lab("L_slow3")
        A("v_cmp_ne_u32 vcc, 0, v10"); A("s_cmp_lg_u64 vcc, 0")
        A("s_cselect_b32 s3, 1, 0"); A("v_mov_b32 v18, s3")
        A(f"s_mul_i32 s3, s33, {QH}"); A("v_lshl_add_u32 v16, v0, 2, s3")
        A("v_lshlrev_b32 v1, 11, v4"); A("v_lshl_add_u32 v1, v3, 4, v1")
        A("s_lshl_b32 s48, s44, 17"); A("s_lshl_b32 s3, s33, 15"); A("s_add_u32 s48, s48, s3")
        A("s_lshl_b32 s3, s32, 8"); A("s_add_u32 s48, s48, s3")
        A("s_waitcnt lgkmcnt(0)")
        A("s_branch L_qok")
        L.append('.section .rodata,"a"'); L.append(".p2align 6"); L.append(f".amdhsa_kernel {KN}")
        L.append("  .amdhsa_next_free_vgpr 168"); L.append("  .amdhsa_next_free_sgpr 96"); L.append("  .amdhsa_accum_offset 168")
        L.append("  .amdhsa_group_segment_fixed_size 0"); L.append("  .amdhsa_kernarg_size 112"); L.append("  .amdhsa_user_sgpr_count 2")
        L.append("  .amdhsa_user_sgpr_kernarg_segment_ptr 1"); L.append("  .amdhsa_system_sgpr_workgroup_id_x 1")
        L.append("  .amdhsa_float_denorm_mode_32 3")
        L.append(".end_amdhsa_kernel")
        return "\n".join(L) + "\n"

if __name__ == "__main__":
    out = sys.argv[1]
    kw = {}
    for a in sys.argv[2:]:
        k, v = a.split("=")
        kw[k] = v.replace("+", " ") if k == "pol" else int(v)
    open(out, "w").write(G(**kw).gen())
```

```python
import sys
KN = "gated_mix__sliding_block_cached__sliding_block_cached__decode_kernel"
HDR = open("gated_mix__sliding_block_cached__sliding_block_cached__decode.s.ref").read().split("; Override launch")[0]

FL = 0x1000
YD = 0x400000
OP = 0x40000
SP = 0xC0000
EP = 0xD0000
QP = 0x100000
FP = 0x200000
WS_BYTES = 0x600000
STAMP_OFF = 0x4000000
L_Q = 0
QH = 272
L_M = 1280
L_L = 1408
L_F = 1536
L_O = 2048
L_R = L_O + 8*2112
LDS_BYTES = L_R + 4*2112
LOG2E = 0x3fb8aa3b
SCALE = 0x3db504f3
NS = 16

class G:
    def __init__(self, **kw):
        d = dict(padk=-1, pad=0, stamps=0, nt=1, pol="sc1", spin=1 << 16, pf=1, wo_early=0, qsleep=12, forcey=0, pretouch=1,
                 n0=8, qdepth=4, lsplit=1, osleep=0, fsleep=0, b4spin=0, fdelay=0, eta=1, edly=0, tx=0, rm=2, N=3, rot=1, lan=1, qpos=3, wj=31, pat='x0x11x', cw=3, up=99, wo1=0, wj2=-1, wa=8)
        d.update(kw)
        self.__dict__.update(d)
        self.L = []
        self.nt = " nt" if self.nt else ""
        self.pol = " " + self.pol
    def A(self, s): self.L.append("    " + s)
    def lab(self, s): self.L.append(s + ":")
    def nop(self, n):
        while n > 0:
            k = min(n, 16); self.A(f"s_nop {k-1}"); n -= k
    def stamp(self, i):
        if self.padk == i: self.A("s_memrealtime s[92:93]")
        if self.stamps: self.A(f"s_memrealtime s[{64+2*i}:{65+2*i}]")
    def stamp_out(self):
        if not self.stamps: return
        A = self.A
        A("s_waitcnt lgkmcnt(0)")
        A("s_mul_i32 s60, s2, 12"); A("s_add_u32 s60, s60, s33"); A(f"s_mul_i32 s60, s60, {NS*8}")
        A(f"s_add_u32 s60, s60, {STAMP_OFF}")
        A("s_add_u32 s62, s12, s60"); A("s_addc_u32 s63, s13, 0")
        A("s_mov_b64 exec, 1"); A("v_mov_b32 v4, 0")
        for i in range(NS):
            A(f"v_mov_b32 v2, s{64+2*i}"); A(f"v_mov_b32 v3, s{65+2*i}")
            A(f"global_store_dwordx2 v4, v[2:3], s[62:63] offset:{i*8}"); A("s_nop 1")
    def v4(self, r): return f"v[{r}:{r+3}]"
    def v2(self, r): return f"v[{r}:{r+1}]"
    def perms(self, dst, src, pairs=(0, 1, 2, 3)):
        for q in pairs:
            for w in range(4):
                for hh in range(2):
                    j = 2*w + hh
                    self.A(f"v_perm_b32 v{dst+4*j+q}, v{src+4*(2*q+1)+w}, v{src+4*(2*q)+w}, s{36+hh}")
    def allred_rows(self, op, v, t):
        A = self.A
        A(f"v_mov_b32 v{t}, v{v}"); self.nop(2)
        A(f"v_permlane32_swap_b32 v{v}, v{t}")
        A(f"{op} v{v}, v{v}, v{t}")
        A(f"v_mov_b32 v{t}, v{v}"); self.nop(2)
        A(f"v_permlane16_swap_b32 v{v}, v{t}")
        A(f"{op} v{v}, v{v}, v{t}")
    def dpp(self, op, d, a, b, ctl):
        self.A(f"{op}_dpp v{d}, v{a}, v{b} {ctl} row_mask:0xf bank_mask:0xf")
    def poll(self, name, loads, tagregs, acc, first_issued=False, sleep=0):
        A = self.A
        A(f"s_mov_b32 s38, {self.spin}")
        if first_issued: A(f"s_branch L_chk_{name}")
        elif sleep: A(f"s_branch L_ld_{name}")
        self.lab(f"L_poll_{name}")
        if sleep: A(f"s_sleep {sleep}")
        self.lab(f"L_ld_{name}")
        for l in loads: A(l)
        self.lab(f"L_chk_{name}")
        A("s_waitcnt vmcnt(0)")
        A(f"v_xor_b32 v{acc}, s34, v{tagregs[0]}")
        for r in tagregs[1:]:
            A(f"v_bitop3_b32 v{acc}, v{r}, s34, v{acc} bitop3:0xbe")
        A("s_sub_u32 s38, s38, 1")
        A(f"v_cmp_ne_u32 vcc, 0, v{acc}")
        A("s_cselect_b64 s[50:51], 0, -1")
        A("s_and_b64 exec, vcc, s[50:51]")
        A(f"s_cbranch_scc1 L_poll_{name}")
        A("s_mov_b64 exec, -1")
    def ldsspin(self, name, off, target, reads, sleep=1):
        A = self.A
        A(f"s_mov_b32 s38, {self.spin * 16}")
        if sleep: A(f"s_branch L_spl_{name}")
        self.lab(f"L_sp_{name}")
        if sleep: A(f"s_sleep {sleep}")
        self.lab(f"L_spl_{name}")
        A(f"ds_read_b32 v2, {self.vz} offset:{L_F+off}")
        for r in reads: A(r)
        A("s_sub_u32 s38, s38, 1")
        A("s_cselect_b32 s3, 0, -1")
        A("s_waitcnt lgkmcnt(0)")
        A("v_readfirstlane_b32 s40, v2")
        A("s_orn2_b32 s40, s40, s3")
        A(f"s_cmp_lt_u32 s40, {target}")
        A(f"s_cbranch_scc1 L_sp_{name}")
    def cnt(self, off, one):
        A = self.A
        A("s_mov_b64 exec, 1")
        A(f"ds_add_u32 {self.vz}, {one} offset:{L_F+off}")
    def vissue(self, VB, p):
        for T in (2*p, 2*p+1):
            for e in range(4):
                self.A(f"buffer_load_dwordx4 {self.v4(VB+16*T+4*e)}, v5, s[8:11], s35 offen offset:{256*e}{self.nt}")
            if T < 3: self.A("s_add_u32 s35, s35, 16384")
    def mspin(self, name, B, d):
        A = self.A
        self.ldsspin(name, 8, 8, [f"ds_read_b128 {self.v4(B)}, v6 offset:{L_M}", f"ds_read_b128 {self.v4(B+4)}, v6 offset:{L_M+16}"], sleep=2)
        A(f"v_max3_f32 v{B}, v{B}, v{B+1}, v{B+2}")
        A(f"v_max3_f32 v{B+3}, v{B+3}, v{B+4}, v{B+5}")
        A(f"v_max3_f32 v{B}, v{B}, v{B+6}, v{B+7}")
        A(f"v_max_f32 v{d}, v{B}, v{B+3}")

    def gen(self):
        A = self.A; nt = self.nt; pol = self.pol; v4 = self.v4; v2 = self.v2
        L = self.L
        L.append(HDR.rstrip("\n"))
        L.append(f"; @launch grid=(256,1,1) block=(768,1,1) lds={LDS_BYTES}")
        L.append('.amdgcn_target "amdgcn-amd-amdhsa--gfx950"')
        L.append(".text"); L.append(f".globl {KN}"); L.append(".p2align 12"); L.append(".p2align 8"); L.append(f".type {KN},@function"); L.append(f"{KN}:")
        self.stamp(0)
        if self.pad: A("s_memrealtime s[90:91]")
        if self.stamps:
            for i in range(1, NS): A(f"s_mov_b64 s[{64+2*i}:{65+2*i}], 0")
        A("s_bfe_u32 s29, s2, 0x10002")
        A("s_mul_i32 s3, s29, 40")
        A("s_cmp_ge_u32 s2, 256"); A("s_cbranch_scc1 L_end")
        A("s_load_dwordx2 s[16:17], s[0:1], s3 offset:24")
        A("s_load_dwordx2 s[24:25], s[0:1], 0")
        A("s_load_dwordx2 s[4:5], s[0:1], s3 offset:8")
        A("s_load_dwordx2 s[8:9], s[0:1], s3 offset:16")
        A("s_load_dwordx2 s[12:13], s[0:1], 104")
        A("v_lshrrev_b32 v1, 6, v0")
        A("s_lshr_b32 s30, s2, 3")
        if self.tx: A(f"s_xor_b32 s30, s30, {self.tx}")
        A("v_readfirstlane_b32 s33, v1")
        A("s_and_b32 s28, s2, 3"); A("s_lshl_b32 s28, s28, 1"); A("s_lshr_b32 s31, s30, 4"); A("s_or_b32 s28, s28, s31")
        A("s_bfe_u32 s31, s30, 0x20002"); A("s_and_b32 s32, s30, 3")
        A("v_and_b32 v0, 63, v0")
        A("v_and_b32 v3, 15, v0")
        A("v_lshrrev_b32 v4, 4, v0")
        A("v_bfe_u32 v5, v0, 2, 2")
        A("v_and_b32 v6, 3, v0")
        A("s_cmp_ge_u32 s33, 4"); A("s_cbranch_scc1 L_S")
        WB, PB, DB, XB = 8, 40, 72, 104
        A("s_setprio 3")
        if self.pf:
            A("s_getpc_b64 s[42:43]")
            A("v_lshlrev_b32 v12, 7, v0"); A("v_min_u32 v12, L_last-L_pfbase, v12")
            self.lab("L_pfbase")
            A("global_load_dword v108, v12, s[42:43]")
        A("s_mov_b32 s18, 0x400000"); A("s_mov_b32 s19, 0x20000")
        A("s_mov_b32 s26, 4096"); A("s_mov_b32 s27, 0x20000")
        A("v_lshlrev_b32 v1, 16, v4"); A("v_lshl_add_u32 v1, v3, 4, v1")
        A("v_lshlrev_b32 v2, 10, v5"); A("v_lshl_add_u32 v2, v4, 4, v2")
        A("s_lshl_b32 s44, s28, 2"); A("s_add_u32 s44, s44, s31")
        A("s_lshl_b32 s39, s32, 2"); A("s_add_u32 s39, s39, s33")
        A("s_lshl_b32 s35, s39, 18"); A("s_lshl_b32 s45, s44, 8"); A("s_add_u32 s35, s35, s45")
        A("s_lshl_b32 s39, s39, 6")
        A("s_waitcnt lgkmcnt(0)")
        self.stamp(1)
        A(f"buffer_load_dwordx4 {v4(XB)}, v2, s[24:27], s39 offen")
        for e in range(self.cw):
            A(f"buffer_load_dwordx4 {v4(WB+4*e)}, v1, s[16:19], s35 offen{nt}")
            if e < 7: A("s_add_u32 s35, s35, 8192")
        A("v_mov_b32 v112, 0"); A("v_mov_b32 v113, 0"); A("v_mov_b32 v114, 0"); A("v_mov_b32 v115, 0")
        A(f"ds_write_b128 v112, v[112:115] offset:{L_F}")
        A(f"ds_write_b128 v112, v[112:115] offset:{L_F+16}")
        A("s_waitcnt lgkmcnt(0)")
        A("s_barrier")
        A("s_branch L_C")
        self.lab("L_S")
        KB, VB, QB, SB = 8, 72, 136, 152
        self.vz = "v7"
        esh = 10 if self.lan else 8
        A("s_setprio 1")
        A("s_mov_b32 s6, 0x4000000"); A("s_mov_b32 s7, 0x20000")
        A("s_mov_b32 s10, 0x4000000"); A("s_mov_b32 s11, 0x20000")
        A("s_lshl_b32 s35, s31, 3"); A("s_add_u32 s35, s35, s28"); A("s_lshl_b32 s35, s35, 4"); A("s_add_u32 s35, s35, s32")
        A("s_lshl_b32 s35, s35, 5"); A("s_add_u32 s35, s35, s33")
        A("s_lshl_b32 s35, s35, 12"); A(f"s_add_u32 s35, s35, {0x180000 - 4*4096}")
        if self.rot: A(f"s_lshl_b32 s3, s32, {esh}"); A("s_add_u32 s35, s35, s3")
        A(f"v_lshlrev_b32 v1, {18-esh}, v5"); A("v_lshl_add_u32 v1, v4, 6, v1"); A("v_lshl_add_u32 v1, v6, 4, v1")
        A(f"v_mul_u32_u24 v2, {QH}, v6"); A("v_lshl_add_u32 v2, v4, 6, v2"); A(f"v_lshl_add_u32 v{QB+12}, v5, 4, v2")
        A("v_lshlrev_b32 v5, 4, v3"); A(f"v_lshl_add_u32 v5, v4, {18-esh}, v5")
        A("s_barrier")
        A("s_waitcnt lgkmcnt(0)")
        self.stamp(1)
        st = dict(i=0)
        def trig(i):
            if i in (self.wj, self.wj2):
                self.cnt(24, f"v{QB+15}"); A("s_mov_b64 exec, -1")
        def nxt(k=1):
            for _ in range(k):
                i = st["i"]; st["i"] += 1
                n = self.N + (1 if i >= self.up else 0)
                if i < len(self.pat):
                    if self.pat[i] != "x": A(f"s_waitcnt vmcnt({self.pat[i]})")
                elif i >= n: A(f"s_waitcnt vmcnt({n-1})")
                T, e = (i >> 2) & 3, i & 3
                so = "s35"
                if T or e: A(f"s_xor_b32 s39, s35, {T*32768 + (e << esh)}"); so = "s39"
                if i < 16: A(f"buffer_load_dwordx4 {v4(KB+4*i)}, v1, s[4:7], {so} offen{nt}")
                else: A(f"buffer_load_dwordx4 {v4(VB+4*(i-16))}, v5, s[8:11], {so} offen{nt}")
                trig(i)
        def upto(j):
            while st["i"] <= j: nxt()
        nxt(len(self.pat) - len(self.pat.lstrip("x")) if self.pat else self.N)
        A("s_load_dword s34, s[12:13], 0")
        A(f"s_mov_b32 s14, {WS_BYTES}"); A("s_mov_b32 s15, 0x20000")
        A("s_mov_b32 s36, 0x05040100"); A("s_mov_b32 s37, 0x07060302")
        A("v_mov_b32 v7, 0")
        A(f"v_mov_b32 v{QB+15}, 1")
        A("v_lshlrev_b32 v6, 5, v6"); A("s_lshl_b32 s3, s33, 2"); A("s_sub_u32 s3, s3, 16"); A("v_add_u32 v3, s3, v6")
        A(f"v_and_b32 v{QB+13}, 3, v0"); A(f"v_mul_u32_u24 v{QB+13}, 528, v{QB+13}"); A(f"v_lshl_add_u32 v{QB+13}, v4, 7, v{QB+13}")
        A("s_mul_i32 s3, s33, 2112"); A(f"s_add_u32 s3, s3, {L_O - 4*2112}"); A(f"v_add_u32 v{QB+13}, s3, v{QB+13}")
        A("s_mov_b32 s42, 0x000f000f"); A("s_mov_b32 s43, 0x000f000f")
        upto(15)
        self.stamp(2)
        upto(15 + self.qpos)
        A(f"s_waitcnt vmcnt({self.qpos})")
        self.stamp(3)
        self.ldsspin("q", 4, 4, [f"ds_read_b128 {v4(QB)}, v{QB+12} offset:{L_Q}"], sleep=4)
        self.stamp(4)
        Dj = lambda j: (QB + 4 + 4*j) if j < 2 else (KB + 4*(j-2))
        for j in range(16):
            A(f"v_mfma_f32_16x16x32_bf16 {v4(Dj(j))}, {v4(KB+4*j)}, {v4(QB)}, 0")
        A(f"s_mov_b32 s40, {SCALE}"); A(f"s_mov_b32 s41, {LOG2E}")
        A("s_mul_i32 s34, s34, 1664525"); A("s_add_u32 s34, s34, 1013904223")
        nxt()
        for j in range(16): self.dpp("v_add_f32", SB+j, Dj(j)+1, Dj(j), "row_ror:12")
        for j in range(16): self.dpp("v_add_f32", SB+j, Dj(j)+2, SB+j, "row_ror:8")
        for j in range(16): self.dpp("v_add_f32", SB+j, Dj(j)+3, SB+j, "row_ror:4")
        for i in range(8):
            A(f"v_cvt_pk_bf16_f32 v{QB+i}, v{SB+2*i}, v{SB+2*i+1}")
        for i in range(8):
            A(f"v_lshlrev_b32 v{SB+2*i}, 16, v{QB+i}"); A(f"v_and_b32 v{SB+2*i+1}, 0xffff0000, v{QB+i}")
        nxt()
        for i in range(8):
            A(f"v_pk_mul_f32 {v2(SB+2*i)}, {v2(SB+2*i)}, s[40:41] op_sel_hi:[1,0]")
        for i in range(8):
            A(f"v_cvt_pk_bf16_f32 v{QB+i}, v{SB+2*i}, v{SB+2*i+1}")
        for i in range(8):
            A(f"v_lshlrev_b32 v{SB+2*i}, 16, v{QB+i}"); A(f"v_and_b32 v{SB+2*i+1}, 0xffff0000, v{QB+i}")
        A(f"v_max3_f32 v1, v{SB}, v{SB+1}, v{SB+2}")
        A(f"v_max3_f32 v2, v{SB+3}, v{SB+4}, v{SB+5}")
        A(f"v_max3_f32 v1, v1, v{SB+6}, v{SB+7}")
        A(f"v_max3_f32 v2, v2, v{SB+8}, v{SB+9}")
        A(f"v_max3_f32 v1, v1, v{SB+10}, v{SB+11}")
        A(f"v_max3_f32 v2, v2, v{SB+12}, v{SB+13}")
        A(f"v_max3_f32 v1, v1, v{SB+14}, v{SB+15}")
        A("v_max_f32 v1, v1, v2")
        self.allred_rows("v_max_f32", 1, 2)
        A("v_mul_f32 v1, s41, v1")
        A("s_mov_b64 exec, 15")
        A(f"ds_write_b32 v3, v1 offset:{L_M}")
        self.cnt(8, f"v{QB+15}")
        A("s_mov_b64 exec, -1")
        self.stamp(5)
        nxt()
        self.stamp(6)
        self.mspin("m", QB, 1)
        for i in range(16):
            A(f"v_fma_f32 v{SB+i}, v{SB+i}, s41, -v1")
        for i in range(16):
            A(f"v_exp_f32 v{SB+i}, v{SB+i}")
        nxt()
        for i in range(8):
            A(f"v_cvt_pk_bf16_f32 v{QB+i}, v{SB+2*i}, v{SB+2*i+1}")
        for i in range(4):
            A(f"v_pk_add_f32 {v2(SB+2*i)}, {v2(SB+2*i)}, {v2(SB+8+2*i)}")
        for i in range(2):
            A(f"v_pk_add_f32 {v2(SB+2*i)}, {v2(SB+2*i)}, {v2(SB+4+2*i)}")
        A(f"v_pk_add_f32 {v2(SB)}, {v2(SB)}, {v2(SB+2)}")
        A(f"v_add_f32 v{SB+8}, v{SB}, v{SB+1}")
        self.allred_rows("v_add_f32", SB+8, SB)
        OB, P0, P1 = 8, 40, 72
        A("s_mov_b64 exec, 15")
        A(f"ds_write_b32 v3, v{SB+8} offset:{L_L}")
        self.cnt(20, f"v{QB+15}")
        A("s_mov_b64 exec, -1")
        self.stamp(7)
        def need(j):
            upto(min(31, j + self.N + (1 if j + self.N + 1 >= self.up else 0)))
            A(f"s_waitcnt vmcnt({st['i'] - 1 - j})")
        need(23)
        self.perms(P0, VB, pairs=(0, 1))
        if st["i"] < 32: nxt()
        self.perms(P0, VB, pairs=(2, 3))
        for j in range(8):
            A(f"v_mfma_f32_16x16x32_bf16 {v4(OB+4*j)}, {v4(P0+4*j)}, {v4(QB)}, 0")
        self.stamp(8)
        need(25)
        self.perms(P1, VB+32, pairs=(0,))
        A("s_cmp_ge_u32 s33, 8"); A("s_cbranch_scc1 L_S_nr")
        A("s_mul_i32 s3, s33, 528"); A(f"s_add_u32 s3, s3, {L_O - 4*528}")
        A(f"v_lshl_add_u32 v{SB+9}, v0, 3, s3")
        A("s_lshl_b32 s3, s33, 5"); A("s_sub_u32 s3, s3, 128"); A(f"v_mov_b32 v{SB+10}, s3")
        A("s_lshl_b32 s3, s29, 3"); A("s_add_u32 s3, s3, s28"); A("s_lshl_b32 s3, s3, 2"); A("s_add_u32 s3, s3, s33"); A("s_sub_u32 s3, s3, 4")
        A("s_lshl_b32 s3, s3, 2"); A("s_add_u32 s3, s3, s32"); A("s_lshl_b32 s3, s3, 2"); A("s_add_u32 s3, s3, s31")
        A("s_lshl_b32 s46, s3, 9"); A(f"s_add_u32 s46, s46, {OP}")
        A(f"v_lshlrev_b32 v{SB+11}, 3, v0")
        A(f"v_mov_b32 v{SB+13}, s34")
        self.ldsspin("l", 20, 8, [f"ds_read_b128 {v4(SB)}, v{SB+10} offset:{L_L}", f"ds_read_b128 {v4(SB+4)}, v{SB+10} offset:{L_L+16}",
                                  f"ds_read_b32 v1, v7 offset:{L_F+12}"], sleep=2)
        A("v_readfirstlane_b32 s45, v1")
        A(f"v_pk_add_f32 {v2(SB)}, {v2(SB)}, {v2(SB+4)}"); A(f"v_pk_add_f32 {v2(SB+2)}, {v2(SB+2)}, {v2(SB+6)}")
        A(f"v_pk_add_f32 {v2(SB)}, {v2(SB)}, {v2(SB+2)}")
        A(f"v_add_f32 v{SB+14}, v{SB}, v{SB+1}")
        A(f"v_rcp_f32 v{SB+14}, v{SB+14}")
        self.lab("L_S_nr")
        for q in range(1, 4):
            if q == 3 and 33 in (self.wj, self.wj2):
                need(30); trig(33)
            need(25 + 2*q)
            if q == 2: trig(32)
            if q == 3: trig(34); A("s_setprio 3"); self.stamp(9)
            self.perms(P1, VB+32, pairs=(q,))
        for j in range(8):
            A(f"v_mfma_f32_16x16x32_bf16 {v4(OB+4*j)}, {v4(P1+4*j)}, {v4(QB+4)}, {v4(OB+4*j)}")
        A("s_mov_b64 exec, s[42:43]")
        A("s_cmp_ge_u32 s33, 8")
        for j in range(8):
            A(f"ds_write_b128 v{QB+13}, {v4(OB+4*j)} offset:{16*j}")
        A("s_mov_b64 exec, -1")
        A("s_waitcnt lgkmcnt(0)")
        A("s_barrier")
        self.stamp(10)
        A("s_cbranch_scc1 L_S_x")
        for w in range(8): A(f"ds_read_b64 {v2(8+2*w)}, v{SB+9} offset:{2112*w}")
        A("s_waitcnt lgkmcnt(0)")
        for w in (0, 1, 2, 3):
            A(f"v_pk_add_f32 {v2(8+2*w)}, {v2(8+2*w)}, {v2(16+2*w)}")
        A("v_pk_add_f32 v[8:9], v[8:9], v[12:13]"); A("v_pk_add_f32 v[10:11], v[10:11], v[14:15]")
        A("s_cmp_lg_u32 s45, 0")
        A("v_pk_add_f32 v[8:9], v[8:9], v[10:11]")
        A(f"v_pk_mul_f32 v[8:9], v[8:9], {v2(SB+14)} op_sel_hi:[1,0]")
        A(f"v_cvt_pk_bf16_f32 v{SB+12}, v8, v9")
        A("s_cbranch_scc1 L_S_y2")
        A(f"buffer_store_dwordx2 {v2(SB+12)}, v{SB+11}, s[12:15], s46 offen")
        self.lab("L_S_x")
        self.stamp(11)
        self.stamp_out()
        A("s_endpgm")
        self.lab("L_C")
        self.vz = "v110"
        A("s_load_dword s34, s[12:13], 0")
        A("s_load_dwordx2 s[20:21], s[0:1], s3 offset:32")
        A("s_load_dwordx2 s[52:53], s[0:1], 80")
        A("s_load_dwordx2 s[56:57], s[0:1], 88")
        A(f"s_mov_b32 s14, {WS_BYTES}"); A("s_mov_b32 s15, 0x20000")
        A("s_mov_b32 s22, 0x400000"); A("s_mov_b32 s23, 0x20000")
        A("s_mov_b32 s36, 0x05040100"); A("s_mov_b32 s37, 0x07060302")
        A("s_mov_b32 s54, 1024"); A("s_mov_b32 s55, 0x20000")
        A("s_mov_b32 s58, 4096"); A("s_mov_b32 s59, 0x20000")
        A("s_lshl_b32 s45, s29, 1"); A("s_lshr_b32 s3, s28, 2"); A("s_add_u32 s45, s45, s3")
        A("v_lshlrev_b32 v109, 4, v0")
        A("s_lshl_b32 s3, s29, 5"); A("s_add_u32 s47, s44, s3")
        A("v_mov_b32 v110, 0"); A("v_mov_b32 v111, 1"); A("v_mov_b32 v133, 1024")
        A("v_lshlrev_b32 v127, 3, v0")
        A("v_mul_u32_u24 v7, 528, v5"); A("v_lshl_add_u32 v7, v4, 7, v7")
        A("s_mul_i32 s3, s33, 2112"); A(f"s_add_u32 s3, s3, {L_R}"); A("v_add_u32 v7, s3, v7")
        A("v_lshlrev_b32 v122, 7, v4"); A("v_lshl_add_u32 v122, v6, 5, v122"); A("v_lshl_add_u32 v122, v5, 2, v122")
        A("s_mul_i32 s3, s33, 528"); A(f"s_add_u32 s3, s3, {L_R}"); A("v_add_u32 v122, s3, v122")
        A("v_add_u32 v123, 2112, v122"); A("v_add_u32 v124, 4224, v122"); A("v_add_u32 v125, 6336, v122")
        A("s_lshl_b32 s46, s47, 2"); A("s_add_u32 s46, s46, s32"); A("s_lshl_b32 s46, s46, 2"); A("s_add_u32 s46, s46, s33")
        A("s_lshl_b32 s46, s46, 10"); A(f"s_add_u32 s46, s46, {QP}")
        A("s_lshl_b32 s4, s29, 3"); A("s_add_u32 s4, s4, s28"); A("s_lshl_b32 s4, s4, 2"); A("s_add_u32 s4, s4, s33")
        A("s_lshl_b32 s4, s4, 2"); A("s_add_u32 s4, s4, s31"); A("s_lshl_b32 s4, s4, 2"); A("s_add_u32 s4, s4, s32")
        A("s_lshl_b32 s4, s4, 3"); A(f"s_add_u32 s4, s4, {SP}")
        if self.rm >= 0:
            A("s_sub_u32 s3, s32, s31"); A("s_add_u32 s44, s44, s3"); A("s_add_u32 s47, s47, s3")
            A(f"s_add_u32 s32, s31, {self.rm}"); A("s_and_b32 s32, s32, 3")
        A("s_mov_b32 s42, 0x11111111"); A("s_mov_b32 s43, 0x11111111")
        A("s_mov_b32 s41, 0")
        A("s_getreg_b32 s30, hwreg(HW_REG_XCC_ID, 0, 4)")
        if self.forcey: A("s_lshr_b32 s30, s2, 3"); A("s_and_b32 s30, s30, 1")
        A("s_lshl_b32 s3, s45, 10")
        for e in range(self.cw, 8):
            A(f"s_waitcnt vmcnt({self.cw-1})")
            A(f"buffer_load_dwordx4 {v4(WB+4*e)}, v1, s[16:19], s35 offen{nt}")
            if e < 7: A("s_add_u32 s35, s35, 8192")
        A("s_waitcnt lgkmcnt(0)")
        A("buffer_load_dwordx4 v[112:115], v109, s[24:27], s3 offen")
        A("buffer_load_dwordx4 v[116:119], v109, s[52:55], 0 offen")
        A("s_mul_i32 s34, s34, 1664525"); A("s_add_u32 s34, s34, 1013904223")
        A("v_mov_b32 v129, s34"); A("v_mov_b32 v131, s34")
        A("s_add_u32 s30, s30, s34"); A("s_add_u32 s30, s30, 1")
        A("v_mov_b32 v165, s30"); A("v_mov_b32 v167, s30")
        self.lab("L_tile")
        for q in range(4):
            A(f"s_waitcnt vmcnt({8-2*q})")
            self.perms(PB, WB, pairs=(q,))
        if self.stamps or self.padk in (2, 7):
            A("s_cmp_eq_u32 s41, 0"); A("s_cbranch_scc0 L_st7")
            self.stamp(2); A("s_branch L_st2")
            self.lab("L_st7"); self.stamp(7); self.lab("L_st2")
        A("s_cmp_eq_u32 s41, 0"); A("s_cbranch_scc1 L_mm")
        SG = 136
        OG = 152
        ol = [f"buffer_load_dwordx2 {v2(OG+2*s)}, v1, s[12:15], s{39 if s < 2 else 48} offen offset:{2048*(s&1)}{pol}" for s in range(4)]
        stl = [f"buffer_load_dwordx4 {v4(SG+4*s)}, v2, s[12:15], s35 offen offset:{16*s}{pol}" for s in range(2)]
        for l in ol: A(l)
        A(f"s_mov_b32 s38, {self.spin}"); A("s_mov_b32 s40, 0")
        A("s_mov_b64 s[50:51], -1")
        A("s_waitcnt vmcnt(4)")
        A("s_branch L_og1b")
        self.lab("L_og")
        A("s_waitcnt vmcnt(0)")
        A(f"v_xor_b32 v20, s34, v{OG+1}")
        for s in range(1, 4): A(f"v_bitop3_b32 v20, v{OG+1+2*s}, s34, v20 bitop3:0xbe")
        A("s_sub_u32 s38, s38, 1")
        A("v_cmp_ne_u32 vcc, 0, v20")
        A("s_cselect_b64 s[50:51], 0, -1")
        A("s_and_b64 exec, vcc, s[50:51]")
        A("s_cbranch_scc0 L_og1")
        if self.osleep: A(f"s_sleep {self.osleep}")
        for l in ol: A(l)
        A("s_cmp_lg_u32 s40, 0"); A("s_cbranch_scc1 L_og")
        self.lab("L_og1")
        A("s_cmp_lg_u32 s40, 0"); A("s_cbranch_scc1 L_ogd")
        self.lab("L_og1b")
        A("s_mov_b64 s[54:55], exec")
        A("s_mov_b64 exec, -1")
        A(f"v_xor_b32 v20, s34, v{SG+1}")
        for i in range(1, 4): A(f"v_bitop3_b32 v20, v{SG+1+2*i}, s34, v20 bitop3:0xbe")
        A("v_cmp_ne_u32 vcc, 0, v20")
        A("s_and_b64 vcc, vcc, s[50:51]")
        A("s_cbranch_scc0 L_og2")
        for l in stl: A(l)
        A("s_branch L_og")
        self.lab("L_og2")
        self.stamp(15)
        A(f"v_max3_f32 v20, v{SG}, v{SG+2}, v{SG+4}"); A(f"v_max_f32 v20, v20, v{SG+6}")
        for s in range(4): A(f"v_sub_f32 v{8+2*s}, v{SG+2*s}, v20")
        for s in range(4): A(f"v_exp_f32 v{8+2*s}, v{8+2*s}")
        A("v_add_f32 v20, v8, v10"); A("v_add_f32 v21, v12, v14".replace("v14", "v14")); A("v_add_f32 v20, v20, v21")
        A("v_rcp_f32 v20, v20")
        A("s_mov_b32 s40, 1")
        for s in range(4): A(f"v_mul_f32 v{8+2*s}, v{8+2*s}, v20")
        A("s_mov_b64 exec, s[54:55]")
        A("s_cbranch_execnz L_og")
        self.lab("L_ogd")
        if self.eta:
            A("s_mov_b64 exec, 1")
            A("s_cmp_lg_u32 s49, 0"); A("s_cbranch_scc1 L_ogn")
            A(f"buffer_store_dword v129, v135, s[12:15], 0 offen{pol}")
            self.lab("L_ogn")
        A("s_mov_b64 exec, -1")
        self.stamp(8)
        for s in range(4):
            A(f"v_lshlrev_b32 v{24+2*s}, 16, v{OG+2*s}"); A(f"v_and_b32 v{25+2*s}, 0xffff0000, v{OG+2*s}")
        A(f"v_pk_mul_f32 v[24:25], v[24:25], v[8:9] op_sel_hi:[1,0]")
        A(f"v_pk_mul_f32 v[28:29], v[28:29], v[12:13] op_sel_hi:[1,0]")
        A(f"v_pk_fma_f32 v[24:25], v[26:27], v[10:11], v[24:25] op_sel_hi:[1,0,1]")
        A(f"v_pk_fma_f32 v[28:29], v[30:31], v[14:15], v[28:29] op_sel_hi:[1,0,1]")
        A(f"v_pk_add_f32 v[24:25], v[24:25], v[28:29]")
        A("v_cvt_pk_bf16_f32 v24, v24, v25"); self.nop(2)
        for q in range(4):
            A(f"v_mov_b32_dpp v{XB+q}, v24 quad_perm:[{q},{q},{q},{q}] row_mask:0xf bank_mask:0xf")
        self.nop(2)
        self.lab("L_mm")
        for j in range(8):
            A(f"v_mfma_f32_16x16x32_bf16 {v4(DB+4*j)}, {v4(PB+4*j)}, {v4(XB)}, 0")
        A("s_mov_b64 exec, s[42:43]")
        A("s_cmp_eq_u32 s41, 0")
        for j in range(8):
            A(f"ds_write_b128 v7, {v4(DB+4*j)} offset:{16*j}")
        A("s_cbranch_scc0 L_fin")
        self.cnt(0, "v111")
        A("s_mov_b64 exec, -1")
        rd = [f"ds_read2_b32 {v2(12+2*i)}, v{122+i} offset0:0 offset1:4" for i in range(4)]
        self.ldsspin("c", 0, 4, rd, sleep=0)
        A("v_pk_add_f32 v[12:13], v[12:13], v[14:15]"); A("v_pk_add_f32 v[16:17], v[16:17], v[18:19]")
        A("v_add_f32 v164, v12, v16"); A("v_add_f32 v166, v13, v17")
        A("buffer_store_dwordx4 v[164:167], v109, s[12:15], s46 offen")
        self.stamp(3)
        if self.pretouch:
            A("s_lshl_b32 s3, s32, 2"); A("s_add_u32 s3, s3, s33"); A("s_lshl_b32 s3, s3, 9")
            A("s_lshl_b32 s40, s47, 13"); A("s_add_u32 s3, s3, s40"); A(f"s_add_u32 s3, s3, {OP}")
            A("s_or_b32 s40, s32, s33"); A("s_cbranch_scc1 L_pt")
            A("s_lshl_b32 s40, s47, 7"); A(f"s_add_u32 s40, s40, {SP}")
            A("s_load_dword s49, s[12:13], s40")
            self.lab("L_pt")
            for i in range(4): A(f"s_load_dword s49, s[12:13], s3 offset:{128*i}")
        A("s_waitcnt vmcnt(1)")
        for i in range(4):
            A(f"v_lshlrev_b32 v{24+2*i}, 16, v{112+i}"); A(f"v_and_b32 v{25+2*i}, 0xffff0000, v{112+i}")
            A(f"v_lshlrev_b32 v{32+2*i}, 16, v{116+i}"); A(f"v_and_b32 v{33+2*i}, 0xffff0000, v{116+i}")
        for i in range(4):
            A(f"v_pk_mul_f32 {v2(24+2*i)}, {v2(24+2*i)}, {v2(32+2*i)}")
        for i in range(4):
            A(f"v_cvt_pk_bf16_f32 v{32+i}, v{24+2*i}, v{25+2*i}")
        for i in range(4):
            A(f"v_lshlrev_b32 v{24+2*i}, 16, v{32+i}"); A(f"v_and_b32 v{25+2*i}, 0xffff0000, v{32+i}")
        A("v_pk_add_f32 v[24:25], v[24:25], v[28:29]"); A("v_pk_add_f32 v[26:27], v[26:27], v[30:31]")
        A("v_pk_add_f32 v[24:25], v[24:25], v[26:27]"); A("v_add_f32 v8, v24, v25")
        for ror in (8, 4, 2, 1):
            self.nop(2); self.dpp("v_add_f32", 8, 8, 8, f"row_ror:{ror}")
        self.allred_rows("v_add_f32", 8, 9)
        A("v_cvt_pk_bf16_f32 v8, v8, v8"); A("v_lshlrev_b32 v8, 16, v8")
        A(f"v_mul_f32 v8, {0xbfb8aa3b}, v8"); A("v_exp_f32 v8, v8"); self.nop(1)
        A("v_add_f32 v8, 1.0, v8"); A("v_rcp_f32 v8, v8"); self.nop(1)
        A("v_cvt_pk_bf16_f32 v8, v8, v8"); A("v_lshlrev_b32 v8, 16, v8")
        A("v_sub_f32 v9, 1.0, v8"); A("v_cvt_pk_bf16_f32 v9, v9, v9"); A("v_lshlrev_b32 v9, 16, v9")
        A("v_cmp_gt_u32 vcc, 32, v0")
        A("s_lshl_b32 s39, s29, 3"); A("s_add_u32 s39, s39, s28"); A("s_lshl_b32 s39, s39, 2"); A("s_add_u32 s39, s39, s33")
        A("v_cndmask_b32 v120, v9, v8, vcc")
        A("s_lshl_b32 s39, s39, 4"); A("s_add_u32 s39, s39, s31"); A("s_lshl_b32 s39, s39, 10"); A(f"s_add_u32 s39, s39, {QP}")
        A("s_add_u32 s60, s39, 4096"); A("s_add_u32 s61, s39, 8192"); A("s_add_u32 s40, s39, 12288")
        A("s_mov_b32 s63, 0")
        A("v_mov_b32 v18, 0")
        A("v_lshlrev_b32 v19, 12, v6")
        A(f"s_mov_b32 s38, {self.n0}"); A(f"s_mov_b32 s62, {self.spin}")
        self.stamp(13)
        D = self.qdepth
        ld = lambda i: A(f"buffer_load_dword v{20+i}, v19, s[12:15], s39 offen offset:4{pol}")
        for i in range(D - 1):
            ld(i); A(f"s_sleep {self.qsleep}")
        self.lab("L_qf")
        for i in range(D):
            ld((i + D - 1) % D)
            A(f"s_waitcnt vmcnt({D-1})")
            A(f"v_cmp_ne_u32 vcc, s30, v{20+i}")
            A("s_cmp_eq_u64 vcc, 0"); A("s_cbranch_scc1 L_qfd")
        self.lab("L_qfr")
        A("s_sub_u32 s38, s38, 1")
        A("s_cbranch_scc0 L_qf")
        A("s_branch L_slow")
        self.lab("L_qfd")
        self.stamp(14)
        for i in range(4):
            A(f"buffer_load_dwordx4 {v4(24+4*i)}, v109, s[12:15], s{(39,60,61,40)[i]} offen{pol}")
        A(f"s_mul_i32 s3, s33, {QH}"); A("v_lshl_add_u32 v16, v0, 2, s3")
        A("v_lshlrev_b32 v1, 11, v4"); A("v_lshl_add_u32 v1, v3, 4, v1")
        A("s_lshl_b32 s48, s44, 17"); A("s_lshl_b32 s3, s33, 15"); A("s_add_u32 s48, s48, s3")
        A("s_lshl_b32 s3, s32, 8"); A("s_add_u32 s48, s48, s3")
        A("s_waitcnt vmcnt(0) lgkmcnt(0)")
        A("v_xor_b32 v8, s30, v25")
        for r in (27, 29, 31, 33, 35, 37, 39): A(f"v_bitop3_b32 v8, v{r}, s30, v8 bitop3:0xbe")
        A("v_cmp_ne_u32 vcc, 0, v8"); A("s_cmp_eq_u64 vcc, 0"); A("s_cbranch_scc0 L_qfr")
        self.lab("L_qok")
        A("v_add_f32 v24, v24, v28"); A("v_add_f32 v32, v32, v36"); A("v_add_f32 v26, v26, v30"); A("v_add_f32 v34, v34, v38")
        A("v_add_f32 v24, v24, v32"); A("v_add_f32 v26, v26, v34")
        A("v_cvt_pk_bf16_f32 v17, v24, v26")
        A(f"ds_write_b32 v16, v17 offset:{L_Q}")
        self.cnt(12, "v18")
        A(f"ds_add_u32 v110, v111 offset:{L_F+4}")
        A("s_mov_b64 exec, -1")
        self.stamp(4)
        self.lab("L_vd")
        A(f"ds_read_b32 v2, v110 offset:{L_F+4}")
        A(f"ds_read2_b32 v[134:135], v133 offset0:{(L_F+12)//4 - 256} offset1:{(L_F+16)//4 - 256}")
        A("s_waitcnt lgkmcnt(0)")
        A("v_readfirstlane_b32 s40, v2"); A("v_readfirstlane_b32 s3, v135"); A("v_readfirstlane_b32 s49, v134")
        A("s_andn2_b32 s3, s3, s63"); A("s_cbranch_scc1 L_puby2")
        A("s_cmp_ge_u32 s40, 4"); A("s_cbranch_scc1 L_vdd")
        A("s_sleep 2"); A("s_sub_u32 s62, s62, 1"); A("s_cbranch_scc0 L_vd")
        self.lab("L_vdd")
        A("s_lshl_b32 s3, s33, 5"); A("v_mov_b32 v56, s3")
        self.ldsspin("l2", 20, 8, [f"ds_read_b128 v[40:43], v56 offset:{L_M}", f"ds_read_b128 v[44:47], v56 offset:{L_M+16}",
                                   f"ds_read_b128 v[48:51], v56 offset:{L_L}", f"ds_read_b128 v[52:55], v56 offset:{L_L+16}"], sleep=4)
        A("v_max3_f32 v40, v40, v41, v42"); A("v_max3_f32 v43, v43, v44, v45"); A("v_max3_f32 v40, v40, v46, v47")
        A("v_pk_add_f32 v[48:49], v[48:49], v[52:53]"); A("v_pk_add_f32 v[50:51], v[50:51], v[54:55]")
        A("v_pk_add_f32 v[48:49], v[48:49], v[50:51]"); A("v_add_f32 v48, v48, v49")
        A("v_log_f32 v48, v48"); A("v_max_f32 v40, v40, v43")
        A("s_cmp_lg_u32 s49, 0")
        A("v_add_f32 v128, v40, v48")
        A("s_mov_b64 exec, 1")
        A("s_cbranch_scc1 L_S_y1")
        A("buffer_store_dwordx2 v[128:129], v110, s[12:15], s4 offen")
        self.lab("L_S_y1r")
        A("s_mov_b64 exec, -1")
        for e in range(8):
            if e == self.wo1: self.ldsspin("w", 24, 8, [], sleep=2)
            if e == self.wa: self.ldsspin("w2", 24, 16, [], sleep=1)
            if e == self.wo_early: A("s_setprio 0")
            A(f"buffer_load_dwordx4 {v4(WB+4*e)}, v1, s[20:23], s48 offen offset:{1024*(e>>2)}{nt}")
            if e == 3: A("s_sub_u32 s48, s48, 24576")
            elif e < 7: A("s_add_u32 s48, s48, 8192")
        A("s_setprio 3")
        self.stamp(5)
        A("s_cmp_lg_u32 s49, 0"); A(f"s_cselect_b32 s49, {YD}, 0")
        A("s_lshl_b32 s35, s47, 7"); A(f"s_add_u32 s35, s35, {SP}"); A("s_add_u32 s35, s35, s49")
        A("v_lshlrev_b32 v2, 5, v5")
        for l in stl: A(l)
        A("s_lshl_b32 s39, s47, 13"); A("s_lshl_b32 s3, s33, 7"); A("s_add_u32 s39, s39, s3"); A(f"s_add_u32 s39, s39, {OP}")
        A("s_add_u32 s39, s39, s49"); A("s_add_u32 s48, s39, 4096")
        A("v_lshlrev_b32 v1, 9, v5"); A("v_lshl_add_u32 v1, v4, 5, v1"); A("v_lshl_add_u32 v1, v6, 3, v1")
        A("s_lshl_b32 s63, s32, 18"); A(f"s_add_u32 s63, s63, {FP}")
        A("s_lshl_b32 s3, s47, 12"); A("s_add_u32 s46, s63, s3"); A("s_lshl_b32 s3, s33, 10"); A("s_add_u32 s46, s46, s3")
        A("v_lshrrev_b32 v121, 2, v0"); A("v_lshlrev_b32 v121, 12, v121"); A("v_lshl_add_u32 v121, v6, 4, v121")
        A("s_lshl_b32 s3, s47, 6"); A("s_add_u32 s63, s63, s3")
        A("s_add_u32 s60, s63, 0x10000"); A("s_add_u32 s61, s63, 0x20000"); A("s_add_u32 s62, s63, 0x30000")
        A("s_lshl_b32 s45, s45, 10"); A("s_lshl_b32 s3, s32, 8"); A("s_add_u32 s45, s45, s3")
        A("s_and_b32 s3, s47, 15"); A("s_lshl_b32 s3, s3, 4"); A("s_add_u32 s45, s45, s3")
        A("v_lshlrev_b32 v126, 2, v6"); A("v_lshl_add_u32 v126, v4, 1, v126")
        A("s_mov_b32 s41, 1")
        A("s_and_b32 s49, s44, 3"); A("s_or_b32 s49, s49, s32"); A("s_or_b32 s49, s49, s33")
        A("s_lshr_b32 s3, s47, 2"); A("s_lshl_b32 s3, s3, 8"); A(f"s_add_u32 s3, s3, {EP}"); A("v_mov_b32 v135, s3")
        A("v_lshlrev_b32 v134, 8, v3"); A(f"v_add_u32 v134, {EP}, v134")
        A("s_barrier")
        self.stamp(6)
        A("s_branch L_tile")
        self.lab("L_fin")
        if self.b4spin:
            self.cnt(28, "v111")
            A("s_mov_b64 exec, -1")
            self.ldsspin("c2", 28, 4, rd, sleep=0)
        else:
            A("s_mov_b64 exec, -1")
            A("s_waitcnt lgkmcnt(0)")
            A("s_barrier")
            for r in rd: A(r)
            A("s_waitcnt lgkmcnt(0)")
        A("v_pk_add_f32 v[12:13], v[12:13], v[14:15]"); A("v_pk_add_f32 v[16:17], v[16:17], v[18:19]")
        A("v_add_f32 v128, v12, v16"); A("v_add_f32 v130, v13, v17")
        A(f"buffer_store_dwordx4 v[128:131], v109, s[12:15], s46 offen{pol}")
        self.stamp(9)
        A("s_cmp_lg_u32 s33, 0"); A("s_cbranch_scc1 L_C_exit")
        if self.fdelay: A(f"s_sleep {self.fdelay}")
        if self.eta:
            self.poll("e", [f"buffer_load_dword v41, v134, s[12:15], 0 offen{pol}"], [41], 40)
            if self.edly: A(f"s_sleep {self.edly}")
        self.poll("f", [f"buffer_load_dwordx4 {v4(24+4*i)}, v121, s[12:15], s{(63,60,61,62)[i]} offen{pol}" for i in range(4)],
                  [25, 27, 29, 31, 33, 35, 37, 39], 40, sleep=self.fsleep)
        self.stamp(10)
        A("v_add_f32 v24, v24, v28"); A("v_add_f32 v26, v26, v30")
        A("v_add_f32 v32, v32, v36"); A("v_add_f32 v34, v34, v38")
        self.nop(1)
        A("v_permlane32_swap_b32 v24, v32"); A("v_permlane32_swap_b32 v26, v34")
        A("v_add_f32 v24, v24, v32"); A("v_add_f32 v26, v26, v34"); self.nop(2)
        A("v_permlane16_swap_b32 v24, v26")
        A("v_add_f32 v24, v24, v26"); self.nop(2)
        self.dpp("v_add_f32", 24, 24, 24, "row_ror:4"); self.nop(2)
        self.dpp("v_add_f32", 24, 24, 24, "row_ror:8")
        A("v_cvt_pk_bf16_f32 v24, v24, v24"); A("v_lshlrev_b32 v24, 16, v24")
        A("v_mul_f32 v24, v24, v120")
        A("v_cvt_pk_bf16_f32 v24, v24, v24"); A("v_lshlrev_b32 v24, 16, v24")
        A("v_mov_b32 v25, v24"); self.nop(2)
        A("v_permlane32_swap_b32 v24, v25")
        A("v_add_f32 v24, v24, v25")
        A("v_cvt_pk_bf16_f32 v24, v24, v24")
        A("s_mov_b64 exec, 0x000f000f")
        A("buffer_store_short v24, v126, s[56:59], s45 offen")
        if self.pad:
            if self.padk >= 0:
                A("s_waitcnt lgkmcnt(0)"); A("s_mov_b32 s90, s92")
            self.lab("L_pad")
            A("s_memrealtime s[94:95]"); A("s_waitcnt lgkmcnt(0)"); A("s_sub_u32 s94, s94, s90")
            A(f"s_cmp_lt_u32 s94, {self.pad}"); A("s_cbranch_scc1 L_pad")
        A("s_cmp_lg_u32 s2, 0"); A("s_cbranch_scc1 L_C_exit")
        A("s_mov_b64 exec, 1")
        A("buffer_store_dword v129, v110, s[12:15], 0 offen")
        self.lab("L_C_exit")
        self.stamp(11)
        if self.stamps:
            A("s_waitcnt vmcnt(0)")
            self.stamp(12)
        self.stamp_out()
        self.lab("L_end")
        A("s_endpgm")
        self.lab("L_last")
        self.lab("L_S_y1")
        A(f"s_add_u32 s4, s4, {YD}")
        A(f"buffer_store_dwordx2 v[128:129], v110, s[12:15], s4 offen{pol}")
        A("s_branch L_S_y1r")
        self.lab("L_S_y2")
        A(f"s_add_u32 s46, s46, {YD}")
        A(f"buffer_store_dwordx2 {v2(SB+12)}, v{SB+11}, s[12:15], s46 offen{pol}")
        A("s_branch L_S_x")
        def puby():
            A(f"s_add_u32 s3, s46, {YD}")
            A(f"buffer_store_dwordx4 v[164:167], v109, s[12:15], s3 offen{pol}")
            A("s_mov_b32 s63, 1")
        self.lab("L_puby2")
        puby()
        A("s_branch L_vd")
        self.lab("L_slow")
        A("s_cmp_lg_u32 s63, 0"); A("s_cbranch_scc1 L_slow2")
        A(f"ds_write_b32 v110, v111 offset:{L_F+16}")
        puby()
        self.lab("L_slow2")
        A(f"v_add_u32 v9, {YD}, v109")
        for i in range(4):
            A(f"buffer_load_dwordx4 {v4(24+4*i)}, v9, s[12:15], s{(39,60,61,40)[i]} offen{pol}")
        A("s_add_u32 s3, s34, 1")
        A("s_waitcnt vmcnt(0)")
        A("v_subrev_u32 v8, s3, v25"); A("v_xor_b32 v10, s30, v25")
        for r in (27, 29, 31, 33, 35, 37, 39):
            A(f"v_subrev_u32 v9, s3, v{r}"); A("v_or_b32 v8, v8, v9"); A(f"v_bitop3_b32 v10, v{r}, s30, v10 bitop3:0xbe")
        A("s_mov_b32 s38, 0")
        A("v_cmp_lt_u32 vcc, 15, v8"); A("s_cmp_eq_u64 vcc, 0"); A("s_cbranch_scc1 L_slow3")
        A("s_sleep 8")
        A("s_sub_u32 s62, s62, 1"); A("s_cbranch_scc0 L_qf")
        self.lab("L_slow3")
        A("v_cmp_ne_u32 vcc, 0, v10"); A("s_cmp_lg_u64 vcc, 0")
        A("s_cselect_b32 s3, 1, 0"); A("v_mov_b32 v18, s3")
        A(f"s_mul_i32 s3, s33, {QH}"); A("v_lshl_add_u32 v16, v0, 2, s3")
        A("v_lshlrev_b32 v1, 11, v4"); A("v_lshl_add_u32 v1, v3, 4, v1")
        A("s_lshl_b32 s48, s44, 17"); A("s_lshl_b32 s3, s33, 15"); A("s_add_u32 s48, s48, s3")
        A("s_lshl_b32 s3, s32, 8"); A("s_add_u32 s48, s48, s3")
        A("s_waitcnt lgkmcnt(0)")
        A("s_branch L_qok")
        L.append('.section .rodata,"a"'); L.append(".p2align 6"); L.append(f".amdhsa_kernel {KN}")
        L.append("  .amdhsa_next_free_vgpr 168"); L.append("  .amdhsa_next_free_sgpr 96"); L.append("  .amdhsa_accum_offset 168")
        L.append("  .amdhsa_group_segment_fixed_size 0"); L.append("  .amdhsa_kernarg_size 112"); L.append("  .amdhsa_user_sgpr_count 2")
        L.append("  .amdhsa_user_sgpr_kernarg_segment_ptr 1"); L.append("  .amdhsa_system_sgpr_workgroup_id_x 1")
        L.append("  .amdhsa_float_denorm_mode_32 3")
        L.append(".end_amdhsa_kernel")
        return "\n".join(L) + "\n"

if __name__ == "__main__":
    out = sys.argv[1]
    kw = {}
    for a in sys.argv[2:]:
        k, v = a.split("=")
        kw[k] = v.replace("+", " ") if k in ("pol", "pat") else int(v)
    open(out, "w").write(G(**kw).gen())
```

```python
import sys
KN = "gated_mix__sliding_block_cached__sliding_block_cached__decode_kernel"
HDR = open("gated_mix__sliding_block_cached__sliding_block_cached__decode.s.ref").read().split("; Override launch")[0]

FL = 0x1000
YD = 0x400000
OP = 0x40000
SP = 0xC0000
EP = 0xD0000
QP = 0x100000
FP = 0x200000
WS_BYTES = 0x600000
STAMP_OFF = 0x4000000
L_Q = 0
QH = 272
L_M = 1280
L_L = 1408
L_F = 1536
L_O = 2048
L_R = L_O + 8*2112
LDS_BYTES = L_R + 4*2112
LOG2E = 0x3fb8aa3b
SCALE = 0x3db504f3
NS = 16

class G:
    def __init__(self, **kw):
        d = dict(padk=-1, pad=0, stamps=0, nt=1, pol="sc1", spin=1 << 16, pf=1, wo_early=0, qsleep=12, forcey=0, pretouch=1,
                 n0=8, qdepth=4, lsplit=1, osleep=0, fsleep=0, b4spin=0, fdelay=0, eta=1, edly=0, tx=0, rm=2, N=3, rot=1, lan=1, qpos=3, wj=31, pat='x0x11x', cw=3, up=99, wo1=0, wj2=32, wa=2, th1=8, th2=16, opos=3, pr=0, tlbs=0, tlbv=0)
        d.update(kw)
        self.__dict__.update(d)
        self.L = []
        self.nt = " nt" if self.nt else ""
        self.pol = " " + self.pol
    def A(self, s): self.L.append("    " + s)
    def lab(self, s): self.L.append(s + ":")
    def nop(self, n):
        while n > 0:
            k = min(n, 16); self.A(f"s_nop {k-1}"); n -= k
    def stamp(self, i):
        if self.padk == i: self.A("s_memrealtime s[92:93]")
        if self.stamps: self.A(f"s_memrealtime s[{64+2*i}:{65+2*i}]")
    def stamp_out(self):
        if not self.stamps: return
        A = self.A
        A("s_waitcnt lgkmcnt(0)")
        A("s_mul_i32 s60, s2, 12"); A("s_add_u32 s60, s60, s33"); A(f"s_mul_i32 s60, s60, {NS*8}")
        A(f"s_add_u32 s60, s60, {STAMP_OFF}")
        A("s_add_u32 s62, s12, s60"); A("s_addc_u32 s63, s13, 0")
        A("s_mov_b64 exec, 1"); A("v_mov_b32 v4, 0")
        for i in range(NS):
            A(f"v_mov_b32 v2, s{64+2*i}"); A(f"v_mov_b32 v3, s{65+2*i}")
            A(f"global_store_dwordx2 v4, v[2:3], s[62:63] offset:{i*8}"); A("s_nop 1")
    def v4(self, r): return f"v[{r}:{r+3}]"
    def v2(self, r): return f"v[{r}:{r+1}]"
    def perms(self, dst, src, pairs=(0, 1, 2, 3)):
        for q in pairs:
            for w in range(4):
                for hh in range(2):
                    j = 2*w + hh
                    self.A(f"v_perm_b32 v{dst+4*j+q}, v{src+4*(2*q+1)+w}, v{src+4*(2*q)+w}, s{36+hh}")
    def allred_rows(self, op, v, t):
        A = self.A
        A(f"v_mov_b32 v{t}, v{v}"); self.nop(2)
        A(f"v_permlane32_swap_b32 v{v}, v{t}")
        A(f"{op} v{v}, v{v}, v{t}")
        A(f"v_mov_b32 v{t}, v{v}"); self.nop(2)
        A(f"v_permlane16_swap_b32 v{v}, v{t}")
        A(f"{op} v{v}, v{v}, v{t}")
    def dpp(self, op, d, a, b, ctl):
        self.A(f"{op}_dpp v{d}, v{a}, v{b} {ctl} row_mask:0xf bank_mask:0xf")
    def poll(self, name, loads, tagregs, acc, first_issued=False, sleep=0):
        A = self.A
        A(f"s_mov_b32 s38, {self.spin}")
        if first_issued: A(f"s_branch L_chk_{name}")
        elif sleep: A(f"s_branch L_ld_{name}")
        self.lab(f"L_poll_{name}")
        if sleep: A(f"s_sleep {sleep}")
        self.lab(f"L_ld_{name}")
        for l in loads: A(l)
        self.lab(f"L_chk_{name}")
        A("s_waitcnt vmcnt(0)")
        A(f"v_xor_b32 v{acc}, s34, v{tagregs[0]}")
        for r in tagregs[1:]:
            A(f"v_bitop3_b32 v{acc}, v{r}, s34, v{acc} bitop3:0xbe")
        A("s_sub_u32 s38, s38, 1")
        A(f"v_cmp_ne_u32 vcc, 0, v{acc}")
        A("s_cselect_b64 s[50:51], 0, -1")
        A("s_and_b64 exec, vcc, s[50:51]")
        A(f"s_cbranch_scc1 L_poll_{name}")
        A("s_mov_b64 exec, -1")
    def ldsspin(self, name, off, target, reads, sleep=1):
        A = self.A
        A(f"s_mov_b32 s38, {self.spin * 16}")
        if sleep: A(f"s_branch L_spl_{name}")
        self.lab(f"L_sp_{name}")
        if sleep: A(f"s_sleep {sleep}")
        self.lab(f"L_spl_{name}")
        A(f"ds_read_b32 v2, {self.vz} offset:{L_F+off}")
        for r in reads: A(r)
        A("s_sub_u32 s38, s38, 1")
        A("s_cselect_b32 s3, 0, -1")
        A("s_waitcnt lgkmcnt(0)")
        A("v_readfirstlane_b32 s40, v2")
        A("s_orn2_b32 s40, s40, s3")
        A(f"s_cmp_lt_u32 s40, {target}")
        A(f"s_cbranch_scc1 L_sp_{name}")
    def cnt(self, off, one):
        A = self.A
        A("s_mov_b64 exec, 1")
        A(f"ds_add_u32 {self.vz}, {one} offset:{L_F+off}")
    def vissue(self, VB, p):
        for T in (2*p, 2*p+1):
            for e in range(4):
                self.A(f"buffer_load_dwordx4 {self.v4(VB+16*T+4*e)}, v5, s[8:11], s35 offen offset:{256*e}{self.nt}")
            if T < 3: self.A("s_add_u32 s35, s35, 16384")
    def mspin(self, name, B, d):
        A = self.A
        self.ldsspin(name, 8, 8, [f"ds_read_b128 {self.v4(B)}, v6 offset:{L_M}", f"ds_read_b128 {self.v4(B+4)}, v6 offset:{L_M+16}"], sleep=2)
        A(f"v_max3_f32 v{B}, v{B}, v{B+1}, v{B+2}")
        A(f"v_max3_f32 v{B+3}, v{B+3}, v{B+4}, v{B+5}")
        A(f"v_max3_f32 v{B}, v{B}, v{B+6}, v{B+7}")
        A(f"v_max_f32 v{d}, v{B}, v{B+3}")

    def gen(self):
        A = self.A; nt = self.nt; pol = self.pol; v4 = self.v4; v2 = self.v2
        L = self.L
        L.append(HDR.rstrip("\n"))
        L.append(f"; @launch grid=(256,1,1) block=(768,1,1) lds={LDS_BYTES}")
        L.append('.amdgcn_target "amdgcn-amd-amdhsa--gfx950"')
        L.append(".text"); L.append(f".globl {KN}"); L.append(".p2align 12"); L.append(".p2align 8"); L.append(f".type {KN},@function"); L.append(f"{KN}:")
        self.stamp(0)
        if self.pad: A("s_memrealtime s[90:91]")
        if self.stamps:
            for i in range(1, NS): A(f"s_mov_b64 s[{64+2*i}:{65+2*i}], 0")
        A("s_bfe_u32 s29, s2, 0x10002")
        A("s_mul_i32 s3, s29, 40")
        A("s_cmp_ge_u32 s2, 256"); A("s_cbranch_scc1 L_end")
        A("s_load_dwordx2 s[16:17], s[0:1], s3 offset:24")
        A("s_load_dwordx2 s[24:25], s[0:1], 0")
        A("s_load_dwordx2 s[4:5], s[0:1], s3 offset:8")
        A("s_load_dwordx2 s[8:9], s[0:1], s3 offset:16")
        A("s_load_dwordx2 s[12:13], s[0:1], 104")
        A("v_lshrrev_b32 v1, 6, v0")
        A("s_lshr_b32 s30, s2, 3")
        if self.tx: A(f"s_xor_b32 s30, s30, {self.tx}")
        A("v_readfirstlane_b32 s33, v1")
        A("s_and_b32 s28, s2, 3"); A("s_lshl_b32 s28, s28, 1"); A("s_lshr_b32 s31, s30, 4"); A("s_or_b32 s28, s28, s31")
        A("s_bfe_u32 s31, s30, 0x20002"); A("s_and_b32 s32, s30, 3")
        A("v_and_b32 v0, 63, v0")
        A("v_and_b32 v3, 15, v0")
        A("v_lshrrev_b32 v4, 4, v0")
        A("v_bfe_u32 v5, v0, 2, 2")
        A("v_and_b32 v6, 3, v0")
        A("s_cmp_ge_u32 s33, 4"); A("s_cbranch_scc1 L_S")
        WB, PB, DB, XB = 8, 40, 72, 104
        A("s_setprio 3")
        if self.pf:
            A("s_getpc_b64 s[42:43]")
            A("v_lshlrev_b32 v12, 7, v0"); A("v_min_u32 v12, L_last-L_pfbase, v12")
            self.lab("L_pfbase")
            A("global_load_dword v108, v12, s[42:43]")
        A("s_mov_b32 s18, 0x400000"); A("s_mov_b32 s19, 0x20000")
        A("s_mov_b32 s26, 4096"); A("s_mov_b32 s27, 0x20000")
        A("v_lshlrev_b32 v1, 16, v4"); A("v_lshl_add_u32 v1, v3, 4, v1")
        A("v_lshlrev_b32 v2, 10, v5"); A("v_lshl_add_u32 v2, v4, 4, v2")
        A("s_lshl_b32 s44, s28, 2"); A("s_add_u32 s44, s44, s31")
        A("s_lshl_b32 s39, s32, 2"); A("s_add_u32 s39, s39, s33")
        A("s_lshl_b32 s35, s39, 18"); A("s_lshl_b32 s45, s44, 8"); A("s_add_u32 s35, s35, s45")
        A("s_lshl_b32 s39, s39, 6")
        A("s_waitcnt lgkmcnt(0)")
        self.stamp(1)
        A(f"buffer_load_dwordx4 {v4(XB)}, v2, s[24:27], s39 offen")
        for e in range(self.cw):
            A(f"buffer_load_dwordx4 {v4(WB+4*e)}, v1, s[16:19], s35 offen{nt}")
            if e < 7: A("s_add_u32 s35, s35, 8192")
        A("v_mov_b32 v112, 0"); A("v_mov_b32 v113, 0"); A("v_mov_b32 v114, 0"); A("v_mov_b32 v115, 0")
        A(f"ds_write_b128 v112, v[112:115] offset:{L_F}")
        A(f"ds_write_b128 v112, v[112:115] offset:{L_F+16}")
        A("s_waitcnt lgkmcnt(0)")
        A("s_barrier")
        A("s_branch L_C")
        self.lab("L_S")
        KB, VB, QB, SB = 8, 72, 136, 152
        self.vz = "v7"
        esh = 10 if self.lan else 8
        A("s_setprio 1")
        A("s_mov_b32 s6, 0x4000000"); A("s_mov_b32 s7, 0x20000")
        A("s_mov_b32 s10, 0x4000000"); A("s_mov_b32 s11, 0x20000")
        A("s_lshl_b32 s35, s31, 3"); A("s_add_u32 s35, s35, s28"); A("s_lshl_b32 s35, s35, 4"); A("s_add_u32 s35, s35, s32")
        A("s_lshl_b32 s35, s35, 5"); A("s_add_u32 s35, s35, s33")
        A("s_lshl_b32 s35, s35, 12"); A(f"s_add_u32 s35, s35, {0x180000 - 4*4096}")
        if self.rot & 1: A(f"s_lshl_b32 s3, s32, {esh}"); A("s_add_u32 s35, s35, s3")
        if self.rot & 2: A("s_and_b32 s3, s2, 7"); A("s_lshl_b32 s3, s3, 12"); A("s_xor_b32 s35, s35, s3")
        A(f"v_lshlrev_b32 v1, {18-esh}, v5"); A("v_lshl_add_u32 v1, v4, 6, v1"); A("v_lshl_add_u32 v1, v6, 4, v1")
        A(f"v_mul_u32_u24 v2, {QH}, v6"); A("v_lshl_add_u32 v2, v4, 6, v2"); A(f"v_lshl_add_u32 v{QB+12}, v5, 4, v2")
        A("v_lshlrev_b32 v5, 4, v3"); A(f"v_lshl_add_u32 v5, v4, {18-esh}, v5")
        if self.pr == 1:
            A("s_cmp_lt_u32 s33, 8"); A("s_cbranch_scc1 L_pr1"); A("s_setprio 2"); self.lab("L_pr1")
        A("s_barrier")
        A("s_waitcnt lgkmcnt(0)")
        self.stamp(1)
        st = dict(i=0)
        def trig(i):
            if i in (self.wj, self.wj2):
                self.cnt(24, f"v{QB+15}"); A("s_mov_b64 exec, -1")
        def nxt(k=1):
            for _ in range(k):
                i = st["i"]; st["i"] += 1
                n = self.N + (1 if i >= self.up else 0)
                if i < len(self.pat):
                    if self.pat[i] != "x": A(f"s_waitcnt vmcnt({self.pat[i]})")
                elif i >= n: A(f"s_waitcnt vmcnt({n-1})")
                if self.pr == 2: A(f"s_setprio {2 - i % 3}")
                if self.pr == 3: A(f"s_setprio {1 - i % 2}")
                T, e = (i >> 2) & 3, i & 3
                so = "s35"
                if T or e: A(f"s_xor_b32 s39, s35, {T*32768 + (e << esh)}"); so = "s39"
                if i < 16: A(f"buffer_load_dwordx4 {v4(KB+4*i)}, v1, s[4:7], {so} offen{nt}")
                else: A(f"buffer_load_dwordx4 {v4(VB+4*(i-16))}, v5, s[8:11], {so} offen{nt}")
                trig(i)
        def upto(j):
            while st["i"] <= j: nxt()
        nxt(len(self.pat) - len(self.pat.lstrip("x")) if self.pat else self.N)
        A("s_load_dword s34, s[12:13], 0")
        A(f"s_mov_b32 s14, {WS_BYTES}"); A("s_mov_b32 s15, 0x20000")
        A("s_mov_b32 s36, 0x05040100"); A("s_mov_b32 s37, 0x07060302")
        A("v_mov_b32 v7, 0")
        A(f"v_mov_b32 v{QB+15}, 1")
        A("v_lshlrev_b32 v6, 5, v6"); A("s_lshl_b32 s3, s33, 2"); A("s_sub_u32 s3, s3, 16"); A("v_add_u32 v3, s3, v6")
        A(f"v_and_b32 v{QB+13}, 3, v0"); A(f"v_mul_u32_u24 v{QB+13}, 528, v{QB+13}"); A(f"v_lshl_add_u32 v{QB+13}, v4, 7, v{QB+13}")
        A("s_mul_i32 s3, s33, 2112"); A(f"s_add_u32 s3, s3, {L_O - 4*2112}"); A(f"v_add_u32 v{QB+13}, s3, v{QB+13}")
        A("s_mov_b32 s42, 0x000f000f"); A("s_mov_b32 s43, 0x000f000f")
        upto(15)
        self.stamp(2)
        upto(15 + self.qpos)
        A(f"s_waitcnt vmcnt({self.qpos})")
        self.stamp(3)
        self.ldsspin("q", 4, 4, [f"ds_read_b128 {v4(QB)}, v{QB+12} offset:{L_Q}"], sleep=4)
        self.stamp(4)
        Dj = lambda j: (QB + 4 + 4*j) if j < 2 else (KB + 4*(j-2))
        for j in range(16):
            A(f"v_mfma_f32_16x16x32_bf16 {v4(Dj(j))}, {v4(KB+4*j)}, {v4(QB)}, 0")
        A(f"s_mov_b32 s40, {SCALE}"); A(f"s_mov_b32 s41, {LOG2E}")
        A("s_mul_i32 s34, s34, 1664525"); A("s_add_u32 s34, s34, 1013904223")
        nxt()
        for j in range(16): self.dpp("v_add_f32", SB+j, Dj(j)+1, Dj(j), "row_ror:12")
        for j in range(16): self.dpp("v_add_f32", SB+j, Dj(j)+2, SB+j, "row_ror:8")
        for j in range(16): self.dpp("v_add_f32", SB+j, Dj(j)+3, SB+j, "row_ror:4")
        for i in range(8):
            A(f"v_cvt_pk_bf16_f32 v{QB+i}, v{SB+2*i}, v{SB+2*i+1}")
        for i in range(8):
            A(f"v_lshlrev_b32 v{SB+2*i}, 16, v{QB+i}"); A(f"v_and_b32 v{SB+2*i+1}, 0xffff0000, v{QB+i}")
        nxt()
        for i in range(8):
            A(f"v_pk_mul_f32 {v2(SB+2*i)}, {v2(SB+2*i)}, s[40:41] op_sel_hi:[1,0]")
        for i in range(8):
            A(f"v_cvt_pk_bf16_f32 v{QB+i}, v{SB+2*i}, v{SB+2*i+1}")
        for i in range(8):
            A(f"v_lshlrev_b32 v{SB+2*i}, 16, v{QB+i}"); A(f"v_and_b32 v{SB+2*i+1}, 0xffff0000, v{QB+i}")
        A(f"v_max3_f32 v1, v{SB}, v{SB+1}, v{SB+2}")
        A(f"v_max3_f32 v2, v{SB+3}, v{SB+4}, v{SB+5}")
        A(f"v_max3_f32 v1, v1, v{SB+6}, v{SB+7}")
        A(f"v_max3_f32 v2, v2, v{SB+8}, v{SB+9}")
        A(f"v_max3_f32 v1, v1, v{SB+10}, v{SB+11}")
        A(f"v_max3_f32 v2, v2, v{SB+12}, v{SB+13}")
        A(f"v_max3_f32 v1, v1, v{SB+14}, v{SB+15}")
        A("v_max_f32 v1, v1, v2")
        self.allred_rows("v_max_f32", 1, 2)
        A("v_mul_f32 v1, s41, v1")
        A("s_mov_b64 exec, 15")
        A(f"ds_write_b32 v3, v1 offset:{L_M}")
        self.cnt(8, f"v{QB+15}")
        A("s_mov_b64 exec, -1")
        self.stamp(5)
        nxt()
        self.stamp(6)
        self.mspin("m", QB, 1)
        for i in range(16):
            A(f"v_fma_f32 v{SB+i}, v{SB+i}, s41, -v1")
        for i in range(16):
            A(f"v_exp_f32 v{SB+i}, v{SB+i}")
        nxt()
        for i in range(8):
            A(f"v_cvt_pk_bf16_f32 v{QB+i}, v{SB+2*i}, v{SB+2*i+1}")
        for i in range(4):
            A(f"v_pk_add_f32 {v2(SB+2*i)}, {v2(SB+2*i)}, {v2(SB+8+2*i)}")
        for i in range(2):
            A(f"v_pk_add_f32 {v2(SB+2*i)}, {v2(SB+2*i)}, {v2(SB+4+2*i)}")
        A(f"v_pk_add_f32 {v2(SB)}, {v2(SB)}, {v2(SB+2)}")
        A(f"v_add_f32 v{SB+8}, v{SB}, v{SB+1}")
        self.allred_rows("v_add_f32", SB+8, SB)
        OB, P0, P1 = 8, 40, 72
        A("s_mov_b64 exec, 15")
        A(f"ds_write_b32 v3, v{SB+8} offset:{L_L}")
        self.cnt(20, f"v{QB+15}")
        A("s_mov_b64 exec, -1")
        self.stamp(7)
        def need(j):
            upto(min(31, j + self.N + (1 if j + self.N + 1 >= self.up else 0)))
            A(f"s_waitcnt vmcnt({st['i'] - 1 - j})")
        need(23)
        self.perms(P0, VB, pairs=(0, 1))
        if st["i"] < 32: nxt()
        self.perms(P0, VB, pairs=(2, 3))
        for j in range(8):
            A(f"v_mfma_f32_16x16x32_bf16 {v4(OB+4*j)}, {v4(P0+4*j)}, {v4(QB)}, 0")
        self.stamp(8)
        need(25)
        self.perms(P1, VB+32, pairs=(0,))
        A("s_cmp_ge_u32 s33, 8"); A("s_cbranch_scc1 L_S_nr")
        A("s_mul_i32 s3, s33, 528"); A(f"s_add_u32 s3, s3, {L_O - 4*528}")
        A(f"v_lshl_add_u32 v{SB+9}, v0, 3, s3")
        A("s_lshl_b32 s3, s33, 5"); A("s_sub_u32 s3, s3, 128"); A(f"v_mov_b32 v{SB+10}, s3")
        A("s_lshl_b32 s3, s29, 3"); A("s_add_u32 s3, s3, s28"); A("s_lshl_b32 s3, s3, 2"); A("s_add_u32 s3, s3, s33"); A("s_sub_u32 s3, s3, 4")
        A("s_lshl_b32 s3, s3, 2"); A("s_add_u32 s3, s3, s32"); A("s_lshl_b32 s3, s3, 2"); A("s_add_u32 s3, s3, s31")
        A("s_lshl_b32 s46, s3, 9"); A(f"s_add_u32 s46, s46, {OP}")
        A(f"v_lshlrev_b32 v{SB+11}, 3, v0")
        A(f"v_mov_b32 v{SB+13}, s34")
        self.ldsspin("l", 20, 8, [f"ds_read_b128 {v4(SB)}, v{SB+10} offset:{L_L}", f"ds_read_b128 {v4(SB+4)}, v{SB+10} offset:{L_L+16}",
                                  f"ds_read_b32 v1, v7 offset:{L_F+12}"], sleep=2)
        A("v_readfirstlane_b32 s45, v1")
        A(f"v_pk_add_f32 {v2(SB)}, {v2(SB)}, {v2(SB+4)}"); A(f"v_pk_add_f32 {v2(SB+2)}, {v2(SB+2)}, {v2(SB+6)}")
        A(f"v_pk_add_f32 {v2(SB)}, {v2(SB)}, {v2(SB+2)}")
        A(f"v_add_f32 v{SB+14}, v{SB}, v{SB+1}")
        A(f"v_rcp_f32 v{SB+14}, v{SB+14}")
        self.lab("L_S_nr")
        for q in range(1, 4):
            if q == 3 and 33 in (self.wj, self.wj2):
                need(30); trig(33)
            need(25 + 2*q)
            if q == 2: trig(32)
            if q == 3: trig(34); A("s_setprio 3"); self.stamp(9)
            self.perms(P1, VB+32, pairs=(q,))
        for j in range(8):
            A(f"v_mfma_f32_16x16x32_bf16 {v4(OB+4*j)}, {v4(P1+4*j)}, {v4(QB+4)}, {v4(OB+4*j)}")
        A("s_mov_b64 exec, s[42:43]")
        A("s_cmp_ge_u32 s33, 8")
        for j in range(8):
            A(f"ds_write_b128 v{QB+13}, {v4(OB+4*j)} offset:{16*j}")
        A("s_mov_b64 exec, -1")
        A("s_waitcnt lgkmcnt(0)")
        A("s_barrier")
        self.stamp(10)
        A("s_cbranch_scc1 L_S_x")
        for w in range(8): A(f"ds_read_b64 {v2(8+2*w)}, v{SB+9} offset:{2112*w}")
        A("s_waitcnt lgkmcnt(0)")
        for w in (0, 1, 2, 3):
            A(f"v_pk_add_f32 {v2(8+2*w)}, {v2(8+2*w)}, {v2(16+2*w)}")
        A("v_pk_add_f32 v[8:9], v[8:9], v[12:13]"); A("v_pk_add_f32 v[10:11], v[10:11], v[14:15]")
        A("s_cmp_lg_u32 s45, 0")
        A("v_pk_add_f32 v[8:9], v[8:9], v[10:11]")
        A(f"v_pk_mul_f32 v[8:9], v[8:9], {v2(SB+14)} op_sel_hi:[1,0]")
        A(f"v_cvt_pk_bf16_f32 v{SB+12}, v8, v9")
        A("s_cbranch_scc1 L_S_y2")
        A(f"buffer_store_dwordx2 {v2(SB+12)}, v{SB+11}, s[12:15], s46 offen")
        self.lab("L_S_x")
        self.stamp(11)
        if self.stamps: A("s_sleep 127"); A("s_sleep 127")
        self.stamp_out()
        A("s_endpgm")
        self.lab("L_C")
        self.vz = "v110"
        A("s_load_dword s34, s[12:13], 0")
        A("s_load_dwordx2 s[20:21], s[0:1], s3 offset:32")
        A("s_load_dwordx2 s[52:53], s[0:1], 80")
        A("s_load_dwordx2 s[56:57], s[0:1], 88")
        A(f"s_mov_b32 s14, {WS_BYTES}"); A("s_mov_b32 s15, 0x20000")
        A("s_mov_b32 s22, 0x400000"); A("s_mov_b32 s23, 0x20000")
        A("s_mov_b32 s36, 0x05040100"); A("s_mov_b32 s37, 0x07060302")
        A("s_mov_b32 s54, 1024"); A("s_mov_b32 s55, 0x20000")
        A("s_mov_b32 s58, 4096"); A("s_mov_b32 s59, 0x20000")
        A("s_lshl_b32 s45, s29, 1"); A("s_lshr_b32 s3, s28, 2"); A("s_add_u32 s45, s45, s3")
        A("v_lshlrev_b32 v109, 4, v0")
        A("s_lshl_b32 s3, s29, 5"); A("s_add_u32 s47, s44, s3")
        A("v_mov_b32 v110, 0"); A("v_mov_b32 v111, 1"); A("v_mov_b32 v133, 1024")
        A("v_lshlrev_b32 v127, 3, v0")
        A("v_mul_u32_u24 v7, 528, v5"); A("v_lshl_add_u32 v7, v4, 7, v7")
        A("s_mul_i32 s3, s33, 2112"); A(f"s_add_u32 s3, s3, {L_R}"); A("v_add_u32 v7, s3, v7")
        A("v_lshlrev_b32 v122, 7, v4"); A("v_lshl_add_u32 v122, v6, 5, v122"); A("v_lshl_add_u32 v122, v5, 2, v122")
        A("s_mul_i32 s3, s33, 528"); A(f"s_add_u32 s3, s3, {L_R}"); A("v_add_u32 v122, s3, v122")
        A("v_add_u32 v123, 2112, v122"); A("v_add_u32 v124, 4224, v122"); A("v_add_u32 v125, 6336, v122")
        A("s_lshl_b32 s46, s47, 2"); A("s_add_u32 s46, s46, s32"); A("s_lshl_b32 s46, s46, 2"); A("s_add_u32 s46, s46, s33")
        A("s_lshl_b32 s46, s46, 10"); A(f"s_add_u32 s46, s46, {QP}")
        A("s_lshl_b32 s4, s29, 3"); A("s_add_u32 s4, s4, s28"); A("s_lshl_b32 s4, s4, 2"); A("s_add_u32 s4, s4, s33")
        A("s_lshl_b32 s4, s4, 2"); A("s_add_u32 s4, s4, s31"); A("s_lshl_b32 s4, s4, 2"); A("s_add_u32 s4, s4, s32")
        A("s_lshl_b32 s4, s4, 3"); A(f"s_add_u32 s4, s4, {SP}")
        if self.rm >= 0:
            A("s_sub_u32 s3, s32, s31"); A("s_add_u32 s44, s44, s3"); A("s_add_u32 s47, s47, s3")
            A(f"s_add_u32 s32, s31, {self.rm}"); A("s_and_b32 s32, s32, 3")
        A("s_mov_b32 s42, 0x11111111"); A("s_mov_b32 s43, 0x11111111")
        A("s_mov_b32 s41, 0")
        A("s_getreg_b32 s30, hwreg(HW_REG_XCC_ID, 0, 4)")
        if self.forcey: A("s_lshr_b32 s30, s2, 3"); A("s_and_b32 s30, s30, 1")
        A("s_lshl_b32 s3, s45, 10")
        for e in range(self.cw, 8):
            A(f"s_waitcnt vmcnt({self.cw-1})")
            A(f"buffer_load_dwordx4 {v4(WB+4*e)}, v1, s[16:19], s35 offen{nt}")
            if e < 7: A("s_add_u32 s35, s35, 8192")
        A("s_waitcnt lgkmcnt(0)")
        A("buffer_load_dwordx4 v[112:115], v109, s[24:27], s3 offen")
        A("buffer_load_dwordx4 v[116:119], v109, s[52:55], 0 offen")
        if self.tlbs:
            A("s_and_b32 s5, s44, 3"); A("s_lshl_b32 s5, s5, 17")
            A("s_lshl_b32 s3, s31, 3"); A("s_add_u32 s3, s3, s28"); A("s_lshl_b32 s3, s3, 21"); A("s_add_u32 s3, s3, s5"); A("s_add_u32 s3, s3, 0x180000")
            A("s_load_dword s5, s[8:9], s3")
            A("s_lshl_b32 s3, s44, 17")
            A("s_load_dword s6, s[20:21], s3")
            A(f"s_mov_b32 s3, {FP + 0x100000}"); A("s_load_dword s7, s[12:13], s3")
            A("s_load_dword s10, s[56:57], 0")
        A("s_mul_i32 s34, s34, 1664525"); A("s_add_u32 s34, s34, 1013904223")
        A("v_mov_b32 v129, s34"); A("v_mov_b32 v131, s34")
        A("s_add_u32 s30, s30, s34"); A("s_add_u32 s30, s30, 1")
        A("v_mov_b32 v165, s30"); A("v_mov_b32 v167, s30")
        SG = 136
        OG = 152
        ol = [f"buffer_load_dwordx2 {v2(OG+2*s)}, v1, s[12:15], s{39 if s < 2 else 48} offen offset:{2048*(s&1)}{pol}" for s in range(4)]
        stl = [f"buffer_load_dwordx4 {v4(SG+4*s)}, v2, s[12:15], s35 offen offset:{16*s}{pol}" for s in range(2)]
        self.lab("L_tile")
        for q in range(4):
            if q == self.opos:
                A("s_cmp_eq_u32 s41, 0"); A("s_cbranch_scc1 L_t0")
                for l in ol: A(l)
                for q2 in range(q, 4):
                    A(f"s_waitcnt vmcnt({12-2*q2})")
                    self.perms(PB, WB, pairs=(q2,))
                self.stamp(7)
                A("s_branch L_t1")
                self.lab("L_t0")
            A(f"s_waitcnt vmcnt({8-2*q})")
            self.perms(PB, WB, pairs=(q,))
        if self.opos < 4:
            self.stamp(2); A("s_branch L_mm")
            self.lab("L_t1")
        else:
            if self.stamps or self.padk in (2, 7):
                A("s_cmp_eq_u32 s41, 0"); A("s_cbranch_scc0 L_st7")
                self.stamp(2); A("s_branch L_st2")
                self.lab("L_st7"); self.stamp(7); self.lab("L_st2")
            A("s_cmp_eq_u32 s41, 0"); A("s_cbranch_scc1 L_mm")
            for l in ol: A(l)
        A(f"s_mov_b32 s38, {self.spin}"); A("s_mov_b32 s40, 0")
        A("s_mov_b64 s[50:51], -1")
        A("s_waitcnt vmcnt(4)")
        A("s_branch L_og1b")
        self.lab("L_og")
        A("s_waitcnt vmcnt(0)")
        A(f"v_xor_b32 v20, s34, v{OG+1}")
        for s in range(1, 4): A(f"v_bitop3_b32 v20, v{OG+1+2*s}, s34, v20 bitop3:0xbe")
        A("s_sub_u32 s38, s38, 1")
        A("v_cmp_ne_u32 vcc, 0, v20")
        A("s_cselect_b64 s[50:51], 0, -1")
        A("s_and_b64 exec, vcc, s[50:51]")
        A("s_cbranch_scc0 L_og1")
        if self.osleep: A(f"s_sleep {self.osleep}")
        for l in ol: A(l)
        A("s_cmp_lg_u32 s40, 0"); A("s_cbranch_scc1 L_og")
        self.lab("L_og1")
        A("s_cmp_lg_u32 s40, 0"); A("s_cbranch_scc1 L_ogd")
        self.lab("L_og1b")
        A("s_mov_b64 s[54:55], exec")
        A("s_mov_b64 exec, -1")
        A(f"v_xor_b32 v20, s34, v{SG+1}")
        for i in range(1, 4): A(f"v_bitop3_b32 v20, v{SG+1+2*i}, s34, v20 bitop3:0xbe")
        A("v_cmp_ne_u32 vcc, 0, v20")
        A("s_and_b64 vcc, vcc, s[50:51]")
        A("s_cbranch_scc0 L_og2")
        for l in stl: A(l)
        A("s_branch L_og")
        self.lab("L_og2")
        self.stamp(15)
        A(f"v_max3_f32 v20, v{SG}, v{SG+2}, v{SG+4}"); A(f"v_max_f32 v20, v20, v{SG+6}")
        for s in range(4): A(f"v_sub_f32 v{8+2*s}, v{SG+2*s}, v20")
        for s in range(4): A(f"v_exp_f32 v{8+2*s}, v{8+2*s}")
        A("v_add_f32 v20, v8, v10"); A("v_add_f32 v21, v12, v14".replace("v14", "v14")); A("v_add_f32 v20, v20, v21")
        A("v_rcp_f32 v20, v20")
        A("s_mov_b32 s40, 1")
        for s in range(4): A(f"v_mul_f32 v{8+2*s}, v{8+2*s}, v20")
        A("s_mov_b64 exec, s[54:55]")
        A("s_cbranch_execnz L_og")
        self.lab("L_ogd")
        if self.eta:
            A("s_mov_b64 exec, 1")
            A("s_cmp_lg_u32 s49, 0"); A("s_cbranch_scc1 L_ogn")
            A(f"buffer_store_dword v129, v135, s[12:15], 0 offen{pol}")
            self.lab("L_ogn")
        A("s_mov_b64 exec, -1")
        self.stamp(8)
        for s in range(4):
            A(f"v_lshlrev_b32 v{24+2*s}, 16, v{OG+2*s}"); A(f"v_and_b32 v{25+2*s}, 0xffff0000, v{OG+2*s}")
        A(f"v_pk_mul_f32 v[24:25], v[24:25], v[8:9] op_sel_hi:[1,0]")
        A(f"v_pk_mul_f32 v[28:29], v[28:29], v[12:13] op_sel_hi:[1,0]")
        A(f"v_pk_fma_f32 v[24:25], v[26:27], v[10:11], v[24:25] op_sel_hi:[1,0,1]")
        A(f"v_pk_fma_f32 v[28:29], v[30:31], v[14:15], v[28:29] op_sel_hi:[1,0,1]")
        A(f"v_pk_add_f32 v[24:25], v[24:25], v[28:29]")
        A("v_cvt_pk_bf16_f32 v24, v24, v25"); self.nop(2)
        for q in range(4):
            A(f"v_mov_b32_dpp v{XB+q}, v24 quad_perm:[{q},{q},{q},{q}] row_mask:0xf bank_mask:0xf")
        self.nop(2)
        self.lab("L_mm")
        for j in range(8):
            A(f"v_mfma_f32_16x16x32_bf16 {v4(DB+4*j)}, {v4(PB+4*j)}, {v4(XB)}, 0")
        A("s_mov_b64 exec, s[42:43]")
        A("s_cmp_eq_u32 s41, 0")
        for j in range(8):
            A(f"ds_write_b128 v7, {v4(DB+4*j)} offset:{16*j}")
        A("s_cbranch_scc0 L_fin")
        self.cnt(0, "v111")
        A("s_mov_b64 exec, -1")
        rd = [f"ds_read2_b32 {v2(12+2*i)}, v{122+i} offset0:0 offset1:4" for i in range(4)]
        self.ldsspin("c", 0, 4, rd, sleep=0)
        A("v_pk_add_f32 v[12:13], v[12:13], v[14:15]"); A("v_pk_add_f32 v[16:17], v[16:17], v[18:19]")
        A("v_add_f32 v164, v12, v16"); A("v_add_f32 v166, v13, v17")
        A("buffer_store_dwordx4 v[164:167], v109, s[12:15], s46 offen")
        self.stamp(3)
        if self.pretouch:
            A("s_lshl_b32 s3, s32, 2"); A("s_add_u32 s3, s3, s33"); A("s_lshl_b32 s3, s3, 9")
            A("s_lshl_b32 s40, s47, 13"); A("s_add_u32 s3, s3, s40"); A(f"s_add_u32 s3, s3, {OP}")
            A("s_or_b32 s40, s32, s33"); A("s_cbranch_scc1 L_pt")
            A("s_lshl_b32 s40, s47, 7"); A(f"s_add_u32 s40, s40, {SP}")
            A("s_load_dword s49, s[12:13], s40")
            self.lab("L_pt")
            for i in range(4): A(f"s_load_dword s49, s[12:13], s3 offset:{128*i}")
        if self.tlbv:
            A("s_mov_b64 exec, 1")
            A(f"s_mov_b32 s3, {FP + 0x100000}")
            A("buffer_load_dword v20, v110, s[12:15], s3 offen")
            A("buffer_load_dword v21, v110, s[56:59], 0 offen")
            A("s_mov_b64 exec, -1")
        A(f"s_waitcnt vmcnt({3 if self.tlbv else 1})")
        for i in range(4):
            A(f"v_lshlrev_b32 v{24+2*i}, 16, v{112+i}"); A(f"v_and_b32 v{25+2*i}, 0xffff0000, v{112+i}")
            A(f"v_lshlrev_b32 v{32+2*i}, 16, v{116+i}"); A(f"v_and_b32 v{33+2*i}, 0xffff0000, v{116+i}")
        for i in range(4):
            A(f"v_pk_mul_f32 {v2(24+2*i)}, {v2(24+2*i)}, {v2(32+2*i)}")
        for i in range(4):
            A(f"v_cvt_pk_bf16_f32 v{32+i}, v{24+2*i}, v{25+2*i}")
        for i in range(4):
            A(f"v_lshlrev_b32 v{24+2*i}, 16, v{32+i}"); A(f"v_and_b32 v{25+2*i}, 0xffff0000, v{32+i}")
        A("v_pk_add_f32 v[24:25], v[24:25], v[28:29]"); A("v_pk_add_f32 v[26:27], v[26:27], v[30:31]")
        A("v_pk_add_f32 v[24:25], v[24:25], v[26:27]"); A("v_add_f32 v8, v24, v25")
        for ror in (8, 4, 2, 1):
            self.nop(2); self.dpp("v_add_f32", 8, 8, 8, f"row_ror:{ror}")
        self.allred_rows("v_add_f32", 8, 9)
        A("v_cvt_pk_bf16_f32 v8, v8, v8"); A("v_lshlrev_b32 v8, 16, v8")
        A(f"v_mul_f32 v8, {0xbfb8aa3b}, v8"); A("v_exp_f32 v8, v8"); self.nop(1)
        A("v_add_f32 v8, 1.0, v8"); A("v_rcp_f32 v8, v8"); self.nop(1)
        A("v_cvt_pk_bf16_f32 v8, v8, v8"); A("v_lshlrev_b32 v8, 16, v8")
        A("v_sub_f32 v9, 1.0, v8"); A("v_cvt_pk_bf16_f32 v9, v9, v9"); A("v_lshlrev_b32 v9, 16, v9")
        A("v_cmp_gt_u32 vcc, 32, v0")
        A("s_lshl_b32 s39, s29, 3"); A("s_add_u32 s39, s39, s28"); A("s_lshl_b32 s39, s39, 2"); A("s_add_u32 s39, s39, s33")
        A("v_cndmask_b32 v120, v9, v8, vcc")
        A("s_lshl_b32 s39, s39, 4"); A("s_add_u32 s39, s39, s31"); A("s_lshl_b32 s39, s39, 10"); A(f"s_add_u32 s39, s39, {QP}")
        A("s_add_u32 s60, s39, 4096"); A("s_add_u32 s61, s39, 8192"); A("s_add_u32 s40, s39, 12288")
        A("s_mov_b32 s63, 0")
        A("v_mov_b32 v18, 0")
        A("v_lshlrev_b32 v19, 12, v6")
        A(f"s_mov_b32 s38, {self.n0}"); A(f"s_mov_b32 s62, {self.spin}")
        self.stamp(13)
        D = self.qdepth
        ld = lambda i: A(f"buffer_load_dword v{20+i}, v19, s[12:15], s39 offen offset:4{pol}")
        for i in range(D - 1):
            ld(i); A(f"s_sleep {self.qsleep}")
        self.lab("L_qf")
        for i in range(D):
            ld((i + D - 1) % D)
            A(f"s_waitcnt vmcnt({D-1})")
            A(f"v_cmp_ne_u32 vcc, s30, v{20+i}")
            A("s_cmp_eq_u64 vcc, 0"); A("s_cbranch_scc1 L_qfd")
        self.lab("L_qfr")
        A("s_sub_u32 s38, s38, 1")
        A("s_cbranch_scc0 L_qf")
        A("s_branch L_slow")
        self.lab("L_qfd")
        self.stamp(14)
        for i in range(4):
            A(f"buffer_load_dwordx4 {v4(24+4*i)}, v109, s[12:15], s{(39,60,61,40)[i]} offen{pol}")
        A(f"s_mul_i32 s3, s33, {QH}"); A("v_lshl_add_u32 v16, v0, 2, s3")
        A("v_lshlrev_b32 v1, 11, v4"); A("v_lshl_add_u32 v1, v3, 4, v1")
        A("s_lshl_b32 s48, s44, 17"); A("s_lshl_b32 s3, s33, 15"); A("s_add_u32 s48, s48, s3")
        A("s_lshl_b32 s3, s32, 8"); A("s_add_u32 s48, s48, s3")
        A("s_waitcnt vmcnt(0) lgkmcnt(0)")
        A("v_xor_b32 v8, s30, v25")
        for r in (27, 29, 31, 33, 35, 37, 39): A(f"v_bitop3_b32 v8, v{r}, s30, v8 bitop3:0xbe")
        A("v_cmp_ne_u32 vcc, 0, v8"); A("s_cmp_eq_u64 vcc, 0"); A("s_cbranch_scc0 L_qfr")
        self.lab("L_qok")
        A("v_add_f32 v24, v24, v28"); A("v_add_f32 v32, v32, v36"); A("v_add_f32 v26, v26, v30"); A("v_add_f32 v34, v34, v38")
        A("v_add_f32 v24, v24, v32"); A("v_add_f32 v26, v26, v34")
        A("v_cvt_pk_bf16_f32 v17, v24, v26")
        A(f"ds_write_b32 v16, v17 offset:{L_Q}")
        self.cnt(12, "v18")
        A(f"ds_add_u32 v110, v111 offset:{L_F+4}")
        A("s_mov_b64 exec, -1")
        self.stamp(4)
        self.lab("L_vd")
        A(f"ds_read_b32 v2, v110 offset:{L_F+4}")
        A(f"ds_read2_b32 v[134:135], v133 offset0:{(L_F+12)//4 - 256} offset1:{(L_F+16)//4 - 256}")
        A("s_waitcnt lgkmcnt(0)")
        A("v_readfirstlane_b32 s40, v2"); A("v_readfirstlane_b32 s3, v135"); A("v_readfirstlane_b32 s49, v134")
        A("s_andn2_b32 s3, s3, s63"); A("s_cbranch_scc1 L_puby2")
        A("s_cmp_ge_u32 s40, 4"); A("s_cbranch_scc1 L_vdd")
        A("s_sleep 2"); A("s_sub_u32 s62, s62, 1"); A("s_cbranch_scc0 L_vd")
        self.lab("L_vdd")
        A("s_lshl_b32 s3, s33, 5"); A("v_mov_b32 v56, s3")
        self.ldsspin("l2", 20, 8, [f"ds_read_b128 v[40:43], v56 offset:{L_M}", f"ds_read_b128 v[44:47], v56 offset:{L_M+16}",
                                   f"ds_read_b128 v[48:51], v56 offset:{L_L}", f"ds_read_b128 v[52:55], v56 offset:{L_L+16}"], sleep=4)
        A("v_max3_f32 v40, v40, v41, v42"); A("v_max3_f32 v43, v43, v44, v45"); A("v_max3_f32 v40, v40, v46, v47")
        A("v_pk_add_f32 v[48:49], v[48:49], v[52:53]"); A("v_pk_add_f32 v[50:51], v[50:51], v[54:55]")
        A("v_pk_add_f32 v[48:49], v[48:49], v[50:51]"); A("v_add_f32 v48, v48, v49")
        A("v_log_f32 v48, v48"); A("v_max_f32 v40, v40, v43")
        A("s_cmp_lg_u32 s49, 0")
        A("v_add_f32 v128, v40, v48")
        A("s_mov_b64 exec, 1")
        A("s_cbranch_scc1 L_S_y1")
        A("buffer_store_dwordx2 v[128:129], v110, s[12:15], s4 offen")
        self.lab("L_S_y1r")
        A("s_mov_b64 exec, -1")
        for e in range(8):
            if e == self.wo1: self.ldsspin("w", 24, self.th1, [], sleep=2)
            if e == self.wa: self.ldsspin("w2", 24, self.th2, [], sleep=1)
            if e == self.wo_early: A("s_setprio 0")
            A(f"buffer_load_dwordx4 {v4(WB+4*e)}, v1, s[20:23], s48 offen offset:{1024*(e>>2)}{nt}")
            if e == 3: A("s_sub_u32 s48, s48, 24576")
            elif e < 7: A("s_add_u32 s48, s48, 8192")
        A("s_setprio 3")
        self.stamp(5)
        A("s_cmp_lg_u32 s49, 0"); A(f"s_cselect_b32 s49, {YD}, 0")
        A("s_lshl_b32 s35, s47, 7"); A(f"s_add_u32 s35, s35, {SP}"); A("s_add_u32 s35, s35, s49")
        A("v_lshlrev_b32 v2, 5, v5")
        for l in stl: A(l)
        A("s_lshl_b32 s39, s47, 13"); A("s_lshl_b32 s3, s33, 7"); A("s_add_u32 s39, s39, s3"); A(f"s_add_u32 s39, s39, {OP}")
        A("s_add_u32 s39, s39, s49"); A("s_add_u32 s48, s39, 4096")
        A("v_lshlrev_b32 v1, 9, v5"); A("v_lshl_add_u32 v1, v4, 5, v1"); A("v_lshl_add_u32 v1, v6, 3, v1")
        A("s_lshl_b32 s63, s32, 18"); A(f"s_add_u32 s63, s63, {FP}")
        A("s_lshl_b32 s3, s47, 12"); A("s_add_u32 s46, s63, s3"); A("s_lshl_b32 s3, s33, 10"); A("s_add_u32 s46, s46, s3")
        A("v_lshrrev_b32 v121, 2, v0"); A("v_lshlrev_b32 v121, 12, v121"); A("v_lshl_add_u32 v121, v6, 4, v121")
        A("s_lshl_b32 s3, s47, 6"); A("s_add_u32 s63, s63, s3")
        A("s_add_u32 s60, s63, 0x10000"); A("s_add_u32 s61, s63, 0x20000"); A("s_add_u32 s62, s63, 0x30000")
        A("s_lshl_b32 s45, s45, 10"); A("s_lshl_b32 s3, s32, 8"); A("s_add_u32 s45, s45, s3")
        A("s_and_b32 s3, s47, 15"); A("s_lshl_b32 s3, s3, 4"); A("s_add_u32 s45, s45, s3")
        A("v_lshlrev_b32 v126, 2, v6"); A("v_lshl_add_u32 v126, v4, 1, v126")
        A("s_mov_b32 s41, 1")
        A("s_and_b32 s49, s44, 3"); A("s_or_b32 s49, s49, s32"); A("s_or_b32 s49, s49, s33")
        A("s_lshr_b32 s3, s47, 2"); A("s_lshl_b32 s3, s3, 8"); A(f"s_add_u32 s3, s3, {EP}"); A("v_mov_b32 v135, s3")
        A("v_lshlrev_b32 v134, 8, v3"); A(f"v_add_u32 v134, {EP}, v134")
        A("s_barrier")
        self.stamp(6)
        A("s_branch L_tile")
        self.lab("L_fin")
        if self.b4spin:
            self.cnt(28, "v111")
            A("s_mov_b64 exec, -1")
            self.ldsspin("c2", 28, 4, rd, sleep=0)
        else:
            A("s_mov_b64 exec, -1")
            A("s_waitcnt lgkmcnt(0)")
            A("s_barrier")
            for r in rd: A(r)
            A("s_waitcnt lgkmcnt(0)")
        A("v_pk_add_f32 v[12:13], v[12:13], v[14:15]"); A("v_pk_add_f32 v[16:17], v[16:17], v[18:19]")
        A("v_add_f32 v128, v12, v16"); A("v_add_f32 v130, v13, v17")
        A(f"buffer_store_dwordx4 v[128:131], v109, s[12:15], s46 offen{pol}")
        self.stamp(9)
        A("s_cmp_lg_u32 s33, 0"); A("s_cbranch_scc1 L_C_exit")
        if self.fdelay: A(f"s_sleep {self.fdelay}")
        if self.eta:
            self.poll("e", [f"buffer_load_dword v41, v134, s[12:15], 0 offen{pol}"], [41], 40)
            if self.edly: A(f"s_sleep {self.edly}")
        self.poll("f", [f"buffer_load_dwordx4 {v4(24+4*i)}, v121, s[12:15], s{(63,60,61,62)[i]} offen{pol}" for i in range(4)],
                  [25, 27, 29, 31, 33, 35, 37, 39], 40, sleep=self.fsleep)
        self.stamp(10)
        A("v_add_f32 v24, v24, v28"); A("v_add_f32 v26, v26, v30")
        A("v_add_f32 v32, v32, v36"); A("v_add_f32 v34, v34, v38")
        self.nop(1)
        A("v_permlane32_swap_b32 v24, v32"); A("v_permlane32_swap_b32 v26, v34")
        A("v_add_f32 v24, v24, v32"); A("v_add_f32 v26, v26, v34"); self.nop(2)
        A("v_permlane16_swap_b32 v24, v26")
        A("v_add_f32 v24, v24, v26"); self.nop(2)
        self.dpp("v_add_f32", 24, 24, 24, "row_ror:4"); self.nop(2)
        self.dpp("v_add_f32", 24, 24, 24, "row_ror:8")
        A("v_cvt_pk_bf16_f32 v24, v24, v24"); A("v_lshlrev_b32 v24, 16, v24")
        A("v_mul_f32 v24, v24, v120")
        A("v_cvt_pk_bf16_f32 v24, v24, v24"); A("v_lshlrev_b32 v24, 16, v24")
        A("v_mov_b32 v25, v24"); self.nop(2)
        A("v_permlane32_swap_b32 v24, v25")
        A("v_add_f32 v24, v24, v25")
        A("v_cvt_pk_bf16_f32 v24, v24, v24")
        A("s_mov_b64 exec, 0x000f000f")
        A("buffer_store_short v24, v126, s[56:59], s45 offen")
        if self.pad:
            if self.padk >= 0:
                A("s_waitcnt lgkmcnt(0)"); A("s_mov_b32 s90, s92")
            self.lab("L_pad")
            A("s_memrealtime s[94:95]"); A("s_waitcnt lgkmcnt(0)"); A("s_sub_u32 s94, s94, s90")
            A(f"s_cmp_lt_u32 s94, {self.pad}"); A("s_cbranch_scc1 L_pad")
        A("s_cmp_lg_u32 s2, 0"); A("s_cbranch_scc1 L_C_exit")
        A("s_mov_b64 exec, 1")
        A("buffer_store_dword v129, v110, s[12:15], 0 offen")
        self.lab("L_C_exit")
        self.stamp(11)
        if self.stamps: A("s_sleep 127")
        if self.stamps:
            A("s_waitcnt vmcnt(0)")
            self.stamp(12)
        self.stamp_out()
        self.lab("L_end")
        A("s_endpgm")
        self.lab("L_last")
        self.lab("L_S_y1")
        A(f"s_add_u32 s4, s4, {YD}")
        A(f"buffer_store_dwordx2 v[128:129], v110, s[12:15], s4 offen{pol}")
        A("s_branch L_S_y1r")
        self.lab("L_S_y2")
        A(f"s_add_u32 s46, s46, {YD}")
        A(f"buffer_store_dwordx2 {v2(SB+12)}, v{SB+11}, s[12:15], s46 offen{pol}")
        A("s_branch L_S_x")
        def puby():
            A(f"s_add_u32 s3, s46, {YD}")
            A(f"buffer_store_dwordx4 v[164:167], v109, s[12:15], s3 offen{pol}")
            A("s_mov_b32 s63, 1")
        self.lab("L_puby2")
        puby()
        A("s_branch L_vd")
        self.lab("L_slow")
        A("s_cmp_lg_u32 s63, 0"); A("s_cbranch_scc1 L_slow2")
        A(f"ds_write_b32 v110, v111 offset:{L_F+16}")
        puby()
        self.lab("L_slow2")
        A(f"v_add_u32 v9, {YD}, v109")
        for i in range(4):
            A(f"buffer_load_dwordx4 {v4(24+4*i)}, v9, s[12:15], s{(39,60,61,40)[i]} offen{pol}")
        A("s_add_u32 s3, s34, 1")
        A("s_waitcnt vmcnt(0)")
        A("v_subrev_u32 v8, s3, v25"); A("v_xor_b32 v10, s30, v25")
        for r in (27, 29, 31, 33, 35, 37, 39):
            A(f"v_subrev_u32 v9, s3, v{r}"); A("v_or_b32 v8, v8, v9"); A(f"v_bitop3_b32 v10, v{r}, s30, v10 bitop3:0xbe")
        A("s_mov_b32 s38, 0")
        A("v_cmp_lt_u32 vcc, 15, v8"); A("s_cmp_eq_u64 vcc, 0"); A("s_cbranch_scc1 L_slow3")
        A("s_sleep 8")
        A("s_sub_u32 s62, s62, 1"); A("s_cbranch_scc0 L_qf")
        self.lab("L_slow3")
        A("v_cmp_ne_u32 vcc, 0, v10"); A("s_cmp_lg_u64 vcc, 0")
        A("s_cselect_b32 s3, 1, 0"); A("v_mov_b32 v18, s3")
        A(f"s_mul_i32 s3, s33, {QH}"); A("v_lshl_add_u32 v16, v0, 2, s3")
        A("v_lshlrev_b32 v1, 11, v4"); A("v_lshl_add_u32 v1, v3, 4, v1")
        A("s_lshl_b32 s48, s44, 17"); A("s_lshl_b32 s3, s33, 15"); A("s_add_u32 s48, s48, s3")
        A("s_lshl_b32 s3, s32, 8"); A("s_add_u32 s48, s48, s3")
        A("s_waitcnt lgkmcnt(0)")
        A("s_branch L_qok")
        L.append('.section .rodata,"a"'); L.append(".p2align 6"); L.append(f".amdhsa_kernel {KN}")
        L.append("  .amdhsa_next_free_vgpr 168"); L.append("  .amdhsa_next_free_sgpr 96"); L.append("  .amdhsa_accum_offset 168")
        L.append("  .amdhsa_group_segment_fixed_size 0"); L.append("  .amdhsa_kernarg_size 112"); L.append("  .amdhsa_user_sgpr_count 2")
        L.append("  .amdhsa_user_sgpr_kernarg_segment_ptr 1"); L.append("  .amdhsa_system_sgpr_workgroup_id_x 1")
        L.append("  .amdhsa_float_denorm_mode_32 3")
        L.append(".end_amdhsa_kernel")
        return "\n".join(L) + "\n"

if __name__ == "__main__":
    out = sys.argv[1]
    kw = {}
    for a in sys.argv[2:]:
        k, v = a.split("=")
        kw[k] = v.replace("+", " ") if k in ("pol", "pat") else int(v)
    open(out, "w").write(G(**kw).gen())
```

```python
import sys
KN = "gated_mix__sliding_block_cached__sliding_block_cached__decode_kernel"
HDR = open("gated_mix__sliding_block_cached__sliding_block_cached__decode.s.ref").read().split("; Override launch")[0]

FL = 0x1000
YD = 0x400000
OP = 0x40000
SP = 0xC0000
EP = 0xD0000
QP = 0x100000
FP = 0x180000
WS_BYTES = 0x600000
STAMP_OFF = 0x4000000
L_Q = 0
QH = 272
L_M = 1280
L_L = 1408
L_F = 1536
L_O = 2048
L_R = L_O + 8*2112
LDS_BYTES = L_R + 4*2112
LOG2E = 0x3fb8aa3b
SCALE = 0x3db504f3
NS = 16

class G:
    def __init__(self, **kw):
        d = dict(padk=-1, pad=0, stamps=0, nt=1, pol="sc1", spin=1 << 16, pf=1, wo_early=0, qsleep=12, forcey=0, pretouch=0,
                 n0=8, qdepth=4, lsplit=1, osleep=0, fsleep=0, b4spin=0, fdelay=0, eta=1, edly=0, tx=0, rm=2, N=3, rot=1, lan=1, qpos=3, wj=31, pat='x0x11x', cw=3, up=99, wo1=0, wj2=32, wa=2, th1=8, th2=16, opos=3, pr=0, tlbs=0, tlbv=0, lean=1)
        d.update(kw)
        self.__dict__.update(d)
        self.L = []
        self.nt = " nt" if self.nt else ""
        self.pol = " " + self.pol
    def A(self, s): self.L.append("    " + s)
    def lab(self, s): self.L.append(s + ":")
    def nop(self, n):
        while n > 0:
            k = min(n, 16); self.A(f"s_nop {k-1}"); n -= k
    def stamp(self, i):
        if self.padk == i: self.A("s_memrealtime s[92:93]")
        if self.stamps: self.A(f"s_memrealtime s[{64+2*i}:{65+2*i}]")
    def stamp_out(self):
        if not self.stamps: return
        A = self.A
        A("s_waitcnt lgkmcnt(0)")
        A("s_mul_i32 s60, s2, 12"); A("s_add_u32 s60, s60, s33"); A(f"s_mul_i32 s60, s60, {NS*8}")
        A(f"s_add_u32 s60, s60, {STAMP_OFF}")
        A("s_add_u32 s62, s12, s60"); A("s_addc_u32 s63, s13, 0")
        A("s_mov_b64 exec, 1"); A("v_mov_b32 v4, 0")
        for i in range(NS):
            A(f"v_mov_b32 v2, s{64+2*i}"); A(f"v_mov_b32 v3, s{65+2*i}")
            A(f"global_store_dwordx2 v4, v[2:3], s[62:63] offset:{i*8}"); A("s_nop 1")
    def v4(self, r): return f"v[{r}:{r+3}]"
    def v2(self, r): return f"v[{r}:{r+1}]"
    def perms(self, dst, src, pairs=(0, 1, 2, 3)):
        for q in pairs:
            for w in range(4):
                for hh in range(2):
                    j = 2*w + hh
                    self.A(f"v_perm_b32 v{dst+4*j+q}, v{src+4*(2*q+1)+w}, v{src+4*(2*q)+w}, s{36+hh}")
    def allred_rows(self, op, v, t):
        A = self.A
        A(f"v_mov_b32 v{t}, v{v}"); self.nop(2)
        A(f"v_permlane32_swap_b32 v{v}, v{t}")
        A(f"{op} v{v}, v{v}, v{t}")
        A(f"v_mov_b32 v{t}, v{v}"); self.nop(2)
        A(f"v_permlane16_swap_b32 v{v}, v{t}")
        A(f"{op} v{v}, v{v}, v{t}")
    def dpp(self, op, d, a, b, ctl):
        self.A(f"{op}_dpp v{d}, v{a}, v{b} {ctl} row_mask:0xf bank_mask:0xf")
    def poll(self, name, loads, tagregs, acc, first_issued=False, sleep=0, tv=None):
        A = self.A
        A(f"s_mov_b32 s38, {self.spin}")
        if first_issued: A(f"s_branch L_chk_{name}")
        elif sleep: A(f"s_branch L_ld_{name}")
        self.lab(f"L_poll_{name}")
        if sleep: A(f"s_sleep {sleep}")
        self.lab(f"L_ld_{name}")
        for l in loads: A(l)
        self.lab(f"L_chk_{name}")
        A("s_waitcnt vmcnt(0)")
        if tv is None:
            A(f"v_xor_b32 v{acc}, s34, v{tagregs[0]}")
            for r in tagregs[1:]:
                A(f"v_bitop3_b32 v{acc}, v{r}, s34, v{acc} bitop3:0xbe")
        else: self.untag(tagregs[0], tv, acc)
        A("s_sub_u32 s38, s38, 1")
        A(f"v_cmp_ne_u32 vcc, 0, v{acc}")
        A("s_cselect_b64 s[50:51], 0, -1")
        if tv is not None: A("s_wqm_b64 vcc, vcc")
        A("s_and_b64 exec, vcc, s[50:51]")
        A(f"s_cbranch_scc1 L_poll_{name}")
        A("s_mov_b64 exec, -1")
    def untag(self, r0, tv, acc):
        A = self.A
        for r in range(r0, r0 + 8): A(f"v_xor_b32 v{r}, v{tv + (r & 1)}, v{r}")
        A(f"v_or3_b32 v{acc}, v{r0}, v{r0+1}, v{r0+2}"); A(f"v_or3_b32 v{acc+1}, v{r0+3}, v{r0+4}, v{r0+5}")
        A(f"v_or3_b32 v{acc}, v{acc}, v{r0+6}, v{r0+7}")
        A(f"v_bitop3_b32 v{acc}, v{acc}, v{acc+1}, s11 bitop3:0xa8")
    def ldsspin(self, name, off, target, reads, sleep=1):
        A = self.A
        A(f"s_mov_b32 s38, {self.spin * 16}")
        if sleep: A(f"s_branch L_spl_{name}")
        self.lab(f"L_sp_{name}")
        if sleep: A(f"s_sleep {sleep}")
        self.lab(f"L_spl_{name}")
        A(f"ds_read_b32 v2, {self.vz} offset:{L_F+off}")
        for r in reads: A(r)
        A("s_sub_u32 s38, s38, 1")
        A("s_cselect_b32 s3, 0, -1")
        A("s_waitcnt lgkmcnt(0)")
        A("v_readfirstlane_b32 s40, v2")
        A("s_orn2_b32 s40, s40, s3")
        A(f"s_cmp_lt_u32 s40, {target}")
        A(f"s_cbranch_scc1 L_sp_{name}")
    def cnt(self, off, one):
        A = self.A
        A("s_mov_b64 exec, 1")
        A(f"ds_add_u32 {self.vz}, {one} offset:{L_F+off}")
    def vissue(self, VB, p):
        for T in (2*p, 2*p+1):
            for e in range(4):
                self.A(f"buffer_load_dwordx4 {self.v4(VB+16*T+4*e)}, v5, s[8:11], s35 offen offset:{256*e}{self.nt}")
            if T < 3: self.A("s_add_u32 s35, s35, 16384")
    def mspin(self, name, B, d):
        A = self.A
        self.ldsspin(name, 8, 8, [f"ds_read_b128 {self.v4(B)}, v6 offset:{L_M}", f"ds_read_b128 {self.v4(B+4)}, v6 offset:{L_M+16}"], sleep=2)
        A(f"v_max3_f32 v{B}, v{B}, v{B+1}, v{B+2}")
        A(f"v_max3_f32 v{B+3}, v{B+3}, v{B+4}, v{B+5}")
        A(f"v_max3_f32 v{B}, v{B}, v{B+6}, v{B+7}")
        A(f"v_max_f32 v{d}, v{B}, v{B+3}")

    def gen(self):
        A = self.A; nt = self.nt; pol = self.pol; v4 = self.v4; v2 = self.v2
        L = self.L
        L.append(HDR.rstrip("\n"))
        L.append(f"; @launch grid=(256,1,1) block=(768,1,1) lds={LDS_BYTES}")
        L.append('.amdgcn_target "amdgcn-amd-amdhsa--gfx950"')
        L.append(".text"); L.append(f".globl {KN}"); L.append(".p2align 12"); L.append(".p2align 8"); L.append(f".type {KN},@function"); L.append(f"{KN}:")
        self.stamp(0)
        if self.pad: A("s_memrealtime s[90:91]")
        if self.stamps:
            for i in range(1, NS): A(f"s_mov_b64 s[{64+2*i}:{65+2*i}], 0")
        A("s_bfe_u32 s29, s2, 0x10002")
        A("s_mul_i32 s3, s29, 40")
        A("s_cmp_ge_u32 s2, 256"); A("s_cbranch_scc1 L_end")
        A("s_load_dwordx2 s[16:17], s[0:1], s3 offset:24")
        A("s_load_dwordx2 s[24:25], s[0:1], 0")
        A("s_load_dwordx2 s[4:5], s[0:1], s3 offset:8")
        A("s_load_dwordx2 s[8:9], s[0:1], s3 offset:16")
        A("s_load_dwordx2 s[12:13], s[0:1], 104")
        A("v_lshrrev_b32 v1, 6, v0")
        A("s_lshr_b32 s30, s2, 3")
        if self.tx: A(f"s_xor_b32 s30, s30, {self.tx}")
        A("v_readfirstlane_b32 s33, v1")
        A("s_and_b32 s28, s2, 3"); A("s_lshl_b32 s28, s28, 1"); A("s_lshr_b32 s31, s30, 4"); A("s_or_b32 s28, s28, s31")
        A("s_bfe_u32 s31, s30, 0x20002"); A("s_and_b32 s32, s30, 3")
        A("v_and_b32 v0, 63, v0")
        A("v_and_b32 v3, 15, v0")
        A("v_lshrrev_b32 v4, 4, v0")
        A("v_bfe_u32 v5, v0, 2, 2")
        A("v_and_b32 v6, 3, v0")
        A("s_cmp_ge_u32 s33, 4"); A("s_cbranch_scc1 L_S")
        WB, PB, DB, XB = 8, 40, 72, 104
        A("s_setprio 3")
        if self.pf:
            A("s_getpc_b64 s[42:43]")
            if self.lean:
                A("s_lshl_b32 s3, s33, 11"); A("v_lshl_add_u32 v12, v3, 7, s3"); A("s_mov_b64 exec, 0xffff")
            else: A("v_lshlrev_b32 v12, 7, v0")
            A("v_min_u32 v12, L_last-L_pfbase, v12")
            self.lab("L_pfbase")
            A("global_load_dword v108, v12, s[42:43]")
            if self.lean: A("s_mov_b64 exec, -1"); A("s_mul_i32 s3, s29, 40")
        A("s_mov_b32 s18, 0x400000"); A("s_mov_b32 s19, 0x20000")
        A("s_mov_b32 s26, 4096"); A("s_mov_b32 s27, 0x20000")
        A("v_lshlrev_b32 v1, 16, v4"); A("v_lshl_add_u32 v1, v3, 4, v1")
        A("v_lshlrev_b32 v2, 10, v5"); A("v_lshl_add_u32 v2, v4, 4, v2")
        A("s_lshl_b32 s44, s28, 2"); A("s_add_u32 s44, s44, s31")
        A("s_lshl_b32 s39, s32, 2"); A("s_add_u32 s39, s39, s33")
        A("s_lshl_b32 s35, s39, 18"); A("s_lshl_b32 s45, s44, 8"); A("s_add_u32 s35, s35, s45")
        A("s_lshl_b32 s39, s39, 6")
        A("s_waitcnt lgkmcnt(0)")
        self.stamp(1)
        A(f"buffer_load_dwordx4 {v4(XB)}, v2, s[24:27], s39 offen")
        for e in range(self.cw):
            A(f"buffer_load_dwordx4 {v4(WB+4*e)}, v1, s[16:19], s35 offen{nt}")
            if e < 7: A("s_add_u32 s35, s35, 8192")
        A("v_mov_b32 v112, 0"); A("v_mov_b32 v113, 0"); A("v_mov_b32 v114, 0"); A("v_mov_b32 v115, 0")
        A(f"ds_write_b128 v112, v[112:115] offset:{L_F}")
        A(f"ds_write_b128 v112, v[112:115] offset:{L_F+16}")
        A("s_waitcnt lgkmcnt(0)")
        A("s_barrier")
        A("s_branch L_C")
        self.lab("L_S")
        KB, VB, QB, SB = 8, 72, 136, 152
        self.vz = "v7"
        esh = 10 if self.lan else 8
        A("s_setprio 1")
        A("s_mov_b32 s6, 0x4000000"); A("s_mov_b32 s7, 0x20000")
        A("s_mov_b32 s10, 0x4000000"); A("s_mov_b32 s11, 0x20000")
        A("s_lshl_b32 s35, s31, 3"); A("s_add_u32 s35, s35, s28"); A("s_lshl_b32 s35, s35, 4"); A("s_add_u32 s35, s35, s32")
        A("s_lshl_b32 s35, s35, 5"); A("s_add_u32 s35, s35, s33")
        A("s_lshl_b32 s35, s35, 12"); A(f"s_add_u32 s35, s35, {0x180000 - 4*4096}")
        if self.rot & 1: A(f"s_lshl_b32 s3, s32, {esh}"); A("s_add_u32 s35, s35, s3")
        if self.rot & 2: A("s_and_b32 s3, s2, 7"); A("s_lshl_b32 s3, s3, 12"); A("s_xor_b32 s35, s35, s3")
        A(f"v_lshlrev_b32 v1, {18-esh}, v5"); A("v_lshl_add_u32 v1, v4, 6, v1"); A("v_lshl_add_u32 v1, v6, 4, v1")
        A(f"v_mul_u32_u24 v2, {QH}, v6"); A("v_lshl_add_u32 v2, v4, 6, v2"); A(f"v_lshl_add_u32 v{QB+12}, v5, 4, v2")
        A("v_lshlrev_b32 v5, 4, v3"); A(f"v_lshl_add_u32 v5, v4, {18-esh}, v5")
        if self.pr == 1:
            A("s_cmp_lt_u32 s33, 8"); A("s_cbranch_scc1 L_pr1"); A("s_setprio 2"); self.lab("L_pr1")
        A("s_barrier")
        A("s_waitcnt lgkmcnt(0)")
        self.stamp(1)
        st = dict(i=0)
        def trig(i):
            if i in (self.wj, self.wj2):
                self.cnt(24, f"v{QB+15}"); A("s_mov_b64 exec, -1")
        def nxt(k=1):
            for _ in range(k):
                i = st["i"]; st["i"] += 1
                n = self.N + (1 if i >= self.up else 0)
                if i < len(self.pat):
                    if self.pat[i] != "x": A(f"s_waitcnt vmcnt({self.pat[i]})")
                elif i >= n: A(f"s_waitcnt vmcnt({n-1})")
                if self.pr == 2: A(f"s_setprio {2 - i % 3}")
                if self.pr == 3: A(f"s_setprio {1 - i % 2}")
                T, e = (i >> 2) & 3, i & 3
                so = "s35"
                if T or e: A(f"s_xor_b32 s39, s35, {T*32768 + (e << esh)}"); so = "s39"
                if i < 16: A(f"buffer_load_dwordx4 {v4(KB+4*i)}, v1, s[4:7], {so} offen{nt}")
                else: A(f"buffer_load_dwordx4 {v4(VB+4*(i-16))}, v5, s[8:11], {so} offen{nt}")
                trig(i)
        def upto(j):
            while st["i"] <= j: nxt()
        nxt(len(self.pat) - len(self.pat.lstrip("x")) if self.pat else self.N)
        A("s_load_dword s34, s[12:13], 0")
        A(f"s_mov_b32 s14, {WS_BYTES}"); A("s_mov_b32 s15, 0x20000")
        A("s_mov_b32 s36, 0x05040100"); A("s_mov_b32 s37, 0x07060302")
        A("v_mov_b32 v7, 0")
        A(f"v_mov_b32 v{QB+15}, 1")
        A("v_lshlrev_b32 v6, 5, v6"); A("s_lshl_b32 s3, s33, 2"); A("s_sub_u32 s3, s3, 16"); A("v_add_u32 v3, s3, v6")
        A(f"v_and_b32 v{QB+13}, 3, v0"); A(f"v_mul_u32_u24 v{QB+13}, 528, v{QB+13}"); A(f"v_lshl_add_u32 v{QB+13}, v4, 7, v{QB+13}")
        A("s_mul_i32 s3, s33, 2112"); A(f"s_add_u32 s3, s3, {L_O - 4*2112}"); A(f"v_add_u32 v{QB+13}, s3, v{QB+13}")
        A("s_mov_b32 s42, 0x000f000f"); A("s_mov_b32 s43, 0x000f000f")
        upto(15)
        self.stamp(2)
        upto(15 + self.qpos)
        A(f"s_waitcnt vmcnt({self.qpos})")
        self.stamp(3)
        self.ldsspin("q", 4, 4, [f"ds_read_b128 {v4(QB)}, v{QB+12} offset:{L_Q}"], sleep=4)
        self.stamp(4)
        Dj = lambda j: (QB + 4 + 4*j) if j < 2 else (KB + 4*(j-2))
        for j in range(16):
            A(f"v_mfma_f32_16x16x32_bf16 {v4(Dj(j))}, {v4(KB+4*j)}, {v4(QB)}, 0")
        A(f"s_mov_b32 s40, {SCALE}"); A(f"s_mov_b32 s41, {LOG2E}")
        A("s_mul_i32 s34, s34, 1664525"); A("s_add_u32 s34, s34, 1013904223")
        nxt()
        for j in range(16): self.dpp("v_add_f32", SB+j, Dj(j)+1, Dj(j), "row_ror:12")
        for j in range(16): self.dpp("v_add_f32", SB+j, Dj(j)+2, SB+j, "row_ror:8")
        for j in range(16): self.dpp("v_add_f32", SB+j, Dj(j)+3, SB+j, "row_ror:4")
        for i in range(8):
            A(f"v_cvt_pk_bf16_f32 v{QB+i}, v{SB+2*i}, v{SB+2*i+1}")
        for i in range(8):
            A(f"v_lshlrev_b32 v{SB+2*i}, 16, v{QB+i}"); A(f"v_and_b32 v{SB+2*i+1}, 0xffff0000, v{QB+i}")
        nxt()
        for i in range(8):
            A(f"v_pk_mul_f32 {v2(SB+2*i)}, {v2(SB+2*i)}, s[40:41] op_sel_hi:[1,0]")
        for i in range(8):
            A(f"v_cvt_pk_bf16_f32 v{QB+i}, v{SB+2*i}, v{SB+2*i+1}")
        for i in range(8):
            A(f"v_lshlrev_b32 v{SB+2*i}, 16, v{QB+i}"); A(f"v_and_b32 v{SB+2*i+1}, 0xffff0000, v{QB+i}")
        A(f"v_max3_f32 v1, v{SB}, v{SB+1}, v{SB+2}")
        A(f"v_max3_f32 v2, v{SB+3}, v{SB+4}, v{SB+5}")
        A(f"v_max3_f32 v1, v1, v{SB+6}, v{SB+7}")
        A(f"v_max3_f32 v2, v2, v{SB+8}, v{SB+9}")
        A(f"v_max3_f32 v1, v1, v{SB+10}, v{SB+11}")
        A(f"v_max3_f32 v2, v2, v{SB+12}, v{SB+13}")
        A(f"v_max3_f32 v1, v1, v{SB+14}, v{SB+15}")
        A("v_max_f32 v1, v1, v2")
        self.allred_rows("v_max_f32", 1, 2)
        A("v_mul_f32 v1, s41, v1")
        A("s_mov_b64 exec, 15")
        A(f"ds_write_b32 v3, v1 offset:{L_M}")
        self.cnt(8, f"v{QB+15}")
        A("s_mov_b64 exec, -1")
        self.stamp(5)
        nxt()
        self.stamp(6)
        self.mspin("m", QB, 1)
        for i in range(16):
            A(f"v_fma_f32 v{SB+i}, v{SB+i}, s41, -v1")
        for i in range(16):
            A(f"v_exp_f32 v{SB+i}, v{SB+i}")
        nxt()
        for i in range(8):
            A(f"v_cvt_pk_bf16_f32 v{QB+i}, v{SB+2*i}, v{SB+2*i+1}")
        for i in range(4):
            A(f"v_pk_add_f32 {v2(SB+2*i)}, {v2(SB+2*i)}, {v2(SB+8+2*i)}")
        for i in range(2):
            A(f"v_pk_add_f32 {v2(SB+2*i)}, {v2(SB+2*i)}, {v2(SB+4+2*i)}")
        A(f"v_pk_add_f32 {v2(SB)}, {v2(SB)}, {v2(SB+2)}")
        A(f"v_add_f32 v{SB+8}, v{SB}, v{SB+1}")
        self.allred_rows("v_add_f32", SB+8, SB)
        OB, P0, P1 = 8, 40, 72
        A("s_mov_b64 exec, 15")
        A(f"ds_write_b32 v3, v{SB+8} offset:{L_L}")
        self.cnt(20, f"v{QB+15}")
        A("s_mov_b64 exec, -1")
        self.stamp(7)
        def need(j):
            upto(min(31, j + self.N + (1 if j + self.N + 1 >= self.up else 0)))
            A(f"s_waitcnt vmcnt({st['i'] - 1 - j})")
        need(23)
        self.perms(P0, VB, pairs=(0, 1))
        if st["i"] < 32: nxt()
        self.perms(P0, VB, pairs=(2, 3))
        for j in range(8):
            A(f"v_mfma_f32_16x16x32_bf16 {v4(OB+4*j)}, {v4(P0+4*j)}, {v4(QB)}, 0")
        self.stamp(8)
        need(25)
        self.perms(P1, VB+32, pairs=(0,))
        A("s_cmp_ge_u32 s33, 8"); A("s_cbranch_scc1 L_S_nr")
        A("s_mul_i32 s3, s33, 528"); A(f"s_add_u32 s3, s3, {L_O - 4*528}")
        A(f"v_lshl_add_u32 v{SB+9}, v0, 3, s3")
        A("s_lshl_b32 s3, s33, 5"); A("s_sub_u32 s3, s3, 128"); A(f"v_mov_b32 v{SB+10}, s3")
        A("s_lshl_b32 s3, s29, 3"); A("s_add_u32 s3, s3, s28"); A("s_lshl_b32 s3, s3, 2"); A("s_add_u32 s3, s3, s33"); A("s_sub_u32 s3, s3, 4")
        A("s_lshl_b32 s3, s3, 2"); A("s_add_u32 s3, s3, s32"); A("s_lshl_b32 s3, s3, 2"); A("s_add_u32 s3, s3, s31")
        A("s_lshl_b32 s46, s3, 9"); A(f"s_add_u32 s46, s46, {OP}")
        A(f"v_lshlrev_b32 v{SB+11}, 3, v0")
        A(f"v_mov_b32 v{SB+13}, s34")
        self.ldsspin("l", 20, 8, [f"ds_read_b128 {v4(SB)}, v{SB+10} offset:{L_L}", f"ds_read_b128 {v4(SB+4)}, v{SB+10} offset:{L_L+16}",
                                  f"ds_read_b32 v1, v7 offset:{L_F+12}"], sleep=2)
        A("v_readfirstlane_b32 s45, v1")
        A(f"v_pk_add_f32 {v2(SB)}, {v2(SB)}, {v2(SB+4)}"); A(f"v_pk_add_f32 {v2(SB+2)}, {v2(SB+2)}, {v2(SB+6)}")
        A(f"v_pk_add_f32 {v2(SB)}, {v2(SB)}, {v2(SB+2)}")
        A(f"v_add_f32 v{SB+14}, v{SB}, v{SB+1}")
        A(f"v_rcp_f32 v{SB+14}, v{SB+14}")
        self.lab("L_S_nr")
        for q in range(1, 4):
            if q == 3 and 33 in (self.wj, self.wj2):
                need(30); trig(33)
            need(25 + 2*q)
            if q == 2: trig(32)
            if q == 3: trig(34); A("s_setprio 3"); self.stamp(9)
            self.perms(P1, VB+32, pairs=(q,))
        for j in range(8):
            A(f"v_mfma_f32_16x16x32_bf16 {v4(OB+4*j)}, {v4(P1+4*j)}, {v4(QB+4)}, {v4(OB+4*j)}")
        A("s_mov_b64 exec, s[42:43]")
        A("s_cmp_ge_u32 s33, 8")
        for j in range(8):
            A(f"ds_write_b128 v{QB+13}, {v4(OB+4*j)} offset:{16*j}")
        A("s_mov_b64 exec, -1")
        A("s_waitcnt lgkmcnt(0)")
        A("s_barrier")
        self.stamp(10)
        A("s_cbranch_scc1 L_S_x")
        for w in range(8): A(f"ds_read_b64 {v2(8+2*w)}, v{SB+9} offset:{2112*w}")
        A("s_waitcnt lgkmcnt(0)")
        for w in (0, 1, 2, 3):
            A(f"v_pk_add_f32 {v2(8+2*w)}, {v2(8+2*w)}, {v2(16+2*w)}")
        A("v_pk_add_f32 v[8:9], v[8:9], v[12:13]"); A("v_pk_add_f32 v[10:11], v[10:11], v[14:15]")
        A("s_cmp_lg_u32 s45, 0")
        A("v_pk_add_f32 v[8:9], v[8:9], v[10:11]")
        A(f"v_pk_mul_f32 v[8:9], v[8:9], {v2(SB+14)} op_sel_hi:[1,0]")
        A(f"v_cvt_pk_bf16_f32 v{SB+12}, v8, v9")
        A("s_cbranch_scc1 L_S_y2")
        A(f"buffer_store_dwordx2 {v2(SB+12)}, v{SB+11}, s[12:15], s46 offen")
        self.lab("L_S_x")
        self.stamp(11)
        if self.stamps: A("s_sleep 127"); A("s_sleep 127")
        self.stamp_out()
        A("s_endpgm")
        self.lab("L_C")
        self.vz = "v110"
        A("s_load_dword s34, s[12:13], 0")
        A("s_load_dwordx2 s[20:21], s[0:1], s3 offset:32")
        A("s_load_dwordx2 s[52:53], s[0:1], 80")
        A("s_load_dwordx2 s[56:57], s[0:1], 88")
        A(f"s_mov_b32 s14, {WS_BYTES}"); A("s_mov_b32 s15, 0x20000")
        A("s_mov_b32 s22, 0x400000"); A("s_mov_b32 s23, 0x20000")
        A("s_mov_b32 s36, 0x05040100"); A("s_mov_b32 s37, 0x07060302")
        A("s_mov_b32 s54, 1024"); A("s_mov_b32 s55, 0x20000")
        A("s_mov_b32 s58, 4096"); A("s_mov_b32 s59, 0x20000")
        A("s_lshl_b32 s45, s29, 1"); A("s_lshr_b32 s3, s28, 2"); A("s_add_u32 s45, s45, s3")
        A("v_lshlrev_b32 v109, 4, v0")
        A("s_lshl_b32 s3, s29, 5"); A("s_add_u32 s47, s44, s3")
        A("v_mov_b32 v110, 0"); A("v_mov_b32 v111, 1"); A("v_mov_b32 v133, 1024")
        A("v_lshlrev_b32 v127, 3, v0")
        A("v_mul_u32_u24 v7, 528, v5"); A("v_lshl_add_u32 v7, v4, 7, v7")
        A("s_mul_i32 s3, s33, 2112"); A(f"s_add_u32 s3, s3, {L_R}"); A("v_add_u32 v7, s3, v7")
        A("v_lshlrev_b32 v122, 7, v4"); A("v_lshl_add_u32 v122, v6, 5, v122"); A("v_lshl_add_u32 v122, v5, 2, v122")
        A("s_mul_i32 s3, s33, 528"); A(f"s_add_u32 s3, s3, {L_R}"); A("v_add_u32 v122, s3, v122")
        A("v_add_u32 v123, 2112, v122"); A("v_add_u32 v124, 4224, v122"); A("v_add_u32 v125, 6336, v122")
        A("s_lshl_b32 s46, s47, 2"); A("s_add_u32 s46, s46, s32"); A("s_lshl_b32 s46, s46, 2"); A("s_add_u32 s46, s46, s33")
        A("s_lshl_b32 s46, s46, 9"); A(f"s_add_u32 s46, s46, {QP}")
        A("s_lshl_b32 s4, s29, 3"); A("s_add_u32 s4, s4, s28"); A("s_lshl_b32 s4, s4, 2"); A("s_add_u32 s4, s4, s33")
        A("s_lshl_b32 s4, s4, 2"); A("s_add_u32 s4, s4, s31"); A("s_lshl_b32 s4, s4, 2"); A("s_add_u32 s4, s4, s32")
        A("s_lshl_b32 s4, s4, 3"); A(f"s_add_u32 s4, s4, {SP}")
        if self.rm >= 0:
            A("s_sub_u32 s3, s32, s31"); A("s_add_u32 s44, s44, s3"); A("s_add_u32 s47, s47, s3")
            A(f"s_add_u32 s32, s31, {self.rm}"); A("s_and_b32 s32, s32, 3")
        A("s_mov_b32 s42, 0x11111111"); A("s_mov_b32 s43, 0x11111111")
        A("s_mov_b32 s41, 0")
        A("s_getreg_b32 s30, hwreg(HW_REG_XCC_ID, 0, 4)")
        if self.forcey: A("s_lshr_b32 s30, s2, 3"); A("s_and_b32 s30, s30, 1")
        A("s_lshl_b32 s3, s45, 10")
        for e in range(self.cw, 8):
            A(f"s_waitcnt vmcnt({self.cw-1})")
            A(f"buffer_load_dwordx4 {v4(WB+4*e)}, v1, s[16:19], s35 offen{nt}")
            if e < 7: A("s_add_u32 s35, s35, 8192")
        A("s_waitcnt lgkmcnt(0)")
        if self.lean: A("s_cmp_eq_u32 s33, 0"); A("s_cselect_b64 exec, -1, 1")
        A("buffer_load_dwordx4 v[112:115], v109, s[24:27], s3 offen")
        A("buffer_load_dwordx4 v[116:119], v109, s[52:55], 0 offen")
        if self.lean: A("s_mov_b64 exec, -1")
        if self.tlbs:
            A("s_and_b32 s5, s44, 3"); A("s_lshl_b32 s5, s5, 17")
            A("s_lshl_b32 s3, s31, 3"); A("s_add_u32 s3, s3, s28"); A("s_lshl_b32 s3, s3, 21"); A("s_add_u32 s3, s3, s5"); A("s_add_u32 s3, s3, 0x180000")
            A("s_load_dword s5, s[8:9], s3")
            A("s_lshl_b32 s3, s44, 17")
            A("s_load_dword s6, s[20:21], s3")
            A(f"s_mov_b32 s3, {FP + 0x100000}"); A("s_load_dword s7, s[12:13], s3")
            A("s_load_dword s9, s[56:57], 0")
        A("s_mul_i32 s34, s34, 1664525"); A("s_add_u32 s34, s34, 1013904223")
        A("v_mov_b32 v129, s34")
        A("s_and_b32 s3, s34, -16"); A("s_or_b32 s30, s30, s3")
        A("v_and_b32 v160, 1, v0"); A("v_lshlrev_b32 v160, 4, v160")
        A("v_lshrrev_b32 v166, v160, s30"); A("v_lshrrev_b32 v160, v160, s34")
        A("v_bfe_u32 v167, v166, 8, 8"); A("v_bfe_u32 v161, v160, 8, 8")
        A("v_and_b32 v166, 0xff, v166"); A("v_and_b32 v160, 0xff, v160")
        A("s_movk_i32 s11, 0xff"); A("s_and_b32 s30, s30, 0xffff"); A("s_mov_b32 s10, 0x0c0c0400")
        SG = 136
        OG = 152
        ol = [f"buffer_load_dwordx2 {v2(OG+2*s)}, v1, s[12:15], s{39 if s < 2 else 48} offen offset:{2048*(s&1)}{pol}" for s in range(4)]
        stl = [f"buffer_load_dwordx4 {v4(SG+4*s)}, v2, s[12:15], s35 offen offset:{16*s}{pol}" for s in range(2)]
        self.lab("L_tile")
        for q in range(4):
            if q == self.opos:
                A("s_cmp_eq_u32 s41, 0"); A("s_cbranch_scc1 L_t0")
                for l in ol: A(l)
                for q2 in range(q, 4):
                    A(f"s_waitcnt vmcnt({12-2*q2})")
                    self.perms(PB, WB, pairs=(q2,))
                self.stamp(7)
                A("s_branch L_t1")
                self.lab("L_t0")
            A(f"s_waitcnt vmcnt({8-2*q})")
            self.perms(PB, WB, pairs=(q,))
        if self.opos < 4:
            self.stamp(2); A("s_branch L_mm")
            self.lab("L_t1")
        else:
            if self.stamps or self.padk in (2, 7):
                A("s_cmp_eq_u32 s41, 0"); A("s_cbranch_scc0 L_st7")
                self.stamp(2); A("s_branch L_st2")
                self.lab("L_st7"); self.stamp(7); self.lab("L_st2")
            A("s_cmp_eq_u32 s41, 0"); A("s_cbranch_scc1 L_mm")
            for l in ol: A(l)
        A(f"s_mov_b32 s38, {self.spin}"); A("s_mov_b32 s40, 0")
        A("s_mov_b64 s[50:51], -1")
        A("s_waitcnt vmcnt(4)")
        A("s_branch L_og1b")
        self.lab("L_og")
        A("s_waitcnt vmcnt(0)")
        A(f"v_xor_b32 v20, s34, v{OG+1}")
        for s in range(1, 4): A(f"v_bitop3_b32 v20, v{OG+1+2*s}, s34, v20 bitop3:0xbe")
        A("s_sub_u32 s38, s38, 1")
        A("v_cmp_ne_u32 vcc, 0, v20")
        A("s_cselect_b64 s[50:51], 0, -1")
        A("s_and_b64 exec, vcc, s[50:51]")
        A("s_cbranch_scc0 L_og1")
        if self.osleep: A(f"s_sleep {self.osleep}")
        for l in ol: A(l)
        A("s_cmp_lg_u32 s40, 0"); A("s_cbranch_scc1 L_og")
        self.lab("L_og1")
        A("s_cmp_lg_u32 s40, 0"); A("s_cbranch_scc1 L_ogd")
        self.lab("L_og1b")
        A("s_mov_b64 s[54:55], exec")
        A("s_mov_b64 exec, -1")
        A(f"v_xor_b32 v20, s34, v{SG+1}")
        for i in range(1, 4): A(f"v_bitop3_b32 v20, v{SG+1+2*i}, s34, v20 bitop3:0xbe")
        A("v_cmp_ne_u32 vcc, 0, v20")
        A("s_and_b64 vcc, vcc, s[50:51]")
        A("s_cbranch_scc0 L_og2")
        for l in stl: A(l)
        A("s_branch L_og")
        self.lab("L_og2")
        self.stamp(15)
        A(f"v_max3_f32 v20, v{SG}, v{SG+2}, v{SG+4}"); A(f"v_max_f32 v20, v20, v{SG+6}")
        for s in range(4): A(f"v_sub_f32 v{8+2*s}, v{SG+2*s}, v20")
        for s in range(4): A(f"v_exp_f32 v{8+2*s}, v{8+2*s}")
        A("v_add_f32 v20, v8, v10"); A("v_add_f32 v21, v12, v14".replace("v14", "v14")); A("v_add_f32 v20, v20, v21")
        A("v_rcp_f32 v20, v20")
        A("s_mov_b32 s40, 1")
        for s in range(4): A(f"v_mul_f32 v{8+2*s}, v{8+2*s}, v20")
        A("s_mov_b64 exec, s[54:55]")
        A("s_cbranch_execnz L_og")
        self.lab("L_ogd")
        if self.eta:
            A("s_mov_b64 exec, 1")
            A("s_cmp_lg_u32 s49, 0"); A("s_cbranch_scc1 L_ogn")
            A(f"buffer_store_dword v129, v135, s[12:15], 0 offen{pol}")
            self.lab("L_ogn")
        A("s_mov_b64 exec, -1")
        self.stamp(8)
        for s in range(4):
            A(f"v_lshlrev_b32 v{24+2*s}, 16, v{OG+2*s}"); A(f"v_and_b32 v{25+2*s}, 0xffff0000, v{OG+2*s}")
        A(f"v_pk_mul_f32 v[24:25], v[24:25], v[8:9] op_sel_hi:[1,0]")
        A(f"v_pk_mul_f32 v[28:29], v[28:29], v[12:13] op_sel_hi:[1,0]")
        A(f"v_pk_fma_f32 v[24:25], v[26:27], v[10:11], v[24:25] op_sel_hi:[1,0,1]")
        A(f"v_pk_fma_f32 v[28:29], v[30:31], v[14:15], v[28:29] op_sel_hi:[1,0,1]")
        A(f"v_pk_add_f32 v[24:25], v[24:25], v[28:29]")
        A("v_cvt_pk_bf16_f32 v24, v24, v25"); self.nop(2)
        for q in range(4):
            A(f"v_mov_b32_dpp v{XB+q}, v24 quad_perm:[{q},{q},{q},{q}] row_mask:0xf bank_mask:0xf")
        self.nop(2)
        self.lab("L_mm")
        for j in range(8):
            A(f"v_mfma_f32_16x16x32_bf16 {v4(DB+4*j)}, {v4(PB+4*j)}, {v4(XB)}, 0")
        A("s_mov_b64 exec, s[42:43]")
        A("s_cmp_eq_u32 s41, 0")
        for j in range(8):
            A(f"ds_write_b128 v7, {v4(DB+4*j)} offset:{16*j}")
        A("s_cbranch_scc0 L_fin")
        self.cnt(0, "v111")
        A("s_mov_b64 exec, -1")
        rd = [f"ds_read2_b32 {v2(12+2*i)}, v{122+i} offset0:0 offset1:4" for i in range(4)]
        self.ldsspin("c", 0, 4, rd, sleep=0)
        A("v_pk_add_f32 v[12:13], v[12:13], v[14:15]"); A("v_pk_add_f32 v[16:17], v[16:17], v[18:19]")
        A("v_pk_add_f32 v[12:13], v[12:13], v[16:17]")
        A("v_bfi_b32 v164, s11, v166, v12"); A("v_bfi_b32 v165, s11, v167, v13")
        A("buffer_store_dwordx2 v[164:165], v127, s[12:15], s46 offen")
        self.stamp(3)
        if self.pretouch:
            A("s_lshl_b32 s3, s32, 2"); A("s_add_u32 s3, s3, s33"); A("s_lshl_b32 s3, s3, 9")
            A("s_lshl_b32 s40, s47, 13"); A("s_add_u32 s3, s3, s40"); A(f"s_add_u32 s3, s3, {OP}")
            A("s_or_b32 s40, s32, s33"); A("s_cbranch_scc1 L_pt")
            A("s_lshl_b32 s40, s47, 7"); A(f"s_add_u32 s40, s40, {SP}")
            A("s_load_dword s49, s[12:13], s40")
            self.lab("L_pt")
            for i in range(4): A(f"s_load_dword s49, s[12:13], s3 offset:{128*i}")
        if self.tlbv:
            A("s_mov_b64 exec, 1")
            A(f"s_mov_b32 s3, {FP + 0x100000}")
            A("buffer_load_dword v20, v110, s[12:15], s3 offen")
            A("buffer_load_dword v21, v110, s[56:59], 0 offen")
            A("s_mov_b64 exec, -1")
        A(f"s_waitcnt vmcnt({3 if self.tlbv else 1})")
        for i in range(4):
            A(f"v_lshlrev_b32 v{24+2*i}, 16, v{112+i}"); A(f"v_and_b32 v{25+2*i}, 0xffff0000, v{112+i}")
            A(f"v_lshlrev_b32 v{32+2*i}, 16, v{116+i}"); A(f"v_and_b32 v{33+2*i}, 0xffff0000, v{116+i}")
        for i in range(4):
            A(f"v_pk_mul_f32 {v2(24+2*i)}, {v2(24+2*i)}, {v2(32+2*i)}")
        for i in range(4):
            A(f"v_cvt_pk_bf16_f32 v{32+i}, v{24+2*i}, v{25+2*i}")
        for i in range(4):
            A(f"v_lshlrev_b32 v{24+2*i}, 16, v{32+i}"); A(f"v_and_b32 v{25+2*i}, 0xffff0000, v{32+i}")
        A("v_pk_add_f32 v[24:25], v[24:25], v[28:29]"); A("v_pk_add_f32 v[26:27], v[26:27], v[30:31]")
        A("v_pk_add_f32 v[24:25], v[24:25], v[26:27]"); A("v_add_f32 v8, v24, v25")
        for ror in (8, 4, 2, 1):
            self.nop(2); self.dpp("v_add_f32", 8, 8, 8, f"row_ror:{ror}")
        self.allred_rows("v_add_f32", 8, 9)
        A("v_cvt_pk_bf16_f32 v8, v8, v8"); A("v_lshlrev_b32 v8, 16, v8")
        A(f"v_mul_f32 v8, {0xbfb8aa3b}, v8"); A("v_exp_f32 v8, v8"); self.nop(1)
        A("v_add_f32 v8, 1.0, v8"); A("v_rcp_f32 v8, v8"); self.nop(1)
        A("v_cvt_pk_bf16_f32 v8, v8, v8"); A("v_lshlrev_b32 v8, 16, v8")
        A("v_sub_f32 v9, 1.0, v8"); A("v_cvt_pk_bf16_f32 v9, v9, v9"); A("v_lshlrev_b32 v9, 16, v9")
        A("v_cmp_gt_u32 vcc, 32, v0")
        A("s_lshl_b32 s39, s29, 3"); A("s_add_u32 s39, s39, s28"); A("s_lshl_b32 s39, s39, 2"); A("s_add_u32 s39, s39, s33")
        A("v_cndmask_b32 v120, v9, v8, vcc")
        A("s_lshl_b32 s39, s39, 4"); A("s_add_u32 s39, s39, s31"); A("s_lshl_b32 s39, s39, 9"); A(f"s_add_u32 s39, s39, {QP}")
        A("s_add_u32 s60, s39, 4096")
        A("s_mov_b32 s63, 0")
        A("v_mov_b32 v18, 0")
        A("v_lshlrev_b32 v19, 11, v6")
        A(f"s_mov_b32 s38, {self.n0}"); A(f"s_mov_b32 s62, {self.spin}")
        self.stamp(13)
        D = self.qdepth
        ld = lambda i: A(f"buffer_load_dwordx2 {v2(40+2*i)}, v19, s[12:15], s39 offen{pol}")
        qg = lambda vo: [f"buffer_load_dwordx2 {v2(24+2*i)}, {vo}, s[12:15], s{39 if i < 2 else 60} offen offset:{2048*(i&1)}{pol}" for i in range(4)]
        for i in range(D - 1):
            ld(i); A(f"s_sleep {self.qsleep}")
        self.lab("L_qf")
        for i in range(D):
            ld((i + D - 1) % D)
            A(f"s_waitcnt vmcnt({D-1})")
            A(f"v_perm_b32 v20, v{41+2*i}, v{40+2*i}, s10")
            A("v_cmp_ne_u32 vcc, s30, v20")
            A("s_cmp_eq_u64 vcc, 0"); A("s_cbranch_scc1 L_qfd")
        self.lab("L_qfr")
        A("s_sub_u32 s38, s38, 1")
        A("s_cbranch_scc0 L_qf")
        A("s_branch L_slow")
        self.lab("L_qfd")
        self.stamp(14)
        for l in qg("v127"): A(l)
        A(f"s_mul_i32 s3, s33, {QH}"); A("v_lshl_add_u32 v16, v0, 2, s3")
        A("v_lshlrev_b32 v1, 11, v4"); A("v_lshl_add_u32 v1, v3, 4, v1")
        A("s_lshl_b32 s48, s44, 17"); A("s_lshl_b32 s3, s33, 15"); A("s_add_u32 s48, s48, s3")
        A("s_lshl_b32 s3, s32, 8"); A("s_add_u32 s48, s48, s3")
        A("s_waitcnt vmcnt(0) lgkmcnt(0)")
        self.untag(24, 166, 8)
        A("v_cmp_ne_u32 vcc, 0, v8"); A("s_cmp_eq_u64 vcc, 0"); A("s_cbranch_scc0 L_qfr")
        self.lab("L_qok")
        A("v_pk_add_f32 v[24:25], v[24:25], v[26:27]"); A("v_pk_add_f32 v[28:29], v[28:29], v[30:31]")
        A("v_pk_add_f32 v[24:25], v[24:25], v[28:29]")
        A("v_cvt_pk_bf16_f32 v17, v24, v25")
        A(f"ds_write_b32 v16, v17 offset:{L_Q}")
        self.cnt(12, "v18")
        A(f"ds_add_u32 v110, v111 offset:{L_F+4}")
        A("s_mov_b64 exec, -1")
        self.stamp(4)
        self.lab("L_vd")
        A(f"ds_read_b32 v2, v110 offset:{L_F+4}")
        A(f"ds_read2_b32 v[134:135], v133 offset0:{(L_F+12)//4 - 256} offset1:{(L_F+16)//4 - 256}")
        A("s_waitcnt lgkmcnt(0)")
        A("v_readfirstlane_b32 s40, v2"); A("v_readfirstlane_b32 s3, v135"); A("v_readfirstlane_b32 s49, v134")
        A("s_andn2_b32 s3, s3, s63"); A("s_cbranch_scc1 L_puby2")
        A("s_cmp_ge_u32 s40, 4"); A("s_cbranch_scc1 L_vdd")
        A("s_sleep 2"); A("s_sub_u32 s62, s62, 1"); A("s_cbranch_scc0 L_vd")
        self.lab("L_vdd")
        A("s_lshl_b32 s3, s33, 5"); A("v_mov_b32 v56, s3")
        self.ldsspin("l2", 20, 8, [f"ds_read_b128 v[40:43], v56 offset:{L_M}", f"ds_read_b128 v[44:47], v56 offset:{L_M+16}",
                                   f"ds_read_b128 v[48:51], v56 offset:{L_L}", f"ds_read_b128 v[52:55], v56 offset:{L_L+16}"], sleep=4)
        A("v_max3_f32 v40, v40, v41, v42"); A("v_max3_f32 v43, v43, v44, v45"); A("v_max3_f32 v40, v40, v46, v47")
        A("v_pk_add_f32 v[48:49], v[48:49], v[52:53]"); A("v_pk_add_f32 v[50:51], v[50:51], v[54:55]")
        A("v_pk_add_f32 v[48:49], v[48:49], v[50:51]"); A("v_add_f32 v48, v48, v49")
        A("v_log_f32 v48, v48"); A("v_max_f32 v40, v40, v43")
        A("s_cmp_lg_u32 s49, 0")
        A("v_add_f32 v128, v40, v48")
        A("s_mov_b64 exec, 1")
        A("s_cbranch_scc1 L_S_y1")
        A("buffer_store_dwordx2 v[128:129], v110, s[12:15], s4 offen")
        self.lab("L_S_y1r")
        A("s_mov_b64 exec, -1")
        for e in range(8):
            if e == self.wo1: self.ldsspin("w", 24, self.th1, [], sleep=2)
            if e == self.wa: self.ldsspin("w2", 24, self.th2, [], sleep=1)
            if e == self.wo_early: A("s_setprio 0")
            A(f"buffer_load_dwordx4 {v4(WB+4*e)}, v1, s[20:23], s48 offen offset:{1024*(e>>2)}{nt}")
            if e == 3: A("s_sub_u32 s48, s48, 24576")
            elif e < 7: A("s_add_u32 s48, s48, 8192")
        A("s_setprio 3")
        self.stamp(5)
        A("s_cmp_lg_u32 s49, 0"); A(f"s_cselect_b32 s49, {YD}, 0")
        A("s_lshl_b32 s35, s47, 7"); A(f"s_add_u32 s35, s35, {SP}"); A("s_add_u32 s35, s35, s49")
        A("v_lshlrev_b32 v2, 5, v5")
        for l in stl: A(l)
        A("s_lshl_b32 s39, s47, 13"); A("s_lshl_b32 s3, s33, 7"); A("s_add_u32 s39, s39, s3"); A(f"s_add_u32 s39, s39, {OP}")
        A("s_add_u32 s39, s39, s49"); A("s_add_u32 s48, s39, 4096")
        A("v_lshlrev_b32 v1, 9, v5"); A("v_lshl_add_u32 v1, v4, 5, v1"); A("v_lshl_add_u32 v1, v6, 3, v1")
        A("s_lshl_b32 s63, s32, 17"); A(f"s_add_u32 s63, s63, {FP}")
        A("s_lshl_b32 s3, s47, 11"); A("s_add_u32 s46, s63, s3"); A("s_lshl_b32 s3, s33, 9"); A("s_add_u32 s46, s46, s3")
        A("v_lshrrev_b32 v121, 2, v0"); A("v_lshlrev_b32 v121, 11, v121"); A("v_lshl_add_u32 v121, v6, 3, v121")
        A("s_lshl_b32 s3, s47, 5"); A("s_add_u32 s63, s63, s3")
        A("s_add_u32 s60, s63, 0x8000"); A("s_add_u32 s61, s63, 0x10000"); A("s_add_u32 s62, s63, 0x18000")
        A("s_lshl_b32 s45, s45, 10"); A("s_lshl_b32 s3, s32, 8"); A("s_add_u32 s45, s45, s3")
        A("s_and_b32 s3, s47, 15"); A("s_lshl_b32 s3, s3, 4"); A("s_add_u32 s45, s45, s3")
        A("v_lshlrev_b32 v126, 2, v6"); A("v_lshl_add_u32 v126, v4, 1, v126")
        A("s_mov_b32 s41, 1")
        A("s_and_b32 s49, s44, 3"); A("s_or_b32 s49, s49, s32"); A("s_or_b32 s49, s49, s33")
        A("s_lshr_b32 s3, s47, 2"); A("s_lshl_b32 s3, s3, 8"); A(f"s_add_u32 s3, s3, {EP}"); A("v_mov_b32 v135, s3")
        A("v_lshlrev_b32 v134, 8, v3"); A(f"v_add_u32 v134, {EP}, v134")
        A("s_barrier")
        self.stamp(6)
        A("s_branch L_tile")
        self.lab("L_fin")
        if self.b4spin:
            self.cnt(28, "v111")
            A("s_mov_b64 exec, -1")
            self.ldsspin("c2", 28, 4, rd, sleep=0)
        else:
            A("s_mov_b64 exec, -1")
            A("s_waitcnt lgkmcnt(0)")
            A("s_barrier")
            for r in rd: A(r)
            A("s_waitcnt lgkmcnt(0)")
        A("v_pk_add_f32 v[12:13], v[12:13], v[14:15]"); A("v_pk_add_f32 v[16:17], v[16:17], v[18:19]")
        A("v_pk_add_f32 v[12:13], v[12:13], v[16:17]")
        A("v_bfi_b32 v12, s11, v160, v12"); A("v_bfi_b32 v13, s11, v161, v13")
        A(f"buffer_store_dwordx2 v[12:13], v127, s[12:15], s46 offen{pol}")
        self.stamp(9)
        A("s_cmp_lg_u32 s33, 0"); A("s_cbranch_scc1 L_C_exit")
        if self.fdelay: A(f"s_sleep {self.fdelay}")
        if self.eta:
            self.poll("e", [f"buffer_load_dword v41, v134, s[12:15], 0 offen{pol}"], [41], 40)
            if self.edly: A(f"s_sleep {self.edly}")
        self.poll("f", [f"buffer_load_dwordx2 {v2(24+2*i)}, v121, s[12:15], s{(63,60,61,62)[i]} offen{pol}" for i in range(4)],
                  list(range(24, 32)), 40, sleep=self.fsleep, tv=160)
        self.stamp(10)
        A("v_pk_add_f32 v[24:25], v[24:25], v[26:27]"); A("v_pk_add_f32 v[28:29], v[28:29], v[30:31]")
        self.nop(2)
        A("v_permlane32_swap_b32 v24, v28"); A("v_permlane32_swap_b32 v25, v29")
        A("v_pk_add_f32 v[24:25], v[24:25], v[28:29]"); self.nop(2)
        A("v_permlane16_swap_b32 v24, v25")
        A("v_add_f32 v24, v24, v25"); self.nop(2)
        self.dpp("v_add_f32", 24, 24, 24, "row_ror:4"); self.nop(2)
        self.dpp("v_add_f32", 24, 24, 24, "row_ror:8")
        A("v_cvt_pk_bf16_f32 v24, v24, v24"); A("v_lshlrev_b32 v24, 16, v24")
        A("v_mul_f32 v24, v24, v120")
        A("v_cvt_pk_bf16_f32 v24, v24, v24"); A("v_lshlrev_b32 v24, 16, v24")
        A("v_mov_b32 v25, v24"); self.nop(2)
        A("v_permlane32_swap_b32 v24, v25")
        A("v_add_f32 v24, v24, v25")
        A("v_cvt_pk_bf16_f32 v24, v24, v24")
        A("s_mov_b64 exec, 0x000f000f")
        A("buffer_store_short v24, v126, s[56:59], s45 offen")
        if self.pad:
            if self.padk >= 0:
                A("s_waitcnt lgkmcnt(0)"); A("s_mov_b32 s90, s92")
            self.lab("L_pad")
            A("s_memrealtime s[94:95]"); A("s_waitcnt lgkmcnt(0)"); A("s_sub_u32 s94, s94, s90")
            A(f"s_cmp_lt_u32 s94, {self.pad}"); A("s_cbranch_scc1 L_pad")
        A("s_cmp_lg_u32 s2, 0"); A("s_cbranch_scc1 L_C_exit")
        A("s_mov_b64 exec, 1")
        A("buffer_store_dword v129, v110, s[12:15], 0 offen")
        self.lab("L_C_exit")
        self.stamp(11)
        if self.stamps: A("s_sleep 127")
        if self.stamps:
            A("s_waitcnt vmcnt(0)")
            self.stamp(12)
        self.stamp_out()
        self.lab("L_end")
        A("s_endpgm")
        self.lab("L_last")
        self.lab("L_S_y1")
        A(f"s_add_u32 s4, s4, {YD}")
        A(f"buffer_store_dwordx2 v[128:129], v110, s[12:15], s4 offen{pol}")
        A("s_branch L_S_y1r")
        self.lab("L_S_y2")
        A(f"s_add_u32 s46, s46, {YD}")
        A(f"buffer_store_dwordx2 {v2(SB+12)}, v{SB+11}, s[12:15], s46 offen{pol}")
        A("s_branch L_S_x")
        def puby():
            A(f"s_add_u32 s3, s46, {YD}")
            A(f"buffer_store_dwordx2 v[164:165], v127, s[12:15], s3 offen{pol}")
            A("s_mov_b32 s63, 1")
        self.lab("L_puby2")
        puby()
        A("s_branch L_vd")
        self.lab("L_slow")
        A("s_cmp_lg_u32 s63, 0"); A("s_cbranch_scc1 L_slow2")
        A(f"ds_write_b32 v110, v111 offset:{L_F+16}")
        puby()
        self.lab("L_slow2")
        A(f"v_add_u32 v9, {YD}, v127")
        for l in qg("v9"): A(l)
        A("v_and_b32 v9, 1, v0"); A("v_mul_u32_u24 v9, 15, v9"); A("v_or_b32 v9, 0xf0, v9")
        A("s_waitcnt vmcnt(0)")
        A("v_xor_b32 v8, v166, v24"); A("v_xor_b32 v10, v167, v25")
        for r in range(26, 32): A(f"v_bitop3_b32 v{8 + 2*(r & 1)}, v{r}, v{166 + (r & 1)}, v{8 + 2*(r & 1)} bitop3:0xbe")
        A("v_and_b32 v10, 0xff, v10"); A("v_and_or_b32 v9, v8, v9, v10"); A("v_and_b32 v10, 15, v8")
        A("s_mov_b32 s38, 0")
        A("v_cmp_ne_u32 vcc, 0, v9"); A("s_cmp_eq_u64 vcc, 0"); A("s_cbranch_scc1 L_slow3")
        A("s_sleep 8")
        A("s_sub_u32 s62, s62, 1"); A("s_cbranch_scc0 L_qf")
        self.lab("L_slow3")
        for r in range(24, 32): A(f"v_and_b32 v{r}, 0xffffff00, v{r}")
        A("v_cmp_ne_u32 vcc, 0, v10"); A("s_cmp_lg_u64 vcc, 0")
        A("s_cselect_b32 s3, 1, 0"); A("v_mov_b32 v18, s3")
        A(f"s_mul_i32 s3, s33, {QH}"); A("v_lshl_add_u32 v16, v0, 2, s3")
        A("v_lshlrev_b32 v1, 11, v4"); A("v_lshl_add_u32 v1, v3, 4, v1")
        A("s_lshl_b32 s48, s44, 17"); A("s_lshl_b32 s3, s33, 15"); A("s_add_u32 s48, s48, s3")
        A("s_lshl_b32 s3, s32, 8"); A("s_add_u32 s48, s48, s3")
        A("s_waitcnt lgkmcnt(0)")
        A("s_branch L_qok")
        L.append('.section .rodata,"a"'); L.append(".p2align 6"); L.append(f".amdhsa_kernel {KN}")
        L.append("  .amdhsa_next_free_vgpr 168"); L.append("  .amdhsa_next_free_sgpr 96"); L.append("  .amdhsa_accum_offset 168")
        L.append("  .amdhsa_group_segment_fixed_size 0"); L.append("  .amdhsa_kernarg_size 112"); L.append("  .amdhsa_user_sgpr_count 2")
        L.append("  .amdhsa_user_sgpr_kernarg_segment_ptr 1"); L.append("  .amdhsa_system_sgpr_workgroup_id_x 1")
        L.append("  .amdhsa_float_denorm_mode_32 3")
        L.append(".end_amdhsa_kernel")
        return "\n".join(L) + "\n"

if __name__ == "__main__":
    out = sys.argv[1]
    kw = {}
    for a in sys.argv[2:]:
        k, v = a.split("=")
        kw[k] = v.replace("+", " ") if k in ("pol", "pat") else int(v)
    open(out, "w").write(G(**kw).gen())
```

```python
import sys
KN = "gated_mix__sliding_block_cached__sliding_block_cached__decode_kernel"
HDR = open("gated_mix__sliding_block_cached__sliding_block_cached__decode.s.ref").read().split("; Override launch")[0]

FL = 0x1000
YD = 0x400000
OP = 0x100000
SP = 0xC0000
EP = 0xD0000
QP = 0x100000
FP = 0x180000
WS_BYTES = 0x600000
STAMP_OFF = 0x4000000
L_Q = 0
QH = 272
L_M = 1280
L_L = 1408
L_F = 1536
L_O = 2048
L_R = L_O + 8*2112
LDS_BYTES = L_R + 4*2112
LOG2E = 0x3fb8aa3b
SCALE = 0x3db504f3
NS = 16

class G:
    def __init__(self, **kw):
        d = dict(padk=-1, pad=0, stamps=0, nt=1, pol="sc1", spin=1 << 16, pf=1, wo_early=0, qsleep=12, forcey=0, pretouch=0,
                 n0=8, qdepth=4, lsplit=1, osleep=0, fsleep=0, b4spin=0, fdelay=0, eta=1, edly=0, tx=0, rm=2, N=3, rot=1, lan=1, qpos=3, wj=31, pat='x0x11x', cw=3, up=99, wo1=0, wj2=32, wa=2, th1=8, th2=16, opos=3, pr=0, tlbs=0, tlbv=0, lean=1, xdirty=0, qwt=0, owt=0, xperm=0, b0late=0, ed=1, es=4, early=0, ldly=0, ssleep=8, ovl=1)
        d.update(kw)
        self.__dict__.update(d)
        self.L = []
        self.nt = " nt" if self.nt else ""
        self.pol = " " + self.pol
    def A(self, s): self.L.append("    " + s)
    def lab(self, s): self.L.append(s + ":")
    def nop(self, n):
        while n > 0:
            k = min(n, 16); self.A(f"s_nop {k-1}"); n -= k
    def stamp(self, i):
        if self.padk == i: self.A("s_memrealtime s[92:93]")
        if self.stamps: self.A(f"s_memrealtime s[{64+2*i}:{65+2*i}]")
    def stamp_out(self):
        if not self.stamps: return
        A = self.A
        A("s_waitcnt lgkmcnt(0)")
        A("s_mul_i32 s60, s2, 12"); A("s_add_u32 s60, s60, s33"); A(f"s_mul_i32 s60, s60, {NS*8}")
        A(f"s_add_u32 s60, s60, {STAMP_OFF}")
        A("s_add_u32 s62, s12, s60"); A("s_addc_u32 s63, s13, 0")
        A("s_mov_b64 exec, 1"); A("v_mov_b32 v4, 0")
        for i in range(NS):
            A(f"v_mov_b32 v2, s{64+2*i}"); A(f"v_mov_b32 v3, s{65+2*i}")
            A(f"global_store_dwordx2 v4, v[2:3], s[62:63] offset:{i*8}"); A("s_nop 1")
    def v4(self, r): return f"v[{r}:{r+3}]"
    def v2(self, r): return f"v[{r}:{r+1}]"
    def perms(self, dst, src, pairs=(0, 1, 2, 3)):
        for q in pairs:
            for w in range(4):
                for hh in range(2):
                    j = 2*w + hh
                    self.A(f"v_perm_b32 v{dst+4*j+q}, v{src+4*(2*q+1)+w}, v{src+4*(2*q)+w}, s{36+hh}")
    def allred_rows(self, op, v, t):
        A = self.A
        A(f"v_mov_b32 v{t}, v{v}"); self.nop(2)
        A(f"v_permlane32_swap_b32 v{v}, v{t}")
        A(f"{op} v{v}, v{v}, v{t}")
        A(f"v_mov_b32 v{t}, v{v}"); self.nop(2)
        A(f"v_permlane16_swap_b32 v{v}, v{t}")
        A(f"{op} v{v}, v{v}, v{t}")
    def dpp(self, op, d, a, b, ctl):
        self.A(f"{op}_dpp v{d}, v{a}, v{b} {ctl} row_mask:0xf bank_mask:0xf")
    def poll(self, name, loads, tagregs, acc, first_issued=False, sleep=0, tv=None):
        A = self.A
        A(f"s_mov_b32 s38, {self.spin}")
        if first_issued: A(f"s_branch L_chk_{name}")
        elif sleep: A(f"s_branch L_ld_{name}")
        self.lab(f"L_poll_{name}")
        if sleep: A(f"s_sleep {sleep}")
        self.lab(f"L_ld_{name}")
        for l in loads: A(l)
        self.lab(f"L_chk_{name}")
        A("s_waitcnt vmcnt(0)")
        if tv is None:
            A(f"v_xor_b32 v{acc}, s34, v{tagregs[0]}")
            for r in tagregs[1:]:
                A(f"v_bitop3_b32 v{acc}, v{r}, s34, v{acc} bitop3:0xbe")
        else: self.untag(tagregs[0], tv, acc)
        A("s_sub_u32 s38, s38, 1")
        A(f"v_cmp_ne_u32 vcc, 0, v{acc}")
        A("s_cselect_b64 s[50:51], 0, -1")
        if tv is not None: A("s_wqm_b64 vcc, vcc")
        A("s_and_b64 exec, vcc, s[50:51]")
        A(f"s_cbranch_scc1 L_poll_{name}")
        A("s_mov_b64 exec, -1")
    def untag(self, r0, tv, acc):
        A = self.A
        for r in range(r0, r0 + 8): A(f"v_xor_b32 v{r}, v{tv + (r & 1)}, v{r}")
        A(f"v_or3_b32 v{acc}, v{r0}, v{r0+1}, v{r0+2}"); A(f"v_or3_b32 v{acc+1}, v{r0+3}, v{r0+4}, v{r0+5}")
        A(f"v_or3_b32 v{acc}, v{acc}, v{r0+6}, v{r0+7}")
        A(f"v_bitop3_b32 v{acc}, v{acc}, v{acc+1}, s11 bitop3:0xa8")
    def ldsspin(self, name, off, target, reads, sleep=1):
        A = self.A
        A(f"s_mov_b32 s38, {self.spin * 16}")
        if sleep: A(f"s_branch L_spl_{name}")
        self.lab(f"L_sp_{name}")
        if sleep: A(f"s_sleep {sleep}")
        self.lab(f"L_spl_{name}")
        A(f"ds_read_b32 v2, {self.vz} offset:{L_F+off}")
        for r in reads: A(r)
        A("s_sub_u32 s38, s38, 1")
        A("s_cselect_b32 s3, 0, -1")
        A("s_waitcnt lgkmcnt(0)")
        A("v_readfirstlane_b32 s40, v2")
        A("s_orn2_b32 s40, s40, s3")
        A(f"s_cmp_lt_u32 s40, {target}")
        A(f"s_cbranch_scc1 L_sp_{name}")
    def cnt(self, off, one):
        A = self.A
        A("s_mov_b64 exec, 1")
        A(f"ds_add_u32 {self.vz}, {one} offset:{L_F+off}")
    def vissue(self, VB, p):
        for T in (2*p, 2*p+1):
            for e in range(4):
                self.A(f"buffer_load_dwordx4 {self.v4(VB+16*T+4*e)}, v5, s[8:11], s35 offen offset:{256*e}{self.nt}")
            if T < 3: self.A("s_add_u32 s35, s35, 16384")
    def mspin(self, name, B, d):
        A = self.A
        self.ldsspin(name, 8, 8, [f"ds_read_b128 {self.v4(B)}, v6 offset:{L_M}", f"ds_read_b128 {self.v4(B+4)}, v6 offset:{L_M+16}"], sleep=2)
        A(f"v_max3_f32 v{B}, v{B}, v{B+1}, v{B+2}")
        A(f"v_max3_f32 v{B+3}, v{B+3}, v{B+4}, v{B+5}")
        A(f"v_max3_f32 v{B}, v{B}, v{B+6}, v{B+7}")
        A(f"v_max_f32 v{d}, v{B}, v{B+3}")

    def gen(self):
        A = self.A; nt = self.nt; pol = self.pol; v4 = self.v4; v2 = self.v2
        OP = 0x100000 if self.ovl else 0x40000
        L = self.L
        L.append(HDR.rstrip("\n"))
        L.append(f"; @launch grid=(256,1,1) block=(768,1,1) lds={LDS_BYTES}")
        L.append('.amdgcn_target "amdgcn-amd-amdhsa--gfx950"')
        L.append(".text"); L.append(f".globl {KN}"); L.append(".p2align 12"); L.append(".p2align 8"); L.append(f".type {KN},@function"); L.append(f"{KN}:")
        self.stamp(0)
        if self.pad: A("s_memrealtime s[90:91]")
        if self.stamps:
            for i in range(1, NS): A(f"s_mov_b64 s[{64+2*i}:{65+2*i}], 0")
        if self.xperm == 1:
            A("s_lshr_b32 s3, s2, 3"); A("s_and_b32 s29, s2, 7"); A("s_lshl_b32 s29, s29, 5"); A("s_or_b32 s2, s3, s29")
        if self.xperm == 2:
            A("s_xor_b32 s3, s2, 1"); A("s_and_b32 s29, s2, 0xf8"); A("s_cmp_eq_u32 s29, 0x48"); A("s_cselect_b32 s2, s3, s2")
        A("s_bfe_u32 s29, s2, 0x10002")
        A("s_mul_i32 s3, s29, 40")
        A("s_cmp_ge_u32 s2, 256"); A("s_cbranch_scc1 L_end")
        A("s_load_dwordx2 s[16:17], s[0:1], s3 offset:24")
        A("s_load_dwordx2 s[24:25], s[0:1], 0")
        A("s_load_dwordx2 s[4:5], s[0:1], s3 offset:8")
        A("s_load_dwordx2 s[8:9], s[0:1], s3 offset:16")
        A("s_load_dwordx2 s[12:13], s[0:1], 104")
        A("v_lshrrev_b32 v1, 6, v0")
        A("s_lshr_b32 s30, s2, 3")
        if self.tx: A(f"s_xor_b32 s30, s30, {self.tx}")
        A("v_readfirstlane_b32 s33, v1")
        A("s_and_b32 s28, s2, 3"); A("s_lshl_b32 s28, s28, 1"); A("s_lshr_b32 s31, s30, 4"); A("s_or_b32 s28, s28, s31")
        A("s_bfe_u32 s31, s30, 0x20002"); A("s_and_b32 s32, s30, 3")
        A("v_and_b32 v0, 63, v0")
        A("v_and_b32 v3, 15, v0")
        A("v_lshrrev_b32 v4, 4, v0")
        A("v_bfe_u32 v5, v0, 2, 2")
        A("v_and_b32 v6, 3, v0")
        A("s_cmp_ge_u32 s33, 4"); A("s_cbranch_scc1 L_S")
        WB, PB, DB, XB = 8, 40, 72, 104
        A("s_setprio 3")
        if self.pf:
            A("s_getpc_b64 s[42:43]")
            if self.lean:
                A("s_lshl_b32 s3, s33, 11"); A("v_lshl_add_u32 v12, v3, 7, s3"); A("s_mov_b64 exec, 0xffff")
            else: A("v_lshlrev_b32 v12, 7, v0")
            A("v_min_u32 v12, L_last-L_pfbase, v12")
            self.lab("L_pfbase")
            A("global_load_dword v108, v12, s[42:43]")
            if self.lean: A("s_mov_b64 exec, -1"); A("s_mul_i32 s3, s29, 40")
        A("s_mov_b32 s18, 0x400000"); A("s_mov_b32 s19, 0x20000")
        A("s_mov_b32 s26, 4096"); A("s_mov_b32 s27, 0x20000")
        A("v_lshlrev_b32 v1, 16, v4"); A("v_lshl_add_u32 v1, v3, 4, v1")
        A("v_lshlrev_b32 v2, 10, v5"); A("v_lshl_add_u32 v2, v4, 4, v2")
        A("s_lshl_b32 s44, s28, 2"); A("s_add_u32 s44, s44, s31")
        A("s_lshl_b32 s39, s32, 2"); A("s_add_u32 s39, s39, s33")
        A("s_lshl_b32 s35, s39, 18"); A("s_lshl_b32 s45, s44, 8"); A("s_add_u32 s35, s35, s45")
        A("s_lshl_b32 s39, s39, 6")
        A("s_waitcnt lgkmcnt(0)")
        self.stamp(1)
        A(f"buffer_load_dwordx4 {v4(XB)}, v2, s[24:27], s39 offen")
        for e in range(self.cw):
            A(f"buffer_load_dwordx4 {v4(WB+4*e)}, v1, s[16:19], s35 offen{nt}")
            if e < 7: A("s_add_u32 s35, s35, 8192")
        A("v_mov_b32 v112, 0"); A("v_mov_b32 v113, 0"); A("v_mov_b32 v114, 0"); A("v_mov_b32 v115, 0")
        A(f"ds_write_b128 v112, v[112:115] offset:{L_F}")
        A(f"ds_write_b128 v112, v[112:115] offset:{L_F+16}")
        A("s_waitcnt lgkmcnt(0)")
        A("s_barrier")
        A("s_branch L_C")
        self.lab("L_S")
        KB, VB, QB, SB = 8, 72, 136, 152
        self.vz = "v7"
        esh = 10 if self.lan else 8
        A("s_setprio 1")
        A("s_mov_b32 s6, 0x4000000"); A("s_mov_b32 s7, 0x20000")
        A("s_mov_b32 s10, 0x4000000"); A("s_mov_b32 s11, 0x20000")
        A("s_lshl_b32 s35, s31, 3"); A("s_add_u32 s35, s35, s28"); A("s_lshl_b32 s35, s35, 4"); A("s_add_u32 s35, s35, s32")
        A("s_lshl_b32 s35, s35, 5"); A("s_add_u32 s35, s35, s33")
        A("s_lshl_b32 s35, s35, 12"); A(f"s_add_u32 s35, s35, {0x180000 - 4*4096}")
        if self.rot & 1: A(f"s_lshl_b32 s3, s32, {esh}"); A("s_add_u32 s35, s35, s3")
        if self.rot & 2: A("s_and_b32 s3, s2, 7"); A("s_lshl_b32 s3, s3, 12"); A("s_xor_b32 s35, s35, s3")
        A(f"v_lshlrev_b32 v1, {18-esh}, v5"); A("v_lshl_add_u32 v1, v4, 6, v1"); A("v_lshl_add_u32 v1, v6, 4, v1")
        A(f"v_mul_u32_u24 v2, {QH}, v6"); A("v_lshl_add_u32 v2, v4, 6, v2"); A(f"v_lshl_add_u32 v{QB+12}, v5, 4, v2")
        A("v_lshlrev_b32 v5, 4, v3"); A(f"v_lshl_add_u32 v5, v4, {18-esh}, v5")
        if self.pr == 1:
            A("s_cmp_lt_u32 s33, 8"); A("s_cbranch_scc1 L_pr1"); A("s_setprio 2"); self.lab("L_pr1")
        if not self.b0late: A("s_barrier")
        A("s_waitcnt lgkmcnt(0)")
        self.stamp(1)
        st = dict(i=0)
        def trig(i):
            if i in (self.wj, self.wj2):
                self.cnt(24, f"v{QB+15}"); A("s_mov_b64 exec, -1")
        def nxt(k=1):
            for _ in range(k):
                i = st["i"]; st["i"] += 1
                n = self.N + (1 if i >= self.up else 0)
                if i < len(self.pat):
                    if self.pat[i] != "x": A(f"s_waitcnt vmcnt({self.pat[i]})")
                elif i >= n: A(f"s_waitcnt vmcnt({n-1})")
                if self.pr == 2: A(f"s_setprio {2 - i % 3}")
                if self.pr == 3: A(f"s_setprio {1 - i % 2}")
                T, e = (i >> 2) & 3, i & 3
                so = "s35"
                if T or e: A(f"s_xor_b32 s39, s35, {T*32768 + (e << esh)}"); so = "s39"
                if i < 16: A(f"buffer_load_dwordx4 {v4(KB+4*i)}, v1, s[4:7], {so} offen{nt}")
                else: A(f"buffer_load_dwordx4 {v4(VB+4*(i-16))}, v5, s[8:11], {so} offen{nt}")
                trig(i)
                if self.xdirty and i == 8:
                    A("s_mov_b32 s14, 0x4000000")
                    A("s_lshl_b32 s46, s2, 3"); A("s_add_u32 s46, s46, s33"); A(f"s_mul_i32 s46, s46, {self.xdirty*1024}"); A("s_add_u32 s46, s46, 0x800000")
                    A(f"v_lshlrev_b32 v{SB}, 4, v0")
                    for k in range(self.xdirty): A(f"buffer_store_dwordx4 v[0:3], v{SB}, s[12:15], s46 offen offset:{1024*k}")
        def upto(j):
            while st["i"] <= j: nxt()
        nxt(len(self.pat) - len(self.pat.lstrip("x")) if self.pat else self.N)
        A("s_load_dword s34, s[12:13], 0")
        A(f"s_mov_b32 s14, {WS_BYTES}"); A("s_mov_b32 s15, 0x20000")
        A("s_mov_b32 s36, 0x05040100"); A("s_mov_b32 s37, 0x07060302")
        A("v_mov_b32 v7, 0")
        A(f"v_mov_b32 v{QB+15}, 1")
        A("v_lshlrev_b32 v6, 5, v6"); A("s_lshl_b32 s3, s33, 2"); A("s_sub_u32 s3, s3, 16"); A("v_add_u32 v3, s3, v6")
        A(f"v_and_b32 v{QB+13}, 3, v0"); A(f"v_mul_u32_u24 v{QB+13}, 528, v{QB+13}"); A(f"v_lshl_add_u32 v{QB+13}, v4, 7, v{QB+13}")
        A("s_mul_i32 s3, s33, 2112"); A(f"s_add_u32 s3, s3, {L_O - 4*2112}"); A(f"v_add_u32 v{QB+13}, s3, v{QB+13}")
        A("s_mov_b32 s42, 0x000f000f"); A("s_mov_b32 s43, 0x000f000f")
        if self.b0late: A("s_barrier")
        upto(15)
        self.stamp(2)
        upto(15 + self.qpos)
        A(f"s_waitcnt vmcnt({self.qpos})")
        self.stamp(3)
        self.ldsspin("q", 4, 4, [f"ds_read_b128 {v4(QB)}, v{QB+12} offset:{L_Q}"], sleep=4)
        self.stamp(4)
        Dj = lambda j: (QB + 4 + 4*j) if j < 2 else (KB + 4*(j-2))
        for j in range(16):
            A(f"v_mfma_f32_16x16x32_bf16 {v4(Dj(j))}, {v4(KB+4*j)}, {v4(QB)}, 0")
        A(f"s_mov_b32 s40, {SCALE}"); A(f"s_mov_b32 s41, {LOG2E}")
        A("s_mul_i32 s34, s34, 1664525"); A("s_add_u32 s34, s34, 1013904223")
        nxt()
        for j in range(16): self.dpp("v_add_f32", SB+j, Dj(j)+1, Dj(j), "row_ror:12")
        for j in range(16): self.dpp("v_add_f32", SB+j, Dj(j)+2, SB+j, "row_ror:8")
        for j in range(16): self.dpp("v_add_f32", SB+j, Dj(j)+3, SB+j, "row_ror:4")
        for i in range(8):
            A(f"v_cvt_pk_bf16_f32 v{QB+i}, v{SB+2*i}, v{SB+2*i+1}")
        for i in range(8):
            A(f"v_lshlrev_b32 v{SB+2*i}, 16, v{QB+i}"); A(f"v_and_b32 v{SB+2*i+1}, 0xffff0000, v{QB+i}")
        nxt()
        for i in range(8):
            A(f"v_pk_mul_f32 {v2(SB+2*i)}, {v2(SB+2*i)}, s[40:41] op_sel_hi:[1,0]")
        for i in range(8):
            A(f"v_cvt_pk_bf16_f32 v{QB+i}, v{SB+2*i}, v{SB+2*i+1}")
        for i in range(8):
            A(f"v_lshlrev_b32 v{SB+2*i}, 16, v{QB+i}"); A(f"v_and_b32 v{SB+2*i+1}, 0xffff0000, v{QB+i}")
        A(f"v_max3_f32 v1, v{SB}, v{SB+1}, v{SB+2}")
        A(f"v_max3_f32 v2, v{SB+3}, v{SB+4}, v{SB+5}")
        A(f"v_max3_f32 v1, v1, v{SB+6}, v{SB+7}")
        A(f"v_max3_f32 v2, v2, v{SB+8}, v{SB+9}")
        A(f"v_max3_f32 v1, v1, v{SB+10}, v{SB+11}")
        A(f"v_max3_f32 v2, v2, v{SB+12}, v{SB+13}")
        A(f"v_max3_f32 v1, v1, v{SB+14}, v{SB+15}")
        A("v_max_f32 v1, v1, v2")
        self.allred_rows("v_max_f32", 1, 2)
        A("v_mul_f32 v1, s41, v1")
        A("s_mov_b64 exec, 15")
        A(f"ds_write_b32 v3, v1 offset:{L_M}")
        self.cnt(8, f"v{QB+15}")
        A("s_mov_b64 exec, -1")
        self.stamp(5)
        nxt()
        self.stamp(6)
        self.mspin("m", QB, 1)
        for i in range(16):
            A(f"v_fma_f32 v{SB+i}, v{SB+i}, s41, -v1")
        for i in range(16):
            A(f"v_exp_f32 v{SB+i}, v{SB+i}")
        nxt()
        for i in range(8):
            A(f"v_cvt_pk_bf16_f32 v{QB+i}, v{SB+2*i}, v{SB+2*i+1}")
        for i in range(4):
            A(f"v_pk_add_f32 {v2(SB+2*i)}, {v2(SB+2*i)}, {v2(SB+8+2*i)}")
        for i in range(2):
            A(f"v_pk_add_f32 {v2(SB+2*i)}, {v2(SB+2*i)}, {v2(SB+4+2*i)}")
        A(f"v_pk_add_f32 {v2(SB)}, {v2(SB)}, {v2(SB+2)}")
        A(f"v_add_f32 v{SB+8}, v{SB}, v{SB+1}")
        self.allred_rows("v_add_f32", SB+8, SB)
        OB, P0, P1 = 8, 40, 72
        A("s_mov_b64 exec, 15")
        A(f"ds_write_b32 v3, v{SB+8} offset:{L_L}")
        self.cnt(20, f"v{QB+15}")
        A("s_mov_b64 exec, -1")
        self.stamp(7)
        def need(j):
            upto(min(31, j + self.N + (1 if j + self.N + 1 >= self.up else 0)))
            A(f"s_waitcnt vmcnt({st['i'] - 1 - j})")
        need(23)
        self.perms(P0, VB, pairs=(0, 1))
        if st["i"] < 32: nxt()
        self.perms(P0, VB, pairs=(2, 3))
        for j in range(8):
            A(f"v_mfma_f32_16x16x32_bf16 {v4(OB+4*j)}, {v4(P0+4*j)}, {v4(QB)}, 0")
        self.stamp(8)
        need(25)
        self.perms(P1, VB+32, pairs=(0,))
        A("s_cmp_ge_u32 s33, 8"); A("s_cbranch_scc1 L_S_nr")
        A("s_mul_i32 s3, s33, 528"); A(f"s_add_u32 s3, s3, {L_O - 4*528}")
        A(f"v_lshl_add_u32 v{SB+9}, v0, 3, s3")
        A("s_lshl_b32 s3, s33, 5"); A("s_sub_u32 s3, s3, 128"); A(f"v_mov_b32 v{SB+10}, s3")
        A("s_lshl_b32 s3, s29, 3"); A("s_add_u32 s3, s3, s28"); A("s_lshl_b32 s3, s3, 2"); A("s_add_u32 s3, s3, s33"); A("s_sub_u32 s3, s3, 4")
        A("s_lshl_b32 s3, s3, 2"); A("s_add_u32 s3, s3, s32"); A("s_lshl_b32 s3, s3, 2"); A("s_add_u32 s3, s3, s31")
        A("s_lshl_b32 s46, s3, 9"); A(f"s_add_u32 s46, s46, {OP}")
        A(f"v_lshlrev_b32 v{SB+11}, 3, v0")
        A(f"v_mov_b32 v{SB+13}, s34")
        self.ldsspin("l", 20, 8, [f"ds_read_b128 {v4(SB)}, v{SB+10} offset:{L_L}", f"ds_read_b128 {v4(SB+4)}, v{SB+10} offset:{L_L+16}",
                                  f"ds_read_b32 v1, v7 offset:{L_F+12}"], sleep=2)
        A("v_readfirstlane_b32 s45, v1")
        A(f"v_pk_add_f32 {v2(SB)}, {v2(SB)}, {v2(SB+4)}"); A(f"v_pk_add_f32 {v2(SB+2)}, {v2(SB+2)}, {v2(SB+6)}")
        A(f"v_pk_add_f32 {v2(SB)}, {v2(SB)}, {v2(SB+2)}")
        A(f"v_add_f32 v{SB+14}, v{SB}, v{SB+1}")
        A(f"v_rcp_f32 v{SB+14}, v{SB+14}")
        self.lab("L_S_nr")
        for q in range(1, 4):
            if q == 3 and 33 in (self.wj, self.wj2):
                need(30); trig(33)
            need(25 + 2*q)
            if q == 2: trig(32)
            if q == 3: trig(34); A("s_setprio 3"); self.stamp(9)
            self.perms(P1, VB+32, pairs=(q,))
        for j in range(8):
            A(f"v_mfma_f32_16x16x32_bf16 {v4(OB+4*j)}, {v4(P1+4*j)}, {v4(QB+4)}, {v4(OB+4*j)}")
        A("s_mov_b64 exec, s[42:43]")
        A("s_cmp_ge_u32 s33, 8")
        for j in range(8):
            A(f"ds_write_b128 v{QB+13}, {v4(OB+4*j)} offset:{16*j}")
        A("s_mov_b64 exec, -1")
        A("s_waitcnt lgkmcnt(0)")
        A("s_barrier")
        self.stamp(10)
        A("s_cbranch_scc1 L_S_x")
        for w in range(8): A(f"ds_read_b64 {v2(8+2*w)}, v{SB+9} offset:{2112*w}")
        A("s_waitcnt lgkmcnt(0)")
        for w in (0, 1, 2, 3):
            A(f"v_pk_add_f32 {v2(8+2*w)}, {v2(8+2*w)}, {v2(16+2*w)}")
        A("v_pk_add_f32 v[8:9], v[8:9], v[12:13]"); A("v_pk_add_f32 v[10:11], v[10:11], v[14:15]")
        A("s_cmp_lg_u32 s45, 0")
        A("v_pk_add_f32 v[8:9], v[8:9], v[10:11]")
        A(f"v_pk_mul_f32 v[8:9], v[8:9], {v2(SB+14)} op_sel_hi:[1,0]")
        A(f"v_cvt_pk_bf16_f32 v{SB+12}, v8, v9")
        A("s_cbranch_scc1 L_S_y2")
        A(f"buffer_store_dwordx2 {v2(SB+12)}, v{SB+11}, s[12:15], s46 offen" + ["", " sc1", " nt", " sc0 sc1"][self.owt])
        self.lab("L_S_x")
        self.stamp(11)
        if self.stamps: A("s_sleep 127"); A("s_sleep 127")
        self.stamp_out()
        A("s_endpgm")
        self.lab("L_C")
        self.vz = "v110"
        A("s_load_dword s34, s[12:13], 0")
        A("s_load_dwordx2 s[20:21], s[0:1], s3 offset:32")
        A("s_load_dwordx2 s[52:53], s[0:1], 80")
        A("s_load_dwordx2 s[56:57], s[0:1], 88")
        A(f"s_mov_b32 s14, {WS_BYTES}"); A("s_mov_b32 s15, 0x20000")
        A("s_mov_b32 s22, 0x400000"); A("s_mov_b32 s23, 0x20000")
        A("s_mov_b32 s36, 0x05040100"); A("s_mov_b32 s37, 0x07060302")
        A("s_mov_b32 s54, 1024"); A("s_mov_b32 s55, 0x20000")
        A("s_mov_b32 s58, 4096"); A("s_mov_b32 s59, 0x20000")
        A("s_lshl_b32 s45, s29, 1"); A("s_lshr_b32 s3, s28, 2"); A("s_add_u32 s45, s45, s3")
        A("v_lshlrev_b32 v109, 4, v0")
        A("s_lshl_b32 s3, s29, 5"); A("s_add_u32 s47, s44, s3")
        A("v_mov_b32 v110, 0"); A("v_mov_b32 v111, 1"); A("v_mov_b32 v133, 1024")
        A("v_lshlrev_b32 v127, 3, v0")
        A("v_mul_u32_u24 v7, 528, v5"); A("v_lshl_add_u32 v7, v4, 7, v7")
        A("s_mul_i32 s3, s33, 2112"); A(f"s_add_u32 s3, s3, {L_R}"); A("v_add_u32 v7, s3, v7")
        A("v_lshlrev_b32 v122, 7, v4"); A("v_lshl_add_u32 v122, v6, 5, v122"); A("v_lshl_add_u32 v122, v5, 2, v122")
        A("s_mul_i32 s3, s33, 528"); A(f"s_add_u32 s3, s3, {L_R}"); A("v_add_u32 v122, s3, v122")
        A("v_add_u32 v123, 2112, v122"); A("v_add_u32 v124, 4224, v122"); A("v_add_u32 v125, 6336, v122")
        A("s_lshl_b32 s46, s47, 2"); A("s_add_u32 s46, s46, s32"); A("s_lshl_b32 s46, s46, 2"); A("s_add_u32 s46, s46, s33")
        A("s_lshl_b32 s46, s46, 9"); A(f"s_add_u32 s46, s46, {QP}")
        A("s_lshl_b32 s4, s29, 3"); A("s_add_u32 s4, s4, s28"); A("s_lshl_b32 s4, s4, 2"); A("s_add_u32 s4, s4, s33")
        A("s_lshl_b32 s4, s4, 2"); A("s_add_u32 s4, s4, s31"); A("s_lshl_b32 s4, s4, 2"); A("s_add_u32 s4, s4, s32")
        A("s_lshl_b32 s4, s4, 3"); A(f"s_add_u32 s4, s4, {SP}")
        if self.rm >= 0:
            A("s_sub_u32 s3, s32, s31"); A("s_add_u32 s44, s44, s3"); A("s_add_u32 s47, s47, s3")
            A(f"s_add_u32 s32, s31, {self.rm}"); A("s_and_b32 s32, s32, 3")
        A("s_mov_b32 s42, 0x11111111"); A("s_mov_b32 s43, 0x11111111")
        A("s_mov_b32 s41, 0")
        A("s_getreg_b32 s30, hwreg(HW_REG_XCC_ID, 0, 4)")
        if self.forcey: A("s_lshr_b32 s30, s2, 3"); A("s_and_b32 s30, s30, 1")
        A("s_lshl_b32 s3, s45, 10")
        A("s_waitcnt lgkmcnt(0)")
        if self.lean: A("s_cmp_eq_u32 s33, 0"); A("s_cselect_b64 exec, -1, 1")
        A("buffer_load_dwordx4 v[112:115], v109, s[24:27], s3 offen")
        A("buffer_load_dwordx4 v[116:119], v109, s[52:55], 0 offen")
        if self.lean: A("s_mov_b64 exec, -1")
        for e in range(self.cw, 8):
            A(f"s_waitcnt vmcnt({self.cw-1 + (2 if e < 2*self.cw else 0)})")
            A(f"buffer_load_dwordx4 {v4(WB+4*e)}, v1, s[16:19], s35 offen{nt}")
            if e < 7: A("s_add_u32 s35, s35, 8192")
        A("s_mul_i32 s34, s34, 1664525"); A("s_add_u32 s34, s34, 1013904223")
        A("v_mov_b32 v129, s34")
        A("s_and_b32 s3, s34, -16"); A("s_or_b32 s30, s30, s3")
        A("v_and_b32 v160, 1, v0"); A("v_lshlrev_b32 v160, 4, v160")
        A("v_lshrrev_b32 v166, v160, s30"); A("v_lshrrev_b32 v160, v160, s34")
        A("v_bfe_u32 v167, v166, 8, 8"); A("v_bfe_u32 v161, v160, 8, 8")
        A("v_and_b32 v166, 0xff, v166"); A("v_and_b32 v160, 0xff, v160")
        A("s_movk_i32 s11, 0xff"); A("s_and_b32 s30, s30, 0xffff"); A("s_mov_b32 s10, 0x0c0c0400")
        SG = 136
        CF = 144
        OG = 152
        ol = [f"buffer_load_dwordx2 {v2(OG+2*s)}, v1, s[12:15], s{39 if s < 2 else 48} offen offset:{2048*(s&1)}{pol}" for s in range(4)]
        stl = [f"buffer_load_dwordx4 {v4(SG+4*s)}, v57, s[12:15], s35 offen offset:{16*s}{pol}" for s in range(2)]
        self.lab("L_tile")
        for q in range(3):
            A(f"s_waitcnt vmcnt({6-2*q})")
            self.perms(PB, WB, pairs=(q,))
        A("s_cmp_eq_u32 s41, 0"); A("s_cbranch_scc0 L_t1")
        A("s_waitcnt vmcnt(0)")
        self.perms(PB, WB, pairs=(3,))
        self.stamp(2); A("s_branch L_mm")
        self.lab("L_t1")
        for l in ol: A(l)
        A(f"s_mov_b32 s38, {self.spin}")
        A("s_waitcnt vmcnt(4)")
        self.perms(PB, WB, pairs=(3,))
        self.stamp(7)
        A("s_branch L_og")
        self.lab("L_ogr")
        if self.osleep: A(f"s_sleep {self.osleep}")
        for l in ol: A(l)
        self.lab("L_og")
        A("s_waitcnt vmcnt(0)")
        A(f"v_xor_b32 v20, s34, v{OG+1}")
        for s in range(1, 4): A(f"v_bitop3_b32 v20, v{OG+1+2*s}, s34, v20 bitop3:0xbe")
        A("s_sub_u32 s38, s38, 1")
        A("v_cmp_ne_u32 vcc, 0, v20")
        A("s_cbranch_scc1 L_ogd")
        A("s_cbranch_vccnz L_ogr")
        self.lab("L_ogd")
        for s in range(4):
            A(f"v_lshlrev_b32 v{24+2*s}, 16, v{OG+2*s}"); A(f"v_and_b32 v{25+2*s}, 0xffff0000, v{OG+2*s}")
        A("s_cmp_lg_u32 s49, 0"); A("s_cbranch_scc1 L_ogn")
        A("s_mov_b64 exec, 1")
        A(f"buffer_store_dword v129, v135, s[12:15], 0 offen{pol}")
        A("s_mov_b64 exec, -1")
        self.lab("L_ogn")
        self.stamp(8)
        A(f"v_pk_mul_f32 v[24:25], v[24:25], {v2(CF)} op_sel_hi:[1,0]")
        A(f"v_pk_mul_f32 v[28:29], v[28:29], {v2(CF+4)} op_sel_hi:[1,0]")
        A(f"v_pk_fma_f32 v[24:25], v[26:27], {v2(CF+2)}, v[24:25] op_sel_hi:[1,0,1]")
        A(f"v_pk_fma_f32 v[28:29], v[30:31], {v2(CF+6)}, v[28:29] op_sel_hi:[1,0,1]")
        A(f"v_pk_add_f32 v[24:25], v[24:25], v[28:29]")
        A("v_cvt_pk_bf16_f32 v24, v24, v25"); self.nop(2)
        for q in range(4):
            A(f"v_mov_b32_dpp v{XB+q}, v24 quad_perm:[{q},{q},{q},{q}] row_mask:0xf bank_mask:0xf")
        self.nop(2)
        self.lab("L_mm")
        for j in range(8):
            A(f"v_mfma_f32_16x16x32_bf16 {v4(DB+4*j)}, {v4(PB+4*j)}, {v4(XB)}, 0")
        A("s_mov_b64 exec, s[42:43]")
        A("s_cmp_eq_u32 s41, 0")
        for j in range(8):
            A(f"ds_write_b128 v7, {v4(DB+4*j)} offset:{16*j}")
        A("s_cbranch_scc0 L_fin")
        self.cnt(0, "v111")
        A("s_mov_b64 exec, -1")
        rd = [f"ds_read2_b32 {v2(12+2*i)}, v{122+i} offset0:0 offset1:4" for i in range(4)]
        self.ldsspin("c", 0, 4, rd, sleep=0)
        A("v_pk_add_f32 v[12:13], v[12:13], v[14:15]"); A("v_pk_add_f32 v[16:17], v[16:17], v[18:19]")
        A("v_pk_add_f32 v[12:13], v[12:13], v[16:17]")
        A("v_bfi_b32 v164, s11, v166, v12"); A("v_bfi_b32 v165, s11, v167, v13")
        A("buffer_store_dwordx2 v[164:165], v127, s[12:15], s46 offen" + ["", " sc1", " nt", " sc0 sc1"][self.qwt])
        self.stamp(3)
        if self.pretouch:
            A("s_lshl_b32 s3, s32, 2"); A("s_add_u32 s3, s3, s33"); A("s_lshl_b32 s3, s3, 9")
            A("s_lshl_b32 s40, s47, 13"); A("s_add_u32 s3, s3, s40"); A(f"s_add_u32 s3, s3, {OP}")
            A("s_or_b32 s40, s32, s33"); A("s_cbranch_scc1 L_pt")
            A("s_lshl_b32 s40, s47, 7"); A(f"s_add_u32 s40, s40, {SP}")
            A("s_load_dword s49, s[12:13], s40")
            self.lab("L_pt")
            for i in range(4): A(f"s_load_dword s49, s[12:13], s3 offset:{128*i}")
        for i in range(4):
            A(f"v_lshlrev_b32 v{24+2*i}, 16, v{112+i}"); A(f"v_and_b32 v{25+2*i}, 0xffff0000, v{112+i}")
            A(f"v_lshlrev_b32 v{32+2*i}, 16, v{116+i}"); A(f"v_and_b32 v{33+2*i}, 0xffff0000, v{116+i}")
        for i in range(4):
            A(f"v_pk_mul_f32 {v2(24+2*i)}, {v2(24+2*i)}, {v2(32+2*i)}")
        for i in range(4):
            A(f"v_cvt_pk_bf16_f32 v{32+i}, v{24+2*i}, v{25+2*i}")
        for i in range(4):
            A(f"v_lshlrev_b32 v{24+2*i}, 16, v{32+i}"); A(f"v_and_b32 v{25+2*i}, 0xffff0000, v{32+i}")
        A("v_pk_add_f32 v[24:25], v[24:25], v[28:29]"); A("v_pk_add_f32 v[26:27], v[26:27], v[30:31]")
        A("v_pk_add_f32 v[24:25], v[24:25], v[26:27]"); A("v_add_f32 v8, v24, v25")
        for ror in (8, 4, 2, 1):
            self.nop(2); self.dpp("v_add_f32", 8, 8, 8, f"row_ror:{ror}")
        self.allred_rows("v_add_f32", 8, 9)
        A("v_cvt_pk_bf16_f32 v8, v8, v8"); A("v_lshlrev_b32 v8, 16, v8")
        A(f"v_mul_f32 v8, {0xbfb8aa3b}, v8"); A("v_exp_f32 v8, v8"); self.nop(1)
        A("v_add_f32 v8, 1.0, v8"); A("v_rcp_f32 v8, v8"); self.nop(1)
        A("v_cvt_pk_bf16_f32 v8, v8, v8"); A("v_lshlrev_b32 v8, 16, v8")
        A("v_sub_f32 v9, 1.0, v8"); A("v_cvt_pk_bf16_f32 v9, v9, v9"); A("v_lshlrev_b32 v9, 16, v9")
        A("v_cmp_gt_u32 vcc, 32, v0")
        A("s_lshl_b32 s39, s29, 3"); A("s_add_u32 s39, s39, s28"); A("s_lshl_b32 s39, s39, 2"); A("s_add_u32 s39, s39, s33")
        A("v_cndmask_b32 v120, v9, v8, vcc")
        A("s_lshl_b32 s39, s39, 4"); A("s_add_u32 s39, s39, s31"); A("s_lshl_b32 s39, s39, 9"); A(f"s_add_u32 s39, s39, {QP}")
        A("s_add_u32 s60, s39, 4096")
        A("s_mov_b32 s63, 0")
        A("v_mov_b32 v18, 0")
        A("v_lshlrev_b32 v19, 11, v6")
        A(f"s_mov_b32 s38, {self.n0}"); A(f"s_mov_b32 s62, {self.spin}")
        self.stamp(13)
        D = self.qdepth
        ld = lambda i: A(f"buffer_load_dwordx2 {v2(40+2*i)}, v19, s[12:15], s39 offen{pol}")
        qg = lambda vo: [f"buffer_load_dwordx2 {v2(24+2*i)}, {vo}, s[12:15], s{39 if i < 2 else 60} offen offset:{2048*(i&1)}{pol}" for i in range(4)]
        for i in range(D - 1):
            ld(i); A(f"s_sleep {self.qsleep}")
        self.lab("L_qf")
        for i in range(D):
            ld((i + D - 1) % D)
            A(f"s_waitcnt vmcnt({D-1})")
            A(f"v_perm_b32 v20, v{41+2*i}, v{40+2*i}, s10")
            A("v_cmp_ne_u32 vcc, s30, v20")
            A("s_cmp_eq_u64 vcc, 0"); A("s_cbranch_scc1 L_qfd")
        self.lab("L_qfr")
        A("s_sub_u32 s38, s38, 1")
        A("s_cbranch_scc0 L_qf")
        A("s_branch L_slow")
        self.lab("L_qfd")
        self.stamp(14)
        for l in qg("v127"): A(l)
        A(f"s_mul_i32 s3, s33, {QH}"); A("v_lshl_add_u32 v16, v0, 2, s3")
        A("v_lshlrev_b32 v1, 11, v4"); A("v_lshl_add_u32 v1, v3, 4, v1")
        A("s_lshl_b32 s48, s44, 17"); A("s_lshl_b32 s3, s33, 15"); A("s_add_u32 s48, s48, s3")
        A("s_lshl_b32 s3, s32, 8"); A("s_add_u32 s48, s48, s3")
        A("s_waitcnt vmcnt(0) lgkmcnt(0)")
        self.untag(24, 166, 8)
        A("v_cmp_ne_u32 vcc, 0, v8"); A("s_cmp_eq_u64 vcc, 0"); A("s_cbranch_scc0 L_qfr")
        self.lab("L_qok")
        A("v_pk_add_f32 v[24:25], v[24:25], v[26:27]"); A("v_pk_add_f32 v[28:29], v[28:29], v[30:31]")
        A("v_pk_add_f32 v[24:25], v[24:25], v[28:29]")
        A("v_cvt_pk_bf16_f32 v17, v24, v25")
        A(f"ds_write_b32 v16, v17 offset:{L_Q}")
        self.cnt(12, "v18")
        A(f"ds_add_u32 v110, v111 offset:{L_F+4}")
        A("s_mov_b64 exec, -1")
        self.stamp(4)
        self.lab("L_vd")
        A(f"ds_read_b32 v2, v110 offset:{L_F+4}")
        A(f"ds_read2_b32 v[134:135], v133 offset0:{(L_F+12)//4 - 256} offset1:{(L_F+16)//4 - 256}")
        A("s_waitcnt lgkmcnt(0)")
        A("v_readfirstlane_b32 s40, v2"); A("v_readfirstlane_b32 s3, v135"); A("v_readfirstlane_b32 s49, v134")
        A("s_andn2_b32 s3, s3, s63"); A("s_cbranch_scc1 L_puby2")
        A("s_cmp_ge_u32 s40, 4"); A("s_cbranch_scc1 L_vdd")
        A("s_sleep 2"); A("s_sub_u32 s62, s62, 1"); A("s_cbranch_scc0 L_vd")
        self.lab("L_vdd")
        A("s_lshl_b32 s3, s33, 5"); A("v_mov_b32 v56, s3")
        self.ldsspin("l2", 20, 8, [f"ds_read_b128 v[40:43], v56 offset:{L_M}", f"ds_read_b128 v[44:47], v56 offset:{L_M+16}",
                                   f"ds_read_b128 v[48:51], v56 offset:{L_L}", f"ds_read_b128 v[52:55], v56 offset:{L_L+16}"], sleep=4)
        A("v_max3_f32 v40, v40, v41, v42"); A("v_max3_f32 v43, v43, v44, v45"); A("v_max3_f32 v40, v40, v46, v47")
        A("v_pk_add_f32 v[48:49], v[48:49], v[52:53]"); A("v_pk_add_f32 v[50:51], v[50:51], v[54:55]")
        A("v_pk_add_f32 v[48:49], v[48:49], v[50:51]"); A("v_add_f32 v48, v48, v49")
        A("v_log_f32 v48, v48"); A("v_max_f32 v40, v40, v43")
        A("s_cmp_lg_u32 s49, 0")
        A("v_add_f32 v128, v40, v48")
        A("s_mov_b64 exec, 1")
        A("s_cbranch_scc1 L_S_y1")
        A("buffer_store_dwordx2 v[128:129], v110, s[12:15], s4 offen")
        self.lab("L_S_y1r")
        A("s_mov_b64 exec, -1")
        A("s_cmp_lg_u32 s49, 0"); A(f"s_cselect_b32 s49, {YD}, 0")
        A("s_lshl_b32 s35, s47, 7"); A(f"s_add_u32 s35, s35, {SP}"); A("s_add_u32 s35, s35, s49")
        A("v_lshlrev_b32 v57, 5, v5")
        self.poll("s", stl, [SG+1, SG+3, SG+5, SG+7], 20, sleep=self.ssleep)
        self.stamp(15)
        A(f"v_max3_f32 v20, v{SG}, v{SG+2}, v{SG+4}"); A(f"v_max_f32 v20, v20, v{SG+6}")
        for s in range(4): A(f"v_sub_f32 v{CF+2*s}, v{SG+2*s}, v20")
        for s in range(4): A(f"v_exp_f32 v{CF+2*s}, v{CF+2*s}")
        self.nop(1)
        A(f"v_add_f32 v20, v{CF}, v{CF+2}"); A(f"v_add_f32 v21, v{CF+4}, v{CF+6}"); A("v_add_f32 v20, v20, v21")
        A("v_rcp_f32 v20, v20"); self.nop(1)
        for s in range(4): A(f"v_mul_f32 v{CF+2*s}, v{CF+2*s}, v20")
        for e in range(8):
            if e == self.wo1: self.ldsspin("w", 24, self.th1, [], sleep=2)
            if e == self.wa: self.ldsspin("w2", 24, self.th2, [], sleep=1)
            if e == self.wo_early: A("s_setprio 0")
            A(f"buffer_load_dwordx4 {v4(WB+4*e)}, v1, s[20:23], s48 offen offset:{1024*(e>>2)}{nt}")
            if e == 3: A("s_sub_u32 s48, s48, 24576")
            elif e < 7: A("s_add_u32 s48, s48, 8192")
        A("s_setprio 3")
        self.stamp(5)
        A("s_lshl_b32 s39, s47, 13"); A("s_lshl_b32 s3, s33, 7"); A("s_add_u32 s39, s39, s3"); A(f"s_add_u32 s39, s39, {OP}")
        A("s_add_u32 s39, s39, s49"); A("s_add_u32 s48, s39, 4096")
        A("v_lshlrev_b32 v1, 9, v5"); A("v_lshl_add_u32 v1, v4, 5, v1"); A("v_lshl_add_u32 v1, v6, 3, v1")
        A("s_lshl_b32 s63, s32, 17"); A(f"s_add_u32 s63, s63, {FP}")
        A("s_lshl_b32 s3, s47, 11"); A("s_add_u32 s46, s63, s3"); A("s_lshl_b32 s3, s33, 9"); A("s_add_u32 s46, s46, s3")
        A("v_lshrrev_b32 v121, 2, v0"); A("v_lshlrev_b32 v121, 11, v121"); A("v_lshl_add_u32 v121, v6, 3, v121")
        A("s_lshl_b32 s3, s47, 5"); A("s_add_u32 s63, s63, s3")
        A("s_add_u32 s60, s63, 0x8000"); A("s_add_u32 s61, s63, 0x10000"); A("s_add_u32 s62, s63, 0x18000")
        A("s_lshl_b32 s45, s45, 10"); A("s_lshl_b32 s3, s32, 8"); A("s_add_u32 s45, s45, s3")
        A("s_and_b32 s3, s47, 15"); A("s_lshl_b32 s3, s3, 4"); A("s_add_u32 s45, s45, s3")
        A("v_lshlrev_b32 v126, 2, v6"); A("v_lshl_add_u32 v126, v4, 1, v126")
        A("s_mov_b32 s41, 1")
        A("s_and_b32 s49, s44, 3"); A("s_or_b32 s49, s49, s32"); A("s_or_b32 s49, s49, s33")
        A("s_lshr_b32 s3, s47, 2"); A("s_lshl_b32 s3, s3, 8"); A(f"s_add_u32 s3, s3, {EP}"); A("v_mov_b32 v135, s3")
        A("v_lshlrev_b32 v134, 8, v3"); A(f"v_add_u32 v134, {EP}, v134")
        A("s_barrier")
        self.stamp(6)
        A("s_branch L_tile")
        self.lab("L_fin")
        if self.b4spin:
            self.cnt(28, "v111")
            A("s_mov_b64 exec, -1")
            self.ldsspin("c2", 28, 4, rd, sleep=0)
        else:
            A("s_mov_b64 exec, -1")
            A("s_waitcnt lgkmcnt(0)")
            A("s_barrier")
            for r in rd: A(r)
            A("s_waitcnt lgkmcnt(0)")
        A("v_pk_add_f32 v[12:13], v[12:13], v[14:15]"); A("v_pk_add_f32 v[16:17], v[16:17], v[18:19]")
        A("v_pk_add_f32 v[12:13], v[12:13], v[16:17]")
        A("v_bfi_b32 v12, s11, v160, v12"); A("v_bfi_b32 v13, s11, v161, v13")
        A(f"buffer_store_dwordx2 v[12:13], v127, s[12:15], s46 offen{pol}")
        self.stamp(9)
        A("s_cmp_lg_u32 s33, 0"); A("s_cbranch_scc1 L_C_exit")
        if self.fdelay: A(f"s_sleep {self.fdelay}")
        if self.eta:
            if self.ed == 1:
                self.poll("e", [f"buffer_load_dword v41, v134, s[12:15], 0 offen{pol}"], [41], 40)
            else:
                D = self.ed
                A("s_mov_b64 exec, 0xffff")
                el = lambda i: A(f"buffer_load_dword v{41+i}, v134, s[12:15], 0 offen{pol}")
                A(f"s_mov_b32 s38, {self.spin}")
                for i in range(D - 1):
                    el(i); A(f"s_sleep {self.es}")
                self.lab("L_ep")
                for i in range(D):
                    el((i + D - 1) % D)
                    A(f"s_waitcnt vmcnt({D-1})")
                    A(f"v_cmp_ne_u32 vcc, s34, v{41+i}")
                    A("s_cmp_eq_u64 vcc, 0"); A("s_cbranch_scc1 L_epd")
                A("s_sub_u32 s38, s38, 1"); A("s_cbranch_scc0 L_ep")
                self.lab("L_epd")
                A("s_mov_b64 exec, -1")
            self.stamp(12)
            if self.edly: A(f"s_sleep {self.edly}")
            self.lab("L_eok")
        self.poll("f", [f"buffer_load_dwordx2 {v2(24+2*i)}, v121, s[12:15], s{(63,60,61,62)[i]} offen{pol}" for i in range(4)],
                  list(range(24, 32)), 40, sleep=self.fsleep, tv=160)
        self.stamp(10)
        if self.stamps: A(f"s_sub_u32 s66, {self.spin}, s38"); A("s_mov_b32 s67, 0")
        A("v_pk_add_f32 v[24:25], v[24:25], v[26:27]"); A("v_pk_add_f32 v[28:29], v[28:29], v[30:31]")
        self.nop(2)
        A("v_permlane32_swap_b32 v24, v28"); A("v_permlane32_swap_b32 v25, v29")
        A("v_pk_add_f32 v[24:25], v[24:25], v[28:29]"); self.nop(2)
        A("v_permlane16_swap_b32 v24, v25")
        A("v_add_f32 v24, v24, v25"); self.nop(2)
        self.dpp("v_add_f32", 24, 24, 24, "row_ror:4"); self.nop(2)
        self.dpp("v_add_f32", 24, 24, 24, "row_ror:8")
        A("v_cvt_pk_bf16_f32 v24, v24, v24"); A("v_lshlrev_b32 v24, 16, v24")
        A("v_mul_f32 v24, v24, v120")
        A("v_cvt_pk_bf16_f32 v24, v24, v24"); A("v_lshlrev_b32 v24, 16, v24")
        A("v_mov_b32 v25, v24"); self.nop(2)
        A("v_permlane32_swap_b32 v24, v25")
        A("v_add_f32 v24, v24, v25")
        A("v_cvt_pk_bf16_f32 v24, v24, v24")
        A("s_mov_b64 exec, 0x000f000f")
        A("buffer_store_short v24, v126, s[56:59], s45 offen")
        if self.pad:
            if self.padk >= 0:
                A("s_waitcnt lgkmcnt(0)"); A("s_mov_b32 s90, s92")
            self.lab("L_pad")
            A("s_memrealtime s[94:95]"); A("s_waitcnt lgkmcnt(0)"); A("s_sub_u32 s94, s94, s90")
            A(f"s_cmp_lt_u32 s94, {self.pad}"); A("s_cbranch_scc1 L_pad")
        A("s_cmp_lg_u32 s2, 0"); A("s_cbranch_scc1 L_C_exit")
        A("s_mov_b64 exec, 1")
        A("buffer_store_dword v129, v110, s[12:15], 0 offen")
        self.lab("L_C_exit")
        self.stamp(11)
        if self.stamps: A("s_sleep 127")
        self.stamp_out()
        self.lab("L_end")
        A("s_endpgm")
        self.lab("L_last")
        self.lab("L_S_y1")
        A(f"s_add_u32 s4, s4, {YD}")
        A(f"buffer_store_dwordx2 v[128:129], v110, s[12:15], s4 offen{pol}")
        A("s_branch L_S_y1r")
        self.lab("L_S_y2")
        A(f"s_add_u32 s46, s46, {YD}")
        A(f"buffer_store_dwordx2 {v2(SB+12)}, v{SB+11}, s[12:15], s46 offen{pol}")
        A("s_branch L_S_x")
        def puby():
            A(f"s_add_u32 s3, s46, {YD}")
            A(f"buffer_store_dwordx2 v[164:165], v127, s[12:15], s3 offen{pol}")
            A("s_mov_b32 s63, 1")
        self.lab("L_puby2")
        puby()
        A("s_branch L_vd")
        self.lab("L_slow")
        A("s_cmp_lg_u32 s63, 0"); A("s_cbranch_scc1 L_slow2")
        A(f"ds_write_b32 v110, v111 offset:{L_F+16}")
        puby()
        self.lab("L_slow2")
        A(f"v_add_u32 v9, {YD}, v127")
        for l in qg("v9"): A(l)
        A("v_and_b32 v9, 1, v0"); A("v_mul_u32_u24 v9, 15, v9"); A("v_or_b32 v9, 0xf0, v9")
        A("s_waitcnt vmcnt(0)")
        A("v_xor_b32 v8, v166, v24"); A("v_xor_b32 v10, v167, v25")
        for r in range(26, 32): A(f"v_bitop3_b32 v{8 + 2*(r & 1)}, v{r}, v{166 + (r & 1)}, v{8 + 2*(r & 1)} bitop3:0xbe")
        A("v_and_b32 v10, 0xff, v10"); A("v_and_or_b32 v9, v8, v9, v10"); A("v_and_b32 v10, 15, v8")
        A("s_mov_b32 s38, 0")
        A("v_cmp_ne_u32 vcc, 0, v9"); A("s_cmp_eq_u64 vcc, 0"); A("s_cbranch_scc1 L_slow3")
        A("s_sleep 8")
        A("s_sub_u32 s62, s62, 1"); A("s_cbranch_scc0 L_qf")
        self.lab("L_slow3")
        for r in range(24, 32): A(f"v_and_b32 v{r}, 0xffffff00, v{r}")
        A("v_cmp_ne_u32 vcc, 0, v10"); A("s_cmp_lg_u64 vcc, 0")
        A("s_cselect_b32 s3, 1, 0"); A("v_mov_b32 v18, s3")
        A(f"s_mul_i32 s3, s33, {QH}"); A("v_lshl_add_u32 v16, v0, 2, s3")
        A("v_lshlrev_b32 v1, 11, v4"); A("v_lshl_add_u32 v1, v3, 4, v1")
        A("s_lshl_b32 s48, s44, 17"); A("s_lshl_b32 s3, s33, 15"); A("s_add_u32 s48, s48, s3")
        A("s_lshl_b32 s3, s32, 8"); A("s_add_u32 s48, s48, s3")
        A("s_waitcnt lgkmcnt(0)")
        A("s_branch L_qok")
        L.append('.section .rodata,"a"'); L.append(".p2align 6"); L.append(f".amdhsa_kernel {KN}")
        L.append("  .amdhsa_next_free_vgpr 168"); L.append("  .amdhsa_next_free_sgpr 96"); L.append("  .amdhsa_accum_offset 168")
        L.append("  .amdhsa_group_segment_fixed_size 0"); L.append("  .amdhsa_kernarg_size 112"); L.append("  .amdhsa_user_sgpr_count 2")
        L.append("  .amdhsa_user_sgpr_kernarg_segment_ptr 1"); L.append("  .amdhsa_system_sgpr_workgroup_id_x 1")
        L.append("  .amdhsa_float_denorm_mode_32 3")
        L.append(".end_amdhsa_kernel")
        return "\n".join(L) + "\n"

if __name__ == "__main__":
    out = sys.argv[1]
    kw = {}
    for a in sys.argv[2:]:
        k, v = a.split("=")
        kw[k] = v.replace("+", " ") if k in ("pol", "pat") else int(v)
    open(out, "w").write(G(**kw).gen())
```

```python
import sys
KN = "gated_mix__sliding_block_cached__sliding_block_cached__decode_kernel"
HDR = open("gated_mix__sliding_block_cached__sliding_block_cached__decode.s.ref").read().split("; Override launch")[0]

FL = 0x1000
YD = 0x400000
OP = 0x100000
SP = 0xC0000
EP = 0xD0000
QP = 0x100000
FP = 0x180000
WS_BYTES = 0x600000
STAMP_OFF = 0x4000000
L_Q = 0
QH = 272
L_M = 1280
L_L = 1408
L_F = 1536
L_O = 2048
L_R = L_O + 8*2112
LDS_BYTES = L_R + 4*2112
LOG2E = 0x3fb8aa3b
SCALE = 0x3db504f3
NS = 16

class G:
    def __init__(self, **kw):
        d = dict(padk=-1, pad=0, stamps=0, nt=1, pol="sc1", spin=1 << 16, pf=1, wo_early=0, qsleep=12, forcey=0, pretouch=0,
                 n0=8, qdepth=4, lsplit=1, osleep=0, fsleep=0, b4spin=0, fdelay=0, eta=1, edly=0, tx=0, rm=2, N=3, rot=1, lan=1, qpos=3, wj=31, pat='x0x11x', cw=3, up=99, wo1=0, wj2=32, wa=2, th1=8, th2=16, opos=3, pr=0, tlbs=0, tlbv=0, lean=1, xdirty=0, qwt=0, owt=0, xperm=0, b0late=0, ed=1, es=4, early=0, ldly=0, ssleep=8, ovl=1, pat2='', lup=99)
        d.update(kw)
        self.__dict__.update(d)
        self.L = []
        self.nt = " nt" if self.nt else ""
        self.pol = " " + self.pol
    def A(self, s): self.L.append("    " + s)
    def lab(self, s): self.L.append(s + ":")
    def nop(self, n):
        while n > 0:
            k = min(n, 16); self.A(f"s_nop {k-1}"); n -= k
    def stamp(self, i):
        if self.padk == i: self.A("s_memrealtime s[92:93]")
        if self.stamps: self.A(f"s_memrealtime s[{64+2*i}:{65+2*i}]")
    def stamp_out(self):
        if not self.stamps: return
        A = self.A
        A("s_waitcnt lgkmcnt(0)")
        A("s_mul_i32 s60, s2, 12"); A("s_add_u32 s60, s60, s33"); A(f"s_mul_i32 s60, s60, {NS*8}")
        A(f"s_add_u32 s60, s60, {STAMP_OFF}")
        A("s_add_u32 s62, s12, s60"); A("s_addc_u32 s63, s13, 0")
        A("s_mov_b64 exec, 1"); A("v_mov_b32 v4, 0")
        for i in range(NS):
            A(f"v_mov_b32 v2, s{64+2*i}"); A(f"v_mov_b32 v3, s{65+2*i}")
            A(f"global_store_dwordx2 v4, v[2:3], s[62:63] offset:{i*8}"); A("s_nop 1")
    def v4(self, r): return f"v[{r}:{r+3}]"
    def v2(self, r): return f"v[{r}:{r+1}]"
    def perms(self, dst, src, pairs=(0, 1, 2, 3)):
        for q in pairs:
            for w in range(4):
                for hh in range(2):
                    j = 2*w + hh
                    self.A(f"v_perm_b32 v{dst+4*j+q}, v{src+4*(2*q+1)+w}, v{src+4*(2*q)+w}, s{36+hh}")
    def allred_rows(self, op, v, t):
        A = self.A
        A(f"v_mov_b32 v{t}, v{v}"); self.nop(2)
        A(f"v_permlane32_swap_b32 v{v}, v{t}")
        A(f"{op} v{v}, v{v}, v{t}")
        A(f"v_mov_b32 v{t}, v{v}"); self.nop(2)
        A(f"v_permlane16_swap_b32 v{v}, v{t}")
        A(f"{op} v{v}, v{v}, v{t}")
    def dpp(self, op, d, a, b, ctl):
        self.A(f"{op}_dpp v{d}, v{a}, v{b} {ctl} row_mask:0xf bank_mask:0xf")
    def poll(self, name, loads, tagregs, acc, first_issued=False, sleep=0, tv=None):
        A = self.A
        A(f"s_mov_b32 s38, {self.spin}")
        if first_issued: A(f"s_branch L_chk_{name}")
        elif sleep: A(f"s_branch L_ld_{name}")
        self.lab(f"L_poll_{name}")
        if sleep: A(f"s_sleep {sleep}")
        self.lab(f"L_ld_{name}")
        for l in loads: A(l)
        self.lab(f"L_chk_{name}")
        A("s_waitcnt vmcnt(0)")
        if tv is None:
            A(f"v_xor_b32 v{acc}, s34, v{tagregs[0]}")
            for r in tagregs[1:]:
                A(f"v_bitop3_b32 v{acc}, v{r}, s34, v{acc} bitop3:0xbe")
        else: self.untag(tagregs[0], tv, acc)
        A("s_sub_u32 s38, s38, 1")
        A(f"v_cmp_ne_u32 vcc, 0, v{acc}")
        A("s_cselect_b64 s[50:51], 0, -1")
        if tv is not None: A("s_wqm_b64 vcc, vcc")
        A("s_and_b64 exec, vcc, s[50:51]")
        A(f"s_cbranch_scc1 L_poll_{name}")
        A("s_mov_b64 exec, -1")
    def untag(self, r0, tv, acc):
        A = self.A
        for r in range(r0, r0 + 8): A(f"v_xor_b32 v{r}, v{tv + (r & 1)}, v{r}")
        A(f"v_or3_b32 v{acc}, v{r0}, v{r0+1}, v{r0+2}"); A(f"v_or3_b32 v{acc+1}, v{r0+3}, v{r0+4}, v{r0+5}")
        A(f"v_or3_b32 v{acc}, v{acc}, v{r0+6}, v{r0+7}")
        A(f"v_bitop3_b32 v{acc}, v{acc}, v{acc+1}, s11 bitop3:0xa8")
    def ldsspin(self, name, off, target, reads, sleep=1):
        A = self.A
        A(f"s_mov_b32 s38, {self.spin * 16}")
        if sleep: A(f"s_branch L_spl_{name}")
        self.lab(f"L_sp_{name}")
        if sleep: A(f"s_sleep {sleep}")
        self.lab(f"L_spl_{name}")
        A(f"ds_read_b32 v2, {self.vz} offset:{L_F+off}")
        for r in reads: A(r)
        A("s_sub_u32 s38, s38, 1")
        A("s_cselect_b32 s3, 0, -1")
        A("s_waitcnt lgkmcnt(0)")
        A("v_readfirstlane_b32 s40, v2")
        A("s_orn2_b32 s40, s40, s3")
        A(f"s_cmp_lt_u32 s40, {target}")
        A(f"s_cbranch_scc1 L_sp_{name}")
    def cnt(self, off, one):
        A = self.A
        A("s_mov_b64 exec, 1")
        A(f"ds_add_u32 {self.vz}, {one} offset:{L_F+off}")
    def vissue(self, VB, p):
        for T in (2*p, 2*p+1):
            for e in range(4):
                self.A(f"buffer_load_dwordx4 {self.v4(VB+16*T+4*e)}, v5, s[8:11], s35 offen offset:{256*e}{self.nt}")
            if T < 3: self.A("s_add_u32 s35, s35, 16384")
    def mspin(self, name, B, d):
        A = self.A
        self.ldsspin(name, 8, 8, [f"ds_read_b128 {self.v4(B)}, v6 offset:{L_M}", f"ds_read_b128 {self.v4(B+4)}, v6 offset:{L_M+16}"], sleep=2)
        A(f"v_max3_f32 v{B}, v{B}, v{B+1}, v{B+2}")
        A(f"v_max3_f32 v{B+3}, v{B+3}, v{B+4}, v{B+5}")
        A(f"v_max3_f32 v{B}, v{B}, v{B+6}, v{B+7}")
        A(f"v_max_f32 v{d}, v{B}, v{B+3}")

    def gen(self):
        A = self.A; nt = self.nt; pol = self.pol; v4 = self.v4; v2 = self.v2
        OP = 0x100000 if self.ovl else 0x40000
        L = self.L
        L.append(HDR.rstrip("\n"))
        L.append(f"; @launch grid=(256,1,1) block=(768,1,1) lds={LDS_BYTES}")
        L.append('.amdgcn_target "amdgcn-amd-amdhsa--gfx950"')
        L.append(".text"); L.append(f".globl {KN}"); L.append(".p2align 12"); L.append(".p2align 8"); L.append(f".type {KN},@function"); L.append(f"{KN}:")
        self.stamp(0)
        if self.pad: A("s_memrealtime s[90:91]")
        if self.stamps:
            for i in range(1, NS): A(f"s_mov_b64 s[{64+2*i}:{65+2*i}], 0")
        if self.xperm == 1:
            A("s_lshr_b32 s3, s2, 3"); A("s_and_b32 s29, s2, 7"); A("s_lshl_b32 s29, s29, 5"); A("s_or_b32 s2, s3, s29")
        if self.xperm == 2:
            A("s_xor_b32 s3, s2, 1"); A("s_and_b32 s29, s2, 0xf8"); A("s_cmp_eq_u32 s29, 0x48"); A("s_cselect_b32 s2, s3, s2")
        A("s_bfe_u32 s29, s2, 0x10002")
        A("s_mul_i32 s3, s29, 40")
        A("s_cmp_ge_u32 s2, 256"); A("s_cbranch_scc1 L_end")
        A("s_load_dwordx2 s[16:17], s[0:1], s3 offset:24")
        A("s_load_dwordx2 s[24:25], s[0:1], 0")
        A("s_load_dwordx2 s[4:5], s[0:1], s3 offset:8")
        A("s_load_dwordx2 s[8:9], s[0:1], s3 offset:16")
        A("s_load_dwordx2 s[12:13], s[0:1], 104")
        A("v_lshrrev_b32 v1, 6, v0")
        A("s_lshr_b32 s30, s2, 3")
        if self.tx: A(f"s_xor_b32 s30, s30, {self.tx}")
        A("v_readfirstlane_b32 s33, v1")
        A("s_and_b32 s28, s2, 3"); A("s_lshl_b32 s28, s28, 1"); A("s_lshr_b32 s31, s30, 4"); A("s_or_b32 s28, s28, s31")
        A("s_bfe_u32 s31, s30, 0x20002"); A("s_and_b32 s32, s30, 3")
        A("v_and_b32 v0, 63, v0")
        A("v_and_b32 v3, 15, v0")
        A("v_lshrrev_b32 v4, 4, v0")
        A("v_bfe_u32 v5, v0, 2, 2")
        A("v_and_b32 v6, 3, v0")
        A("s_cmp_ge_u32 s33, 4"); A("s_cbranch_scc1 L_S")
        WB, PB, DB, XB = 8, 40, 72, 104
        A("s_setprio 3")
        if self.pf:
            A("s_getpc_b64 s[42:43]")
            if self.lean:
                A("s_lshl_b32 s3, s33, 11"); A("v_lshl_add_u32 v12, v3, 7, s3"); A("s_mov_b64 exec, 0xffff")
            else: A("v_lshlrev_b32 v12, 7, v0")
            A("v_min_u32 v12, L_last-L_pfbase, v12")
            self.lab("L_pfbase")
            A("global_load_dword v108, v12, s[42:43]")
            if self.lean: A("s_mov_b64 exec, -1"); A("s_mul_i32 s3, s29, 40")
        A("s_mov_b32 s18, 0x400000"); A("s_mov_b32 s19, 0x20000")
        A("s_mov_b32 s26, 4096"); A("s_mov_b32 s27, 0x20000")
        A("v_lshlrev_b32 v1, 16, v4"); A("v_lshl_add_u32 v1, v3, 4, v1")
        A("v_lshlrev_b32 v2, 10, v5"); A("v_lshl_add_u32 v2, v4, 4, v2")
        A("s_lshl_b32 s44, s28, 2"); A("s_add_u32 s44, s44, s31")
        A("s_lshl_b32 s39, s32, 2"); A("s_add_u32 s39, s39, s33")
        A("s_lshl_b32 s35, s39, 18"); A("s_lshl_b32 s45, s44, 8"); A("s_add_u32 s35, s35, s45")
        A("s_lshl_b32 s39, s39, 6")
        A("s_waitcnt lgkmcnt(0)")
        self.stamp(1)
        A(f"buffer_load_dwordx4 {v4(XB)}, v2, s[24:27], s39 offen")
        for e in range(self.cw):
            A(f"buffer_load_dwordx4 {v4(WB+4*e)}, v1, s[16:19], s35 offen{nt}")
            if e < 7: A("s_add_u32 s35, s35, 8192")
        A("v_mov_b32 v112, 0"); A("v_mov_b32 v113, 0"); A("v_mov_b32 v114, 0"); A("v_mov_b32 v115, 0")
        A(f"ds_write_b128 v112, v[112:115] offset:{L_F}")
        A(f"ds_write_b128 v112, v[112:115] offset:{L_F+16}")
        A("s_waitcnt lgkmcnt(0)")
        A("s_barrier")
        A("s_branch L_C")
        self.lab("L_S")
        KB, VB, QB, SB = 8, 72, 136, 152
        self.vz = "v7"
        esh = 10 if self.lan else 8
        A("s_setprio 1")
        A("s_mov_b32 s6, 0x4000000"); A("s_mov_b32 s7, 0x20000")
        A("s_mov_b32 s10, 0x4000000"); A("s_mov_b32 s11, 0x20000")
        A("s_lshl_b32 s35, s31, 3"); A("s_add_u32 s35, s35, s28"); A("s_lshl_b32 s35, s35, 4"); A("s_add_u32 s35, s35, s32")
        A("s_lshl_b32 s35, s35, 5"); A("s_add_u32 s35, s35, s33")
        A("s_lshl_b32 s35, s35, 12"); A(f"s_add_u32 s35, s35, {0x180000 - 4*4096}")
        if self.rot & 1: A(f"s_lshl_b32 s3, s32, {esh}"); A("s_add_u32 s35, s35, s3")
        if self.rot & 2: A("s_and_b32 s3, s2, 7"); A("s_lshl_b32 s3, s3, 12"); A("s_xor_b32 s35, s35, s3")
        A(f"v_lshlrev_b32 v1, {18-esh}, v5"); A("v_lshl_add_u32 v1, v4, 6, v1"); A("v_lshl_add_u32 v1, v6, 4, v1")
        A(f"v_mul_u32_u24 v2, {QH}, v6"); A("v_lshl_add_u32 v2, v4, 6, v2"); A(f"v_lshl_add_u32 v{QB+12}, v5, 4, v2")
        A("v_lshlrev_b32 v5, 4, v3"); A(f"v_lshl_add_u32 v5, v4, {18-esh}, v5")
        if self.pr == 1:
            A("s_cmp_lt_u32 s33, 8"); A("s_cbranch_scc1 L_pr1"); A("s_setprio 2"); self.lab("L_pr1")
        if not self.b0late: A("s_barrier")
        A("s_waitcnt lgkmcnt(0)")
        self.stamp(1)
        st = dict(i=0)
        def trig(i):
            if i in (self.wj, self.wj2):
                self.cnt(24, f"v{QB+15}"); A("s_mov_b64 exec, -1")
        def nxt(k=1):
            for _ in range(k):
                i = st["i"]; st["i"] += 1
                n = self.N + (1 if i >= self.up else 0)
                wt = lambda p: (None if p[i] == "x" else int(p[i])) if i < len(p) else (n - 1 if i >= n else None)
                w1 = wt(self.pat); w2 = wt(self.pat2) if self.pat2 else w1
                if i == self.lup: w2 = n
                if w1 == w2:
                    if w1 is not None: A(f"s_waitcnt vmcnt({w1})")
                else:
                    A("s_cmp_ge_u32 s33, 8"); A(f"s_cbranch_scc1 L_p{i}")
                    if w1 is not None: A(f"s_waitcnt vmcnt({w1})")
                    if w2 is not None and (w1 is None or w2 < w1):
                        A(f"s_branch L_q{i}"); self.lab(f"L_p{i}"); A(f"s_waitcnt vmcnt({w2})"); self.lab(f"L_q{i}")
                    else:
                        self.lab(f"L_p{i}")
                        if w2 is not None: A(f"s_waitcnt vmcnt({w2})")
                if self.pr == 2: A(f"s_setprio {2 - i % 3}")
                if self.pr == 3: A(f"s_setprio {1 - i % 2}")
                T, e = (i >> 2) & 3, i & 3
                so = "s35"
                if T or e: A(f"s_xor_b32 s39, s35, {T*32768 + (e << esh)}"); so = "s39"
                if i < 16: A(f"buffer_load_dwordx4 {v4(KB+4*i)}, v1, s[4:7], {so} offen{nt}")
                else: A(f"buffer_load_dwordx4 {v4(VB+4*(i-16))}, v5, s[8:11], {so} offen{nt}")
                trig(i)
                if self.xdirty and i == 8:
                    A("s_mov_b32 s14, 0x4000000")
                    A("s_lshl_b32 s46, s2, 3"); A("s_add_u32 s46, s46, s33"); A(f"s_mul_i32 s46, s46, {self.xdirty*1024}"); A("s_add_u32 s46, s46, 0x800000")
                    A(f"v_lshlrev_b32 v{SB}, 4, v0")
                    for k in range(self.xdirty): A(f"buffer_store_dwordx4 v[0:3], v{SB}, s[12:15], s46 offen offset:{1024*k}")
        def upto(j):
            while st["i"] <= j: nxt()
        nxt(len(self.pat) - len(self.pat.lstrip("x")) if self.pat else self.N)
        A("s_load_dword s34, s[12:13], 0")
        A(f"s_mov_b32 s14, {WS_BYTES}"); A("s_mov_b32 s15, 0x20000")
        A("s_mov_b32 s36, 0x05040100"); A("s_mov_b32 s37, 0x07060302")
        A("v_mov_b32 v7, 0")
        A(f"v_mov_b32 v{QB+15}, 1")
        A("v_lshlrev_b32 v6, 5, v6"); A("s_lshl_b32 s3, s33, 2"); A("s_sub_u32 s3, s3, 16"); A("v_add_u32 v3, s3, v6")
        A(f"v_and_b32 v{QB+13}, 3, v0"); A(f"v_mul_u32_u24 v{QB+13}, 528, v{QB+13}"); A(f"v_lshl_add_u32 v{QB+13}, v4, 7, v{QB+13}")
        A("s_mul_i32 s3, s33, 2112"); A(f"s_add_u32 s3, s3, {L_O - 4*2112}"); A(f"v_add_u32 v{QB+13}, s3, v{QB+13}")
        A("s_mov_b32 s42, 0x000f000f"); A("s_mov_b32 s43, 0x000f000f")
        if self.b0late: A("s_barrier")
        upto(15)
        self.stamp(2)
        upto(15 + self.qpos)
        A(f"s_waitcnt vmcnt({self.qpos})")
        self.stamp(3)
        self.ldsspin("q", 4, 4, [f"ds_read_b128 {v4(QB)}, v{QB+12} offset:{L_Q}"], sleep=4)
        self.stamp(4)
        Dj = lambda j: (QB + 4 + 4*j) if j < 2 else (KB + 4*(j-2))
        for j in range(16):
            A(f"v_mfma_f32_16x16x32_bf16 {v4(Dj(j))}, {v4(KB+4*j)}, {v4(QB)}, 0")
        A(f"s_mov_b32 s40, {SCALE}"); A(f"s_mov_b32 s41, {LOG2E}")
        A("s_mul_i32 s34, s34, 1664525"); A("s_add_u32 s34, s34, 1013904223")
        nxt()
        for j in range(16): self.dpp("v_add_f32", SB+j, Dj(j)+1, Dj(j), "row_ror:12")
        for j in range(16): self.dpp("v_add_f32", SB+j, Dj(j)+2, SB+j, "row_ror:8")
        for j in range(16): self.dpp("v_add_f32", SB+j, Dj(j)+3, SB+j, "row_ror:4")
        for i in range(8):
            A(f"v_cvt_pk_bf16_f32 v{QB+i}, v{SB+2*i}, v{SB+2*i+1}")
        for i in range(8):
            A(f"v_lshlrev_b32 v{SB+2*i}, 16, v{QB+i}"); A(f"v_and_b32 v{SB+2*i+1}, 0xffff0000, v{QB+i}")
        nxt()
        for i in range(8):
            A(f"v_pk_mul_f32 {v2(SB+2*i)}, {v2(SB+2*i)}, s[40:41] op_sel_hi:[1,0]")
        for i in range(8):
            A(f"v_cvt_pk_bf16_f32 v{QB+i}, v{SB+2*i}, v{SB+2*i+1}")
        for i in range(8):
            A(f"v_lshlrev_b32 v{SB+2*i}, 16, v{QB+i}"); A(f"v_and_b32 v{SB+2*i+1}, 0xffff0000, v{QB+i}")
        A(f"v_max3_f32 v1, v{SB}, v{SB+1}, v{SB+2}")
        A(f"v_max3_f32 v2, v{SB+3}, v{SB+4}, v{SB+5}")
        A(f"v_max3_f32 v1, v1, v{SB+6}, v{SB+7}")
        A(f"v_max3_f32 v2, v2, v{SB+8}, v{SB+9}")
        A(f"v_max3_f32 v1, v1, v{SB+10}, v{SB+11}")
        A(f"v_max3_f32 v2, v2, v{SB+12}, v{SB+13}")
        A(f"v_max3_f32 v1, v1, v{SB+14}, v{SB+15}")
        A("v_max_f32 v1, v1, v2")
        self.allred_rows("v_max_f32", 1, 2)
        A("v_mul_f32 v1, s41, v1")
        A("s_mov_b64 exec, 15")
        A(f"ds_write_b32 v3, v1 offset:{L_M}")
        self.cnt(8, f"v{QB+15}")
        A("s_mov_b64 exec, -1")
        self.stamp(5)
        nxt()
        self.stamp(6)
        self.mspin("m", QB, 1)
        for i in range(16):
            A(f"v_fma_f32 v{SB+i}, v{SB+i}, s41, -v1")
        for i in range(16):
            A(f"v_exp_f32 v{SB+i}, v{SB+i}")
        nxt()
        for i in range(8):
            A(f"v_cvt_pk_bf16_f32 v{QB+i}, v{SB+2*i}, v{SB+2*i+1}")
        for i in range(4):
            A(f"v_pk_add_f32 {v2(SB+2*i)}, {v2(SB+2*i)}, {v2(SB+8+2*i)}")
        for i in range(2):
            A(f"v_pk_add_f32 {v2(SB+2*i)}, {v2(SB+2*i)}, {v2(SB+4+2*i)}")
        A(f"v_pk_add_f32 {v2(SB)}, {v2(SB)}, {v2(SB+2)}")
        A(f"v_add_f32 v{SB+8}, v{SB}, v{SB+1}")
        self.allred_rows("v_add_f32", SB+8, SB)
        OB, P0, P1 = 8, 40, 72
        A("s_mov_b64 exec, 15")
        A(f"ds_write_b32 v3, v{SB+8} offset:{L_L}")
        self.cnt(20, f"v{QB+15}")
        A("s_mov_b64 exec, -1")
        self.stamp(7)
        def need(j):
            upto(min(31, j + self.N + (1 if j + self.N + 1 >= self.up else 0)))
            A(f"s_waitcnt vmcnt({st['i'] - 1 - j})")
        need(23)
        self.perms(P0, VB, pairs=(0, 1))
        if st["i"] < 32: nxt()
        self.perms(P0, VB, pairs=(2, 3))
        for j in range(8):
            A(f"v_mfma_f32_16x16x32_bf16 {v4(OB+4*j)}, {v4(P0+4*j)}, {v4(QB)}, 0")
        self.stamp(8)
        need(25)
        self.perms(P1, VB+32, pairs=(0,))
        A("s_cmp_ge_u32 s33, 8"); A("s_cbranch_scc1 L_S_nr")
        A("s_mul_i32 s3, s33, 528"); A(f"s_add_u32 s3, s3, {L_O - 4*528}")
        A(f"v_lshl_add_u32 v{SB+9}, v0, 3, s3")
        A("s_lshl_b32 s3, s33, 5"); A("s_sub_u32 s3, s3, 128"); A(f"v_mov_b32 v{SB+10}, s3")
        A("s_lshl_b32 s3, s29, 3"); A("s_add_u32 s3, s3, s28"); A("s_lshl_b32 s3, s3, 2"); A("s_add_u32 s3, s3, s33"); A("s_sub_u32 s3, s3, 4")
        A("s_lshl_b32 s3, s3, 2"); A("s_add_u32 s3, s3, s32"); A("s_lshl_b32 s3, s3, 2"); A("s_add_u32 s3, s3, s31")
        A("s_lshl_b32 s46, s3, 9"); A(f"s_add_u32 s46, s46, {OP}")
        A(f"v_lshlrev_b32 v{SB+11}, 3, v0")
        A(f"v_mov_b32 v{SB+13}, s34")
        self.ldsspin("l", 20, 8, [f"ds_read_b128 {v4(SB)}, v{SB+10} offset:{L_L}", f"ds_read_b128 {v4(SB+4)}, v{SB+10} offset:{L_L+16}",
                                  f"ds_read_b32 v1, v7 offset:{L_F+12}"], sleep=2)
        A("v_readfirstlane_b32 s45, v1")
        A(f"v_pk_add_f32 {v2(SB)}, {v2(SB)}, {v2(SB+4)}"); A(f"v_pk_add_f32 {v2(SB+2)}, {v2(SB+2)}, {v2(SB+6)}")
        A(f"v_pk_add_f32 {v2(SB)}, {v2(SB)}, {v2(SB+2)}")
        A(f"v_add_f32 v{SB+14}, v{SB}, v{SB+1}")
        A(f"v_rcp_f32 v{SB+14}, v{SB+14}")
        self.lab("L_S_nr")
        for q in range(1, 4):
            if q == 3 and 33 in (self.wj, self.wj2):
                need(30); trig(33)
            need(25 + 2*q)
            if q == 2: trig(32)
            if q == 3: trig(34); A("s_setprio 3"); self.stamp(9)
            self.perms(P1, VB+32, pairs=(q,))
        for j in range(8):
            A(f"v_mfma_f32_16x16x32_bf16 {v4(OB+4*j)}, {v4(P1+4*j)}, {v4(QB+4)}, {v4(OB+4*j)}")
        A("s_mov_b64 exec, s[42:43]")
        A("s_cmp_ge_u32 s33, 8")
        for j in range(8):
            A(f"ds_write_b128 v{QB+13}, {v4(OB+4*j)} offset:{16*j}")
        A("s_mov_b64 exec, -1")
        A("s_waitcnt lgkmcnt(0)")
        A("s_barrier")
        self.stamp(10)
        A("s_cbranch_scc1 L_S_x")
        for w in range(8): A(f"ds_read_b64 {v2(8+2*w)}, v{SB+9} offset:{2112*w}")
        A("s_waitcnt lgkmcnt(0)")
        for w in (0, 1, 2, 3):
            A(f"v_pk_add_f32 {v2(8+2*w)}, {v2(8+2*w)}, {v2(16+2*w)}")
        A("v_pk_add_f32 v[8:9], v[8:9], v[12:13]"); A("v_pk_add_f32 v[10:11], v[10:11], v[14:15]")
        A("s_cmp_lg_u32 s45, 0")
        A("v_pk_add_f32 v[8:9], v[8:9], v[10:11]")
        A(f"v_pk_mul_f32 v[8:9], v[8:9], {v2(SB+14)} op_sel_hi:[1,0]")
        A(f"v_cvt_pk_bf16_f32 v{SB+12}, v8, v9")
        A("s_cbranch_scc1 L_S_y2")
        A(f"buffer_store_dwordx2 {v2(SB+12)}, v{SB+11}, s[12:15], s46 offen" + ["", " sc1", " nt", " sc0 sc1"][self.owt])
        self.lab("L_S_x")
        self.stamp(11)
        if self.stamps: A("s_sleep 127"); A("s_sleep 127")
        self.stamp_out()
        A("s_endpgm")
        self.lab("L_C")
        self.vz = "v110"
        A("s_load_dword s34, s[12:13], 0")
        A("s_load_dwordx2 s[20:21], s[0:1], s3 offset:32")
        A("s_load_dwordx2 s[52:53], s[0:1], 80")
        A("s_load_dwordx2 s[56:57], s[0:1], 88")
        A(f"s_mov_b32 s14, {WS_BYTES}"); A("s_mov_b32 s15, 0x20000")
        A("s_mov_b32 s22, 0x400000"); A("s_mov_b32 s23, 0x20000")
        A("s_mov_b32 s36, 0x05040100"); A("s_mov_b32 s37, 0x07060302")
        A("s_mov_b32 s54, 1024"); A("s_mov_b32 s55, 0x20000")
        A("s_mov_b32 s58, 4096"); A("s_mov_b32 s59, 0x20000")
        A("s_lshl_b32 s45, s29, 1"); A("s_lshr_b32 s3, s28, 2"); A("s_add_u32 s45, s45, s3")
        A("v_lshlrev_b32 v109, 4, v0")
        A("s_lshl_b32 s3, s29, 5"); A("s_add_u32 s47, s44, s3")
        A("v_mov_b32 v110, 0"); A("v_mov_b32 v111, 1"); A("v_mov_b32 v133, 1024")
        A("v_lshlrev_b32 v127, 3, v0")
        A("v_mul_u32_u24 v7, 528, v5"); A("v_lshl_add_u32 v7, v4, 7, v7")
        A("s_mul_i32 s3, s33, 2112"); A(f"s_add_u32 s3, s3, {L_R}"); A("v_add_u32 v7, s3, v7")
        A("v_lshlrev_b32 v122, 7, v4"); A("v_lshl_add_u32 v122, v6, 5, v122"); A("v_lshl_add_u32 v122, v5, 2, v122")
        A("s_mul_i32 s3, s33, 528"); A(f"s_add_u32 s3, s3, {L_R}"); A("v_add_u32 v122, s3, v122")
        A("v_add_u32 v123, 2112, v122"); A("v_add_u32 v124, 4224, v122"); A("v_add_u32 v125, 6336, v122")
        A("s_lshl_b32 s46, s47, 2"); A("s_add_u32 s46, s46, s32"); A("s_lshl_b32 s46, s46, 2"); A("s_add_u32 s46, s46, s33")
        A("s_lshl_b32 s46, s46, 9"); A(f"s_add_u32 s46, s46, {QP}")
        A("s_lshl_b32 s4, s29, 3"); A("s_add_u32 s4, s4, s28"); A("s_lshl_b32 s4, s4, 2"); A("s_add_u32 s4, s4, s33")
        A("s_lshl_b32 s4, s4, 2"); A("s_add_u32 s4, s4, s31"); A("s_lshl_b32 s4, s4, 2"); A("s_add_u32 s4, s4, s32")
        A("s_lshl_b32 s4, s4, 3"); A(f"s_add_u32 s4, s4, {SP}")
        if self.rm >= 0:
            A("s_sub_u32 s3, s32, s31"); A("s_add_u32 s44, s44, s3"); A("s_add_u32 s47, s47, s3")
            A(f"s_add_u32 s32, s31, {self.rm}"); A("s_and_b32 s32, s32, 3")
        A("s_mov_b32 s42, 0x11111111"); A("s_mov_b32 s43, 0x11111111")
        A("s_mov_b32 s41, 0")
        A("s_getreg_b32 s30, hwreg(HW_REG_XCC_ID, 0, 4)")
        if self.forcey: A("s_lshr_b32 s30, s2, 3"); A("s_and_b32 s30, s30, 1")
        A("s_lshl_b32 s3, s45, 10")
        A("s_waitcnt lgkmcnt(0)")
        if self.lean: A("s_cmp_eq_u32 s33, 0"); A("s_cselect_b64 exec, -1, 1")
        A("buffer_load_dwordx4 v[112:115], v109, s[24:27], s3 offen")
        A("buffer_load_dwordx4 v[116:119], v109, s[52:55], 0 offen")
        if self.lean: A("s_mov_b64 exec, -1")
        for e in range(self.cw, 8):
            A(f"s_waitcnt vmcnt({self.cw-1 + (2 if e < 2*self.cw else 0)})")
            A(f"buffer_load_dwordx4 {v4(WB+4*e)}, v1, s[16:19], s35 offen{nt}")
            if e < 7: A("s_add_u32 s35, s35, 8192")
        A("s_mul_i32 s34, s34, 1664525"); A("s_add_u32 s34, s34, 1013904223")
        A("v_mov_b32 v129, s34")
        A("s_and_b32 s3, s34, -16"); A("s_or_b32 s30, s30, s3")
        A("v_and_b32 v160, 1, v0"); A("v_lshlrev_b32 v160, 4, v160")
        A("v_lshrrev_b32 v166, v160, s30"); A("v_lshrrev_b32 v160, v160, s34")
        A("v_bfe_u32 v167, v166, 8, 8"); A("v_bfe_u32 v161, v160, 8, 8")
        A("v_and_b32 v166, 0xff, v166"); A("v_and_b32 v160, 0xff, v160")
        A("s_movk_i32 s11, 0xff"); A("s_and_b32 s30, s30, 0xffff"); A("s_mov_b32 s10, 0x0c0c0400")
        SG = 136
        CF = 144
        OG = 152
        ol = [f"buffer_load_dwordx2 {v2(OG+2*s)}, v1, s[12:15], s{39 if s < 2 else 48} offen offset:{2048*(s&1)}{pol}" for s in range(4)]
        stl = [f"buffer_load_dwordx4 {v4(SG+4*s)}, v57, s[12:15], s35 offen offset:{16*s}{pol}" for s in range(2)]
        self.lab("L_tile")
        for q in range(3):
            A(f"s_waitcnt vmcnt({6-2*q})")
            self.perms(PB, WB, pairs=(q,))
        A("s_cmp_eq_u32 s41, 0"); A("s_cbranch_scc0 L_t1")
        A("s_waitcnt vmcnt(0)")
        self.perms(PB, WB, pairs=(3,))
        self.stamp(2); A("s_branch L_mm")
        self.lab("L_t1")
        for l in ol: A(l)
        A(f"s_mov_b32 s38, {self.spin}")
        A("s_waitcnt vmcnt(4)")
        self.perms(PB, WB, pairs=(3,))
        self.stamp(7)
        A("s_branch L_og")
        self.lab("L_ogr")
        if self.osleep: A(f"s_sleep {self.osleep}")
        for l in ol: A(l)
        self.lab("L_og")
        A("s_waitcnt vmcnt(0)")
        A(f"v_xor_b32 v20, s34, v{OG+1}")
        for s in range(1, 4): A(f"v_bitop3_b32 v20, v{OG+1+2*s}, s34, v20 bitop3:0xbe")
        A("s_sub_u32 s38, s38, 1")
        A("v_cmp_ne_u32 vcc, 0, v20")
        A("s_cbranch_scc1 L_ogd")
        A("s_cbranch_vccnz L_ogr")
        self.lab("L_ogd")
        for s in range(4):
            A(f"v_lshlrev_b32 v{24+2*s}, 16, v{OG+2*s}"); A(f"v_and_b32 v{25+2*s}, 0xffff0000, v{OG+2*s}")
        A("s_cmp_lg_u32 s49, 0"); A("s_cbranch_scc1 L_ogn")
        A("s_mov_b64 exec, 1")
        A(f"buffer_store_dword v129, v135, s[12:15], 0 offen{pol}")
        A("s_mov_b64 exec, -1")
        self.lab("L_ogn")
        self.stamp(8)
        A(f"v_pk_mul_f32 v[24:25], v[24:25], {v2(CF)} op_sel_hi:[1,0]")
        A(f"v_pk_mul_f32 v[28:29], v[28:29], {v2(CF+4)} op_sel_hi:[1,0]")
        A(f"v_pk_fma_f32 v[24:25], v[26:27], {v2(CF+2)}, v[24:25] op_sel_hi:[1,0,1]")
        A(f"v_pk_fma_f32 v[28:29], v[30:31], {v2(CF+6)}, v[28:29] op_sel_hi:[1,0,1]")
        A(f"v_pk_add_f32 v[24:25], v[24:25], v[28:29]")
        A("v_cvt_pk_bf16_f32 v24, v24, v25"); self.nop(2)
        for q in range(4):
            A(f"v_mov_b32_dpp v{XB+q}, v24 quad_perm:[{q},{q},{q},{q}] row_mask:0xf bank_mask:0xf")
        self.nop(2)
        self.lab("L_mm")
        for j in range(8):
            A(f"v_mfma_f32_16x16x32_bf16 {v4(DB+4*j)}, {v4(PB+4*j)}, {v4(XB)}, 0")
        A("s_mov_b64 exec, s[42:43]")
        A("s_cmp_eq_u32 s41, 0")
        for j in range(8):
            A(f"ds_write_b128 v7, {v4(DB+4*j)} offset:{16*j}")
        A("s_cbranch_scc0 L_fin")
        self.cnt(0, "v111")
        A("s_mov_b64 exec, -1")
        rd = [f"ds_read2_b32 {v2(12+2*i)}, v{122+i} offset0:0 offset1:4" for i in range(4)]
        self.ldsspin("c", 0, 4, rd, sleep=0)
        A("v_pk_add_f32 v[12:13], v[12:13], v[14:15]"); A("v_pk_add_f32 v[16:17], v[16:17], v[18:19]")
        A("v_pk_add_f32 v[12:13], v[12:13], v[16:17]")
        A("v_bfi_b32 v164, s11, v166, v12"); A("v_bfi_b32 v165, s11, v167, v13")
        A("buffer_store_dwordx2 v[164:165], v127, s[12:15], s46 offen" + ["", " sc1", " nt", " sc0 sc1"][self.qwt])
        self.stamp(3)
        if self.pretouch:
            A("s_lshl_b32 s3, s32, 2"); A("s_add_u32 s3, s3, s33"); A("s_lshl_b32 s3, s3, 9")
            A("s_lshl_b32 s40, s47, 13"); A("s_add_u32 s3, s3, s40"); A(f"s_add_u32 s3, s3, {OP}")
            A("s_or_b32 s40, s32, s33"); A("s_cbranch_scc1 L_pt")
            A("s_lshl_b32 s40, s47, 7"); A(f"s_add_u32 s40, s40, {SP}")
            A("s_load_dword s49, s[12:13], s40")
            self.lab("L_pt")
            for i in range(4): A(f"s_load_dword s49, s[12:13], s3 offset:{128*i}")
        for i in range(4):
            A(f"v_lshlrev_b32 v{24+2*i}, 16, v{112+i}"); A(f"v_and_b32 v{25+2*i}, 0xffff0000, v{112+i}")
            A(f"v_lshlrev_b32 v{32+2*i}, 16, v{116+i}"); A(f"v_and_b32 v{33+2*i}, 0xffff0000, v{116+i}")
        for i in range(4):
            A(f"v_pk_mul_f32 {v2(24+2*i)}, {v2(24+2*i)}, {v2(32+2*i)}")
        for i in range(4):
            A(f"v_cvt_pk_bf16_f32 v{32+i}, v{24+2*i}, v{25+2*i}")
        for i in range(4):
            A(f"v_lshlrev_b32 v{24+2*i}, 16, v{32+i}"); A(f"v_and_b32 v{25+2*i}, 0xffff0000, v{32+i}")
        A("v_pk_add_f32 v[24:25], v[24:25], v[28:29]"); A("v_pk_add_f32 v[26:27], v[26:27], v[30:31]")
        A("v_pk_add_f32 v[24:25], v[24:25], v[26:27]"); A("v_add_f32 v8, v24, v25")
        for ror in (8, 4, 2, 1):
            self.nop(2); self.dpp("v_add_f32", 8, 8, 8, f"row_ror:{ror}")
        self.allred_rows("v_add_f32", 8, 9)
        A("v_cvt_pk_bf16_f32 v8, v8, v8"); A("v_lshlrev_b32 v8, 16, v8")
        A(f"v_mul_f32 v8, {0xbfb8aa3b}, v8"); A("v_exp_f32 v8, v8"); self.nop(1)
        A("v_add_f32 v8, 1.0, v8"); A("v_rcp_f32 v8, v8"); self.nop(1)
        A("v_cvt_pk_bf16_f32 v8, v8, v8"); A("v_lshlrev_b32 v8, 16, v8")
        A("v_sub_f32 v9, 1.0, v8"); A("v_cvt_pk_bf16_f32 v9, v9, v9"); A("v_lshlrev_b32 v9, 16, v9")
        A("v_cmp_gt_u32 vcc, 32, v0")
        A("s_lshl_b32 s39, s29, 3"); A("s_add_u32 s39, s39, s28"); A("s_lshl_b32 s39, s39, 2"); A("s_add_u32 s39, s39, s33")
        A("v_cndmask_b32 v120, v9, v8, vcc")
        A("s_lshl_b32 s39, s39, 4"); A("s_add_u32 s39, s39, s31"); A("s_lshl_b32 s39, s39, 9"); A(f"s_add_u32 s39, s39, {QP}")
        A("s_add_u32 s60, s39, 4096")
        A("s_mov_b32 s63, 0")
        A("v_mov_b32 v18, 0")
        A("v_lshlrev_b32 v19, 11, v6")
        A(f"s_mov_b32 s38, {self.n0}"); A(f"s_mov_b32 s62, {self.spin}")
        self.stamp(13)
        D = self.qdepth
        ld = lambda i: A(f"buffer_load_dwordx2 {v2(40+2*i)}, v19, s[12:15], s39 offen{pol}")
        qg = lambda vo: [f"buffer_load_dwordx2 {v2(24+2*i)}, {vo}, s[12:15], s{39 if i < 2 else 60} offen offset:{2048*(i&1)}{pol}" for i in range(4)]
        for i in range(D - 1):
            ld(i); A(f"s_sleep {self.qsleep}")
        self.lab("L_qf")
        for i in range(D):
            ld((i + D - 1) % D)
            A(f"s_waitcnt vmcnt({D-1})")
            A(f"v_perm_b32 v20, v{41+2*i}, v{40+2*i}, s10")
            A("v_cmp_ne_u32 vcc, s30, v20")
            A("s_cmp_eq_u64 vcc, 0"); A("s_cbranch_scc1 L_qfd")
        self.lab("L_qfr")
        A("s_sub_u32 s38, s38, 1")
        A("s_cbranch_scc0 L_qf")
        A("s_branch L_slow")
        self.lab("L_qfd")
        self.stamp(14)
        for l in qg("v127"): A(l)
        A(f"s_mul_i32 s3, s33, {QH}"); A("v_lshl_add_u32 v16, v0, 2, s3")
        A("v_lshlrev_b32 v1, 11, v4"); A("v_lshl_add_u32 v1, v3, 4, v1")
        A("s_lshl_b32 s48, s44, 17"); A("s_lshl_b32 s3, s33, 15"); A("s_add_u32 s48, s48, s3")
        A("s_lshl_b32 s3, s32, 8"); A("s_add_u32 s48, s48, s3")
        A("s_waitcnt vmcnt(0) lgkmcnt(0)")
        self.untag(24, 166, 8)
        A("v_cmp_ne_u32 vcc, 0, v8"); A("s_cmp_eq_u64 vcc, 0"); A("s_cbranch_scc0 L_qfr")
        self.lab("L_qok")
        A("v_pk_add_f32 v[24:25], v[24:25], v[26:27]"); A("v_pk_add_f32 v[28:29], v[28:29], v[30:31]")
        A("v_pk_add_f32 v[24:25], v[24:25], v[28:29]")
        A("v_cvt_pk_bf16_f32 v17, v24, v25")
        A(f"ds_write_b32 v16, v17 offset:{L_Q}")
        self.cnt(12, "v18")
        A(f"ds_add_u32 v110, v111 offset:{L_F+4}")
        A("s_mov_b64 exec, -1")
        self.stamp(4)
        self.lab("L_vd")
        A(f"ds_read_b32 v2, v110 offset:{L_F+4}")
        A(f"ds_read2_b32 v[134:135], v133 offset0:{(L_F+12)//4 - 256} offset1:{(L_F+16)//4 - 256}")
        A("s_waitcnt lgkmcnt(0)")
        A("v_readfirstlane_b32 s40, v2"); A("v_readfirstlane_b32 s3, v135"); A("v_readfirstlane_b32 s49, v134")
        A("s_andn2_b32 s3, s3, s63"); A("s_cbranch_scc1 L_puby2")
        A("s_cmp_ge_u32 s40, 4"); A("s_cbranch_scc1 L_vdd")
        A("s_sleep 2"); A("s_sub_u32 s62, s62, 1"); A("s_cbranch_scc0 L_vd")
        self.lab("L_vdd")
        A("s_lshl_b32 s3, s33, 5"); A("v_mov_b32 v56, s3")
        self.ldsspin("l2", 20, 8, [f"ds_read_b128 v[40:43], v56 offset:{L_M}", f"ds_read_b128 v[44:47], v56 offset:{L_M+16}",
                                   f"ds_read_b128 v[48:51], v56 offset:{L_L}", f"ds_read_b128 v[52:55], v56 offset:{L_L+16}"], sleep=4)
        A("v_max3_f32 v40, v40, v41, v42"); A("v_max3_f32 v43, v43, v44, v45"); A("v_max3_f32 v40, v40, v46, v47")
        A("v_pk_add_f32 v[48:49], v[48:49], v[52:53]"); A("v_pk_add_f32 v[50:51], v[50:51], v[54:55]")
        A("v_pk_add_f32 v[48:49], v[48:49], v[50:51]"); A("v_add_f32 v48, v48, v49")
        A("v_log_f32 v48, v48"); A("v_max_f32 v40, v40, v43")
        A("s_cmp_lg_u32 s49, 0")
        A("v_add_f32 v128, v40, v48")
        A("s_mov_b64 exec, 1")
        A("s_cbranch_scc1 L_S_y1")
        A("buffer_store_dwordx2 v[128:129], v110, s[12:15], s4 offen")
        self.lab("L_S_y1r")
        A("s_mov_b64 exec, -1")
        A("s_cmp_lg_u32 s49, 0"); A(f"s_cselect_b32 s49, {YD}, 0")
        A("s_lshl_b32 s35, s47, 7"); A(f"s_add_u32 s35, s35, {SP}"); A("s_add_u32 s35, s35, s49")
        A("v_lshlrev_b32 v57, 5, v5")
        self.poll("s", stl, [SG+1, SG+3, SG+5, SG+7], 20, sleep=self.ssleep)
        self.stamp(15)
        A(f"v_max3_f32 v20, v{SG}, v{SG+2}, v{SG+4}"); A(f"v_max_f32 v20, v20, v{SG+6}")
        for s in range(4): A(f"v_sub_f32 v{CF+2*s}, v{SG+2*s}, v20")
        for s in range(4): A(f"v_exp_f32 v{CF+2*s}, v{CF+2*s}")
        self.nop(1)
        A(f"v_add_f32 v20, v{CF}, v{CF+2}"); A(f"v_add_f32 v21, v{CF+4}, v{CF+6}"); A("v_add_f32 v20, v20, v21")
        A("v_rcp_f32 v20, v20"); self.nop(1)
        for s in range(4): A(f"v_mul_f32 v{CF+2*s}, v{CF+2*s}, v20")
        for e in range(8):
            if e == self.wo1: self.ldsspin("w", 24, self.th1, [], sleep=2)
            if e == self.wa: self.ldsspin("w2", 24, self.th2, [], sleep=1)
            if e == self.wo_early: A("s_setprio 0")
            A(f"buffer_load_dwordx4 {v4(WB+4*e)}, v1, s[20:23], s48 offen offset:{1024*(e>>2)}{nt}")
            if e == 3: A("s_sub_u32 s48, s48, 24576")
            elif e < 7: A("s_add_u32 s48, s48, 8192")
        A("s_setprio 3")
        self.stamp(5)
        A("s_lshl_b32 s39, s47, 13"); A("s_lshl_b32 s3, s33, 7"); A("s_add_u32 s39, s39, s3"); A(f"s_add_u32 s39, s39, {OP}")
        A("s_add_u32 s39, s39, s49"); A("s_add_u32 s48, s39, 4096")
        A("v_lshlrev_b32 v1, 9, v5"); A("v_lshl_add_u32 v1, v4, 5, v1"); A("v_lshl_add_u32 v1, v6, 3, v1")
        A("s_lshl_b32 s63, s32, 17"); A(f"s_add_u32 s63, s63, {FP}")
        A("s_lshl_b32 s3, s47, 11"); A("s_add_u32 s46, s63, s3"); A("s_lshl_b32 s3, s33, 9"); A("s_add_u32 s46, s46, s3")
        A("v_lshrrev_b32 v121, 2, v0"); A("v_lshlrev_b32 v121, 11, v121"); A("v_lshl_add_u32 v121, v6, 3, v121")
        A("s_lshl_b32 s3, s47, 5"); A("s_add_u32 s63, s63, s3")
        A("s_add_u32 s60, s63, 0x8000"); A("s_add_u32 s61, s63, 0x10000"); A("s_add_u32 s62, s63, 0x18000")
        A("s_lshl_b32 s45, s45, 10"); A("s_lshl_b32 s3, s32, 8"); A("s_add_u32 s45, s45, s3")
        A("s_and_b32 s3, s47, 15"); A("s_lshl_b32 s3, s3, 4"); A("s_add_u32 s45, s45, s3")
        A("v_lshlrev_b32 v126, 2, v6"); A("v_lshl_add_u32 v126, v4, 1, v126")
        A("s_mov_b32 s41, 1")
        A("s_and_b32 s49, s44, 3"); A("s_or_b32 s49, s49, s32"); A("s_or_b32 s49, s49, s33")
        A("s_lshr_b32 s3, s47, 2"); A("s_lshl_b32 s3, s3, 8"); A(f"s_add_u32 s3, s3, {EP}"); A("v_mov_b32 v135, s3")
        A("v_lshlrev_b32 v134, 8, v3"); A(f"v_add_u32 v134, {EP}, v134")
        A("s_barrier")
        self.stamp(6)
        A("s_branch L_tile")
        self.lab("L_fin")
        if self.b4spin:
            self.cnt(28, "v111")
            A("s_mov_b64 exec, -1")
            self.ldsspin("c2", 28, 4, rd, sleep=0)
        else:
            A("s_mov_b64 exec, -1")
            A("s_waitcnt lgkmcnt(0)")
            A("s_barrier")
            for r in rd: A(r)
            A("s_waitcnt lgkmcnt(0)")
        A("v_pk_add_f32 v[12:13], v[12:13], v[14:15]"); A("v_pk_add_f32 v[16:17], v[16:17], v[18:19]")
        A("v_pk_add_f32 v[12:13], v[12:13], v[16:17]")
        A("v_bfi_b32 v12, s11, v160, v12"); A("v_bfi_b32 v13, s11, v161, v13")
        A(f"buffer_store_dwordx2 v[12:13], v127, s[12:15], s46 offen{pol}")
        self.stamp(9)
        A("s_cmp_lg_u32 s33, 0"); A("s_cbranch_scc1 L_C_exit")
        if self.fdelay: A(f"s_sleep {self.fdelay}")
        if self.eta:
            if self.ed == 1:
                self.poll("e", [f"buffer_load_dword v41, v134, s[12:15], 0 offen{pol}"], [41], 40)
            else:
                D = self.ed
                A("s_mov_b64 exec, 0xffff")
                el = lambda i: A(f"buffer_load_dword v{41+i}, v134, s[12:15], 0 offen{pol}")
                A(f"s_mov_b32 s38, {self.spin}")
                for i in range(D - 1):
                    el(i); A(f"s_sleep {self.es}")
                self.lab("L_ep")
                for i in range(D):
                    el((i + D - 1) % D)
                    A(f"s_waitcnt vmcnt({D-1})")
                    A(f"v_cmp_ne_u32 vcc, s34, v{41+i}")
                    A("s_cmp_eq_u64 vcc, 0"); A("s_cbranch_scc1 L_epd")
                A("s_sub_u32 s38, s38, 1"); A("s_cbranch_scc0 L_ep")
                self.lab("L_epd")
                A("s_mov_b64 exec, -1")
            self.stamp(12)
            if self.edly: A(f"s_sleep {self.edly}")
            self.lab("L_eok")
        self.poll("f", [f"buffer_load_dwordx2 {v2(24+2*i)}, v121, s[12:15], s{(63,60,61,62)[i]} offen{pol}" for i in range(4)],
                  list(range(24, 32)), 40, sleep=self.fsleep, tv=160)
        self.stamp(10)
        if self.stamps: A(f"s_sub_u32 s66, {self.spin}, s38"); A("s_mov_b32 s67, 0")
        A("v_pk_add_f32 v[24:25], v[24:25], v[26:27]"); A("v_pk_add_f32 v[28:29], v[28:29], v[30:31]")
        self.nop(2)
        A("v_permlane32_swap_b32 v24, v28"); A("v_permlane32_swap_b32 v25, v29")
        A("v_pk_add_f32 v[24:25], v[24:25], v[28:29]"); self.nop(2)
        A("v_permlane16_swap_b32 v24, v25")
        A("v_add_f32 v24, v24, v25"); self.nop(2)
        self.dpp("v_add_f32", 24, 24, 24, "row_ror:4"); self.nop(2)
        self.dpp("v_add_f32", 24, 24, 24, "row_ror:8")
        A("v_cvt_pk_bf16_f32 v24, v24, v24"); A("v_lshlrev_b32 v24, 16, v24")
        A("v_mul_f32 v24, v24, v120")
        A("v_cvt_pk_bf16_f32 v24, v24, v24"); A("v_lshlrev_b32 v24, 16, v24")
        A("v_mov_b32 v25, v24"); self.nop(2)
        A("v_permlane32_swap_b32 v24, v25")
        A("v_add_f32 v24, v24, v25")
        A("v_cvt_pk_bf16_f32 v24, v24, v24")
        A("s_mov_b64 exec, 0x000f000f")
        A("buffer_store_short v24, v126, s[56:59], s45 offen")
        if self.pad:
            if self.padk >= 0:
                A("s_waitcnt lgkmcnt(0)"); A("s_mov_b32 s90, s92")
            self.lab("L_pad")
            A("s_memrealtime s[94:95]"); A("s_waitcnt lgkmcnt(0)"); A("s_sub_u32 s94, s94, s90")
            A(f"s_cmp_lt_u32 s94, {self.pad}"); A("s_cbranch_scc1 L_pad")
        A("s_cmp_lg_u32 s2, 0"); A("s_cbranch_scc1 L_C_exit")
        A("s_mov_b64 exec, 1")
        A("buffer_store_dword v129, v110, s[12:15], 0 offen")
        self.lab("L_C_exit")
        self.stamp(11)
        if self.stamps: A("s_sleep 127")
        self.stamp_out()
        self.lab("L_end")
        A("s_endpgm")
        self.lab("L_last")
        self.lab("L_S_y1")
        A(f"s_add_u32 s4, s4, {YD}")
        A(f"buffer_store_dwordx2 v[128:129], v110, s[12:15], s4 offen{pol}")
        A("s_branch L_S_y1r")
        self.lab("L_S_y2")
        A(f"s_add_u32 s46, s46, {YD}")
        A(f"buffer_store_dwordx2 {v2(SB+12)}, v{SB+11}, s[12:15], s46 offen{pol}")
        A("s_branch L_S_x")
        def puby():
            A(f"s_add_u32 s3, s46, {YD}")
            A(f"buffer_store_dwordx2 v[164:165], v127, s[12:15], s3 offen{pol}")
            A("s_mov_b32 s63, 1")
        self.lab("L_puby2")
        puby()
        A("s_branch L_vd")
        self.lab("L_slow")
        A("s_cmp_lg_u32 s63, 0"); A("s_cbranch_scc1 L_slow2")
        A(f"ds_write_b32 v110, v111 offset:{L_F+16}")
        puby()
        self.lab("L_slow2")
        A(f"v_add_u32 v9, {YD}, v127")
        for l in qg("v9"): A(l)
        A("v_and_b32 v9, 1, v0"); A("v_mul_u32_u24 v9, 15, v9"); A("v_or_b32 v9, 0xf0, v9")
        A("s_waitcnt vmcnt(0)")
        A("v_xor_b32 v8, v166, v24"); A("v_xor_b32 v10, v167, v25")
        for r in range(26, 32): A(f"v_bitop3_b32 v{8 + 2*(r & 1)}, v{r}, v{166 + (r & 1)}, v{8 + 2*(r & 1)} bitop3:0xbe")
        A("v_and_b32 v10, 0xff, v10"); A("v_and_or_b32 v9, v8, v9, v10"); A("v_and_b32 v10, 15, v8")
        A("s_mov_b32 s38, 0")
        A("v_cmp_ne_u32 vcc, 0, v9"); A("s_cmp_eq_u64 vcc, 0"); A("s_cbranch_scc1 L_slow3")
        A("s_sleep 8")
        A("s_sub_u32 s62, s62, 1"); A("s_cbranch_scc0 L_qf")
        self.lab("L_slow3")
        for r in range(24, 32): A(f"v_and_b32 v{r}, 0xffffff00, v{r}")
        A("v_cmp_ne_u32 vcc, 0, v10"); A("s_cmp_lg_u64 vcc, 0")
        A("s_cselect_b32 s3, 1, 0"); A("v_mov_b32 v18, s3")
        A(f"s_mul_i32 s3, s33, {QH}"); A("v_lshl_add_u32 v16, v0, 2, s3")
        A("v_lshlrev_b32 v1, 11, v4"); A("v_lshl_add_u32 v1, v3, 4, v1")
        A("s_lshl_b32 s48, s44, 17"); A("s_lshl_b32 s3, s33, 15"); A("s_add_u32 s48, s48, s3")
        A("s_lshl_b32 s3, s32, 8"); A("s_add_u32 s48, s48, s3")
        A("s_waitcnt lgkmcnt(0)")
        A("s_branch L_qok")
        L.append('.section .rodata,"a"'); L.append(".p2align 6"); L.append(f".amdhsa_kernel {KN}")
        L.append("  .amdhsa_next_free_vgpr 168"); L.append("  .amdhsa_next_free_sgpr 96"); L.append("  .amdhsa_accum_offset 168")
        L.append("  .amdhsa_group_segment_fixed_size 0"); L.append("  .amdhsa_kernarg_size 112"); L.append("  .amdhsa_user_sgpr_count 2")
        L.append("  .amdhsa_user_sgpr_kernarg_segment_ptr 1"); L.append("  .amdhsa_system_sgpr_workgroup_id_x 1")
        L.append("  .amdhsa_float_denorm_mode_32 3")
        L.append(".end_amdhsa_kernel")
        return "\n".join(L) + "\n"

if __name__ == "__main__":
    out = sys.argv[1]
    kw = {}
    for a in sys.argv[2:]:
        k, v = a.split("=")
        kw[k] = v.replace("+", " ") if k in ("pol", "pat", "pat2") else int(v)
    open(out, "w").write(G(**kw).gen())
```

```python
import sys
KN = "gated_mix__sliding_block_cached__sliding_block_cached__decode_kernel"
HDR = open("gated_mix__sliding_block_cached__sliding_block_cached__decode.s.ref").read().split("; Override launch")[0]

FL = 0x1000
YD = 0x400000
OP = 0x100000
SP = 0xC0000
EP = 0xD0000
QP = 0x100000
FP = 0x180000
WS_BYTES = 0x600000
STAMP_OFF = 0x4000000
L_Q = 0
QH = 272
L_M = 1280
L_L = 1408
L_F = 1536
L_O = 2048
L_R = L_O + 8*2112
LDS_BYTES = L_R + 4*2112
LOG2E = 0x3fb8aa3b
SCALE = 0x3db504f3
NS = 16

class G:
    def __init__(self, **kw):
        d = dict(padk=-1, pad=0, stamps=0, nt=1, pol="sc1", spin=1 << 16, pf=1, wo_early=0, qsleep=12, forcey=0, pretouch=0,
                 n0=8, qdepth=4, lsplit=1, osleep=0, fsleep=0, b4spin=0, fdelay=0, eta=1, edly=0, tx=0, rm=2, N=3, rot=1, lan=1, qpos=3, wj=31, pat='x0x11x', cw=3, up=99, wo1=0, wj2=32, wa=2, th1=8, th2=16, opos=3, pr=0, tlbs=0, tlbv=0, lean=1, xdirty=0, qwt=0, owt=0, xperm=0, b0late=0, ed=1, es=4, early=0, ldly=0, ssleep=8, ovl=1, pat2='', lup=99, wbl=0, wqr=1)
        d.update(kw)
        self.__dict__.update(d)
        self.L = []
        self.nt = " nt" if self.nt else ""
        self.pol = " " + self.pol
    def A(self, s): self.L.append("    " + s)
    def lab(self, s): self.L.append(s + ":")
    def nop(self, n):
        while n > 0:
            k = min(n, 16); self.A(f"s_nop {k-1}"); n -= k
    def stamp(self, i):
        if self.padk == i: self.A("s_memrealtime s[92:93]")
        if self.stamps: self.A(f"s_memrealtime s[{64+2*i}:{65+2*i}]")
    def stamp_out(self):
        if not self.stamps: return
        A = self.A
        A("s_waitcnt lgkmcnt(0)")
        A("s_mul_i32 s60, s2, 12"); A("s_add_u32 s60, s60, s33"); A(f"s_mul_i32 s60, s60, {NS*8}")
        A(f"s_add_u32 s60, s60, {STAMP_OFF}")
        A("s_add_u32 s62, s12, s60"); A("s_addc_u32 s63, s13, 0")
        A("s_mov_b64 exec, 1"); A("v_mov_b32 v4, 0")
        for i in range(NS):
            A(f"v_mov_b32 v2, s{64+2*i}"); A(f"v_mov_b32 v3, s{65+2*i}")
            A(f"global_store_dwordx2 v4, v[2:3], s[62:63] offset:{i*8}"); A("s_nop 1")
    def v4(self, r): return f"v[{r}:{r+3}]"
    def v2(self, r): return f"v[{r}:{r+1}]"
    def perms(self, dst, src, pairs=(0, 1, 2, 3)):
        for q in pairs:
            for w in range(4):
                for hh in range(2):
                    j = 2*w + hh
                    self.A(f"v_perm_b32 v{dst+4*j+q}, v{src+4*(2*q+1)+w}, v{src+4*(2*q)+w}, s{36+hh}")
    def allred_rows(self, op, v, t):
        A = self.A
        A(f"v_mov_b32 v{t}, v{v}"); self.nop(2)
        A(f"v_permlane32_swap_b32 v{v}, v{t}")
        A(f"{op} v{v}, v{v}, v{t}")
        A(f"v_mov_b32 v{t}, v{v}"); self.nop(2)
        A(f"v_permlane16_swap_b32 v{v}, v{t}")
        A(f"{op} v{v}, v{v}, v{t}")
    def dpp(self, op, d, a, b, ctl):
        self.A(f"{op}_dpp v{d}, v{a}, v{b} {ctl} row_mask:0xf bank_mask:0xf")
    def poll(self, name, loads, tagregs, acc, first_issued=False, sleep=0, tv=None):
        A = self.A
        A(f"s_mov_b32 s38, {self.spin}")
        if first_issued: A(f"s_branch L_chk_{name}")
        elif sleep: A(f"s_branch L_ld_{name}")
        self.lab(f"L_poll_{name}")
        if sleep: A(f"s_sleep {sleep}")
        self.lab(f"L_ld_{name}")
        for l in loads: A(l)
        self.lab(f"L_chk_{name}")
        A("s_waitcnt vmcnt(0)")
        if tv is None:
            A(f"v_xor_b32 v{acc}, s34, v{tagregs[0]}")
            for r in tagregs[1:]:
                A(f"v_bitop3_b32 v{acc}, v{r}, s34, v{acc} bitop3:0xbe")
        else: self.untag(tagregs[0], tv, acc)
        A("s_sub_u32 s38, s38, 1")
        A(f"v_cmp_ne_u32 vcc, 0, v{acc}")
        A("s_cselect_b64 s[50:51], 0, -1")
        if tv is not None: A("s_wqm_b64 vcc, vcc")
        A("s_and_b64 exec, vcc, s[50:51]")
        A(f"s_cbranch_scc1 L_poll_{name}")
        A("s_mov_b64 exec, -1")
    def untag(self, r0, tv, acc):
        A = self.A
        for r in range(r0, r0 + 8): A(f"v_xor_b32 v{r}, v{tv + (r & 1)}, v{r}")
        A(f"v_or3_b32 v{acc}, v{r0}, v{r0+1}, v{r0+2}"); A(f"v_or3_b32 v{acc+1}, v{r0+3}, v{r0+4}, v{r0+5}")
        A(f"v_or3_b32 v{acc}, v{acc}, v{r0+6}, v{r0+7}")
        A(f"v_bitop3_b32 v{acc}, v{acc}, v{acc+1}, s11 bitop3:0xa8")
    def ldsspin(self, name, off, target, reads, sleep=1):
        A = self.A
        A(f"s_mov_b32 s38, {self.spin * 16}")
        if sleep: A(f"s_branch L_spl_{name}")
        self.lab(f"L_sp_{name}")
        if sleep: A(f"s_sleep {sleep}")
        self.lab(f"L_spl_{name}")
        A(f"ds_read_b32 v2, {self.vz} offset:{L_F+off}")
        for r in reads: A(r)
        A("s_sub_u32 s38, s38, 1")
        A("s_cselect_b32 s3, 0, -1")
        A("s_waitcnt lgkmcnt(0)")
        A("v_readfirstlane_b32 s40, v2")
        A("s_orn2_b32 s40, s40, s3")
        A(f"s_cmp_lt_u32 s40, {target}")
        A(f"s_cbranch_scc1 L_sp_{name}")
    def cnt(self, off, one):
        A = self.A
        A("s_mov_b64 exec, 1")
        A(f"ds_add_u32 {self.vz}, {one} offset:{L_F+off}")
    def vissue(self, VB, p):
        for T in (2*p, 2*p+1):
            for e in range(4):
                self.A(f"buffer_load_dwordx4 {self.v4(VB+16*T+4*e)}, v5, s[8:11], s35 offen offset:{256*e}{self.nt}")
            if T < 3: self.A("s_add_u32 s35, s35, 16384")
    def mspin(self, name, B, d):
        A = self.A
        self.ldsspin(name, 8, 8, [f"ds_read_b128 {self.v4(B)}, v6 offset:{L_M}", f"ds_read_b128 {self.v4(B+4)}, v6 offset:{L_M+16}"], sleep=2)
        A(f"v_max3_f32 v{B}, v{B}, v{B+1}, v{B+2}")
        A(f"v_max3_f32 v{B+3}, v{B+3}, v{B+4}, v{B+5}")
        A(f"v_max3_f32 v{B}, v{B}, v{B+6}, v{B+7}")
        A(f"v_max_f32 v{d}, v{B}, v{B+3}")

    def gen(self):
        A = self.A; nt = self.nt; pol = self.pol; v4 = self.v4; v2 = self.v2
        OP = 0x100000 if self.ovl else 0x40000
        L = self.L
        L.append(HDR.rstrip("\n"))
        L.append(f"; @launch grid=(256,1,1) block=(768,1,1) lds={LDS_BYTES}")
        L.append('.amdgcn_target "amdgcn-amd-amdhsa--gfx950"')
        L.append(".text"); L.append(f".globl {KN}"); L.append(".p2align 12"); L.append(".p2align 8"); L.append(f".type {KN},@function"); L.append(f"{KN}:")
        self.stamp(0)
        if self.pad: A("s_memrealtime s[90:91]")
        if self.stamps:
            for i in range(1, NS): A(f"s_mov_b64 s[{64+2*i}:{65+2*i}], 0")
        if self.xperm == 1:
            A("s_lshr_b32 s3, s2, 3"); A("s_and_b32 s29, s2, 7"); A("s_lshl_b32 s29, s29, 5"); A("s_or_b32 s2, s3, s29")
        if self.xperm == 2:
            A("s_xor_b32 s3, s2, 1"); A("s_and_b32 s29, s2, 0xf8"); A("s_cmp_eq_u32 s29, 0x48"); A("s_cselect_b32 s2, s3, s2")
        A("s_bfe_u32 s29, s2, 0x10002")
        A("s_mul_i32 s3, s29, 40")
        A("s_cmp_ge_u32 s2, 256"); A("s_cbranch_scc1 L_end")
        A("s_load_dwordx2 s[16:17], s[0:1], s3 offset:24")
        A("s_load_dwordx2 s[24:25], s[0:1], 0")
        A("s_load_dwordx2 s[4:5], s[0:1], s3 offset:8")
        A("s_load_dwordx2 s[8:9], s[0:1], s3 offset:16")
        A("s_load_dwordx2 s[12:13], s[0:1], 104")
        A("v_lshrrev_b32 v1, 6, v0")
        A("s_lshr_b32 s30, s2, 3")
        if self.tx: A(f"s_xor_b32 s30, s30, {self.tx}")
        A("v_readfirstlane_b32 s33, v1")
        A("s_and_b32 s28, s2, 3"); A("s_lshl_b32 s28, s28, 1"); A("s_lshr_b32 s31, s30, 4"); A("s_or_b32 s28, s28, s31")
        A("s_bfe_u32 s31, s30, 0x20002"); A("s_and_b32 s32, s30, 3")
        A("v_and_b32 v0, 63, v0")
        A("v_and_b32 v3, 15, v0")
        A("v_lshrrev_b32 v4, 4, v0")
        A("v_bfe_u32 v5, v0, 2, 2")
        A("v_and_b32 v6, 3, v0")
        A("s_cmp_ge_u32 s33, 4"); A("s_cbranch_scc1 L_S")
        WB, PB, DB, XB = 8, 40, 72, 104
        A("s_setprio 3")
        if self.pf:
            A("s_getpc_b64 s[42:43]")
            if self.lean:
                A("s_lshl_b32 s3, s33, 11"); A("v_lshl_add_u32 v12, v3, 7, s3"); A("s_mov_b64 exec, 0xffff")
            else: A("v_lshlrev_b32 v12, 7, v0")
            A("v_min_u32 v12, L_last-L_pfbase, v12")
            self.lab("L_pfbase")
            A("global_load_dword v108, v12, s[42:43]")
            if self.lean: A("s_mov_b64 exec, -1"); A("s_mul_i32 s3, s29, 40")
        A("s_mov_b32 s18, 0x400000"); A("s_mov_b32 s19, 0x20000")
        A("s_mov_b32 s26, 4096"); A("s_mov_b32 s27, 0x20000")
        A("v_lshlrev_b32 v1, 16, v4"); A("v_lshl_add_u32 v1, v3, 4, v1")
        if self.wqr:
            A("v_lshl_add_u32 v1, v4, 13, v1")
            for e in range(1, self.cw): A(f"v_xor_b32 v{64+e}, {e << 13}, v1")
        def wql(e):
            if self.wqr:
                if e >= self.cw: A(f"v_xor_b32 v{64+e}, {e << 13}, v1")
                A(f"buffer_load_dwordx4 {v4(WB+4*e)}, v{64+e if e else 1}, s[16:19], s35 offen{nt}")
            else:
                A(f"buffer_load_dwordx4 {v4(WB+4*e)}, v1, s[16:19], s35 offen{nt}")
                if e < 7: A("s_add_u32 s35, s35, 8192")
        A("v_lshlrev_b32 v2, 10, v5"); A("v_lshl_add_u32 v2, v4, 4, v2")
        A("s_lshl_b32 s44, s28, 2"); A("s_add_u32 s44, s44, s31")
        A("s_lshl_b32 s39, s32, 2"); A("s_add_u32 s39, s39, s33")
        A("s_lshl_b32 s35, s39, 18"); A("s_lshl_b32 s45, s44, 8"); A("s_add_u32 s35, s35, s45")
        A("s_lshl_b32 s39, s39, 6")
        A("s_waitcnt lgkmcnt(0)")
        self.stamp(1)
        A(f"buffer_load_dwordx4 {v4(136 if self.wqr else XB)}, v2, s[24:27], s39 offen")
        for e in range(self.cw): wql(e)
        A("v_mov_b32 v112, 0"); A("v_mov_b32 v113, 0"); A("v_mov_b32 v114, 0"); A("v_mov_b32 v115, 0")
        A(f"ds_write_b128 v112, v[112:115] offset:{L_F}")
        A(f"ds_write_b128 v112, v[112:115] offset:{L_F+16}")
        A("s_waitcnt lgkmcnt(0)")
        A("s_barrier")
        A("s_branch L_C")
        self.lab("L_S")
        KB, VB, QB, SB = 8, 72, 136, 152
        self.vz = "v7"
        esh = 10 if self.lan else 8
        A("s_setprio 1")
        A("s_mov_b32 s6, 0x4000000"); A("s_mov_b32 s7, 0x20000")
        A("s_mov_b32 s10, 0x4000000"); A("s_mov_b32 s11, 0x20000")
        A("s_lshl_b32 s35, s31, 3"); A("s_add_u32 s35, s35, s28"); A("s_lshl_b32 s35, s35, 4"); A("s_add_u32 s35, s35, s32")
        A("s_lshl_b32 s35, s35, 5"); A("s_add_u32 s35, s35, s33")
        A("s_lshl_b32 s35, s35, 12"); A(f"s_add_u32 s35, s35, {0x180000 - 4*4096}")
        if self.rot & 1: A(f"s_lshl_b32 s3, s32, {esh}"); A("s_add_u32 s35, s35, s3")
        if self.rot & 2: A("s_and_b32 s3, s2, 7"); A("s_lshl_b32 s3, s3, 12"); A("s_xor_b32 s35, s35, s3")
        A(f"v_lshlrev_b32 v1, {18-esh}, v5"); A("v_lshl_add_u32 v1, v4, 6, v1"); A("v_lshl_add_u32 v1, v6, 4, v1")
        A(f"v_mul_u32_u24 v2, {QH}, v6"); A("v_lshl_add_u32 v2, v4, 6, v2"); A(f"v_lshl_add_u32 v{QB+12}, v5, 4, v2")
        A("v_lshlrev_b32 v5, 4, v3"); A(f"v_lshl_add_u32 v5, v4, {18-esh}, v5")
        if self.pr == 1:
            A("s_cmp_lt_u32 s33, 8"); A("s_cbranch_scc1 L_pr1"); A("s_setprio 2"); self.lab("L_pr1")
        if not self.b0late: A("s_barrier")
        A("s_waitcnt lgkmcnt(0)")
        self.stamp(1)
        st = dict(i=0)
        def trig(i):
            if i in (self.wj, self.wj2):
                self.cnt(24, f"v{QB+15}"); A("s_mov_b64 exec, -1")
        def nxt(k=1):
            for _ in range(k):
                i = st["i"]; st["i"] += 1
                n = self.N + (1 if i >= self.up else 0)
                wt = lambda p: (None if p[i] == "x" else int(p[i])) if i < len(p) else (n - 1 if i >= n else None)
                w1 = wt(self.pat); w2 = wt(self.pat2) if self.pat2 else w1
                if i == self.lup: w2 = n
                if w1 == w2:
                    if w1 is not None: A(f"s_waitcnt vmcnt({w1})")
                else:
                    A("s_cmp_ge_u32 s33, 8"); A(f"s_cbranch_scc1 L_p{i}")
                    if w1 is not None: A(f"s_waitcnt vmcnt({w1})")
                    if w2 is not None and (w1 is None or w2 < w1):
                        A(f"s_branch L_q{i}"); self.lab(f"L_p{i}"); A(f"s_waitcnt vmcnt({w2})"); self.lab(f"L_q{i}")
                    else:
                        self.lab(f"L_p{i}")
                        if w2 is not None: A(f"s_waitcnt vmcnt({w2})")
                if self.pr == 2: A(f"s_setprio {2 - i % 3}")
                if self.pr == 3: A(f"s_setprio {1 - i % 2}")
                T, e = (i >> 2) & 3, i & 3
                so = "s35"
                if T or e: A(f"s_xor_b32 s39, s35, {T*32768 + (e << esh)}"); so = "s39"
                if i < 16: A(f"buffer_load_dwordx4 {v4(KB+4*i)}, v1, s[4:7], {so} offen{nt}")
                else: A(f"buffer_load_dwordx4 {v4(VB+4*(i-16))}, v5, s[8:11], {so} offen{nt}")
                trig(i)
                if self.xdirty and i == 8:
                    A("s_mov_b32 s14, 0x4000000")
                    A("s_lshl_b32 s46, s2, 3"); A("s_add_u32 s46, s46, s33"); A(f"s_mul_i32 s46, s46, {self.xdirty*1024}"); A("s_add_u32 s46, s46, 0x800000")
                    A(f"v_lshlrev_b32 v{SB}, 4, v0")
                    for k in range(self.xdirty): A(f"buffer_store_dwordx4 v[0:3], v{SB}, s[12:15], s46 offen offset:{1024*k}")
        def upto(j):
            while st["i"] <= j: nxt()
        nxt(len(self.pat) - len(self.pat.lstrip("x")) if self.pat else self.N)
        A("s_load_dword s34, s[12:13], 0")
        A(f"s_mov_b32 s14, {WS_BYTES}"); A("s_mov_b32 s15, 0x20000")
        A("s_mov_b32 s36, 0x05040100"); A("s_mov_b32 s37, 0x07060302")
        A("v_mov_b32 v7, 0")
        A(f"v_mov_b32 v{QB+15}, 1")
        A("v_lshlrev_b32 v6, 5, v6"); A("s_lshl_b32 s3, s33, 2"); A("s_sub_u32 s3, s3, 16"); A("v_add_u32 v3, s3, v6")
        A(f"v_and_b32 v{QB+13}, 3, v0"); A(f"v_mul_u32_u24 v{QB+13}, 528, v{QB+13}"); A(f"v_lshl_add_u32 v{QB+13}, v4, 7, v{QB+13}")
        A("s_mul_i32 s3, s33, 2112"); A(f"s_add_u32 s3, s3, {L_O - 4*2112}"); A(f"v_add_u32 v{QB+13}, s3, v{QB+13}")
        A("s_mov_b32 s42, 0x000f000f"); A("s_mov_b32 s43, 0x000f000f")
        if self.b0late: A("s_barrier")
        upto(15)
        self.stamp(2)
        upto(15 + self.qpos)
        A(f"s_waitcnt vmcnt({self.qpos})")
        self.stamp(3)
        self.ldsspin("q", 4, 4, [f"ds_read_b128 {v4(QB)}, v{QB+12} offset:{L_Q}"], sleep=4)
        self.stamp(4)
        Dj = lambda j: (QB + 4 + 4*j) if j < 2 else (KB + 4*(j-2))
        for j in range(16):
            A(f"v_mfma_f32_16x16x32_bf16 {v4(Dj(j))}, {v4(KB+4*j)}, {v4(QB)}, 0")
        A(f"s_mov_b32 s40, {SCALE}"); A(f"s_mov_b32 s41, {LOG2E}")
        A("s_mul_i32 s34, s34, 1664525"); A("s_add_u32 s34, s34, 1013904223")
        nxt()
        for j in range(16): self.dpp("v_add_f32", SB+j, Dj(j)+1, Dj(j), "row_ror:12")
        for j in range(16): self.dpp("v_add_f32", SB+j, Dj(j)+2, SB+j, "row_ror:8")
        for j in range(16): self.dpp("v_add_f32", SB+j, Dj(j)+3, SB+j, "row_ror:4")
        for i in range(8):
            A(f"v_cvt_pk_bf16_f32 v{QB+i}, v{SB+2*i}, v{SB+2*i+1}")
        for i in range(8):
            A(f"v_lshlrev_b32 v{SB+2*i}, 16, v{QB+i}"); A(f"v_and_b32 v{SB+2*i+1}, 0xffff0000, v{QB+i}")
        nxt()
        for i in range(8):
            A(f"v_pk_mul_f32 {v2(SB+2*i)}, {v2(SB+2*i)}, s[40:41] op_sel_hi:[1,0]")
        for i in range(8):
            A(f"v_cvt_pk_bf16_f32 v{QB+i}, v{SB+2*i}, v{SB+2*i+1}")
        for i in range(8):
            A(f"v_lshlrev_b32 v{SB+2*i}, 16, v{QB+i}"); A(f"v_and_b32 v{SB+2*i+1}, 0xffff0000, v{QB+i}")
        A(f"v_max3_f32 v1, v{SB}, v{SB+1}, v{SB+2}")
        A(f"v_max3_f32 v2, v{SB+3}, v{SB+4}, v{SB+5}")
        A(f"v_max3_f32 v1, v1, v{SB+6}, v{SB+7}")
        A(f"v_max3_f32 v2, v2, v{SB+8}, v{SB+9}")
        A(f"v_max3_f32 v1, v1, v{SB+10}, v{SB+11}")
        A(f"v_max3_f32 v2, v2, v{SB+12}, v{SB+13}")
        A(f"v_max3_f32 v1, v1, v{SB+14}, v{SB+15}")
        A("v_max_f32 v1, v1, v2")
        self.allred_rows("v_max_f32", 1, 2)
        A("v_mul_f32 v1, s41, v1")
        A("s_mov_b64 exec, 15")
        A(f"ds_write_b32 v3, v1 offset:{L_M}")
        self.cnt(8, f"v{QB+15}")
        A("s_mov_b64 exec, -1")
        self.stamp(5)
        nxt()
        self.stamp(6)
        self.mspin("m", QB, 1)
        for i in range(16):
            A(f"v_fma_f32 v{SB+i}, v{SB+i}, s41, -v1")
        for i in range(16):
            A(f"v_exp_f32 v{SB+i}, v{SB+i}")
        nxt()
        for i in range(8):
            A(f"v_cvt_pk_bf16_f32 v{QB+i}, v{SB+2*i}, v{SB+2*i+1}")
        for i in range(4):
            A(f"v_pk_add_f32 {v2(SB+2*i)}, {v2(SB+2*i)}, {v2(SB+8+2*i)}")
        for i in range(2):
            A(f"v_pk_add_f32 {v2(SB+2*i)}, {v2(SB+2*i)}, {v2(SB+4+2*i)}")
        A(f"v_pk_add_f32 {v2(SB)}, {v2(SB)}, {v2(SB+2)}")
        A(f"v_add_f32 v{SB+8}, v{SB}, v{SB+1}")
        self.allred_rows("v_add_f32", SB+8, SB)
        OB, P0, P1 = 8, 40, 72
        A("s_mov_b64 exec, 15")
        A(f"ds_write_b32 v3, v{SB+8} offset:{L_L}")
        self.cnt(20, f"v{QB+15}")
        A("s_mov_b64 exec, -1")
        self.stamp(7)
        def need(j):
            upto(min(31, j + self.N + (1 if j + self.N + 1 >= self.up else 0)))
            A(f"s_waitcnt vmcnt({st['i'] - 1 - j})")
        need(23)
        self.perms(P0, VB, pairs=(0, 1))
        if st["i"] < 32: nxt()
        self.perms(P0, VB, pairs=(2, 3))
        for j in range(8):
            A(f"v_mfma_f32_16x16x32_bf16 {v4(OB+4*j)}, {v4(P0+4*j)}, {v4(QB)}, 0")
        self.stamp(8)
        need(25)
        self.perms(P1, VB+32, pairs=(0,))
        A("s_cmp_ge_u32 s33, 8"); A("s_cbranch_scc1 L_S_nr")
        A("s_mul_i32 s3, s33, 528"); A(f"s_add_u32 s3, s3, {L_O - 4*528}")
        A(f"v_lshl_add_u32 v{SB+9}, v0, 3, s3")
        A("s_lshl_b32 s3, s33, 5"); A("s_sub_u32 s3, s3, 128"); A(f"v_mov_b32 v{SB+10}, s3")
        A("s_lshl_b32 s3, s29, 3"); A("s_add_u32 s3, s3, s28"); A("s_lshl_b32 s3, s3, 2"); A("s_add_u32 s3, s3, s33"); A("s_sub_u32 s3, s3, 4")
        A("s_lshl_b32 s3, s3, 2"); A("s_add_u32 s3, s3, s32"); A("s_lshl_b32 s3, s3, 2"); A("s_add_u32 s3, s3, s31")
        A("s_lshl_b32 s46, s3, 9"); A(f"s_add_u32 s46, s46, {OP}")
        A(f"v_lshlrev_b32 v{SB+11}, 3, v0")
        A(f"v_mov_b32 v{SB+13}, s34")
        self.ldsspin("l", 20, 8, [f"ds_read_b128 {v4(SB)}, v{SB+10} offset:{L_L}", f"ds_read_b128 {v4(SB+4)}, v{SB+10} offset:{L_L+16}",
                                  f"ds_read_b32 v1, v7 offset:{L_F+12}"], sleep=2)
        A("v_readfirstlane_b32 s45, v1")
        A(f"v_pk_add_f32 {v2(SB)}, {v2(SB)}, {v2(SB+4)}"); A(f"v_pk_add_f32 {v2(SB+2)}, {v2(SB+2)}, {v2(SB+6)}")
        A(f"v_pk_add_f32 {v2(SB)}, {v2(SB)}, {v2(SB+2)}")
        A(f"v_add_f32 v{SB+14}, v{SB}, v{SB+1}")
        A(f"v_rcp_f32 v{SB+14}, v{SB+14}")
        self.lab("L_S_nr")
        for q in range(1, 4):
            if q == 3 and 33 in (self.wj, self.wj2):
                need(30); trig(33)
            need(25 + 2*q)
            if q == 2: trig(32)
            if q == 3: trig(34); A("s_setprio 3"); self.stamp(9)
            self.perms(P1, VB+32, pairs=(q,))
        for j in range(8):
            A(f"v_mfma_f32_16x16x32_bf16 {v4(OB+4*j)}, {v4(P1+4*j)}, {v4(QB+4)}, {v4(OB+4*j)}")
        A("s_mov_b64 exec, s[42:43]")
        A("s_cmp_ge_u32 s33, 8")
        for j in range(8):
            A(f"ds_write_b128 v{QB+13}, {v4(OB+4*j)} offset:{16*j}")
        A("s_mov_b64 exec, -1")
        A("s_waitcnt lgkmcnt(0)")
        A("s_barrier")
        self.stamp(10)
        A("s_cbranch_scc1 L_S_x")
        for w in range(8): A(f"ds_read_b64 {v2(8+2*w)}, v{SB+9} offset:{2112*w}")
        A("s_waitcnt lgkmcnt(0)")
        for w in (0, 1, 2, 3):
            A(f"v_pk_add_f32 {v2(8+2*w)}, {v2(8+2*w)}, {v2(16+2*w)}")
        A("v_pk_add_f32 v[8:9], v[8:9], v[12:13]"); A("v_pk_add_f32 v[10:11], v[10:11], v[14:15]")
        A("s_cmp_lg_u32 s45, 0")
        A("v_pk_add_f32 v[8:9], v[8:9], v[10:11]")
        A(f"v_pk_mul_f32 v[8:9], v[8:9], {v2(SB+14)} op_sel_hi:[1,0]")
        A(f"v_cvt_pk_bf16_f32 v{SB+12}, v8, v9")
        A("s_cbranch_scc1 L_S_y2")
        A(f"buffer_store_dwordx2 {v2(SB+12)}, v{SB+11}, s[12:15], s46 offen" + ["", " sc1", " nt", " sc0 sc1"][self.owt])
        self.lab("L_S_x")
        self.stamp(11)
        if self.stamps: A("s_sleep 127"); A("s_sleep 127")
        self.stamp_out()
        A("s_endpgm")
        self.lab("L_C")
        self.vz = "v110"
        A("s_load_dword s34, s[12:13], 0")
        A("s_load_dwordx2 s[20:21], s[0:1], s3 offset:32")
        A("s_load_dwordx2 s[52:53], s[0:1], 80")
        A("s_load_dwordx2 s[56:57], s[0:1], 88")
        A(f"s_mov_b32 s14, {WS_BYTES}"); A("s_mov_b32 s15, 0x20000")
        A("s_mov_b32 s22, 0x400000"); A("s_mov_b32 s23, 0x20000")
        A("s_mov_b32 s36, 0x05040100"); A("s_mov_b32 s37, 0x07060302")
        A("s_mov_b32 s54, 1024"); A("s_mov_b32 s55, 0x20000")
        A("s_mov_b32 s58, 4096"); A("s_mov_b32 s59, 0x20000")
        A("s_lshl_b32 s45, s29, 1"); A("s_lshr_b32 s3, s28, 2"); A("s_add_u32 s45, s45, s3")
        A("v_lshlrev_b32 v109, 4, v0")
        A("s_lshl_b32 s3, s29, 5"); A("s_add_u32 s47, s44, s3")
        A("v_mov_b32 v110, 0"); A("v_mov_b32 v111, 1"); A("v_mov_b32 v133, 1024")
        A("v_lshlrev_b32 v127, 3, v0")
        A("v_mul_u32_u24 v7, 528, v5"); A("v_lshl_add_u32 v7, v4, 7, v7")
        A("s_mul_i32 s3, s33, 2112"); A(f"s_add_u32 s3, s3, {L_R}"); A("v_add_u32 v7, s3, v7")
        A("v_lshlrev_b32 v122, 7, v4"); A("v_lshl_add_u32 v122, v6, 5, v122"); A("v_lshl_add_u32 v122, v5, 2, v122")
        A("s_mul_i32 s3, s33, 528"); A(f"s_add_u32 s3, s3, {L_R}"); A("v_add_u32 v122, s3, v122")
        A("v_add_u32 v123, 2112, v122"); A("v_add_u32 v124, 4224, v122"); A("v_add_u32 v125, 6336, v122")
        A("s_lshl_b32 s46, s47, 2"); A("s_add_u32 s46, s46, s32"); A("s_lshl_b32 s46, s46, 2"); A("s_add_u32 s46, s46, s33")
        A("s_lshl_b32 s46, s46, 9"); A(f"s_add_u32 s46, s46, {QP}")
        A("s_lshl_b32 s4, s29, 3"); A("s_add_u32 s4, s4, s28"); A("s_lshl_b32 s4, s4, 2"); A("s_add_u32 s4, s4, s33")
        A("s_lshl_b32 s4, s4, 2"); A("s_add_u32 s4, s4, s31"); A("s_lshl_b32 s4, s4, 2"); A("s_add_u32 s4, s4, s32")
        A("s_lshl_b32 s4, s4, 3"); A(f"s_add_u32 s4, s4, {SP}")
        if self.rm >= 0:
            A("s_sub_u32 s3, s32, s31"); A("s_add_u32 s44, s44, s3"); A("s_add_u32 s47, s47, s3")
            A(f"s_add_u32 s32, s31, {self.rm}"); A("s_and_b32 s32, s32, 3")
        A("s_mov_b32 s42, 0x11111111"); A("s_mov_b32 s43, 0x11111111")
        A("s_mov_b32 s41, 0")
        A("s_getreg_b32 s30, hwreg(HW_REG_XCC_ID, 0, 4)")
        if self.forcey: A("s_lshr_b32 s30, s2, 3"); A("s_and_b32 s30, s30, 1")
        A("s_lshl_b32 s3, s45, 10")
        A("s_waitcnt lgkmcnt(0)")
        if self.lean: A("s_cmp_eq_u32 s33, 0"); A("s_cselect_b64 exec, -1, 1")
        A("buffer_load_dwordx4 v[112:115], v109, s[24:27], s3 offen")
        A("buffer_load_dwordx4 v[116:119], v109, s[52:55], 0 offen")
        if self.lean: A("s_mov_b64 exec, -1")
        for e in range(self.cw, 8):
            A(f"s_waitcnt vmcnt({self.cw-1 + (2 if e < 2*self.cw else 0)})")
            wql(e)
        if self.wqr:
            A("s_mov_b32 s3, 0x02020202"); A("v_mul_lo_u32 v140, v4, s3"); A("v_xor_b32 v140, 0x03020100, v140")
            for q in range(4): A(f"v_perm_b32 v{XB+q}, v{136 + (q ^ 1)}, v{136 + q}, v140")
        A("s_mul_i32 s34, s34, 1664525"); A("s_add_u32 s34, s34, 1013904223")
        A("v_mov_b32 v129, s34")
        A("s_and_b32 s3, s34, -16"); A("s_or_b32 s30, s30, s3")
        A("v_and_b32 v160, 1, v0"); A("v_lshlrev_b32 v160, 4, v160")
        A("v_lshrrev_b32 v166, v160, s30"); A("v_lshrrev_b32 v160, v160, s34")
        A("v_bfe_u32 v167, v166, 8, 8"); A("v_bfe_u32 v161, v160, 8, 8")
        A("v_and_b32 v166, 0xff, v166"); A("v_and_b32 v160, 0xff, v160")
        A("s_movk_i32 s11, 0xff"); A("s_and_b32 s30, s30, 0xffff"); A("s_mov_b32 s10, 0x0c0c0400")
        SG = 136
        CF = 144
        OG = 152
        ol = [f"buffer_load_dwordx2 {v2(OG+2*s)}, v1, s[12:15], s{39 if s < 2 else 48} offen offset:{2048*(s&1)}{pol}" for s in range(4)]
        stl = [f"buffer_load_dwordx4 {v4(SG+4*s)}, v57, s[12:15], s35 offen offset:{16*s}{pol}" for s in range(2)]
        self.lab("L_tile")
        for q in range(3):
            A(f"s_waitcnt vmcnt({6-2*q})")
            self.perms(PB, WB, pairs=(q,))
        A("s_cmp_eq_u32 s41, 0"); A("s_cbranch_scc0 L_t1")
        A("s_waitcnt vmcnt(0)")
        self.perms(PB, WB, pairs=(3,))
        self.stamp(2); A("s_branch L_mm")
        self.lab("L_t1")
        for l in ol: A(l)
        A(f"s_mov_b32 s38, {self.spin}")
        A("s_waitcnt vmcnt(4)")
        self.perms(PB, WB, pairs=(3,))
        self.stamp(7)
        A("s_branch L_og")
        self.lab("L_ogr")
        if self.osleep: A(f"s_sleep {self.osleep}")
        for l in ol: A(l)
        self.lab("L_og")
        A("s_waitcnt vmcnt(0)")
        A(f"v_xor_b32 v20, s34, v{OG+1}")
        for s in range(1, 4): A(f"v_bitop3_b32 v20, v{OG+1+2*s}, s34, v20 bitop3:0xbe")
        A("s_sub_u32 s38, s38, 1")
        A("v_cmp_ne_u32 vcc, 0, v20")
        A("s_cbranch_scc1 L_ogd")
        A("s_cbranch_vccnz L_ogr")
        self.lab("L_ogd")
        for s in range(4):
            A(f"v_lshlrev_b32 v{24+2*s}, 16, v{OG+2*s}"); A(f"v_and_b32 v{25+2*s}, 0xffff0000, v{OG+2*s}")
        A("s_cmp_lg_u32 s49, 0"); A("s_cbranch_scc1 L_ogn")
        A("s_mov_b64 exec, 1")
        A(f"buffer_store_dword v129, v135, s[12:15], 0 offen{pol}")
        A("s_mov_b64 exec, -1")
        self.lab("L_ogn")
        self.stamp(8)
        A(f"v_pk_mul_f32 v[24:25], v[24:25], {v2(CF)} op_sel_hi:[1,0]")
        A(f"v_pk_mul_f32 v[28:29], v[28:29], {v2(CF+4)} op_sel_hi:[1,0]")
        A(f"v_pk_fma_f32 v[24:25], v[26:27], {v2(CF+2)}, v[24:25] op_sel_hi:[1,0,1]")
        A(f"v_pk_fma_f32 v[28:29], v[30:31], {v2(CF+6)}, v[28:29] op_sel_hi:[1,0,1]")
        A(f"v_pk_add_f32 v[24:25], v[24:25], v[28:29]")
        A("v_cvt_pk_bf16_f32 v24, v24, v25"); self.nop(2)
        for q in range(4):
            A(f"v_mov_b32_dpp v{XB+q}, v24 quad_perm:[{q},{q},{q},{q}] row_mask:0xf bank_mask:0xf")
        self.nop(2)
        self.lab("L_mm")
        for j in range(8):
            A(f"v_mfma_f32_16x16x32_bf16 {v4(DB+4*j)}, {v4(PB+4*j)}, {v4(XB)}, 0")
        A("s_mov_b64 exec, s[42:43]")
        A("s_cmp_eq_u32 s41, 0")
        for j in range(8):
            A(f"ds_write_b128 v7, {v4(DB+4*j)} offset:{16*j}")
        A("s_cbranch_scc0 L_fin")
        self.cnt(0, "v111")
        A("s_mov_b64 exec, -1")
        rd = [f"ds_read2_b32 {v2(12+2*i)}, v{122+i} offset0:0 offset1:4" for i in range(4)]
        self.ldsspin("c", 0, 4, rd, sleep=0)
        A("v_pk_add_f32 v[12:13], v[12:13], v[14:15]"); A("v_pk_add_f32 v[16:17], v[16:17], v[18:19]")
        A("v_pk_add_f32 v[12:13], v[12:13], v[16:17]")
        A("v_bfi_b32 v164, s11, v166, v12"); A("v_bfi_b32 v165, s11, v167, v13")
        A("buffer_store_dwordx2 v[164:165], v127, s[12:15], s46 offen" + ["", " sc1", " nt", " sc0 sc1"][self.qwt])
        self.stamp(3)
        if self.pretouch:
            A("s_lshl_b32 s3, s32, 2"); A("s_add_u32 s3, s3, s33"); A("s_lshl_b32 s3, s3, 9")
            A("s_lshl_b32 s40, s47, 13"); A("s_add_u32 s3, s3, s40"); A(f"s_add_u32 s3, s3, {OP}")
            A("s_or_b32 s40, s32, s33"); A("s_cbranch_scc1 L_pt")
            A("s_lshl_b32 s40, s47, 7"); A(f"s_add_u32 s40, s40, {SP}")
            A("s_load_dword s49, s[12:13], s40")
            self.lab("L_pt")
            for i in range(4): A(f"s_load_dword s49, s[12:13], s3 offset:{128*i}")
        for i in range(4):
            A(f"v_lshlrev_b32 v{24+2*i}, 16, v{112+i}"); A(f"v_and_b32 v{25+2*i}, 0xffff0000, v{112+i}")
            A(f"v_lshlrev_b32 v{32+2*i}, 16, v{116+i}"); A(f"v_and_b32 v{33+2*i}, 0xffff0000, v{116+i}")
        for i in range(4):
            A(f"v_pk_mul_f32 {v2(24+2*i)}, {v2(24+2*i)}, {v2(32+2*i)}")
        for i in range(4):
            A(f"v_cvt_pk_bf16_f32 v{32+i}, v{24+2*i}, v{25+2*i}")
        for i in range(4):
            A(f"v_lshlrev_b32 v{24+2*i}, 16, v{32+i}"); A(f"v_and_b32 v{25+2*i}, 0xffff0000, v{32+i}")
        A("v_pk_add_f32 v[24:25], v[24:25], v[28:29]"); A("v_pk_add_f32 v[26:27], v[26:27], v[30:31]")
        A("v_pk_add_f32 v[24:25], v[24:25], v[26:27]"); A("v_add_f32 v8, v24, v25")
        for ror in (8, 4, 2, 1):
            self.nop(2); self.dpp("v_add_f32", 8, 8, 8, f"row_ror:{ror}")
        self.allred_rows("v_add_f32", 8, 9)
        A("v_cvt_pk_bf16_f32 v8, v8, v8"); A("v_lshlrev_b32 v8, 16, v8")
        A(f"v_mul_f32 v8, {0xbfb8aa3b}, v8"); A("v_exp_f32 v8, v8"); self.nop(1)
        A("v_add_f32 v8, 1.0, v8"); A("v_rcp_f32 v8, v8"); self.nop(1)
        A("v_cvt_pk_bf16_f32 v8, v8, v8"); A("v_lshlrev_b32 v8, 16, v8")
        A("v_sub_f32 v9, 1.0, v8"); A("v_cvt_pk_bf16_f32 v9, v9, v9"); A("v_lshlrev_b32 v9, 16, v9")
        A("v_cmp_gt_u32 vcc, 32, v0")
        A("s_lshl_b32 s39, s29, 3"); A("s_add_u32 s39, s39, s28"); A("s_lshl_b32 s39, s39, 2"); A("s_add_u32 s39, s39, s33")
        A("v_cndmask_b32 v120, v9, v8, vcc")
        A("s_lshl_b32 s39, s39, 4"); A("s_add_u32 s39, s39, s31"); A("s_lshl_b32 s39, s39, 9"); A(f"s_add_u32 s39, s39, {QP}")
        A("s_add_u32 s60, s39, 4096")
        A("s_mov_b32 s63, 0")
        A("v_mov_b32 v18, 0")
        A("v_lshlrev_b32 v19, 11, v6")
        A(f"s_mov_b32 s38, {self.n0}"); A(f"s_mov_b32 s62, {self.spin}")
        self.stamp(13)
        D = self.qdepth
        ld = lambda i: A(f"buffer_load_dwordx2 {v2(40+2*i)}, v19, s[12:15], s39 offen{pol}")
        qg = lambda vo: [f"buffer_load_dwordx2 {v2(24+2*i)}, {vo}, s[12:15], s{39 if i < 2 else 60} offen offset:{2048*(i&1)}{pol}" for i in range(4)]
        for i in range(D - 1):
            ld(i); A(f"s_sleep {self.qsleep}")
        self.lab("L_qf")
        for i in range(D):
            ld((i + D - 1) % D)
            A(f"s_waitcnt vmcnt({D-1})")
            A(f"v_perm_b32 v20, v{41+2*i}, v{40+2*i}, s10")
            A("v_cmp_ne_u32 vcc, s30, v20")
            A("s_cmp_eq_u64 vcc, 0"); A("s_cbranch_scc1 L_qfd")
        self.lab("L_qfr")
        A("s_sub_u32 s38, s38, 1")
        A("s_cbranch_scc0 L_qf")
        A("s_branch L_slow")
        self.lab("L_qfd")
        self.stamp(14)
        for l in qg("v127"): A(l)
        A(f"s_mul_i32 s3, s33, {QH}"); A("v_lshl_add_u32 v16, v0, 2, s3")
        A("v_lshlrev_b32 v1, 11, v4"); A("v_lshl_add_u32 v1, v3, 4, v1")
        A("s_lshl_b32 s48, s44, 17"); A("s_lshl_b32 s3, s33, 15"); A("s_add_u32 s48, s48, s3")
        A("s_lshl_b32 s3, s32, 8"); A("s_add_u32 s48, s48, s3")
        A("s_waitcnt vmcnt(0) lgkmcnt(0)")
        self.untag(24, 166, 8)
        A("v_cmp_ne_u32 vcc, 0, v8"); A("s_cmp_eq_u64 vcc, 0"); A("s_cbranch_scc0 L_qfr")
        self.lab("L_qok")
        A("v_pk_add_f32 v[24:25], v[24:25], v[26:27]"); A("v_pk_add_f32 v[28:29], v[28:29], v[30:31]")
        A("v_pk_add_f32 v[24:25], v[24:25], v[28:29]")
        A("v_cvt_pk_bf16_f32 v17, v24, v25")
        A(f"ds_write_b32 v16, v17 offset:{L_Q}")
        self.cnt(12, "v18")
        A(f"ds_add_u32 v110, v111 offset:{L_F+4}")
        A("s_mov_b64 exec, -1")
        self.stamp(4)
        self.lab("L_vd")
        A(f"ds_read_b32 v2, v110 offset:{L_F+4}")
        A(f"ds_read2_b32 v[134:135], v133 offset0:{(L_F+12)//4 - 256} offset1:{(L_F+16)//4 - 256}")
        A("s_waitcnt lgkmcnt(0)")
        A("v_readfirstlane_b32 s40, v2"); A("v_readfirstlane_b32 s3, v135"); A("v_readfirstlane_b32 s49, v134")
        A("s_andn2_b32 s3, s3, s63"); A("s_cbranch_scc1 L_puby2")
        A("s_cmp_ge_u32 s40, 4"); A("s_cbranch_scc1 L_vdd")
        A("s_sleep 2"); A("s_sub_u32 s62, s62, 1"); A("s_cbranch_scc0 L_vd")
        self.lab("L_vdd")
        A("s_lshl_b32 s3, s33, 5"); A("v_mov_b32 v56, s3")
        self.ldsspin("l2", 20, 8, [f"ds_read_b128 v[40:43], v56 offset:{L_M}", f"ds_read_b128 v[44:47], v56 offset:{L_M+16}",
                                   f"ds_read_b128 v[48:51], v56 offset:{L_L}", f"ds_read_b128 v[52:55], v56 offset:{L_L+16}"], sleep=4)
        A("v_max3_f32 v40, v40, v41, v42"); A("v_max3_f32 v43, v43, v44, v45"); A("v_max3_f32 v40, v40, v46, v47")
        A("v_pk_add_f32 v[48:49], v[48:49], v[52:53]"); A("v_pk_add_f32 v[50:51], v[50:51], v[54:55]")
        A("v_pk_add_f32 v[48:49], v[48:49], v[50:51]"); A("v_add_f32 v48, v48, v49")
        A("v_log_f32 v48, v48"); A("v_max_f32 v40, v40, v43")
        A("s_cmp_lg_u32 s49, 0")
        A("v_add_f32 v128, v40, v48")
        A("s_mov_b64 exec, 1")
        A("s_cbranch_scc1 L_S_y1")
        A("buffer_store_dwordx2 v[128:129], v110, s[12:15], s4 offen")
        self.lab("L_S_y1r")
        A("s_mov_b64 exec, -1")
        A("s_cmp_lg_u32 s49, 0"); A(f"s_cselect_b32 s49, {YD}, 0")
        A("s_lshl_b32 s35, s47, 7"); A(f"s_add_u32 s35, s35, {SP}"); A("s_add_u32 s35, s35, s49")
        A("v_lshlrev_b32 v57, 5, v5")
        self.poll("s", stl, [SG+1, SG+3, SG+5, SG+7], 20, sleep=self.ssleep)
        self.stamp(15)
        A(f"v_max3_f32 v20, v{SG}, v{SG+2}, v{SG+4}"); A(f"v_max_f32 v20, v20, v{SG+6}")
        for s in range(4): A(f"v_sub_f32 v{CF+2*s}, v{SG+2*s}, v20")
        for s in range(4): A(f"v_exp_f32 v{CF+2*s}, v{CF+2*s}")
        self.nop(1)
        A(f"v_add_f32 v20, v{CF}, v{CF+2}"); A(f"v_add_f32 v21, v{CF+4}, v{CF+6}"); A("v_add_f32 v20, v20, v21")
        A("v_rcp_f32 v20, v20"); self.nop(1)
        for s in range(4): A(f"v_mul_f32 v{CF+2*s}, v{CF+2*s}, v20")
        for e in range(8):
            if e == self.wo1: self.ldsspin("w", 24, self.th1, [], sleep=2)
            if e == self.wa: self.ldsspin("w2", 24, self.th2, [], sleep=1)
            if e == self.wo_early: A("s_setprio 0")
            A(f"buffer_load_dwordx4 {v4(WB+4*e)}, v1, s[20:23], s48 offen offset:{1024*(e>>2)}{nt}")
            if e == 3: A("s_sub_u32 s48, s48, 24576")
            elif e < 7: A("s_add_u32 s48, s48, 8192")
        A("s_setprio 3")
        self.stamp(5)
        A("s_lshl_b32 s39, s47, 13"); A("s_lshl_b32 s3, s33, 7"); A("s_add_u32 s39, s39, s3"); A(f"s_add_u32 s39, s39, {OP}")
        A("s_add_u32 s39, s39, s49"); A("s_add_u32 s48, s39, 4096")
        A("v_lshlrev_b32 v1, 9, v5"); A("v_lshl_add_u32 v1, v4, 5, v1"); A("v_lshl_add_u32 v1, v6, 3, v1")
        A("s_lshl_b32 s63, s32, 17"); A(f"s_add_u32 s63, s63, {FP}")
        A("s_lshl_b32 s3, s47, 11"); A("s_add_u32 s46, s63, s3"); A("s_lshl_b32 s3, s33, 9"); A("s_add_u32 s46, s46, s3")
        A("v_lshrrev_b32 v121, 2, v0"); A("v_lshlrev_b32 v121, 11, v121"); A("v_lshl_add_u32 v121, v6, 3, v121")
        A("s_lshl_b32 s3, s47, 5"); A("s_add_u32 s63, s63, s3")
        A("s_add_u32 s60, s63, 0x8000"); A("s_add_u32 s61, s63, 0x10000"); A("s_add_u32 s62, s63, 0x18000")
        A("s_lshl_b32 s45, s45, 10"); A("s_lshl_b32 s3, s32, 8"); A("s_add_u32 s45, s45, s3")
        A("s_and_b32 s3, s47, 15"); A("s_lshl_b32 s3, s3, 4"); A("s_add_u32 s45, s45, s3")
        A("v_lshlrev_b32 v126, 2, v6"); A("v_lshl_add_u32 v126, v4, 1, v126")
        A("s_mov_b32 s41, 1")
        A("s_and_b32 s49, s44, 3"); A("s_or_b32 s49, s49, s32"); A("s_or_b32 s49, s49, s33")
        A("s_lshr_b32 s3, s47, 2"); A("s_lshl_b32 s3, s3, 8"); A(f"s_add_u32 s3, s3, {EP}"); A("v_mov_b32 v135, s3")
        A("v_lshlrev_b32 v134, 8, v3"); A(f"v_add_u32 v134, {EP}, v134")
        A("s_barrier")
        self.stamp(6)
        A("s_branch L_tile")
        self.lab("L_fin")
        if self.b4spin:
            self.cnt(28, "v111")
            A("s_mov_b64 exec, -1")
            self.ldsspin("c2", 28, 4, rd, sleep=0)
        else:
            A("s_mov_b64 exec, -1")
            A("s_waitcnt lgkmcnt(0)")
            A("s_barrier")
            for r in rd: A(r)
            A("s_waitcnt lgkmcnt(0)")
        A("v_pk_add_f32 v[12:13], v[12:13], v[14:15]"); A("v_pk_add_f32 v[16:17], v[16:17], v[18:19]")
        A("v_pk_add_f32 v[12:13], v[12:13], v[16:17]")
        A("v_bfi_b32 v12, s11, v160, v12"); A("v_bfi_b32 v13, s11, v161, v13")
        A(f"buffer_store_dwordx2 v[12:13], v127, s[12:15], s46 offen{pol}")
        self.stamp(9)
        if self.wbl == 1:
            A("s_lshr_b32 s3, s2, 3"); A("s_lshl_b32 s3, s3, 2"); A("s_add_u32 s5, s3, s33"); A("s_cmp_eq_u32 s5, 1"); A("s_cbranch_scc1 L_wb1")
        if self.wbl == 2:
            A("s_lshr_b32 s3, s2, 3"); A("s_lshl_b32 s3, s3, 2"); A("s_add_u32 s5, s3, s33"); A("s_cmp_eq_u32 s5, 1"); A("s_cbranch_scc0 L_wb1")
            A("buffer_wbl2 sc1")
            self.lab("L_wb1")
        A("s_cmp_lg_u32 s33, 0"); A("s_cbranch_scc1 L_C_exit")
        if self.wbl == 1: self.lab("L_wb1")
        if self.fdelay: A(f"s_sleep {self.fdelay}")
        if self.eta:
            if self.ed == 1:
                self.poll("e", [f"buffer_load_dword v41, v134, s[12:15], 0 offen{pol}"], [41], 40)
            else:
                D = self.ed
                A("s_mov_b64 exec, 0xffff")
                el = lambda i: A(f"buffer_load_dword v{41+i}, v134, s[12:15], 0 offen{pol}")
                A(f"s_mov_b32 s38, {self.spin}")
                for i in range(D - 1):
                    el(i); A(f"s_sleep {self.es}")
                self.lab("L_ep")
                for i in range(D):
                    el((i + D - 1) % D)
                    A(f"s_waitcnt vmcnt({D-1})")
                    A(f"v_cmp_ne_u32 vcc, s34, v{41+i}")
                    A("s_cmp_eq_u64 vcc, 0"); A("s_cbranch_scc1 L_epd")
                A("s_sub_u32 s38, s38, 1"); A("s_cbranch_scc0 L_ep")
                self.lab("L_epd")
                A("s_mov_b64 exec, -1")
            self.stamp(12)
            if self.wbl == 1:
                A("s_cmp_eq_u32 s33, 0"); A("s_cbranch_scc1 L_wb2")
                A("buffer_wbl2 sc1"); A("s_branch L_C_exit")
                self.lab("L_wb2")
            if self.edly: A(f"s_sleep {self.edly}")
            self.lab("L_eok")
        self.poll("f", [f"buffer_load_dwordx2 {v2(24+2*i)}, v121, s[12:15], s{(63,60,61,62)[i]} offen{pol}" for i in range(4)],
                  list(range(24, 32)), 40, sleep=self.fsleep, tv=160)
        self.stamp(10)
        if self.stamps: A(f"s_sub_u32 s66, {self.spin}, s38"); A("s_mov_b32 s67, 0")
        A("v_pk_add_f32 v[24:25], v[24:25], v[26:27]"); A("v_pk_add_f32 v[28:29], v[28:29], v[30:31]")
        self.nop(2)
        A("v_permlane32_swap_b32 v24, v28"); A("v_permlane32_swap_b32 v25, v29")
        A("v_pk_add_f32 v[24:25], v[24:25], v[28:29]"); self.nop(2)
        A("v_permlane16_swap_b32 v24, v25")
        A("v_add_f32 v24, v24, v25"); self.nop(2)
        self.dpp("v_add_f32", 24, 24, 24, "row_ror:4"); self.nop(2)
        self.dpp("v_add_f32", 24, 24, 24, "row_ror:8")
        A("v_cvt_pk_bf16_f32 v24, v24, v24"); A("v_lshlrev_b32 v24, 16, v24")
        A("v_mul_f32 v24, v24, v120")
        A("v_cvt_pk_bf16_f32 v24, v24, v24"); A("v_lshlrev_b32 v24, 16, v24")
        A("v_mov_b32 v25, v24"); self.nop(2)
        A("v_permlane32_swap_b32 v24, v25")
        A("v_add_f32 v24, v24, v25")
        A("v_cvt_pk_bf16_f32 v24, v24, v24")
        A("s_mov_b64 exec, 0x000f000f")
        A("buffer_store_short v24, v126, s[56:59], s45 offen")
        if self.pad:
            if self.padk >= 0:
                A("s_waitcnt lgkmcnt(0)"); A("s_mov_b32 s90, s92")
            self.lab("L_pad")
            A("s_memrealtime s[94:95]"); A("s_waitcnt lgkmcnt(0)"); A("s_sub_u32 s94, s94, s90")
            A(f"s_cmp_lt_u32 s94, {self.pad}"); A("s_cbranch_scc1 L_pad")
        A("s_cmp_lg_u32 s2, 0"); A("s_cbranch_scc1 L_C_exit")
        A("s_mov_b64 exec, 1")
        A("buffer_store_dword v129, v110, s[12:15], 0 offen")
        self.lab("L_C_exit")
        self.stamp(11)
        if self.stamps: A("s_sleep 127")
        self.stamp_out()
        self.lab("L_end")
        A("s_endpgm")
        self.lab("L_last")
        self.lab("L_S_y1")
        A(f"s_add_u32 s4, s4, {YD}")
        A(f"buffer_store_dwordx2 v[128:129], v110, s[12:15], s4 offen{pol}")
        A("s_branch L_S_y1r")
        self.lab("L_S_y2")
        A(f"s_add_u32 s46, s46, {YD}")
        A(f"buffer_store_dwordx2 {v2(SB+12)}, v{SB+11}, s[12:15], s46 offen{pol}")
        A("s_branch L_S_x")
        def puby():
            A(f"s_add_u32 s3, s46, {YD}")
            A(f"buffer_store_dwordx2 v[164:165], v127, s[12:15], s3 offen{pol}")
            A("s_mov_b32 s63, 1")
        self.lab("L_puby2")
        puby()
        A("s_branch L_vd")
        self.lab("L_slow")
        A("s_cmp_lg_u32 s63, 0"); A("s_cbranch_scc1 L_slow2")
        A(f"ds_write_b32 v110, v111 offset:{L_F+16}")
        puby()
        self.lab("L_slow2")
        A(f"v_add_u32 v9, {YD}, v127")
        for l in qg("v9"): A(l)
        A("v_and_b32 v9, 1, v0"); A("v_mul_u32_u24 v9, 15, v9"); A("v_or_b32 v9, 0xf0, v9")
        A("s_waitcnt vmcnt(0)")
        A("v_xor_b32 v8, v166, v24"); A("v_xor_b32 v10, v167, v25")
        for r in range(26, 32): A(f"v_bitop3_b32 v{8 + 2*(r & 1)}, v{r}, v{166 + (r & 1)}, v{8 + 2*(r & 1)} bitop3:0xbe")
        A("v_and_b32 v10, 0xff, v10"); A("v_and_or_b32 v9, v8, v9, v10"); A("v_and_b32 v10, 15, v8")
        A("s_mov_b32 s38, 0")
        A("v_cmp_ne_u32 vcc, 0, v9"); A("s_cmp_eq_u64 vcc, 0"); A("s_cbranch_scc1 L_slow3")
        A("s_sleep 8")
        A("s_sub_u32 s62, s62, 1"); A("s_cbranch_scc0 L_qf")
        self.lab("L_slow3")
        for r in range(24, 32): A(f"v_and_b32 v{r}, 0xffffff00, v{r}")
        A("v_cmp_ne_u32 vcc, 0, v10"); A("s_cmp_lg_u64 vcc, 0")
        A("s_cselect_b32 s3, 1, 0"); A("v_mov_b32 v18, s3")
        A(f"s_mul_i32 s3, s33, {QH}"); A("v_lshl_add_u32 v16, v0, 2, s3")
        A("v_lshlrev_b32 v1, 11, v4"); A("v_lshl_add_u32 v1, v3, 4, v1")
        A("s_lshl_b32 s48, s44, 17"); A("s_lshl_b32 s3, s33, 15"); A("s_add_u32 s48, s48, s3")
        A("s_lshl_b32 s3, s32, 8"); A("s_add_u32 s48, s48, s3")
        A("s_waitcnt lgkmcnt(0)")
        A("s_branch L_qok")
        L.append('.section .rodata,"a"'); L.append(".p2align 6"); L.append(f".amdhsa_kernel {KN}")
        L.append("  .amdhsa_next_free_vgpr 168"); L.append("  .amdhsa_next_free_sgpr 96"); L.append("  .amdhsa_accum_offset 168")
        L.append("  .amdhsa_group_segment_fixed_size 0"); L.append("  .amdhsa_kernarg_size 112"); L.append("  .amdhsa_user_sgpr_count 2")
        L.append("  .amdhsa_user_sgpr_kernarg_segment_ptr 1"); L.append("  .amdhsa_system_sgpr_workgroup_id_x 1")
        L.append("  .amdhsa_float_denorm_mode_32 3")
        L.append(".end_amdhsa_kernel")
        return "\n".join(L) + "\n"

if __name__ == "__main__":
    out = sys.argv[1]
    kw = {}
    for a in sys.argv[2:]:
        k, v = a.split("=")
        kw[k] = v.replace("+", " ") if k in ("pol", "pat", "pat2") else int(v)
    open(out, "w").write(G(**kw).gen())
```

```python
import sys
KN = "gated_mix__sliding_block_cached__sliding_block_cached__decode_kernel"
HDR = open("gated_mix__sliding_block_cached__sliding_block_cached__decode.s.ref").read().split("; Override launch")[0]

FL = 0x1000
YD = 0x400000
OP = 0x100000
SP = 0xC0000
EP = 0xD0000
QP = 0x100000
FP = 0x180000
WS_BYTES = 0x600000
STAMP_OFF = 0x4000000
L_Q = 0
QH = 272
L_M = 1280
L_L = 1408
L_F = 1536
L_G = 1600
L_O = 2048
L_R = L_O + 8*2112
LDS_BYTES = L_R + 4*2112
LOG2E = 0x3fb8aa3b
SCALE = 0x3db504f3
NS = 16

class G:
    def __init__(self, **kw):
        d = dict(padk=-1, pad=0, stamps=0, nt=1, pol="sc1", spin=1 << 16, pf=1, wo_early=0, qsleep=12, forcey=0, pretouch=0,
                 n0=8, qdepth=4, lsplit=1, osleep=0, fsleep=0, b4spin=0, fdelay=0, eta=1, edly=0, tx=0, rm=2, N=3, rot=1, lan=1, qpos=3, wj=31, pat='x0x11x', cw=3, up=99, wo1=0, wj2=32, wa=2, th1=8, th2=16, opos=3, pr=0, tlbs=0, tlbv=0, lean=1, xdirty=0, qwt=0, owt=0, xperm=0, b0late=0, ed=1, es=4, early=0, ldly=0, ssleep=8, ovl=1, pat2='', lup=99, wbl=0, wqr=0, er=1, xown=1, fw=8)
        d.update(kw)
        self.__dict__.update(d)
        self.L = []
        self.nt = " nt" if self.nt else ""
        self.pol = " " + self.pol
    def A(self, s): self.L.append("    " + s)
    def lab(self, s): self.L.append(s + ":")
    def nop(self, n):
        while n > 0:
            k = min(n, 16); self.A(f"s_nop {k-1}"); n -= k
    def stamp(self, i):
        if self.padk == i: self.A("s_memrealtime s[92:93]")
        if self.stamps: self.A(f"s_memrealtime s[{64+2*i}:{65+2*i}]")
    def stamp_out(self):
        if not self.stamps: return
        A = self.A
        A("s_waitcnt lgkmcnt(0)")
        A("s_mul_i32 s60, s2, 12"); A("s_add_u32 s60, s60, s33"); A(f"s_mul_i32 s60, s60, {NS*8}")
        A(f"s_add_u32 s60, s60, {STAMP_OFF}")
        A("s_add_u32 s62, s12, s60"); A("s_addc_u32 s63, s13, 0")
        A("s_mov_b64 exec, 1"); A("v_mov_b32 v4, 0")
        for i in range(NS):
            A(f"v_mov_b32 v2, s{64+2*i}"); A(f"v_mov_b32 v3, s{65+2*i}")
            A(f"global_store_dwordx2 v4, v[2:3], s[62:63] offset:{i*8}"); A("s_nop 1")
    def v4(self, r): return f"v[{r}:{r+3}]"
    def v2(self, r): return f"v[{r}:{r+1}]"
    def perms(self, dst, src, pairs=(0, 1, 2, 3)):
        for q in pairs:
            for w in range(4):
                for hh in range(2):
                    j = 2*w + hh
                    self.A(f"v_perm_b32 v{dst+4*j+q}, v{src+4*(2*q+1)+w}, v{src+4*(2*q)+w}, s{36+hh}")
    def allred_rows(self, op, v, t):
        A = self.A
        A(f"v_mov_b32 v{t}, v{v}"); self.nop(2)
        A(f"v_permlane32_swap_b32 v{v}, v{t}")
        A(f"{op} v{v}, v{v}, v{t}")
        A(f"v_mov_b32 v{t}, v{v}"); self.nop(2)
        A(f"v_permlane16_swap_b32 v{v}, v{t}")
        A(f"{op} v{v}, v{v}, v{t}")
    def dpp(self, op, d, a, b, ctl):
        self.A(f"{op}_dpp v{d}, v{a}, v{b} {ctl} row_mask:0xf bank_mask:0xf")
    def poll(self, name, loads, tagregs, acc, first_issued=False, sleep=0, tv=None):
        A = self.A
        A(f"s_mov_b32 s38, {self.spin}")
        if first_issued: A(f"s_branch L_chk_{name}")
        elif sleep: A(f"s_branch L_ld_{name}")
        self.lab(f"L_poll_{name}")
        if sleep: A(f"s_sleep {sleep}")
        self.lab(f"L_ld_{name}")
        for l in loads: A(l)
        self.lab(f"L_chk_{name}")
        A("s_waitcnt vmcnt(0)")
        if tv is None:
            A(f"v_xor_b32 v{acc}, s34, v{tagregs[0]}")
            for r in tagregs[1:]:
                A(f"v_bitop3_b32 v{acc}, v{r}, s34, v{acc} bitop3:0xbe")
        else: self.untag(tagregs[0], tv, acc)
        A("s_sub_u32 s38, s38, 1")
        A(f"v_cmp_ne_u32 vcc, 0, v{acc}")
        A("s_cselect_b64 s[50:51], 0, -1")
        if tv is not None: A("s_wqm_b64 vcc, vcc")
        A("s_and_b64 exec, vcc, s[50:51]")
        A(f"s_cbranch_scc1 L_poll_{name}")
        A("s_mov_b64 exec, -1")
    def untag(self, r0, tv, acc):
        A = self.A
        for r in range(r0, r0 + 8): A(f"v_xor_b32 v{r}, v{tv + (r & 1)}, v{r}")
        A(f"v_or3_b32 v{acc}, v{r0}, v{r0+1}, v{r0+2}"); A(f"v_or3_b32 v{acc+1}, v{r0+3}, v{r0+4}, v{r0+5}")
        A(f"v_or3_b32 v{acc}, v{acc}, v{r0+6}, v{r0+7}")
        A(f"v_bitop3_b32 v{acc}, v{acc}, v{acc+1}, s11 bitop3:0xa8")
    def ldsspin(self, name, off, target, reads, sleep=1):
        A = self.A
        A(f"s_mov_b32 s38, {self.spin * 16}")
        if sleep: A(f"s_branch L_spl_{name}")
        self.lab(f"L_sp_{name}")
        if sleep: A(f"s_sleep {sleep}")
        self.lab(f"L_spl_{name}")
        A(f"ds_read_b32 v2, {self.vz} offset:{L_F+off}")
        for r in reads: A(r)
        A("s_sub_u32 s38, s38, 1")
        A("s_cselect_b32 s3, 0, -1")
        A("s_waitcnt lgkmcnt(0)")
        A("v_readfirstlane_b32 s40, v2")
        A("s_orn2_b32 s40, s40, s3")
        A(f"s_cmp_lt_u32 s40, {target}")
        A(f"s_cbranch_scc1 L_sp_{name}")
    def cnt(self, off, one):
        A = self.A
        A("s_mov_b64 exec, 1")
        A(f"ds_add_u32 {self.vz}, {one} offset:{L_F+off}")
    def vissue(self, VB, p):
        for T in (2*p, 2*p+1):
            for e in range(4):
                self.A(f"buffer_load_dwordx4 {self.v4(VB+16*T+4*e)}, v5, s[8:11], s35 offen offset:{256*e}{self.nt}")
            if T < 3: self.A("s_add_u32 s35, s35, 16384")
    def mspin(self, name, B, d):
        A = self.A
        self.ldsspin(name, 8, 8, [f"ds_read_b128 {self.v4(B)}, v6 offset:{L_M}", f"ds_read_b128 {self.v4(B+4)}, v6 offset:{L_M+16}"], sleep=2)
        A(f"v_max3_f32 v{B}, v{B}, v{B+1}, v{B+2}")
        A(f"v_max3_f32 v{B+3}, v{B+3}, v{B+4}, v{B+5}")
        A(f"v_max3_f32 v{B}, v{B}, v{B+6}, v{B+7}")
        A(f"v_max_f32 v{d}, v{B}, v{B+3}")

    def gen(self):
        A = self.A; nt = self.nt; pol = self.pol; v4 = self.v4; v2 = self.v2
        OP = 0x100000 if self.ovl else 0x40000
        L = self.L
        L.append(HDR.rstrip("\n"))
        L.append(f"; @launch grid=(256,1,1) block=(768,1,1) lds={LDS_BYTES}")
        L.append('.amdgcn_target "amdgcn-amd-amdhsa--gfx950"')
        L.append(".text"); L.append(f".globl {KN}"); L.append(".p2align 12"); L.append(".p2align 8"); L.append(f".type {KN},@function"); L.append(f"{KN}:")
        self.stamp(0)
        if self.pad: A("s_memrealtime s[90:91]")
        if self.stamps:
            for i in range(1, NS): A(f"s_mov_b64 s[{64+2*i}:{65+2*i}], 0")
        if self.xperm == 1:
            A("s_lshr_b32 s3, s2, 3"); A("s_and_b32 s29, s2, 7"); A("s_lshl_b32 s29, s29, 5"); A("s_or_b32 s2, s3, s29")
        if self.xperm == 2:
            A("s_xor_b32 s3, s2, 1"); A("s_and_b32 s29, s2, 0xf8"); A("s_cmp_eq_u32 s29, 0x48"); A("s_cselect_b32 s2, s3, s2")
        A("s_bfe_u32 s29, s2, 0x10002")
        A("s_mul_i32 s3, s29, 40")
        A("s_cmp_ge_u32 s2, 256"); A("s_cbranch_scc1 L_end")
        A("s_load_dwordx2 s[16:17], s[0:1], s3 offset:24")
        A("s_load_dwordx2 s[24:25], s[0:1], 0")
        A("s_load_dwordx2 s[4:5], s[0:1], s3 offset:8")
        A("s_load_dwordx2 s[8:9], s[0:1], s3 offset:16")
        A("s_load_dwordx2 s[12:13], s[0:1], 104")
        A("v_lshrrev_b32 v1, 6, v0")
        A("s_lshr_b32 s30, s2, 3")
        if self.tx: A(f"s_xor_b32 s30, s30, {self.tx}")
        A("v_readfirstlane_b32 s33, v1")
        A("s_and_b32 s28, s2, 3"); A("s_lshl_b32 s28, s28, 1"); A("s_lshr_b32 s31, s30, 4"); A("s_or_b32 s28, s28, s31")
        A("s_bfe_u32 s31, s30, 0x20002"); A("s_and_b32 s32, s30, 3")
        A("v_and_b32 v0, 63, v0")
        A("v_and_b32 v3, 15, v0")
        A("v_lshrrev_b32 v4, 4, v0")
        A("v_bfe_u32 v5, v0, 2, 2")
        A("v_and_b32 v6, 3, v0")
        A("s_cmp_ge_u32 s33, 4"); A("s_cbranch_scc1 L_S")
        WB, PB, DB, XB = 8, 40, 72, 104
        A("s_setprio 3")
        if self.pf:
            A("s_getpc_b64 s[42:43]")
            if self.lean:
                A("s_lshl_b32 s3, s33, 11"); A("v_lshl_add_u32 v12, v3, 7, s3"); A("s_mov_b64 exec, 0xffff")
            else: A("v_lshlrev_b32 v12, 7, v0")
            A("v_min_u32 v12, L_last-L_pfbase, v12")
            self.lab("L_pfbase")
            A("global_load_dword v108, v12, s[42:43]")
            if self.lean: A("s_mov_b64 exec, -1"); A("s_mul_i32 s3, s29, 40")
        A("s_mov_b32 s18, 0x400000"); A("s_mov_b32 s19, 0x20000")
        A("s_mov_b32 s26, 4096"); A("s_mov_b32 s27, 0x20000")
        A("v_lshlrev_b32 v1, 16, v4"); A("v_lshl_add_u32 v1, v3, 4, v1")
        if self.wqr:
            A("v_lshl_add_u32 v1, v4, 13, v1")
            for e in range(1, self.cw): A(f"v_xor_b32 v{64+e}, {e << 13}, v1")
        def wql(e):
            if self.wqr:
                if e >= self.cw: A(f"v_xor_b32 v{64+e}, {e << 13}, v1")
                A(f"buffer_load_dwordx4 {v4(WB+4*e)}, v{64+e if e else 1}, s[16:19], s35 offen{nt}")
            else:
                A(f"buffer_load_dwordx4 {v4(WB+4*e)}, v1, s[16:19], s35 offen{nt}")
                if e < 7: A("s_add_u32 s35, s35, 8192")
        A("v_lshlrev_b32 v2, 10, v5"); A("v_lshl_add_u32 v2, v4, 4, v2")
        A("s_lshl_b32 s44, s28, 2"); A("s_add_u32 s44, s44, s31")
        A("s_lshl_b32 s39, s32, 2"); A("s_add_u32 s39, s39, s33")
        A("s_lshl_b32 s35, s39, 18"); A("s_lshl_b32 s45, s44, 8"); A("s_add_u32 s35, s35, s45")
        A("s_lshl_b32 s39, s39, 6")
        A("s_waitcnt lgkmcnt(0)")
        self.stamp(1)
        A(f"buffer_load_dwordx4 {v4(136 if self.wqr else XB)}, v2, s[24:27], s39 offen")
        for e in range(self.cw): wql(e)
        A("v_mov_b32 v112, 0"); A("v_mov_b32 v113, 0"); A("v_mov_b32 v114, 0"); A("v_mov_b32 v115, 0")
        A(f"ds_write_b128 v112, v[112:115] offset:{L_F}")
        A(f"ds_write_b128 v112, v[112:115] offset:{L_F+16}")
        A("s_waitcnt lgkmcnt(0)")
        A("s_barrier")
        A("s_branch L_C")
        self.lab("L_S")
        KB, VB, QB, SB = 8, 72, 136, 152
        self.vz = "v7"
        esh = 10 if self.lan else 8
        A("s_setprio 1")
        A("s_mov_b32 s6, 0x4000000"); A("s_mov_b32 s7, 0x20000")
        A("s_mov_b32 s10, 0x4000000"); A("s_mov_b32 s11, 0x20000")
        A("s_lshl_b32 s35, s31, 3"); A("s_add_u32 s35, s35, s28"); A("s_lshl_b32 s35, s35, 4"); A("s_add_u32 s35, s35, s32")
        A("s_lshl_b32 s35, s35, 5"); A("s_add_u32 s35, s35, s33")
        A("s_lshl_b32 s35, s35, 12"); A(f"s_add_u32 s35, s35, {0x180000 - 4*4096}")
        if self.rot & 1: A(f"s_lshl_b32 s3, s32, {esh}"); A("s_add_u32 s35, s35, s3")
        if self.rot & 2: A("s_and_b32 s3, s2, 7"); A("s_lshl_b32 s3, s3, 12"); A("s_xor_b32 s35, s35, s3")
        A(f"v_lshlrev_b32 v1, {18-esh}, v5"); A("v_lshl_add_u32 v1, v4, 6, v1"); A("v_lshl_add_u32 v1, v6, 4, v1")
        A(f"v_mul_u32_u24 v2, {QH}, v6"); A("v_lshl_add_u32 v2, v4, 6, v2"); A(f"v_lshl_add_u32 v{QB+12}, v5, 4, v2")
        A("v_lshlrev_b32 v5, 4, v3"); A(f"v_lshl_add_u32 v5, v4, {18-esh}, v5")
        if self.pr == 1:
            A("s_cmp_lt_u32 s33, 8"); A("s_cbranch_scc1 L_pr1"); A("s_setprio 2"); self.lab("L_pr1")
        if not self.b0late: A("s_barrier")
        A("s_waitcnt lgkmcnt(0)")
        self.stamp(1)
        st = dict(i=0)
        def trig(i):
            if i in (self.wj, self.wj2):
                self.cnt(24, f"v{QB+15}"); A("s_mov_b64 exec, -1")
        def nxt(k=1):
            for _ in range(k):
                i = st["i"]; st["i"] += 1
                n = self.N + (1 if i >= self.up else 0)
                wt = lambda p: (None if p[i] == "x" else int(p[i])) if i < len(p) else (n - 1 if i >= n else None)
                w1 = wt(self.pat); w2 = wt(self.pat2) if self.pat2 else w1
                if i == self.lup: w2 = n
                if w1 == w2:
                    if w1 is not None: A(f"s_waitcnt vmcnt({w1})")
                else:
                    A("s_cmp_ge_u32 s33, 8"); A(f"s_cbranch_scc1 L_p{i}")
                    if w1 is not None: A(f"s_waitcnt vmcnt({w1})")
                    if w2 is not None and (w1 is None or w2 < w1):
                        A(f"s_branch L_q{i}"); self.lab(f"L_p{i}"); A(f"s_waitcnt vmcnt({w2})"); self.lab(f"L_q{i}")
                    else:
                        self.lab(f"L_p{i}")
                        if w2 is not None: A(f"s_waitcnt vmcnt({w2})")
                if self.pr == 2: A(f"s_setprio {2 - i % 3}")
                if self.pr == 3: A(f"s_setprio {1 - i % 2}")
                T, e = (i >> 2) & 3, i & 3
                so = "s35"
                if T or e: A(f"s_xor_b32 s39, s35, {T*32768 + (e << esh)}"); so = "s39"
                if i < 16: A(f"buffer_load_dwordx4 {v4(KB+4*i)}, v1, s[4:7], {so} offen{nt}")
                else: A(f"buffer_load_dwordx4 {v4(VB+4*(i-16))}, v5, s[8:11], {so} offen{nt}")
                trig(i)
                if self.xdirty and i == 8:
                    A("s_mov_b32 s14, 0x4000000")
                    A("s_lshl_b32 s46, s2, 3"); A("s_add_u32 s46, s46, s33"); A(f"s_mul_i32 s46, s46, {self.xdirty*1024}"); A("s_add_u32 s46, s46, 0x800000")
                    A(f"v_lshlrev_b32 v{SB}, 4, v0")
                    for k in range(self.xdirty): A(f"buffer_store_dwordx4 v[0:3], v{SB}, s[12:15], s46 offen offset:{1024*k}")
        def upto(j):
            while st["i"] <= j: nxt()
        nxt(len(self.pat) - len(self.pat.lstrip("x")) if self.pat else self.N)
        A("s_load_dword s34, s[12:13], 0")
        A(f"s_mov_b32 s14, {WS_BYTES}"); A("s_mov_b32 s15, 0x20000")
        A("s_mov_b32 s36, 0x05040100"); A("s_mov_b32 s37, 0x07060302")
        A("v_mov_b32 v7, 0")
        A(f"v_mov_b32 v{QB+15}, 1")
        A("v_lshlrev_b32 v6, 5, v6"); A("s_lshl_b32 s3, s33, 2"); A("s_sub_u32 s3, s3, 16"); A("v_add_u32 v3, s3, v6")
        A(f"v_and_b32 v{QB+13}, 3, v0"); A(f"v_mul_u32_u24 v{QB+13}, 528, v{QB+13}"); A(f"v_lshl_add_u32 v{QB+13}, v4, 7, v{QB+13}")
        A("s_mul_i32 s3, s33, 2112"); A(f"s_add_u32 s3, s3, {L_O - 4*2112}"); A(f"v_add_u32 v{QB+13}, s3, v{QB+13}")
        A("s_mov_b32 s42, 0x000f000f"); A("s_mov_b32 s43, 0x000f000f")
        if self.b0late: A("s_barrier")
        upto(15)
        self.stamp(2)
        upto(15 + self.qpos)
        A(f"s_waitcnt vmcnt({self.qpos})")
        self.stamp(3)
        self.ldsspin("q", 4, 4, [f"ds_read_b128 {v4(QB)}, v{QB+12} offset:{L_Q}"], sleep=4)
        self.stamp(4)
        Dj = lambda j: (QB + 4 + 4*j) if j < 2 else (KB + 4*(j-2))
        for j in range(16):
            A(f"v_mfma_f32_16x16x32_bf16 {v4(Dj(j))}, {v4(KB+4*j)}, {v4(QB)}, 0")
        A(f"s_mov_b32 s40, {SCALE}"); A(f"s_mov_b32 s41, {LOG2E}")
        A("s_mul_i32 s34, s34, 1664525"); A("s_add_u32 s34, s34, 1013904223")
        nxt()
        for j in range(16): self.dpp("v_add_f32", SB+j, Dj(j)+1, Dj(j), "row_ror:12")
        for j in range(16): self.dpp("v_add_f32", SB+j, Dj(j)+2, SB+j, "row_ror:8")
        for j in range(16): self.dpp("v_add_f32", SB+j, Dj(j)+3, SB+j, "row_ror:4")
        for i in range(8):
            A(f"v_cvt_pk_bf16_f32 v{QB+i}, v{SB+2*i}, v{SB+2*i+1}")
        for i in range(8):
            A(f"v_lshlrev_b32 v{SB+2*i}, 16, v{QB+i}"); A(f"v_and_b32 v{SB+2*i+1}, 0xffff0000, v{QB+i}")
        nxt()
        for i in range(8):
            A(f"v_pk_mul_f32 {v2(SB+2*i)}, {v2(SB+2*i)}, s[40:41] op_sel_hi:[1,0]")
        for i in range(8):
            A(f"v_cvt_pk_bf16_f32 v{QB+i}, v{SB+2*i}, v{SB+2*i+1}")
        for i in range(8):
            A(f"v_lshlrev_b32 v{SB+2*i}, 16, v{QB+i}"); A(f"v_and_b32 v{SB+2*i+1}, 0xffff0000, v{QB+i}")
        A(f"v_max3_f32 v1, v{SB}, v{SB+1}, v{SB+2}")
        A(f"v_max3_f32 v2, v{SB+3}, v{SB+4}, v{SB+5}")
        A(f"v_max3_f32 v1, v1, v{SB+6}, v{SB+7}")
        A(f"v_max3_f32 v2, v2, v{SB+8}, v{SB+9}")
        A(f"v_max3_f32 v1, v1, v{SB+10}, v{SB+11}")
        A(f"v_max3_f32 v2, v2, v{SB+12}, v{SB+13}")
        A(f"v_max3_f32 v1, v1, v{SB+14}, v{SB+15}")
        A("v_max_f32 v1, v1, v2")
        self.allred_rows("v_max_f32", 1, 2)
        A("v_mul_f32 v1, s41, v1")
        A("s_mov_b64 exec, 15")
        A(f"ds_write_b32 v3, v1 offset:{L_M}")
        self.cnt(8, f"v{QB+15}")
        A("s_mov_b64 exec, -1")
        self.stamp(5)
        nxt()
        self.stamp(6)
        self.mspin("m", QB, 1)
        for i in range(16):
            A(f"v_fma_f32 v{SB+i}, v{SB+i}, s41, -v1")
        for i in range(16):
            A(f"v_exp_f32 v{SB+i}, v{SB+i}")
        nxt()
        for i in range(8):
            A(f"v_cvt_pk_bf16_f32 v{QB+i}, v{SB+2*i}, v{SB+2*i+1}")
        for i in range(4):
            A(f"v_pk_add_f32 {v2(SB+2*i)}, {v2(SB+2*i)}, {v2(SB+8+2*i)}")
        for i in range(2):
            A(f"v_pk_add_f32 {v2(SB+2*i)}, {v2(SB+2*i)}, {v2(SB+4+2*i)}")
        A(f"v_pk_add_f32 {v2(SB)}, {v2(SB)}, {v2(SB+2)}")
        A(f"v_add_f32 v{SB+8}, v{SB}, v{SB+1}")
        self.allred_rows("v_add_f32", SB+8, SB)
        OB, P0, P1 = 8, 40, 72
        A("s_mov_b64 exec, 15")
        A(f"ds_write_b32 v3, v{SB+8} offset:{L_L}")
        self.cnt(20, f"v{QB+15}")
        A("s_mov_b64 exec, -1")
        self.stamp(7)
        def need(j):
            upto(min(31, j + self.N + (1 if j + self.N + 1 >= self.up else 0)))
            A(f"s_waitcnt vmcnt({st['i'] - 1 - j})")
        need(23)
        self.perms(P0, VB, pairs=(0, 1))
        if st["i"] < 32: nxt()
        self.perms(P0, VB, pairs=(2, 3))
        for j in range(8):
            A(f"v_mfma_f32_16x16x32_bf16 {v4(OB+4*j)}, {v4(P0+4*j)}, {v4(QB)}, 0")
        self.stamp(8)
        need(25)
        self.perms(P1, VB+32, pairs=(0,))
        A("s_cmp_ge_u32 s33, 8"); A("s_cbranch_scc1 L_S_nr")
        A("s_mul_i32 s3, s33, 528"); A(f"s_add_u32 s3, s3, {L_O - 4*528}")
        A(f"v_lshl_add_u32 v{SB+9}, v0, 3, s3")
        A("s_lshl_b32 s3, s33, 5"); A("s_sub_u32 s3, s3, 128"); A(f"v_mov_b32 v{SB+10}, s3")
        A("s_lshl_b32 s3, s29, 3"); A("s_add_u32 s3, s3, s28"); A("s_lshl_b32 s3, s3, 2"); A("s_add_u32 s3, s3, s33"); A("s_sub_u32 s3, s3, 4")
        A("s_lshl_b32 s3, s3, 2"); A("s_add_u32 s3, s3, s32"); A("s_lshl_b32 s3, s3, 2"); A("s_add_u32 s3, s3, s31")
        A("s_lshl_b32 s46, s3, 9"); A(f"s_add_u32 s46, s46, {OP}")
        A(f"v_lshlrev_b32 v{SB+11}, 3, v0")
        A(f"v_mov_b32 v{SB+13}, s34")
        self.ldsspin("l", 20, 8, [f"ds_read_b128 {v4(SB)}, v{SB+10} offset:{L_L}", f"ds_read_b128 {v4(SB+4)}, v{SB+10} offset:{L_L+16}",
                                  f"ds_read_b32 v1, v7 offset:{L_F+12}"], sleep=2)
        A("v_readfirstlane_b32 s45, v1")
        A(f"v_pk_add_f32 {v2(SB)}, {v2(SB)}, {v2(SB+4)}"); A(f"v_pk_add_f32 {v2(SB+2)}, {v2(SB+2)}, {v2(SB+6)}")
        A(f"v_pk_add_f32 {v2(SB)}, {v2(SB)}, {v2(SB+2)}")
        A(f"v_add_f32 v{SB+14}, v{SB}, v{SB+1}")
        A(f"v_rcp_f32 v{SB+14}, v{SB+14}")
        self.lab("L_S_nr")
        for q in range(1, 4):
            if q == 3 and 33 in (self.wj, self.wj2):
                need(30); trig(33)
            need(25 + 2*q)
            if q == 2: trig(32)
            if q == 3: trig(34); A("s_setprio 3"); self.stamp(9)
            self.perms(P1, VB+32, pairs=(q,))
        for j in range(8):
            A(f"v_mfma_f32_16x16x32_bf16 {v4(OB+4*j)}, {v4(P1+4*j)}, {v4(QB+4)}, {v4(OB+4*j)}")
        A("s_mov_b64 exec, s[42:43]")
        A("s_cmp_ge_u32 s33, 8")
        for j in range(8):
            A(f"ds_write_b128 v{QB+13}, {v4(OB+4*j)} offset:{16*j}")
        A("s_mov_b64 exec, -1")
        A("s_waitcnt lgkmcnt(0)")
        A("s_barrier")
        self.stamp(10)
        A("s_cbranch_scc1 L_S_f")
        for w in range(8): A(f"ds_read_b64 {v2(8+2*w)}, v{SB+9} offset:{2112*w}")
        A("s_waitcnt lgkmcnt(0)")
        for w in (0, 1, 2, 3):
            A(f"v_pk_add_f32 {v2(8+2*w)}, {v2(8+2*w)}, {v2(16+2*w)}")
        A("v_pk_add_f32 v[8:9], v[8:9], v[12:13]"); A("v_pk_add_f32 v[10:11], v[10:11], v[14:15]")
        A("s_cmp_lg_u32 s45, 0")
        A("v_pk_add_f32 v[8:9], v[8:9], v[10:11]")
        A(f"v_pk_mul_f32 v[8:9], v[8:9], {v2(SB+14)} op_sel_hi:[1,0]")
        A(f"v_cvt_pk_bf16_f32 v{SB+12}, v8, v9")
        A("s_cbranch_scc1 L_S_y2")
        A(f"buffer_store_dwordx2 {v2(SB+12)}, v{SB+11}, s[12:15], s46 offen" + ["", " sc1", " nt", " sc0 sc1"][self.owt])
        self.lab("L_S_x")
        self.stamp(11)
        if self.stamps: A("s_sleep 127"); A("s_sleep 127")
        self.stamp_out()
        A("s_endpgm")
        self.lab("L_C")
        self.vz = "v110"
        A("s_load_dword s34, s[12:13], 0")
        A("s_load_dwordx2 s[20:21], s[0:1], s3 offset:32")
        A("s_load_dwordx2 s[52:53], s[0:1], 80")
        A(f"s_mov_b32 s14, {WS_BYTES}"); A("s_mov_b32 s15, 0x20000")
        A("s_mov_b32 s22, 0x400000"); A("s_mov_b32 s23, 0x20000")
        A("s_mov_b32 s36, 0x05040100"); A("s_mov_b32 s37, 0x07060302")
        A("s_mov_b32 s54, 1024"); A("s_mov_b32 s55, 0x20000")
        A("s_lshl_b32 s45, s29, 1"); A("s_lshr_b32 s3, s28, 2"); A("s_add_u32 s45, s45, s3")
        A("v_lshlrev_b32 v109, 4, v0")
        A("s_lshl_b32 s3, s29, 5"); A("s_add_u32 s47, s44, s3")
        A("v_mov_b32 v110, 0"); A("v_mov_b32 v111, 1"); A("v_mov_b32 v133, 1024")
        A("v_lshlrev_b32 v127, 3, v0")
        A("v_mul_u32_u24 v7, 528, v5"); A("v_lshl_add_u32 v7, v4, 7, v7")
        A("s_mul_i32 s3, s33, 2112"); A(f"s_add_u32 s3, s3, {L_R}"); A("v_add_u32 v7, s3, v7")
        A("v_lshlrev_b32 v122, 7, v4"); A("v_lshl_add_u32 v122, v6, 5, v122"); A("v_lshl_add_u32 v122, v5, 2, v122")
        A("s_mul_i32 s3, s33, 528"); A(f"s_add_u32 s3, s3, {L_R}"); A("v_add_u32 v122, s3, v122")
        A("v_add_u32 v123, 2112, v122"); A("v_add_u32 v124, 4224, v122"); A("v_add_u32 v125, 6336, v122")
        A("s_lshl_b32 s46, s47, 2"); A("s_add_u32 s46, s46, s32"); A("s_lshl_b32 s46, s46, 2"); A("s_add_u32 s46, s46, s33")
        A("s_lshl_b32 s46, s46, 9"); A(f"s_add_u32 s46, s46, {QP}")
        A("s_lshl_b32 s4, s29, 3"); A("s_add_u32 s4, s4, s28"); A("s_lshl_b32 s4, s4, 2"); A("s_add_u32 s4, s4, s33")
        A("s_lshl_b32 s4, s4, 2"); A("s_add_u32 s4, s4, s31"); A("s_lshl_b32 s4, s4, 2"); A("s_add_u32 s4, s4, s32")
        A("s_lshl_b32 s4, s4, 3"); A(f"s_add_u32 s4, s4, {SP}")
        if self.rm >= 0:
            A("s_sub_u32 s3, s32, s31"); A("s_add_u32 s44, s44, s3"); A("s_add_u32 s47, s47, s3")
            A(f"s_add_u32 s32, s31, {self.rm}"); A("s_and_b32 s32, s32, 3")
        A("s_mov_b32 s42, 0x11111111"); A("s_mov_b32 s43, 0x11111111")
        A("s_mov_b32 s41, 0")
        A("s_getreg_b32 s30, hwreg(HW_REG_XCC_ID, 0, 4)")
        if self.forcey: A("s_lshr_b32 s30, s2, 3"); A("s_and_b32 s30, s30, 1")
        A("s_lshl_b32 s3, s45, 10")
        A("s_waitcnt lgkmcnt(0)")
        if self.lean: A("s_cmp_eq_u32 s33, 0"); A("s_cselect_b64 exec, -1, 1")
        A("buffer_load_dwordx4 v[112:115], v109, s[24:27], s3 offen")
        A("buffer_load_dwordx4 v[116:119], v109, s[52:55], 0 offen")
        if self.lean: A("s_mov_b64 exec, -1")
        for e in range(self.cw, 8):
            A(f"s_waitcnt vmcnt({self.cw-1 + (2 if e < 2*self.cw else 0)})")
            wql(e)
        if self.wqr:
            A("s_mov_b32 s3, 0x02020202"); A("v_mul_lo_u32 v140, v4, s3"); A("v_xor_b32 v140, 0x03020100, v140")
            for q in range(4): A(f"v_perm_b32 v{XB+q}, v{136 + (q ^ 1)}, v{136 + q}, v140")
        A("s_mul_i32 s34, s34, 1664525"); A("s_add_u32 s34, s34, 1013904223")
        A("v_mov_b32 v129, s34")
        A("s_and_b32 s3, s34, -16"); A("s_or_b32 s30, s30, s3")
        A("v_and_b32 v160, 1, v0"); A("v_lshlrev_b32 v160, 4, v160")
        A("v_lshrrev_b32 v166, v160, s30"); A("v_lshrrev_b32 v160, v160, s34")
        A("v_bfe_u32 v167, v166, 8, 8"); A("v_bfe_u32 v161, v160, 8, 8")
        A("v_and_b32 v166, 0xff, v166"); A("v_and_b32 v160, 0xff, v160")
        A("s_movk_i32 s11, 0xff"); A("s_and_b32 s30, s30, 0xffff"); A("s_mov_b32 s10, 0x0c0c0400")
        SG = 136
        CF = 144
        OG = 152
        ol = [f"buffer_load_dwordx2 {v2(OG+2*s)}, v1, s[12:15], s{39 if s < 2 else 48} offen offset:{2048*(s&1)}{pol}" for s in range(4)]
        stl = [f"buffer_load_dwordx4 {v4(SG+4*s)}, v57, s[12:15], s35 offen offset:{16*s}{pol}" for s in range(2)]
        self.lab("L_tile")
        for q in range(3):
            A(f"s_waitcnt vmcnt({6-2*q})")
            self.perms(PB, WB, pairs=(q,))
        A("s_cmp_eq_u32 s41, 0"); A("s_cbranch_scc0 L_t1")
        A("s_waitcnt vmcnt(0)")
        self.perms(PB, WB, pairs=(3,))
        self.stamp(2); A("s_branch L_mm")
        self.lab("L_t1")
        for l in ol: A(l)
        A(f"s_mov_b32 s38, {self.spin}")
        A("s_waitcnt vmcnt(4)")
        self.perms(PB, WB, pairs=(3,))
        self.stamp(7)
        A("s_branch L_og")
        self.lab("L_ogr")
        if self.osleep: A(f"s_sleep {self.osleep}")
        for l in ol: A(l)
        self.lab("L_og")
        A("s_waitcnt vmcnt(0)")
        A(f"v_xor_b32 v20, s34, v{OG+1}")
        for s in range(1, 4): A(f"v_bitop3_b32 v20, v{OG+1+2*s}, s34, v20 bitop3:0xbe")
        A("s_sub_u32 s38, s38, 1")
        A("v_cmp_ne_u32 vcc, 0, v20")
        A("s_cbranch_scc1 L_ogd")
        A("s_cbranch_vccnz L_ogr")
        self.lab("L_ogd")
        for s in range(4):
            A(f"v_lshlrev_b32 v{24+2*s}, 16, v{OG+2*s}"); A(f"v_and_b32 v{25+2*s}, 0xffff0000, v{OG+2*s}")
        A("s_cmp_lg_u32 s49, 0"); A("s_cbranch_scc1 L_ogn")
        A(f"s_mov_b64 exec, {(1 << self.er) - 1}")
        A(f"buffer_store_dword v129, v135, s[12:15], 0 offen{pol}")
        A("s_mov_b64 exec, -1")
        self.lab("L_ogn")
        self.stamp(8)
        A(f"v_pk_mul_f32 v[24:25], v[24:25], {v2(CF)} op_sel_hi:[1,0]")
        A(f"v_pk_mul_f32 v[28:29], v[28:29], {v2(CF+4)} op_sel_hi:[1,0]")
        A(f"v_pk_fma_f32 v[24:25], v[26:27], {v2(CF+2)}, v[24:25] op_sel_hi:[1,0,1]")
        A(f"v_pk_fma_f32 v[28:29], v[30:31], {v2(CF+6)}, v[28:29] op_sel_hi:[1,0,1]")
        A(f"v_pk_add_f32 v[24:25], v[24:25], v[28:29]")
        A("v_cvt_pk_bf16_f32 v24, v24, v25"); self.nop(2)
        for q in range(4):
            A(f"v_mov_b32_dpp v{XB+q}, v24 quad_perm:[{q},{q},{q},{q}] row_mask:0xf bank_mask:0xf")
        self.nop(2)
        self.lab("L_mm")
        for j in range(8):
            A(f"v_mfma_f32_16x16x32_bf16 {v4(DB+4*j)}, {v4(PB+4*j)}, {v4(XB)}, 0")
        A("s_mov_b64 exec, s[42:43]")
        A("s_cmp_eq_u32 s41, 0")
        for j in range(8):
            A(f"ds_write_b128 v7, {v4(DB+4*j)} offset:{16*j}")
        A("s_cbranch_scc0 L_fin")
        self.cnt(0, "v111")
        A("s_mov_b64 exec, -1")
        rd = [f"ds_read2_b32 {v2(12+2*i)}, v{122+i} offset0:0 offset1:4" for i in range(4)]
        self.ldsspin("c", 0, 4, rd, sleep=0)
        A("v_pk_add_f32 v[12:13], v[12:13], v[14:15]"); A("v_pk_add_f32 v[16:17], v[16:17], v[18:19]")
        A("v_pk_add_f32 v[12:13], v[12:13], v[16:17]")
        A("v_bfi_b32 v164, s11, v166, v12"); A("v_bfi_b32 v165, s11, v167, v13")
        A("buffer_store_dwordx2 v[164:165], v127, s[12:15], s46 offen" + ["", " sc1", " nt", " sc0 sc1"][self.qwt])
        self.stamp(3)
        if self.pretouch:
            A("s_lshl_b32 s3, s32, 2"); A("s_add_u32 s3, s3, s33"); A("s_lshl_b32 s3, s3, 9")
            A("s_lshl_b32 s40, s47, 13"); A("s_add_u32 s3, s3, s40"); A(f"s_add_u32 s3, s3, {OP}")
            A("s_or_b32 s40, s32, s33"); A("s_cbranch_scc1 L_pt")
            A("s_lshl_b32 s40, s47, 7"); A(f"s_add_u32 s40, s40, {SP}")
            A("s_load_dword s49, s[12:13], s40")
            self.lab("L_pt")
            for i in range(4): A(f"s_load_dword s49, s[12:13], s3 offset:{128*i}")
        for i in range(4):
            A(f"v_lshlrev_b32 v{24+2*i}, 16, v{112+i}"); A(f"v_and_b32 v{25+2*i}, 0xffff0000, v{112+i}")
            A(f"v_lshlrev_b32 v{32+2*i}, 16, v{116+i}"); A(f"v_and_b32 v{33+2*i}, 0xffff0000, v{116+i}")
        for i in range(4):
            A(f"v_pk_mul_f32 {v2(24+2*i)}, {v2(24+2*i)}, {v2(32+2*i)}")
        for i in range(4):
            A(f"v_cvt_pk_bf16_f32 v{32+i}, v{24+2*i}, v{25+2*i}")
        for i in range(4):
            A(f"v_lshlrev_b32 v{24+2*i}, 16, v{32+i}"); A(f"v_and_b32 v{25+2*i}, 0xffff0000, v{32+i}")
        A("v_pk_add_f32 v[24:25], v[24:25], v[28:29]"); A("v_pk_add_f32 v[26:27], v[26:27], v[30:31]")
        A("v_pk_add_f32 v[24:25], v[24:25], v[26:27]"); A("v_add_f32 v8, v24, v25")
        for ror in (8, 4, 2, 1):
            self.nop(2); self.dpp("v_add_f32", 8, 8, 8, f"row_ror:{ror}")
        self.allred_rows("v_add_f32", 8, 9)
        A("v_cvt_pk_bf16_f32 v8, v8, v8"); A("v_lshlrev_b32 v8, 16, v8")
        A(f"v_mul_f32 v8, {0xbfb8aa3b}, v8"); A("v_exp_f32 v8, v8"); self.nop(1)
        A("v_add_f32 v8, 1.0, v8"); A("v_rcp_f32 v8, v8"); self.nop(1)
        A("v_cvt_pk_bf16_f32 v8, v8, v8"); A("v_lshlrev_b32 v8, 16, v8")
        A("v_sub_f32 v9, 1.0, v8"); A("v_cvt_pk_bf16_f32 v9, v9, v9"); A("v_lshlrev_b32 v9, 16, v9")
        A("s_lshl_b32 s39, s29, 3"); A("s_add_u32 s39, s39, s28"); A("s_lshl_b32 s39, s39, 2"); A("s_add_u32 s39, s39, s33")
        A("s_cmp_lg_u32 s33, 0"); A("s_cbranch_scc1 L_ng")
        A(f"ds_write_b64 v110, v[8:9] offset:{L_G}")
        self.lab("L_ng")
        A("s_lshl_b32 s39, s39, 4"); A("s_add_u32 s39, s39, s31"); A("s_lshl_b32 s39, s39, 9"); A(f"s_add_u32 s39, s39, {QP}")
        A("s_add_u32 s60, s39, 4096")
        A("s_mov_b32 s63, 0")
        A("v_mov_b32 v18, 0")
        A("v_lshlrev_b32 v19, 11, v6")
        A(f"s_mov_b32 s38, {self.n0}"); A(f"s_mov_b32 s62, {self.spin}")
        self.stamp(13)
        D = self.qdepth
        ld = lambda i: A(f"buffer_load_dwordx2 {v2(40+2*i)}, v19, s[12:15], s39 offen{pol}")
        qg = lambda vo: [f"buffer_load_dwordx2 {v2(24+2*i)}, {vo}, s[12:15], s{39 if i < 2 else 60} offen offset:{2048*(i&1)}{pol}" for i in range(4)]
        for i in range(D - 1):
            ld(i); A(f"s_sleep {self.qsleep}")
        self.lab("L_qf")
        for i in range(D):
            ld((i + D - 1) % D)
            A(f"s_waitcnt vmcnt({D-1})")
            A(f"v_perm_b32 v20, v{41+2*i}, v{40+2*i}, s10")
            A("v_cmp_ne_u32 vcc, s30, v20")
            A("s_cmp_eq_u64 vcc, 0"); A("s_cbranch_scc1 L_qfd")
        self.lab("L_qfr")
        A("s_sub_u32 s38, s38, 1")
        A("s_cbranch_scc0 L_qf")
        A("s_branch L_slow")
        self.lab("L_qfd")
        self.stamp(14)
        for l in qg("v127"): A(l)
        A(f"s_mul_i32 s3, s33, {QH}"); A("v_lshl_add_u32 v16, v0, 2, s3")
        A("v_lshlrev_b32 v1, 11, v4"); A("v_lshl_add_u32 v1, v3, 4, v1")
        A("s_lshl_b32 s48, s44, 17"); A("s_lshl_b32 s3, s33, 15"); A("s_add_u32 s48, s48, s3")
        A("s_lshl_b32 s3, s32, 8"); A("s_add_u32 s48, s48, s3")
        A("s_waitcnt vmcnt(0) lgkmcnt(0)")
        self.untag(24, 166, 8)
        A("v_cmp_ne_u32 vcc, 0, v8"); A("s_cmp_eq_u64 vcc, 0"); A("s_cbranch_scc0 L_qfr")
        self.lab("L_qok")
        A("v_pk_add_f32 v[24:25], v[24:25], v[26:27]"); A("v_pk_add_f32 v[28:29], v[28:29], v[30:31]")
        A("v_pk_add_f32 v[24:25], v[24:25], v[28:29]")
        A("v_cvt_pk_bf16_f32 v17, v24, v25")
        A(f"ds_write_b32 v16, v17 offset:{L_Q}")
        self.cnt(12, "v18")
        A(f"ds_add_u32 v110, v111 offset:{L_F+4}")
        A("s_mov_b64 exec, -1")
        self.stamp(4)
        self.lab("L_vd")
        A(f"ds_read_b32 v2, v110 offset:{L_F+4}")
        A(f"ds_read2_b32 v[134:135], v133 offset0:{(L_F+12)//4 - 256} offset1:{(L_F+16)//4 - 256}")
        A("s_waitcnt lgkmcnt(0)")
        A("v_readfirstlane_b32 s40, v2"); A("v_readfirstlane_b32 s3, v135"); A("v_readfirstlane_b32 s49, v134")
        A("s_andn2_b32 s3, s3, s63"); A("s_cbranch_scc1 L_puby2")
        A("s_cmp_ge_u32 s40, 4"); A("s_cbranch_scc1 L_vdd")
        A("s_sleep 2"); A("s_sub_u32 s62, s62, 1"); A("s_cbranch_scc0 L_vd")
        self.lab("L_vdd")
        A("s_lshl_b32 s3, s33, 5"); A("v_mov_b32 v56, s3")
        self.ldsspin("l2", 20, 8, [f"ds_read_b128 v[40:43], v56 offset:{L_M}", f"ds_read_b128 v[44:47], v56 offset:{L_M+16}",
                                   f"ds_read_b128 v[48:51], v56 offset:{L_L}", f"ds_read_b128 v[52:55], v56 offset:{L_L+16}"], sleep=4)
        A("v_max3_f32 v40, v40, v41, v42"); A("v_max3_f32 v43, v43, v44, v45"); A("v_max3_f32 v40, v40, v46, v47")
        A("v_pk_add_f32 v[48:49], v[48:49], v[52:53]"); A("v_pk_add_f32 v[50:51], v[50:51], v[54:55]")
        A("v_pk_add_f32 v[48:49], v[48:49], v[50:51]"); A("v_add_f32 v48, v48, v49")
        A("v_log_f32 v48, v48"); A("v_max_f32 v40, v40, v43")
        A("s_cmp_lg_u32 s49, 0")
        A("v_add_f32 v128, v40, v48")
        A("s_mov_b64 exec, 1")
        A("s_cbranch_scc1 L_S_y1")
        A("buffer_store_dwordx2 v[128:129], v110, s[12:15], s4 offen")
        self.lab("L_S_y1r")
        A("s_mov_b64 exec, -1")
        A("s_cmp_lg_u32 s49, 0"); A(f"s_cselect_b32 s49, {YD}, 0")
        A("s_lshl_b32 s35, s47, 7"); A(f"s_add_u32 s35, s35, {SP}"); A("s_add_u32 s35, s35, s49")
        A("v_lshlrev_b32 v57, 5, v5")
        self.poll("s", stl, [SG+1, SG+3, SG+5, SG+7], 20, sleep=self.ssleep)
        self.stamp(15)
        A(f"v_max3_f32 v20, v{SG}, v{SG+2}, v{SG+4}"); A(f"v_max_f32 v20, v20, v{SG+6}")
        for s in range(4): A(f"v_sub_f32 v{CF+2*s}, v{SG+2*s}, v20")
        for s in range(4): A(f"v_exp_f32 v{CF+2*s}, v{CF+2*s}")
        self.nop(1)
        A(f"v_add_f32 v20, v{CF}, v{CF+2}"); A(f"v_add_f32 v21, v{CF+4}, v{CF+6}"); A("v_add_f32 v20, v20, v21")
        A("v_rcp_f32 v20, v20"); self.nop(1)
        for s in range(4): A(f"v_mul_f32 v{CF+2*s}, v{CF+2*s}, v20")
        for e in range(8):
            if e == self.wo1: self.ldsspin("w", 24, self.th1, [], sleep=2)
            if e == self.wa: self.ldsspin("w2", 24, self.th2, [], sleep=1)
            if e == self.wo_early: A("s_setprio 0")
            A(f"buffer_load_dwordx4 {v4(WB+4*e)}, v1, s[20:23], s48 offen offset:{1024*(e>>2)}{nt}")
            if e == 3: A("s_sub_u32 s48, s48, 24576")
            elif e < 7: A("s_add_u32 s48, s48, 8192")
        A("s_setprio 3")
        self.stamp(5)
        A("s_lshl_b32 s39, s47, 13"); A("s_lshl_b32 s3, s33, 7"); A("s_add_u32 s39, s39, s3"); A(f"s_add_u32 s39, s39, {OP}")
        A("s_add_u32 s39, s39, s49"); A("s_add_u32 s48, s39, 4096")
        A("v_lshlrev_b32 v1, 9, v5"); A("v_lshl_add_u32 v1, v4, 5, v1"); A("v_lshl_add_u32 v1, v6, 3, v1")
        A("s_lshl_b32 s63, s32, 17"); A(f"s_add_u32 s63, s63, {FP}")
        A("s_lshl_b32 s3, s47, 11"); A("s_add_u32 s46, s63, s3"); A("s_lshl_b32 s3, s33, 9"); A("s_add_u32 s46, s46, s3")
        A("s_mov_b32 s41, 1")
        A("s_and_b32 s49, s44, 3"); A("s_or_b32 s49, s49, s32"); A("s_or_b32 s49, s49, s33")
        A("s_lshr_b32 s3, s47, 2"); A("s_lshl_b32 s3, s3, 10"); A(f"s_add_u32 s3, s3, {EP}"); A("v_lshl_add_u32 v135, v0, 7, s3")
        A("s_barrier")
        self.stamp(6)
        A("s_branch L_tile")
        self.lab("L_fin")
        if self.b4spin:
            self.cnt(28, "v111")
            A("s_mov_b64 exec, -1")
            self.ldsspin("c2", 28, 4, rd, sleep=0)
        else:
            A("s_mov_b64 exec, -1")
            A("s_waitcnt lgkmcnt(0)")
            A("s_barrier")
            for r in rd: A(r)
            A("s_waitcnt lgkmcnt(0)")
        A("v_pk_add_f32 v[12:13], v[12:13], v[14:15]"); A("v_pk_add_f32 v[16:17], v[16:17], v[18:19]")
        A("v_pk_add_f32 v[12:13], v[12:13], v[16:17]")
        A("v_bfi_b32 v12, s11, v160, v12"); A("v_bfi_b32 v13, s11, v161, v13")
        A(f"buffer_store_dwordx2 v[12:13], v127, s[12:15], s46 offen{pol}")
        self.stamp(9)
        self.lab("L_C_exit")
        self.stamp(11)
        if self.stamps: A("s_sleep 127")
        self.stamp_out()
        self.lab("L_end")
        A("s_endpgm")
        self.vz = "v7"
        self.lab("L_S_f")
        A(f"s_cmp_lg_u32 s33, {self.fw}"); A("s_cbranch_scc1 L_S_x")
        A("s_load_dwordx2 s[56:57], s[0:1], 88")
        A("s_mov_b32 s58, 4096"); A("s_mov_b32 s59, 0x20000")
        A("v_lshrrev_b32 v8, 5, v0"); A("v_lshlrev_b32 v8, 2, v8")
        A(f"ds_read_b32 v120, v8 offset:{L_G}")
        A("s_lshl_b32 s47, s29, 3"); A("s_add_u32 s47, s47, s28"); A("s_lshl_b32 s47, s47, 2"); A("s_add_u32 s47, s47, s32")
        A(f"s_add_u32 s32, s31, {self.rm}"); A("s_and_b32 s32, s32, 3")
        A("v_and_b32 v6, 3, v0")
        A("s_lshl_b32 s63, s32, 17"); A(f"s_add_u32 s63, s63, {FP}")
        A("v_lshrrev_b32 v9, 2, v0"); A("v_lshlrev_b32 v121, 11, v9"); A("v_lshl_add_u32 v121, v6, 3, v121")
        A("s_lshl_b32 s3, s47, 5"); A("s_add_u32 s63, s63, s3")
        A("s_add_u32 s60, s63, 0x8000"); A("s_add_u32 s61, s63, 0x10000"); A("s_add_u32 s62, s63, 0x18000")
        A("s_lshr_b32 s45, s47, 4"); A("s_lshl_b32 s45, s45, 10"); A("s_lshl_b32 s3, s32, 8"); A("s_add_u32 s45, s45, s3")
        A("s_and_b32 s3, s47, 15"); A("s_lshl_b32 s3, s3, 4"); A("s_add_u32 s45, s45, s3")
        A("v_lshlrev_b32 v126, 2, v6"); A("v_lshl_add_u32 v126, v4, 1, v126")
        A("v_lshlrev_b32 v134, 10, v0"); A(f"s_mov_b32 s46, {EP}")
        if self.er > self.ed:
            A(f"s_lshr_b32 s3, s2, 3"); A(f"s_and_b32 s3, s3, {self.er // self.ed - 1}"); A(f"s_mul_i32 s3, s3, {128 * self.ed}"); A("s_add_u32 s46, s46, s3")
        A("v_and_b32 v160, 1, v0"); A("v_lshlrev_b32 v160, 4, v160"); A("v_lshrrev_b32 v160, v160, s34")
        A("v_bfe_u32 v161, v160, 8, 8"); A("v_and_b32 v160, 0xff, v160")
        A("s_movk_i32 s11, 0xff"); A("v_mov_b32 v129, s34")
        A("s_lshr_b32 s3, s47, 2"); A("v_cmp_ne_u32 s[6:7], s3, v0")
        if not self.xown: A("s_mov_b64 s[6:7], -1")
        A("s_and_b64 s[6:7], s[6:7], 0xffff")
        if self.b4spin: self.ldsspin("c3", 28, 4, [], sleep=1)
        else:
            A("s_waitcnt lgkmcnt(0)")
            A("s_barrier")
        self.stamp(15)
        if self.fdelay: A(f"s_sleep {self.fdelay}")
        D = self.ed
        el = lambda i: A(f"buffer_load_dword v{40+i}, v134, s[12:15], s46 offen offset:{128 * (i % self.er)}{pol}")
        A("s_mov_b64 exec, s[6:7]")
        A(f"s_mov_b32 s38, {self.spin}")
        for i in range(D - 1):
            el(i); A(f"s_sleep {self.es}")
        self.lab("L_ep")
        for i in range(D):
            el((i + D - 1) % D)
            A(f"s_waitcnt vmcnt({D-1})")
            A(f"v_cmp_ne_u32 vcc, s34, v{40+i}")
            if D == 1: A("s_and_b64 exec, exec, vcc"); A("s_cbranch_scc0 L_epd")
            else: A("s_cmp_eq_u64 vcc, 0"); A("s_cbranch_scc1 L_epd")
        A("s_sub_u32 s38, s38, 1"); A("s_cbranch_scc0 L_ep")
        self.lab("L_epd")
        A("s_mov_b64 exec, -1")
        self.stamp(12)
        if self.edly: A(f"s_sleep {self.edly}")
        self.poll("f", [f"buffer_load_dwordx2 {v2(24+2*i)}, v121, s[12:15], s{(63,60,61,62)[i]} offen{pol}" for i in range(4)],
                  list(range(24, 32)), 36, sleep=self.fsleep, tv=160)
        self.stamp(13)
        if self.stamps: A(f"s_sub_u32 s92, {self.spin}, s38"); A("s_mov_b32 s93, 0")
        A("v_pk_add_f32 v[24:25], v[24:25], v[26:27]"); A("v_pk_add_f32 v[28:29], v[28:29], v[30:31]")
        self.nop(2)
        A("v_permlane32_swap_b32 v24, v28"); A("v_permlane32_swap_b32 v25, v29")
        A("v_pk_add_f32 v[24:25], v[24:25], v[28:29]"); self.nop(2)
        A("v_permlane16_swap_b32 v24, v25")
        A("v_add_f32 v24, v24, v25"); self.nop(2)
        self.dpp("v_add_f32", 24, 24, 24, "row_ror:4"); self.nop(2)
        self.dpp("v_add_f32", 24, 24, 24, "row_ror:8")
        A("v_cvt_pk_bf16_f32 v24, v24, v24"); A("v_lshlrev_b32 v24, 16, v24")
        A("v_mul_f32 v24, v24, v120")
        A("v_cvt_pk_bf16_f32 v24, v24, v24"); A("v_lshlrev_b32 v24, 16, v24")
        A("v_mov_b32 v25, v24"); self.nop(2)
        A("v_permlane32_swap_b32 v24, v25")
        A("v_add_f32 v24, v24, v25")
        A("v_cvt_pk_bf16_f32 v24, v24, v24")
        A("s_mov_b64 exec, 0x000f000f")
        A("buffer_store_short v24, v126, s[56:59], s45 offen")
        A("s_cmp_eq_u32 s2, 0"); A("s_cbranch_scc1 L_S_w")
        if self.stamps: A("s_branch L_S_x")
        else: A("s_endpgm")
        self.lab("L_S_w")
        A("s_mov_b64 exec, 1")
        A("buffer_store_dword v129, v7, s[12:15], 0 offen")
        A("s_branch L_S_x")
        self.lab("L_last")
        self.lab("L_S_y1")
        A(f"s_add_u32 s4, s4, {YD}")
        A(f"buffer_store_dwordx2 v[128:129], v110, s[12:15], s4 offen{pol}")
        A("s_branch L_S_y1r")
        self.lab("L_S_y2")
        A(f"s_add_u32 s46, s46, {YD}")
        A(f"buffer_store_dwordx2 {v2(SB+12)}, v{SB+11}, s[12:15], s46 offen{pol}")
        A("s_branch L_S_x")
        def puby():
            A(f"s_add_u32 s3, s46, {YD}")
            A(f"buffer_store_dwordx2 v[164:165], v127, s[12:15], s3 offen{pol}")
            A("s_mov_b32 s63, 1")
        self.lab("L_puby2")
        puby()
        A("s_branch L_vd")
        self.lab("L_slow")
        A("s_cmp_lg_u32 s63, 0"); A("s_cbranch_scc1 L_slow2")
        A(f"ds_write_b32 v110, v111 offset:{L_F+16}")
        puby()
        self.lab("L_slow2")
        A(f"v_add_u32 v9, {YD}, v127")
        for l in qg("v9"): A(l)
        A("v_and_b32 v9, 1, v0"); A("v_mul_u32_u24 v9, 15, v9"); A("v_or_b32 v9, 0xf0, v9")
        A("s_waitcnt vmcnt(0)")
        A("v_xor_b32 v8, v166, v24"); A("v_xor_b32 v10, v167, v25")
        for r in range(26, 32): A(f"v_bitop3_b32 v{8 + 2*(r & 1)}, v{r}, v{166 + (r & 1)}, v{8 + 2*(r & 1)} bitop3:0xbe")
        A("v_and_b32 v10, 0xff, v10"); A("v_and_or_b32 v9, v8, v9, v10"); A("v_and_b32 v10, 15, v8")
        A("s_mov_b32 s38, 0")
        A("v_cmp_ne_u32 vcc, 0, v9"); A("s_cmp_eq_u64 vcc, 0"); A("s_cbranch_scc1 L_slow3")
        A("s_sleep 8")
        A("s_sub_u32 s62, s62, 1"); A("s_cbranch_scc0 L_qf")
        self.lab("L_slow3")
        for r in range(24, 32): A(f"v_and_b32 v{r}, 0xffffff00, v{r}")
        A("v_cmp_ne_u32 vcc, 0, v10"); A("s_cmp_lg_u64 vcc, 0")
        A("s_cselect_b32 s3, 1, 0"); A("v_mov_b32 v18, s3")
        A(f"s_mul_i32 s3, s33, {QH}"); A("v_lshl_add_u32 v16, v0, 2, s3")
        A("v_lshlrev_b32 v1, 11, v4"); A("v_lshl_add_u32 v1, v3, 4, v1")
        A("s_lshl_b32 s48, s44, 17"); A("s_lshl_b32 s3, s33, 15"); A("s_add_u32 s48, s48, s3")
        A("s_lshl_b32 s3, s32, 8"); A("s_add_u32 s48, s48, s3")
        A("s_waitcnt lgkmcnt(0)")
        A("s_branch L_qok")
        L.append('.section .rodata,"a"'); L.append(".p2align 6"); L.append(f".amdhsa_kernel {KN}")
        L.append("  .amdhsa_next_free_vgpr 168"); L.append("  .amdhsa_next_free_sgpr 96"); L.append("  .amdhsa_accum_offset 168")
        L.append("  .amdhsa_group_segment_fixed_size 0"); L.append("  .amdhsa_kernarg_size 112"); L.append("  .amdhsa_user_sgpr_count 2")
        L.append("  .amdhsa_user_sgpr_kernarg_segment_ptr 1"); L.append("  .amdhsa_system_sgpr_workgroup_id_x 1")
        L.append("  .amdhsa_float_denorm_mode_32 3")
        L.append(".end_amdhsa_kernel")
        return "\n".join(L) + "\n"

if __name__ == "__main__":
    out = sys.argv[1]
    kw = {}
    for a in sys.argv[2:]:
        k, v = a.split("=")
        kw[k] = v.replace("+", " ") if k in ("pol", "pat", "pat2") else int(v)
    open(out, "w").write(G(**kw).gen())
```

```python
import sys
KN = "gated_mix__sliding_block_cached__sliding_block_cached__decode_kernel"
HDR = open("gated_mix__sliding_block_cached__sliding_block_cached__decode.s.ref").read().split("; Override launch")[0]

FL = 0x1000
YD = 0x400000
OP = 0x100000
SP = 0xC0000
EP = 0xD0000
QP = 0x100000
FP = 0x180000
WS_BYTES = 0x600000
STAMP_OFF = 0x4000000
L_Q = 0
QH = 272
L_M = 1280
L_L = 1408
L_F = 1536
L_O = 2048
L_R = L_O + 8*2112
LDS_BYTES = L_R + 4*2112
LOG2E = 0x3fb8aa3b
SCALE = 0x3db504f3
NS = 16

class G:
    def __init__(self, **kw):
        d = dict(padk=-1, pad=0, stamps=0, nt=1, pol="sc1", spin=1 << 16, pf=1, wo_early=0, qsleep=12, forcey=0, pretouch=0,
                 n0=8, qdepth=4, lsplit=1, osleep=0, fsleep=0, b4spin=0, fdelay=0, eta=1, edly=0, tx=0, rm=2, N=3, rot=1, lan=1, qpos=3, wj=31, pat='x0x11x', cw=3, up=99, wo1=0, wj2=32, wa=2, th1=8, th2=16, opos=3, pr=0, tlbs=0, tlbv=0, lean=1, xdirty=0, qwt=0, owt=0, xperm=0, b0late=0, ed=1, es=4, early=0, ldly=0, ssleep=8, ovl=1, pat2='', lup=99, wbl=0, wqr=0, er=1)
        d.update(kw)
        self.__dict__.update(d)
        self.L = []
        self.nt = " nt" if self.nt else ""
        self.pol = " " + self.pol
    def A(self, s): self.L.append("    " + s)
    def lab(self, s): self.L.append(s + ":")
    def nop(self, n):
        while n > 0:
            k = min(n, 16); self.A(f"s_nop {k-1}"); n -= k
    def stamp(self, i):
        if self.padk == i: self.A("s_memrealtime s[92:93]")
        if self.stamps: self.A(f"s_memrealtime s[{64+2*i}:{65+2*i}]")
    def stamp_out(self):
        if not self.stamps: return
        A = self.A
        A("s_waitcnt lgkmcnt(0)")
        A("s_mul_i32 s60, s2, 12"); A("s_add_u32 s60, s60, s33"); A(f"s_mul_i32 s60, s60, {NS*8}")
        A(f"s_add_u32 s60, s60, {STAMP_OFF}")
        A("s_add_u32 s62, s12, s60"); A("s_addc_u32 s63, s13, 0")
        A("s_mov_b64 exec, 1"); A("v_mov_b32 v4, 0")
        for i in range(NS):
            A(f"v_mov_b32 v2, s{64+2*i}"); A(f"v_mov_b32 v3, s{65+2*i}")
            A(f"global_store_dwordx2 v4, v[2:3], s[62:63] offset:{i*8}"); A("s_nop 1")
    def v4(self, r): return f"v[{r}:{r+3}]"
    def v2(self, r): return f"v[{r}:{r+1}]"
    def perms(self, dst, src, pairs=(0, 1, 2, 3)):
        for q in pairs:
            for w in range(4):
                for hh in range(2):
                    j = 2*w + hh
                    self.A(f"v_perm_b32 v{dst+4*j+q}, v{src+4*(2*q+1)+w}, v{src+4*(2*q)+w}, s{36+hh}")
    def allred_rows(self, op, v, t):
        A = self.A
        A(f"v_mov_b32 v{t}, v{v}"); self.nop(2)
        A(f"v_permlane32_swap_b32 v{v}, v{t}")
        A(f"{op} v{v}, v{v}, v{t}")
        A(f"v_mov_b32 v{t}, v{v}"); self.nop(2)
        A(f"v_permlane16_swap_b32 v{v}, v{t}")
        A(f"{op} v{v}, v{v}, v{t}")
    def dpp(self, op, d, a, b, ctl):
        self.A(f"{op}_dpp v{d}, v{a}, v{b} {ctl} row_mask:0xf bank_mask:0xf")
    def poll(self, name, loads, tagregs, acc, first_issued=False, sleep=0, tv=None):
        A = self.A
        A(f"s_mov_b32 s38, {self.spin}")
        if first_issued: A(f"s_branch L_chk_{name}")
        elif sleep: A(f"s_branch L_ld_{name}")
        self.lab(f"L_poll_{name}")
        if sleep: A(f"s_sleep {sleep}")
        self.lab(f"L_ld_{name}")
        for l in loads: A(l)
        self.lab(f"L_chk_{name}")
        A("s_waitcnt vmcnt(0)")
        if tv is None:
            A(f"v_xor_b32 v{acc}, s34, v{tagregs[0]}")
            for r in tagregs[1:]:
                A(f"v_bitop3_b32 v{acc}, v{r}, s34, v{acc} bitop3:0xbe")
        else: self.untag(tagregs[0], tv, acc)
        A("s_sub_u32 s38, s38, 1")
        A(f"v_cmp_ne_u32 vcc, 0, v{acc}")
        A("s_cselect_b64 s[50:51], 0, -1")
        if tv is not None: A("s_wqm_b64 vcc, vcc")
        A("s_and_b64 exec, vcc, s[50:51]")
        A(f"s_cbranch_scc1 L_poll_{name}")
        A("s_mov_b64 exec, -1")
    def untag(self, r0, tv, acc):
        A = self.A
        for r in range(r0, r0 + 8): A(f"v_xor_b32 v{r}, v{tv + (r & 1)}, v{r}")
        A(f"v_or3_b32 v{acc}, v{r0}, v{r0+1}, v{r0+2}"); A(f"v_or3_b32 v{acc+1}, v{r0+3}, v{r0+4}, v{r0+5}")
        A(f"v_or3_b32 v{acc}, v{acc}, v{r0+6}, v{r0+7}")
        A(f"v_bitop3_b32 v{acc}, v{acc}, v{acc+1}, s11 bitop3:0xa8")
    def ldsspin(self, name, off, target, reads, sleep=1):
        A = self.A
        A(f"s_mov_b32 s38, {self.spin * 16}")
        if sleep: A(f"s_branch L_spl_{name}")
        self.lab(f"L_sp_{name}")
        if sleep: A(f"s_sleep {sleep}")
        self.lab(f"L_spl_{name}")
        A(f"ds_read_b32 v2, {self.vz} offset:{L_F+off}")
        for r in reads: A(r)
        A("s_sub_u32 s38, s38, 1")
        A("s_cselect_b32 s3, 0, -1")
        A("s_waitcnt lgkmcnt(0)")
        A("v_readfirstlane_b32 s40, v2")
        A("s_orn2_b32 s40, s40, s3")
        A(f"s_cmp_lt_u32 s40, {target}")
        A(f"s_cbranch_scc1 L_sp_{name}")
    def cnt(self, off, one):
        A = self.A
        A("s_mov_b64 exec, 1")
        A(f"ds_add_u32 {self.vz}, {one} offset:{L_F+off}")
    def vissue(self, VB, p):
        for T in (2*p, 2*p+1):
            for e in range(4):
                self.A(f"buffer_load_dwordx4 {self.v4(VB+16*T+4*e)}, v5, s[8:11], s35 offen offset:{256*e}{self.nt}")
            if T < 3: self.A("s_add_u32 s35, s35, 16384")
    def mspin(self, name, B, d):
        A = self.A
        self.ldsspin(name, 8, 8, [f"ds_read_b128 {self.v4(B)}, v6 offset:{L_M}", f"ds_read_b128 {self.v4(B+4)}, v6 offset:{L_M+16}"], sleep=2)
        A(f"v_max3_f32 v{B}, v{B}, v{B+1}, v{B+2}")
        A(f"v_max3_f32 v{B+3}, v{B+3}, v{B+4}, v{B+5}")
        A(f"v_max3_f32 v{B}, v{B}, v{B+6}, v{B+7}")
        A(f"v_max_f32 v{d}, v{B}, v{B+3}")

    def gen(self):
        A = self.A; nt = self.nt; pol = self.pol; v4 = self.v4; v2 = self.v2
        OP = 0x100000 if self.ovl else 0x40000
        L = self.L
        L.append(HDR.rstrip("\n"))
        L.append(f"; @launch grid=(256,1,1) block=(768,1,1) lds={LDS_BYTES}")
        L.append('.amdgcn_target "amdgcn-amd-amdhsa--gfx950"')
        L.append(".text"); L.append(f".globl {KN}"); L.append(".p2align 12"); L.append(".p2align 8"); L.append(f".type {KN},@function"); L.append(f"{KN}:")
        self.stamp(0)
        if self.pad: A("s_memrealtime s[90:91]")
        if self.stamps:
            for i in range(1, NS): A(f"s_mov_b64 s[{64+2*i}:{65+2*i}], 0")
        if self.xperm == 1:
            A("s_lshr_b32 s3, s2, 3"); A("s_and_b32 s29, s2, 7"); A("s_lshl_b32 s29, s29, 5"); A("s_or_b32 s2, s3, s29")
        if self.xperm == 2:
            A("s_xor_b32 s3, s2, 1"); A("s_and_b32 s29, s2, 0xf8"); A("s_cmp_eq_u32 s29, 0x48"); A("s_cselect_b32 s2, s3, s2")
        A("s_bfe_u32 s29, s2, 0x10002")
        A("s_mul_i32 s3, s29, 40")
        A("s_cmp_ge_u32 s2, 256"); A("s_cbranch_scc1 L_end")
        A("s_load_dwordx2 s[16:17], s[0:1], s3 offset:24")
        A("s_load_dwordx2 s[24:25], s[0:1], 0")
        A("s_load_dwordx2 s[4:5], s[0:1], s3 offset:8")
        A("s_load_dwordx2 s[8:9], s[0:1], s3 offset:16")
        A("s_load_dwordx2 s[12:13], s[0:1], 104")
        A("v_lshrrev_b32 v1, 6, v0")
        A("s_lshr_b32 s30, s2, 3")
        if self.tx: A(f"s_xor_b32 s30, s30, {self.tx}")
        A("v_readfirstlane_b32 s33, v1")
        A("s_and_b32 s28, s2, 3"); A("s_lshl_b32 s28, s28, 1"); A("s_lshr_b32 s31, s30, 4"); A("s_or_b32 s28, s28, s31")
        A("s_bfe_u32 s31, s30, 0x20002"); A("s_and_b32 s32, s30, 3")
        A("v_and_b32 v0, 63, v0")
        A("v_and_b32 v3, 15, v0")
        A("v_lshrrev_b32 v4, 4, v0")
        A("v_bfe_u32 v5, v0, 2, 2")
        A("v_and_b32 v6, 3, v0")
        A("s_cmp_ge_u32 s33, 4"); A("s_cbranch_scc1 L_S")
        WB, PB, DB, XB = 8, 40, 72, 104
        A("s_setprio 3")
        if self.pf:
            A("s_getpc_b64 s[42:43]")
            if self.lean:
                A("s_lshl_b32 s3, s33, 11"); A("v_lshl_add_u32 v12, v3, 7, s3"); A("s_mov_b64 exec, 0xffff")
            else: A("v_lshlrev_b32 v12, 7, v0")
            A("v_min_u32 v12, L_last-L_pfbase, v12")
            self.lab("L_pfbase")
            A("global_load_dword v108, v12, s[42:43]")
            if self.lean: A("s_mov_b64 exec, -1"); A("s_mul_i32 s3, s29, 40")
        A("s_mov_b32 s18, 0x400000"); A("s_mov_b32 s19, 0x20000")
        A("s_mov_b32 s26, 4096"); A("s_mov_b32 s27, 0x20000")
        A("v_lshlrev_b32 v1, 16, v4"); A("v_lshl_add_u32 v1, v3, 4, v1")
        if self.wqr:
            A("v_lshl_add_u32 v1, v4, 13, v1")
            for e in range(1, self.cw): A(f"v_xor_b32 v{64+e}, {e << 13}, v1")
        def wql(e):
            if self.wqr:
                if e >= self.cw: A(f"v_xor_b32 v{64+e}, {e << 13}, v1")
                A(f"buffer_load_dwordx4 {v4(WB+4*e)}, v{64+e if e else 1}, s[16:19], s35 offen{nt}")
            else:
                A(f"buffer_load_dwordx4 {v4(WB+4*e)}, v1, s[16:19], s35 offen{nt}")
                if e < 7: A("s_add_u32 s35, s35, 8192")
        A("v_lshlrev_b32 v2, 10, v5"); A("v_lshl_add_u32 v2, v4, 4, v2")
        A("s_lshl_b32 s44, s28, 2"); A("s_add_u32 s44, s44, s31")
        A("s_lshl_b32 s39, s32, 2"); A("s_add_u32 s39, s39, s33")
        A("s_lshl_b32 s35, s39, 18"); A("s_lshl_b32 s45, s44, 8"); A("s_add_u32 s35, s35, s45")
        A("s_lshl_b32 s39, s39, 6")
        A("s_waitcnt lgkmcnt(0)")
        self.stamp(1)
        A(f"buffer_load_dwordx4 {v4(136 if self.wqr else XB)}, v2, s[24:27], s39 offen")
        for e in range(self.cw): wql(e)
        A("v_mov_b32 v112, 0"); A("v_mov_b32 v113, 0"); A("v_mov_b32 v114, 0"); A("v_mov_b32 v115, 0")
        A(f"ds_write_b128 v112, v[112:115] offset:{L_F}")
        A(f"ds_write_b128 v112, v[112:115] offset:{L_F+16}")
        A("s_waitcnt lgkmcnt(0)")
        A("s_barrier")
        A("s_branch L_C")
        self.lab("L_S")
        KB, VB, QB, SB = 8, 72, 136, 152
        self.vz = "v7"
        esh = 10 if self.lan else 8
        A("s_setprio 1")
        A("s_mov_b32 s6, 0x4000000"); A("s_mov_b32 s7, 0x20000")
        A("s_mov_b32 s10, 0x4000000"); A("s_mov_b32 s11, 0x20000")
        A("s_lshl_b32 s35, s31, 3"); A("s_add_u32 s35, s35, s28"); A("s_lshl_b32 s35, s35, 4"); A("s_add_u32 s35, s35, s32")
        A("s_lshl_b32 s35, s35, 5"); A("s_add_u32 s35, s35, s33")
        A("s_lshl_b32 s35, s35, 12"); A(f"s_add_u32 s35, s35, {0x180000 - 4*4096}")
        if self.rot & 1: A(f"s_lshl_b32 s3, s32, {esh}"); A("s_add_u32 s35, s35, s3")
        if self.rot & 2: A("s_and_b32 s3, s2, 7"); A("s_lshl_b32 s3, s3, 12"); A("s_xor_b32 s35, s35, s3")
        A(f"v_lshlrev_b32 v1, {18-esh}, v5"); A("v_lshl_add_u32 v1, v4, 6, v1"); A("v_lshl_add_u32 v1, v6, 4, v1")
        A(f"v_mul_u32_u24 v2, {QH}, v6"); A("v_lshl_add_u32 v2, v4, 6, v2"); A(f"v_lshl_add_u32 v{QB+12}, v5, 4, v2")
        A("v_lshlrev_b32 v5, 4, v3"); A(f"v_lshl_add_u32 v5, v4, {18-esh}, v5")
        if self.pr == 1:
            A("s_cmp_lt_u32 s33, 8"); A("s_cbranch_scc1 L_pr1"); A("s_setprio 2"); self.lab("L_pr1")
        if not self.b0late: A("s_barrier")
        A("s_waitcnt lgkmcnt(0)")
        self.stamp(1)
        st = dict(i=0)
        def trig(i):
            if i in (self.wj, self.wj2):
                self.cnt(24, f"v{QB+15}"); A("s_mov_b64 exec, -1")
        def nxt(k=1):
            for _ in range(k):
                i = st["i"]; st["i"] += 1
                n = self.N + (1 if i >= self.up else 0)
                wt = lambda p: (None if p[i] == "x" else int(p[i])) if i < len(p) else (n - 1 if i >= n else None)
                w1 = wt(self.pat); w2 = wt(self.pat2) if self.pat2 else w1
                if i == self.lup: w2 = n
                if w1 == w2:
                    if w1 is not None: A(f"s_waitcnt vmcnt({w1})")
                else:
                    A("s_cmp_ge_u32 s33, 8"); A(f"s_cbranch_scc1 L_p{i}")
                    if w1 is not None: A(f"s_waitcnt vmcnt({w1})")
                    if w2 is not None and (w1 is None or w2 < w1):
                        A(f"s_branch L_q{i}"); self.lab(f"L_p{i}"); A(f"s_waitcnt vmcnt({w2})"); self.lab(f"L_q{i}")
                    else:
                        self.lab(f"L_p{i}")
                        if w2 is not None: A(f"s_waitcnt vmcnt({w2})")
                if self.pr == 2: A(f"s_setprio {2 - i % 3}")
                if self.pr == 3: A(f"s_setprio {1 - i % 2}")
                T, e = (i >> 2) & 3, i & 3
                so = "s35"
                if T or e: A(f"s_xor_b32 s39, s35, {T*32768 + (e << esh)}"); so = "s39"
                if i < 16: A(f"buffer_load_dwordx4 {v4(KB+4*i)}, v1, s[4:7], {so} offen{nt}")
                else: A(f"buffer_load_dwordx4 {v4(VB+4*(i-16))}, v5, s[8:11], {so} offen{nt}")
                trig(i)
                if self.xdirty and i == 8:
                    A("s_mov_b32 s14, 0x4000000")
                    A("s_lshl_b32 s46, s2, 3"); A("s_add_u32 s46, s46, s33"); A(f"s_mul_i32 s46, s46, {self.xdirty*1024}"); A("s_add_u32 s46, s46, 0x800000")
                    A(f"v_lshlrev_b32 v{SB}, 4, v0")
                    for k in range(self.xdirty): A(f"buffer_store_dwordx4 v[0:3], v{SB}, s[12:15], s46 offen offset:{1024*k}")
        def upto(j):
            while st["i"] <= j: nxt()
        nxt(len(self.pat) - len(self.pat.lstrip("x")) if self.pat else self.N)
        A("s_load_dword s34, s[12:13], 0")
        A(f"s_mov_b32 s14, {WS_BYTES}"); A("s_mov_b32 s15, 0x20000")
        A("s_mov_b32 s36, 0x05040100"); A("s_mov_b32 s37, 0x07060302")
        A("v_mov_b32 v7, 0")
        A(f"v_mov_b32 v{QB+15}, 1")
        A("v_lshlrev_b32 v6, 5, v6"); A("s_lshl_b32 s3, s33, 2"); A("s_sub_u32 s3, s3, 16"); A("v_add_u32 v3, s3, v6")
        A(f"v_and_b32 v{QB+13}, 3, v0"); A(f"v_mul_u32_u24 v{QB+13}, 528, v{QB+13}"); A(f"v_lshl_add_u32 v{QB+13}, v4, 7, v{QB+13}")
        A("s_mul_i32 s3, s33, 2112"); A(f"s_add_u32 s3, s3, {L_O - 4*2112}"); A(f"v_add_u32 v{QB+13}, s3, v{QB+13}")
        A("s_mov_b32 s42, 0x000f000f"); A("s_mov_b32 s43, 0x000f000f")
        if self.b0late: A("s_barrier")
        upto(15)
        self.stamp(2)
        upto(15 + self.qpos)
        A(f"s_waitcnt vmcnt({self.qpos})")
        self.stamp(3)
        self.ldsspin("q", 4, 4, [f"ds_read_b128 {v4(QB)}, v{QB+12} offset:{L_Q}"], sleep=4)
        self.stamp(4)
        Dj = lambda j: (QB + 4 + 4*j) if j < 2 else (KB + 4*(j-2))
        for j in range(16):
            A(f"v_mfma_f32_16x16x32_bf16 {v4(Dj(j))}, {v4(KB+4*j)}, {v4(QB)}, 0")
        A(f"s_mov_b32 s40, {SCALE}"); A(f"s_mov_b32 s41, {LOG2E}")
        A("s_mul_i32 s34, s34, 1664525"); A("s_add_u32 s34, s34, 1013904223")
        nxt()
        for j in range(16): self.dpp("v_add_f32", SB+j, Dj(j)+1, Dj(j), "row_ror:12")
        for j in range(16): self.dpp("v_add_f32", SB+j, Dj(j)+2, SB+j, "row_ror:8")
        for j in range(16): self.dpp("v_add_f32", SB+j, Dj(j)+3, SB+j, "row_ror:4")
        for i in range(8):
            A(f"v_cvt_pk_bf16_f32 v{QB+i}, v{SB+2*i}, v{SB+2*i+1}")
        for i in range(8):
            A(f"v_lshlrev_b32 v{SB+2*i}, 16, v{QB+i}"); A(f"v_and_b32 v{SB+2*i+1}, 0xffff0000, v{QB+i}")
        nxt()
        for i in range(8):
            A(f"v_pk_mul_f32 {v2(SB+2*i)}, {v2(SB+2*i)}, s[40:41] op_sel_hi:[1,0]")
        for i in range(8):
            A(f"v_cvt_pk_bf16_f32 v{QB+i}, v{SB+2*i}, v{SB+2*i+1}")
        for i in range(8):
            A(f"v_lshlrev_b32 v{SB+2*i}, 16, v{QB+i}"); A(f"v_and_b32 v{SB+2*i+1}, 0xffff0000, v{QB+i}")
        A(f"v_max3_f32 v1, v{SB}, v{SB+1}, v{SB+2}")
        A(f"v_max3_f32 v2, v{SB+3}, v{SB+4}, v{SB+5}")
        A(f"v_max3_f32 v1, v1, v{SB+6}, v{SB+7}")
        A(f"v_max3_f32 v2, v2, v{SB+8}, v{SB+9}")
        A(f"v_max3_f32 v1, v1, v{SB+10}, v{SB+11}")
        A(f"v_max3_f32 v2, v2, v{SB+12}, v{SB+13}")
        A(f"v_max3_f32 v1, v1, v{SB+14}, v{SB+15}")
        A("v_max_f32 v1, v1, v2")
        self.allred_rows("v_max_f32", 1, 2)
        A("v_mul_f32 v1, s41, v1")
        A("s_mov_b64 exec, 15")
        A(f"ds_write_b32 v3, v1 offset:{L_M}")
        self.cnt(8, f"v{QB+15}")
        A("s_mov_b64 exec, -1")
        self.stamp(5)
        nxt()
        self.stamp(6)
        self.mspin("m", QB, 1)
        for i in range(16):
            A(f"v_fma_f32 v{SB+i}, v{SB+i}, s41, -v1")
        for i in range(16):
            A(f"v_exp_f32 v{SB+i}, v{SB+i}")
        nxt()
        for i in range(8):
            A(f"v_cvt_pk_bf16_f32 v{QB+i}, v{SB+2*i}, v{SB+2*i+1}")
        for i in range(4):
            A(f"v_pk_add_f32 {v2(SB+2*i)}, {v2(SB+2*i)}, {v2(SB+8+2*i)}")
        for i in range(2):
            A(f"v_pk_add_f32 {v2(SB+2*i)}, {v2(SB+2*i)}, {v2(SB+4+2*i)}")
        A(f"v_pk_add_f32 {v2(SB)}, {v2(SB)}, {v2(SB+2)}")
        A(f"v_add_f32 v{SB+8}, v{SB}, v{SB+1}")
        self.allred_rows("v_add_f32", SB+8, SB)
        OB, P0, P1 = 8, 40, 72
        A("s_mov_b64 exec, 15")
        A(f"ds_write_b32 v3, v{SB+8} offset:{L_L}")
        self.cnt(20, f"v{QB+15}")
        A("s_mov_b64 exec, -1")
        self.stamp(7)
        def need(j):
            upto(min(31, j + self.N + (1 if j + self.N + 1 >= self.up else 0)))
            A(f"s_waitcnt vmcnt({st['i'] - 1 - j})")
        need(23)
        self.perms(P0, VB, pairs=(0, 1))
        if st["i"] < 32: nxt()
        self.perms(P0, VB, pairs=(2, 3))
        for j in range(8):
            A(f"v_mfma_f32_16x16x32_bf16 {v4(OB+4*j)}, {v4(P0+4*j)}, {v4(QB)}, 0")
        self.stamp(8)
        need(25)
        self.perms(P1, VB+32, pairs=(0,))
        A("s_cmp_ge_u32 s33, 8"); A("s_cbranch_scc1 L_S_nr")
        A("s_mul_i32 s3, s33, 528"); A(f"s_add_u32 s3, s3, {L_O - 4*528}")
        A(f"v_lshl_add_u32 v{SB+9}, v0, 3, s3")
        A("s_lshl_b32 s3, s33, 5"); A("s_sub_u32 s3, s3, 128"); A(f"v_mov_b32 v{SB+10}, s3")
        A("s_lshl_b32 s3, s29, 3"); A("s_add_u32 s3, s3, s28"); A("s_lshl_b32 s3, s3, 2"); A("s_add_u32 s3, s3, s33"); A("s_sub_u32 s3, s3, 4")
        A("s_lshl_b32 s3, s3, 2"); A("s_add_u32 s3, s3, s32"); A("s_lshl_b32 s3, s3, 2"); A("s_add_u32 s3, s3, s31")
        A("s_lshl_b32 s46, s3, 9"); A(f"s_add_u32 s46, s46, {OP}")
        A(f"v_lshlrev_b32 v{SB+11}, 3, v0")
        A(f"v_mov_b32 v{SB+13}, s34")
        self.ldsspin("l", 20, 8, [f"ds_read_b128 {v4(SB)}, v{SB+10} offset:{L_L}", f"ds_read_b128 {v4(SB+4)}, v{SB+10} offset:{L_L+16}",
                                  f"ds_read_b32 v1, v7 offset:{L_F+12}"], sleep=2)
        A("v_readfirstlane_b32 s45, v1")
        A(f"v_pk_add_f32 {v2(SB)}, {v2(SB)}, {v2(SB+4)}"); A(f"v_pk_add_f32 {v2(SB+2)}, {v2(SB+2)}, {v2(SB+6)}")
        A(f"v_pk_add_f32 {v2(SB)}, {v2(SB)}, {v2(SB+2)}")
        A(f"v_add_f32 v{SB+14}, v{SB}, v{SB+1}")
        A(f"v_rcp_f32 v{SB+14}, v{SB+14}")
        self.lab("L_S_nr")
        for q in range(1, 4):
            if q == 3 and 33 in (self.wj, self.wj2):
                need(30); trig(33)
            need(25 + 2*q)
            if q == 2: trig(32)
            if q == 3: trig(34); A("s_setprio 3"); self.stamp(9)
            self.perms(P1, VB+32, pairs=(q,))
        for j in range(8):
            A(f"v_mfma_f32_16x16x32_bf16 {v4(OB+4*j)}, {v4(P1+4*j)}, {v4(QB+4)}, {v4(OB+4*j)}")
        A("s_mov_b64 exec, s[42:43]")
        A("s_cmp_ge_u32 s33, 8")
        for j in range(8):
            A(f"ds_write_b128 v{QB+13}, {v4(OB+4*j)} offset:{16*j}")
        A("s_mov_b64 exec, -1")
        A("s_waitcnt lgkmcnt(0)")
        A("s_barrier")
        self.stamp(10)
        A("s_cbranch_scc1 L_S_x")
        for w in range(8): A(f"ds_read_b64 {v2(8+2*w)}, v{SB+9} offset:{2112*w}")
        A("s_waitcnt lgkmcnt(0)")
        for w in (0, 1, 2, 3):
            A(f"v_pk_add_f32 {v2(8+2*w)}, {v2(8+2*w)}, {v2(16+2*w)}")
        A("v_pk_add_f32 v[8:9], v[8:9], v[12:13]"); A("v_pk_add_f32 v[10:11], v[10:11], v[14:15]")
        A("s_cmp_lg_u32 s45, 0")
        A("v_pk_add_f32 v[8:9], v[8:9], v[10:11]")
        A(f"v_pk_mul_f32 v[8:9], v[8:9], {v2(SB+14)} op_sel_hi:[1,0]")
        A(f"v_cvt_pk_bf16_f32 v{SB+12}, v8, v9")
        A("s_cbranch_scc1 L_S_y2")
        A(f"buffer_store_dwordx2 {v2(SB+12)}, v{SB+11}, s[12:15], s46 offen" + ["", " sc1", " nt", " sc0 sc1"][self.owt])
        self.lab("L_S_x")
        self.stamp(11)
        if self.stamps: A("s_sleep 127"); A("s_sleep 127")
        self.stamp_out()
        A("s_endpgm")
        self.lab("L_C")
        self.vz = "v110"
        A("s_load_dword s34, s[12:13], 0")
        A("s_load_dwordx2 s[20:21], s[0:1], s3 offset:32")
        A("s_load_dwordx2 s[52:53], s[0:1], 80")
        A("s_load_dwordx2 s[56:57], s[0:1], 88")
        A(f"s_mov_b32 s14, {WS_BYTES}"); A("s_mov_b32 s15, 0x20000")
        A("s_mov_b32 s22, 0x400000"); A("s_mov_b32 s23, 0x20000")
        A("s_mov_b32 s36, 0x05040100"); A("s_mov_b32 s37, 0x07060302")
        A("s_mov_b32 s54, 1024"); A("s_mov_b32 s55, 0x20000")
        A("s_mov_b32 s58, 4096"); A("s_mov_b32 s59, 0x20000")
        A("s_lshl_b32 s45, s29, 1"); A("s_lshr_b32 s3, s28, 2"); A("s_add_u32 s45, s45, s3")
        A("v_lshlrev_b32 v109, 4, v0")
        A("s_lshl_b32 s3, s29, 5"); A("s_add_u32 s47, s44, s3")
        A("v_mov_b32 v110, 0"); A("v_mov_b32 v111, 1"); A("v_mov_b32 v133, 1024")
        A("v_lshlrev_b32 v127, 3, v0")
        A("v_mul_u32_u24 v7, 528, v5"); A("v_lshl_add_u32 v7, v4, 7, v7")
        A("s_mul_i32 s3, s33, 2112"); A(f"s_add_u32 s3, s3, {L_R}"); A("v_add_u32 v7, s3, v7")
        A("v_lshlrev_b32 v122, 7, v4"); A("v_lshl_add_u32 v122, v6, 5, v122"); A("v_lshl_add_u32 v122, v5, 2, v122")
        A("s_mul_i32 s3, s33, 528"); A(f"s_add_u32 s3, s3, {L_R}"); A("v_add_u32 v122, s3, v122")
        A("v_add_u32 v123, 2112, v122"); A("v_add_u32 v124, 4224, v122"); A("v_add_u32 v125, 6336, v122")
        A("s_lshl_b32 s46, s47, 2"); A("s_add_u32 s46, s46, s32"); A("s_lshl_b32 s46, s46, 2"); A("s_add_u32 s46, s46, s33")
        A("s_lshl_b32 s46, s46, 9"); A(f"s_add_u32 s46, s46, {QP}")
        A("s_lshl_b32 s4, s29, 3"); A("s_add_u32 s4, s4, s28"); A("s_lshl_b32 s4, s4, 2"); A("s_add_u32 s4, s4, s33")
        A("s_lshl_b32 s4, s4, 2"); A("s_add_u32 s4, s4, s31"); A("s_lshl_b32 s4, s4, 2"); A("s_add_u32 s4, s4, s32")
        A("s_lshl_b32 s4, s4, 3"); A(f"s_add_u32 s4, s4, {SP}")
        if self.rm >= 0:
            A("s_sub_u32 s3, s32, s31"); A("s_add_u32 s44, s44, s3"); A("s_add_u32 s47, s47, s3")
            A(f"s_add_u32 s32, s31, {self.rm}"); A("s_and_b32 s32, s32, 3")
        A("s_mov_b32 s42, 0x11111111"); A("s_mov_b32 s43, 0x11111111")
        A("s_mov_b32 s41, 0")
        A("s_getreg_b32 s30, hwreg(HW_REG_XCC_ID, 0, 4)")
        if self.forcey: A("s_lshr_b32 s30, s2, 3"); A("s_and_b32 s30, s30, 1")
        A("s_lshl_b32 s3, s45, 10")
        A("s_waitcnt lgkmcnt(0)")
        if self.lean: A("s_cmp_eq_u32 s33, 0"); A("s_cselect_b64 exec, -1, 1")
        A("buffer_load_dwordx4 v[112:115], v109, s[24:27], s3 offen")
        A("buffer_load_dwordx4 v[116:119], v109, s[52:55], 0 offen")
        if self.lean: A("s_mov_b64 exec, -1")
        for e in range(self.cw, 8):
            A(f"s_waitcnt vmcnt({self.cw-1 + (2 if e < 2*self.cw else 0)})")
            wql(e)
        if self.wqr:
            A("s_mov_b32 s3, 0x02020202"); A("v_mul_lo_u32 v140, v4, s3"); A("v_xor_b32 v140, 0x03020100, v140")
            for q in range(4): A(f"v_perm_b32 v{XB+q}, v{136 + (q ^ 1)}, v{136 + q}, v140")
        A("s_mul_i32 s34, s34, 1664525"); A("s_add_u32 s34, s34, 1013904223")
        A("v_mov_b32 v129, s34")
        A("s_and_b32 s3, s34, -16"); A("s_or_b32 s30, s30, s3")
        A("v_and_b32 v160, 1, v0"); A("v_lshlrev_b32 v160, 4, v160")
        A("v_lshrrev_b32 v166, v160, s30"); A("v_lshrrev_b32 v160, v160, s34")
        A("v_bfe_u32 v167, v166, 8, 8"); A("v_bfe_u32 v161, v160, 8, 8")
        A("v_and_b32 v166, 0xff, v166"); A("v_and_b32 v160, 0xff, v160")
        A("s_movk_i32 s11, 0xff"); A("s_and_b32 s30, s30, 0xffff"); A("s_mov_b32 s10, 0x0c0c0400")
        SG = 136
        CF = 144
        OG = 152
        ol = [f"buffer_load_dwordx2 {v2(OG+2*s)}, v1, s[12:15], s{39 if s < 2 else 48} offen offset:{2048*(s&1)}{pol}" for s in range(4)]
        stl = [f"buffer_load_dwordx4 {v4(SG+4*s)}, v57, s[12:15], s35 offen offset:{16*s}{pol}" for s in range(2)]
        self.lab("L_tile")
        for q in range(3):
            A(f"s_waitcnt vmcnt({6-2*q})")
            self.perms(PB, WB, pairs=(q,))
        A("s_cmp_eq_u32 s41, 0"); A("s_cbranch_scc0 L_t1")
        A("s_waitcnt vmcnt(0)")
        self.perms(PB, WB, pairs=(3,))
        self.stamp(2); A("s_branch L_mm")
        self.lab("L_t1")
        for l in ol: A(l)
        A(f"s_mov_b32 s38, {self.spin}")
        A("s_waitcnt vmcnt(4)")
        self.perms(PB, WB, pairs=(3,))
        self.stamp(7)
        A("s_branch L_og")
        self.lab("L_ogr")
        if self.osleep: A(f"s_sleep {self.osleep}")
        for l in ol: A(l)
        self.lab("L_og")
        A("s_waitcnt vmcnt(0)")
        A(f"v_xor_b32 v20, s34, v{OG+1}")
        for s in range(1, 4): A(f"v_bitop3_b32 v20, v{OG+1+2*s}, s34, v20 bitop3:0xbe")
        A("s_sub_u32 s38, s38, 1")
        A("v_cmp_ne_u32 vcc, 0, v20")
        A("s_cbranch_scc1 L_ogd")
        A("s_cbranch_vccnz L_ogr")
        self.lab("L_ogd")
        for s in range(4):
            A(f"v_lshlrev_b32 v{24+2*s}, 16, v{OG+2*s}"); A(f"v_and_b32 v{25+2*s}, 0xffff0000, v{OG+2*s}")
        A("s_cmp_lg_u32 s49, 0"); A("s_cbranch_scc1 L_ogn")
        A(f"s_mov_b64 exec, {(1 << self.er) - 1}")
        A(f"buffer_store_dword v129, v135, s[12:15], 0 offen{pol}")
        A("s_mov_b64 exec, -1")
        self.lab("L_ogn")
        self.stamp(8)
        A(f"v_pk_mul_f32 v[24:25], v[24:25], {v2(CF)} op_sel_hi:[1,0]")
        A(f"v_pk_mul_f32 v[28:29], v[28:29], {v2(CF+4)} op_sel_hi:[1,0]")
        A(f"v_pk_fma_f32 v[24:25], v[26:27], {v2(CF+2)}, v[24:25] op_sel_hi:[1,0,1]")
        A(f"v_pk_fma_f32 v[28:29], v[30:31], {v2(CF+6)}, v[28:29] op_sel_hi:[1,0,1]")
        A(f"v_pk_add_f32 v[24:25], v[24:25], v[28:29]")
        A("v_cvt_pk_bf16_f32 v24, v24, v25"); self.nop(2)
        for q in range(4):
            A(f"v_mov_b32_dpp v{XB+q}, v24 quad_perm:[{q},{q},{q},{q}] row_mask:0xf bank_mask:0xf")
        self.nop(2)
        self.lab("L_mm")
        for j in range(8):
            A(f"v_mfma_f32_16x16x32_bf16 {v4(DB+4*j)}, {v4(PB+4*j)}, {v4(XB)}, 0")
        A("s_mov_b64 exec, s[42:43]")
        A("s_cmp_eq_u32 s41, 0")
        for j in range(8):
            A(f"ds_write_b128 v7, {v4(DB+4*j)} offset:{16*j}")
        A("s_cbranch_scc0 L_fin")
        self.cnt(0, "v111")
        A("s_mov_b64 exec, -1")
        rd = [f"ds_read2_b32 {v2(12+2*i)}, v{122+i} offset0:0 offset1:4" for i in range(4)]
        self.ldsspin("c", 0, 4, rd, sleep=0)
        A("v_pk_add_f32 v[12:13], v[12:13], v[14:15]"); A("v_pk_add_f32 v[16:17], v[16:17], v[18:19]")
        A("v_pk_add_f32 v[12:13], v[12:13], v[16:17]")
        A("v_bfi_b32 v164, s11, v166, v12"); A("v_bfi_b32 v165, s11, v167, v13")
        A("buffer_store_dwordx2 v[164:165], v127, s[12:15], s46 offen" + ["", " sc1", " nt", " sc0 sc1"][self.qwt])
        self.stamp(3)
        if self.pretouch:
            A("s_lshl_b32 s3, s32, 2"); A("s_add_u32 s3, s3, s33"); A("s_lshl_b32 s3, s3, 9")
            A("s_lshl_b32 s40, s47, 13"); A("s_add_u32 s3, s3, s40"); A(f"s_add_u32 s3, s3, {OP}")
            A("s_or_b32 s40, s32, s33"); A("s_cbranch_scc1 L_pt")
            A("s_lshl_b32 s40, s47, 7"); A(f"s_add_u32 s40, s40, {SP}")
            A("s_load_dword s49, s[12:13], s40")
            self.lab("L_pt")
            for i in range(4): A(f"s_load_dword s49, s[12:13], s3 offset:{128*i}")
        for i in range(4):
            A(f"v_lshlrev_b32 v{24+2*i}, 16, v{112+i}"); A(f"v_and_b32 v{25+2*i}, 0xffff0000, v{112+i}")
            A(f"v_lshlrev_b32 v{32+2*i}, 16, v{116+i}"); A(f"v_and_b32 v{33+2*i}, 0xffff0000, v{116+i}")
        for i in range(4):
            A(f"v_pk_mul_f32 {v2(24+2*i)}, {v2(24+2*i)}, {v2(32+2*i)}")
        for i in range(4):
            A(f"v_cvt_pk_bf16_f32 v{32+i}, v{24+2*i}, v{25+2*i}")
        for i in range(4):
            A(f"v_lshlrev_b32 v{24+2*i}, 16, v{32+i}"); A(f"v_and_b32 v{25+2*i}, 0xffff0000, v{32+i}")
        A("v_pk_add_f32 v[24:25], v[24:25], v[28:29]"); A("v_pk_add_f32 v[26:27], v[26:27], v[30:31]")
        A("v_pk_add_f32 v[24:25], v[24:25], v[26:27]"); A("v_add_f32 v8, v24, v25")
        for ror in (8, 4, 2, 1):
            self.nop(2); self.dpp("v_add_f32", 8, 8, 8, f"row_ror:{ror}")
        self.allred_rows("v_add_f32", 8, 9)
        A("v_cvt_pk_bf16_f32 v8, v8, v8"); A("v_lshlrev_b32 v8, 16, v8")
        A(f"v_mul_f32 v8, {0xbfb8aa3b}, v8"); A("v_exp_f32 v8, v8"); self.nop(1)
        A("v_add_f32 v8, 1.0, v8"); A("v_rcp_f32 v8, v8"); self.nop(1)
        A("v_cvt_pk_bf16_f32 v8, v8, v8"); A("v_lshlrev_b32 v8, 16, v8")
        A("v_sub_f32 v9, 1.0, v8"); A("v_cvt_pk_bf16_f32 v9, v9, v9"); A("v_lshlrev_b32 v9, 16, v9")
        A("v_cmp_gt_u32 vcc, 32, v0")
        A("s_lshl_b32 s39, s29, 3"); A("s_add_u32 s39, s39, s28"); A("s_lshl_b32 s39, s39, 2"); A("s_add_u32 s39, s39, s33")
        A("v_cndmask_b32 v120, v9, v8, vcc")
        A("s_lshl_b32 s39, s39, 4"); A("s_add_u32 s39, s39, s31"); A("s_lshl_b32 s39, s39, 9"); A(f"s_add_u32 s39, s39, {QP}")
        A("s_add_u32 s60, s39, 4096")
        A("s_mov_b32 s63, 0")
        A("v_mov_b32 v18, 0")
        A("v_lshlrev_b32 v19, 11, v6")
        A(f"s_mov_b32 s38, {self.n0}"); A(f"s_mov_b32 s62, {self.spin}")
        self.stamp(13)
        D = self.qdepth
        ld = lambda i: A(f"buffer_load_dwordx2 {v2(40+2*i)}, v19, s[12:15], s39 offen{pol}")
        qg = lambda vo: [f"buffer_load_dwordx2 {v2(24+2*i)}, {vo}, s[12:15], s{39 if i < 2 else 60} offen offset:{2048*(i&1)}{pol}" for i in range(4)]
        for i in range(D - 1):
            ld(i); A(f"s_sleep {self.qsleep}")
        self.lab("L_qf")
        for i in range(D):
            ld((i + D - 1) % D)
            A(f"s_waitcnt vmcnt({D-1})")
            A(f"v_perm_b32 v20, v{41+2*i}, v{40+2*i}, s10")
            A("v_cmp_ne_u32 vcc, s30, v20")
            A("s_cmp_eq_u64 vcc, 0"); A("s_cbranch_scc1 L_qfd")
        self.lab("L_qfr")
        A("s_sub_u32 s38, s38, 1")
        A("s_cbranch_scc0 L_qf")
        A("s_branch L_slow")
        self.lab("L_qfd")
        self.stamp(14)
        for l in qg("v127"): A(l)
        A(f"s_mul_i32 s3, s33, {QH}"); A("v_lshl_add_u32 v16, v0, 2, s3")
        A("v_lshlrev_b32 v1, 11, v4"); A("v_lshl_add_u32 v1, v3, 4, v1")
        A("s_lshl_b32 s48, s44, 17"); A("s_lshl_b32 s3, s33, 15"); A("s_add_u32 s48, s48, s3")
        A("s_lshl_b32 s3, s32, 8"); A("s_add_u32 s48, s48, s3")
        A("s_waitcnt vmcnt(0) lgkmcnt(0)")
        self.untag(24, 166, 8)
        A("v_cmp_ne_u32 vcc, 0, v8"); A("s_cmp_eq_u64 vcc, 0"); A("s_cbranch_scc0 L_qfr")
        self.lab("L_qok")
        A("v_pk_add_f32 v[24:25], v[24:25], v[26:27]"); A("v_pk_add_f32 v[28:29], v[28:29], v[30:31]")
        A("v_pk_add_f32 v[24:25], v[24:25], v[28:29]")
        A("v_cvt_pk_bf16_f32 v17, v24, v25")
        A(f"ds_write_b32 v16, v17 offset:{L_Q}")
        self.cnt(12, "v18")
        A(f"ds_add_u32 v110, v111 offset:{L_F+4}")
        A("s_mov_b64 exec, -1")
        self.stamp(4)
        self.lab("L_vd")
        A(f"ds_read_b32 v2, v110 offset:{L_F+4}")
        A(f"ds_read2_b32 v[134:135], v133 offset0:{(L_F+12)//4 - 256} offset1:{(L_F+16)//4 - 256}")
        A("s_waitcnt lgkmcnt(0)")
        A("v_readfirstlane_b32 s40, v2"); A("v_readfirstlane_b32 s3, v135"); A("v_readfirstlane_b32 s49, v134")
        A("s_andn2_b32 s3, s3, s63"); A("s_cbranch_scc1 L_puby2")
        A("s_cmp_ge_u32 s40, 4"); A("s_cbranch_scc1 L_vdd")
        A("s_sleep 2"); A("s_sub_u32 s62, s62, 1"); A("s_cbranch_scc0 L_vd")
        self.lab("L_vdd")
        A("s_lshl_b32 s3, s33, 5"); A("v_mov_b32 v56, s3")
        self.ldsspin("l2", 20, 8, [f"ds_read_b128 v[40:43], v56 offset:{L_M}", f"ds_read_b128 v[44:47], v56 offset:{L_M+16}",
                                   f"ds_read_b128 v[48:51], v56 offset:{L_L}", f"ds_read_b128 v[52:55], v56 offset:{L_L+16}"], sleep=4)
        A("v_max3_f32 v40, v40, v41, v42"); A("v_max3_f32 v43, v43, v44, v45"); A("v_max3_f32 v40, v40, v46, v47")
        A("v_pk_add_f32 v[48:49], v[48:49], v[52:53]"); A("v_pk_add_f32 v[50:51], v[50:51], v[54:55]")
        A("v_pk_add_f32 v[48:49], v[48:49], v[50:51]"); A("v_add_f32 v48, v48, v49")
        A("v_log_f32 v48, v48"); A("v_max_f32 v40, v40, v43")
        A("s_cmp_lg_u32 s49, 0")
        A("v_add_f32 v128, v40, v48")
        A("s_mov_b64 exec, 1")
        A("s_cbranch_scc1 L_S_y1")
        A("buffer_store_dwordx2 v[128:129], v110, s[12:15], s4 offen")
        self.lab("L_S_y1r")
        A("s_mov_b64 exec, -1")
        A("s_cmp_lg_u32 s49, 0"); A(f"s_cselect_b32 s49, {YD}, 0")
        A("s_lshl_b32 s35, s47, 7"); A(f"s_add_u32 s35, s35, {SP}"); A("s_add_u32 s35, s35, s49")
        A("v_lshlrev_b32 v57, 5, v5")
        self.poll("s", stl, [SG+1, SG+3, SG+5, SG+7], 20, sleep=self.ssleep)
        self.stamp(15)
        A(f"v_max3_f32 v20, v{SG}, v{SG+2}, v{SG+4}"); A(f"v_max_f32 v20, v20, v{SG+6}")
        for s in range(4): A(f"v_sub_f32 v{CF+2*s}, v{SG+2*s}, v20")
        for s in range(4): A(f"v_exp_f32 v{CF+2*s}, v{CF+2*s}")
        self.nop(1)
        A(f"v_add_f32 v20, v{CF}, v{CF+2}"); A(f"v_add_f32 v21, v{CF+4}, v{CF+6}"); A("v_add_f32 v20, v20, v21")
        A("v_rcp_f32 v20, v20"); self.nop(1)
        for s in range(4): A(f"v_mul_f32 v{CF+2*s}, v{CF+2*s}, v20")
        for e in range(8):
            if e == self.wo1: self.ldsspin("w", 24, self.th1, [], sleep=2)
            if e == self.wa: self.ldsspin("w2", 24, self.th2, [], sleep=1)
            if e == self.wo_early: A("s_setprio 0")
            A(f"buffer_load_dwordx4 {v4(WB+4*e)}, v1, s[20:23], s48 offen offset:{1024*(e>>2)}{nt}")
            if e == 3: A("s_sub_u32 s48, s48, 24576")
            elif e < 7: A("s_add_u32 s48, s48, 8192")
        A("s_setprio 3")
        self.stamp(5)
        A("s_lshl_b32 s39, s47, 13"); A("s_lshl_b32 s3, s33, 7"); A("s_add_u32 s39, s39, s3"); A(f"s_add_u32 s39, s39, {OP}")
        A("s_add_u32 s39, s39, s49"); A("s_add_u32 s48, s39, 4096")
        A("v_lshlrev_b32 v1, 9, v5"); A("v_lshl_add_u32 v1, v4, 5, v1"); A("v_lshl_add_u32 v1, v6, 3, v1")
        A("s_lshl_b32 s63, s32, 17"); A(f"s_add_u32 s63, s63, {FP}")
        A("s_lshl_b32 s3, s47, 11"); A("s_add_u32 s46, s63, s3"); A("s_lshl_b32 s3, s33, 9"); A("s_add_u32 s46, s46, s3")
        A("v_lshrrev_b32 v121, 2, v0"); A("v_lshlrev_b32 v121, 11, v121"); A("v_lshl_add_u32 v121, v6, 3, v121")
        A("s_lshl_b32 s3, s47, 5"); A("s_add_u32 s63, s63, s3")
        A("s_add_u32 s60, s63, 0x8000"); A("s_add_u32 s61, s63, 0x10000"); A("s_add_u32 s62, s63, 0x18000")
        A("s_lshl_b32 s45, s45, 10"); A("s_lshl_b32 s3, s32, 8"); A("s_add_u32 s45, s45, s3")
        A("s_and_b32 s3, s47, 15"); A("s_lshl_b32 s3, s3, 4"); A("s_add_u32 s45, s45, s3")
        A("v_lshlrev_b32 v126, 2, v6"); A("v_lshl_add_u32 v126, v4, 1, v126")
        A("s_mov_b32 s41, 1")
        A("s_and_b32 s49, s44, 3"); A("s_or_b32 s49, s49, s32"); A("s_or_b32 s49, s49, s33")
        A("s_lshr_b32 s3, s47, 2"); A("s_lshl_b32 s3, s3, 10"); A(f"s_add_u32 s3, s3, {EP}"); A("v_lshl_add_u32 v135, v0, 7, s3")
        A("v_lshlrev_b32 v134, 10, v3"); A(f"v_add_u32 v134, {EP}, v134")
        if self.er > self.ed:
            A(f"s_lshr_b32 s3, s2, 3"); A(f"s_and_b32 s3, s3, {self.er // self.ed - 1}"); A(f"s_mul_i32 s3, s3, {128 * self.ed}"); A("v_add_u32 v134, s3, v134")
        A("s_barrier")
        self.stamp(6)
        A("s_branch L_tile")
        self.lab("L_fin")
        if self.b4spin:
            self.cnt(28, "v111")
            A("s_mov_b64 exec, -1")
            self.ldsspin("c2", 28, 4, rd, sleep=0)
        else:
            A("s_mov_b64 exec, -1")
            A("s_waitcnt lgkmcnt(0)")
            A("s_barrier")
            for r in rd: A(r)
            A("s_waitcnt lgkmcnt(0)")
        A("v_pk_add_f32 v[12:13], v[12:13], v[14:15]"); A("v_pk_add_f32 v[16:17], v[16:17], v[18:19]")
        A("v_pk_add_f32 v[12:13], v[12:13], v[16:17]")
        A("v_bfi_b32 v12, s11, v160, v12"); A("v_bfi_b32 v13, s11, v161, v13")
        A(f"buffer_store_dwordx2 v[12:13], v127, s[12:15], s46 offen{pol}")
        self.stamp(9)
        if self.wbl == 1:
            A("s_lshr_b32 s3, s2, 3"); A("s_lshl_b32 s3, s3, 2"); A("s_add_u32 s5, s3, s33"); A("s_cmp_eq_u32 s5, 1"); A("s_cbranch_scc1 L_wb1")
        if self.wbl == 2:
            A("s_lshr_b32 s3, s2, 3"); A("s_lshl_b32 s3, s3, 2"); A("s_add_u32 s5, s3, s33"); A("s_cmp_eq_u32 s5, 1"); A("s_cbranch_scc0 L_wb1")
            A("buffer_wbl2 sc1")
            self.lab("L_wb1")
        A("s_cmp_lg_u32 s33, 0"); A("s_cbranch_scc1 L_C_exit")
        if self.wbl == 1: self.lab("L_wb1")
        if self.fdelay: A(f"s_sleep {self.fdelay}")
        if self.eta:
            if self.ed == 1:
                self.poll("e", [f"buffer_load_dword v41, v134, s[12:15], 0 offen{pol}"], [41], 40)
            else:
                D = self.ed
                A("s_mov_b64 exec, 0xffff")
                el = lambda i: A(f"buffer_load_dword v{41+i}, v134, s[12:15], 0 offen offset:{128 * (i % self.er)}{pol}")
                A(f"s_mov_b32 s38, {self.spin}")
                for i in range(D - 1):
                    el(i); A(f"s_sleep {self.es}")
                self.lab("L_ep")
                for i in range(D):
                    el((i + D - 1) % D)
                    A(f"s_waitcnt vmcnt({D-1})")
                    A(f"v_cmp_ne_u32 vcc, s34, v{41+i}")
                    A("s_cmp_eq_u64 vcc, 0"); A("s_cbranch_scc1 L_epd")
                A("s_sub_u32 s38, s38, 1"); A("s_cbranch_scc0 L_ep")
                self.lab("L_epd")
                A("s_mov_b64 exec, -1")
            self.stamp(12)
            if self.wbl == 1:
                A("s_cmp_eq_u32 s33, 0"); A("s_cbranch_scc1 L_wb2")
                A("buffer_wbl2 sc1"); A("s_branch L_C_exit")
                self.lab("L_wb2")
            if self.edly: A(f"s_sleep {self.edly}")
            self.lab("L_eok")
        self.poll("f", [f"buffer_load_dwordx2 {v2(24+2*i)}, v121, s[12:15], s{(63,60,61,62)[i]} offen{pol}" for i in range(4)],
                  list(range(24, 32)), 40, sleep=self.fsleep, tv=160)
        self.stamp(10)
        if self.stamps: A(f"s_sub_u32 s66, {self.spin}, s38"); A("s_mov_b32 s67, 0")
        A("v_pk_add_f32 v[24:25], v[24:25], v[26:27]"); A("v_pk_add_f32 v[28:29], v[28:29], v[30:31]")
        self.nop(2)
        A("v_permlane32_swap_b32 v24, v28"); A("v_permlane32_swap_b32 v25, v29")
        A("v_pk_add_f32 v[24:25], v[24:25], v[28:29]"); self.nop(2)
        A("v_permlane16_swap_b32 v24, v25")
        A("v_add_f32 v24, v24, v25"); self.nop(2)
        self.dpp("v_add_f32", 24, 24, 24, "row_ror:4"); self.nop(2)
        self.dpp("v_add_f32", 24, 24, 24, "row_ror:8")
        A("v_cvt_pk_bf16_f32 v24, v24, v24"); A("v_lshlrev_b32 v24, 16, v24")
        A("v_mul_f32 v24, v24, v120")
        A("v_cvt_pk_bf16_f32 v24, v24, v24"); A("v_lshlrev_b32 v24, 16, v24")
        A("v_mov_b32 v25, v24"); self.nop(2)
        A("v_permlane32_swap_b32 v24, v25")
        A("v_add_f32 v24, v24, v25")
        A("v_cvt_pk_bf16_f32 v24, v24, v24")
        A("s_mov_b64 exec, 0x000f000f")
        A("buffer_store_short v24, v126, s[56:59], s45 offen")
        if self.pad:
            if self.padk >= 0:
                A("s_waitcnt lgkmcnt(0)"); A("s_mov_b32 s90, s92")
            self.lab("L_pad")
            A("s_memrealtime s[94:95]"); A("s_waitcnt lgkmcnt(0)"); A("s_sub_u32 s94, s94, s90")
            A(f"s_cmp_lt_u32 s94, {self.pad}"); A("s_cbranch_scc1 L_pad")
        A("s_cmp_lg_u32 s2, 0"); A("s_cbranch_scc1 L_C_exit")
        A("s_mov_b64 exec, 1")
        A("buffer_store_dword v129, v110, s[12:15], 0 offen")
        self.lab("L_C_exit")
        self.stamp(11)
        if self.stamps: A("s_sleep 127")
        self.stamp_out()
        self.lab("L_end")
        A("s_endpgm")
        self.lab("L_last")
        self.lab("L_S_y1")
        A(f"s_add_u32 s4, s4, {YD}")
        A(f"buffer_store_dwordx2 v[128:129], v110, s[12:15], s4 offen{pol}")
        A("s_branch L_S_y1r")
        self.lab("L_S_y2")
        A(f"s_add_u32 s46, s46, {YD}")
        A(f"buffer_store_dwordx2 {v2(SB+12)}, v{SB+11}, s[12:15], s46 offen{pol}")
        A("s_branch L_S_x")
        def puby():
            A(f"s_add_u32 s3, s46, {YD}")
            A(f"buffer_store_dwordx2 v[164:165], v127, s[12:15], s3 offen{pol}")
            A("s_mov_b32 s63, 1")
        self.lab("L_puby2")
        puby()
        A("s_branch L_vd")
        self.lab("L_slow")
        A("s_cmp_lg_u32 s63, 0"); A("s_cbranch_scc1 L_slow2")
        A(f"ds_write_b32 v110, v111 offset:{L_F+16}")
        puby()
        self.lab("L_slow2")
        A(f"v_add_u32 v9, {YD}, v127")
        for l in qg("v9"): A(l)
        A("v_and_b32 v9, 1, v0"); A("v_mul_u32_u24 v9, 15, v9"); A("v_or_b32 v9, 0xf0, v9")
        A("s_waitcnt vmcnt(0)")
        A("v_xor_b32 v8, v166, v24"); A("v_xor_b32 v10, v167, v25")
        for r in range(26, 32): A(f"v_bitop3_b32 v{8 + 2*(r & 1)}, v{r}, v{166 + (r & 1)}, v{8 + 2*(r & 1)} bitop3:0xbe")
        A("v_and_b32 v10, 0xff, v10"); A("v_and_or_b32 v9, v8, v9, v10"); A("v_and_b32 v10, 15, v8")
        A("s_mov_b32 s38, 0")
        A("v_cmp_ne_u32 vcc, 0, v9"); A("s_cmp_eq_u64 vcc, 0"); A("s_cbranch_scc1 L_slow3")
        A("s_sleep 8")
        A("s_sub_u32 s62, s62, 1"); A("s_cbranch_scc0 L_qf")
        self.lab("L_slow3")
        for r in range(24, 32): A(f"v_and_b32 v{r}, 0xffffff00, v{r}")
        A("v_cmp_ne_u32 vcc, 0, v10"); A("s_cmp_lg_u64 vcc, 0")
        A("s_cselect_b32 s3, 1, 0"); A("v_mov_b32 v18, s3")
        A(f"s_mul_i32 s3, s33, {QH}"); A("v_lshl_add_u32 v16, v0, 2, s3")
        A("v_lshlrev_b32 v1, 11, v4"); A("v_lshl_add_u32 v1, v3, 4, v1")
        A("s_lshl_b32 s48, s44, 17"); A("s_lshl_b32 s3, s33, 15"); A("s_add_u32 s48, s48, s3")
        A("s_lshl_b32 s3, s32, 8"); A("s_add_u32 s48, s48, s3")
        A("s_waitcnt lgkmcnt(0)")
        A("s_branch L_qok")
        L.append('.section .rodata,"a"'); L.append(".p2align 6"); L.append(f".amdhsa_kernel {KN}")
        L.append("  .amdhsa_next_free_vgpr 168"); L.append("  .amdhsa_next_free_sgpr 96"); L.append("  .amdhsa_accum_offset 168")
        L.append("  .amdhsa_group_segment_fixed_size 0"); L.append("  .amdhsa_kernarg_size 112"); L.append("  .amdhsa_user_sgpr_count 2")
        L.append("  .amdhsa_user_sgpr_kernarg_segment_ptr 1"); L.append("  .amdhsa_system_sgpr_workgroup_id_x 1")
        L.append("  .amdhsa_float_denorm_mode_32 3")
        L.append(".end_amdhsa_kernel")
        return "\n".join(L) + "\n"

if __name__ == "__main__":
    out = sys.argv[1]
    kw = {}
    for a in sys.argv[2:]:
        k, v = a.split("=")
        kw[k] = v.replace("+", " ") if k in ("pol", "pat", "pat2") else int(v)
    open(out, "w").write(G(**kw).gen())
```

```python
import sys
KN = "gated_mix__sliding_block_cached__sliding_block_cached__decode_kernel"
HDR = open("gated_mix__sliding_block_cached__sliding_block_cached__decode.s.ref").read().split("; Override launch")[0]

FL = 0x1000
YD = 0x400000
OP = 0x100000
SP = 0xC0000
EP = 0xD0000
QP = 0x100000
FP = 0x180000
WS_BYTES = 0x600000
STAMP_OFF = 0x4000000
L_Q = 0
QH = 272
L_M = 1280
L_L = 1408
L_F = 1536
L_O = 2048
L_R = L_O + 8*2112
LDS_BYTES = L_R + 4*2112
LOG2E = 0x3fb8aa3b
SCALE = 0x3db504f3
NS = 16

class G:
    def __init__(self, **kw):
        d = dict(padk=-1, pad=0, stamps=0, nt=1, pol="sc1", spin=1 << 16, pf=1, wo_early=0, qsleep=12, forcey=0, pretouch=0,
                 n0=8, qdepth=4, lsplit=1, osleep=0, fsleep=0, b4spin=0, fdelay=0, eta=1, edly=0, tx=0, rm=2, N=3, rot=1, lan=1, qpos=3, wj=31, pat='x0x11x', cw=3, up=99, wo1=0, wj2=32, wa=2, th1=8, th2=16, opos=3, pr=0, tlbs=0, tlbv=0, lean=1, xdirty=0, qwt=0, owt=0, xperm=0, b0late=0, ed=1, es=4, early=0, ldly=0, ssleep=8, ovl=1, pat2='', lup=99, wbl=0, wqr=0, er=1, dbg=0)
        d.update(kw)
        self.__dict__.update(d)
        self.L = []
        self.nt = " nt" if self.nt else ""
        self.pol = " " + self.pol
    def A(self, s): self.L.append("    " + s)
    def lab(self, s): self.L.append(s + ":")
    def nop(self, n):
        while n > 0:
            k = min(n, 16); self.A(f"s_nop {k-1}"); n -= k
    def stamp(self, i):
        if self.padk == i: self.A("s_memrealtime s[92:93]")
        if self.stamps: self.A(f"s_memrealtime s[{64+2*i}:{65+2*i}]")
    def stamp_out(self, cls="C"):
        if not self.stamps: return
        A = self.A
        if self.dbg:
            A("s_load_dwordx2 s[62:63], s[0:1], 96")
            A("s_waitcnt lgkmcnt(0)")
            A("s_mov_b64 exec, 1"); A("v_mov_b32 v4, 0")
            A("s_not_b32 s60, s64"); A("v_mov_b32 v2, s60"); A("global_atomic_umax v4, v2, s[62:63]")
            m = {"C": {0: 15, 2: 2, 4: 3, 7: 10, 8: 11, 9: 12, 12: 13, 10: 14}, "S": {1: 1, 2: 4, 3: 5, 7: 6, 9: 7, 10: 8, 11: 9}}[cls]
            for k, d in m.items():
                A(f"v_mov_b32 v2, s{64+2*k}"); A(f"global_atomic_umax v4, v2, s[62:63] offset:{4*d}"); A("s_nop 1")
            if self.dbg == 2:
                m2 = {"C": {7: 16, 0: 17}, "S": {9: 18, 1: 19}}[cls]
                for k, d in m2.items():
                    A(f"v_mov_b32 v2, s{64+2*k}"); A(f"global_atomic_add v4, v2, s[62:63] offset:{4*d}"); A("s_nop 1")
            return
        A("s_waitcnt lgkmcnt(0)")
        A("s_mul_i32 s60, s2, 12"); A("s_add_u32 s60, s60, s33"); A(f"s_mul_i32 s60, s60, {NS*8}")
        A(f"s_add_u32 s60, s60, {STAMP_OFF}")
        A("s_add_u32 s62, s12, s60"); A("s_addc_u32 s63, s13, 0")
        A("s_mov_b64 exec, 1"); A("v_mov_b32 v4, 0")
        for i in range(NS):
            A(f"v_mov_b32 v2, s{64+2*i}"); A(f"v_mov_b32 v3, s{65+2*i}")
            A(f"global_store_dwordx2 v4, v[2:3], s[62:63] offset:{i*8}"); A("s_nop 1")
    def v4(self, r): return f"v[{r}:{r+3}]"
    def v2(self, r): return f"v[{r}:{r+1}]"
    def perms(self, dst, src, pairs=(0, 1, 2, 3)):
        for q in pairs:
            for w in range(4):
                for hh in range(2):
                    j = 2*w + hh
                    self.A(f"v_perm_b32 v{dst+4*j+q}, v{src+4*(2*q+1)+w}, v{src+4*(2*q)+w}, s{36+hh}")
    def allred_rows(self, op, v, t):
        A = self.A
        A(f"v_mov_b32 v{t}, v{v}"); self.nop(2)
        A(f"v_permlane32_swap_b32 v{v}, v{t}")
        A(f"{op} v{v}, v{v}, v{t}")
        A(f"v_mov_b32 v{t}, v{v}"); self.nop(2)
        A(f"v_permlane16_swap_b32 v{v}, v{t}")
        A(f"{op} v{v}, v{v}, v{t}")
    def dpp(self, op, d, a, b, ctl):
        self.A(f"{op}_dpp v{d}, v{a}, v{b} {ctl} row_mask:0xf bank_mask:0xf")
    def poll(self, name, loads, tagregs, acc, first_issued=False, sleep=0, tv=None):
        A = self.A
        A(f"s_mov_b32 s38, {self.spin}")
        if first_issued: A(f"s_branch L_chk_{name}")
        elif sleep: A(f"s_branch L_ld_{name}")
        self.lab(f"L_poll_{name}")
        if sleep: A(f"s_sleep {sleep}")
        self.lab(f"L_ld_{name}")
        for l in loads: A(l)
        self.lab(f"L_chk_{name}")
        A("s_waitcnt vmcnt(0)")
        if tv is None:
            A(f"v_xor_b32 v{acc}, s34, v{tagregs[0]}")
            for r in tagregs[1:]:
                A(f"v_bitop3_b32 v{acc}, v{r}, s34, v{acc} bitop3:0xbe")
        else: self.untag(tagregs[0], tv, acc)
        A("s_sub_u32 s38, s38, 1")
        A(f"v_cmp_ne_u32 vcc, 0, v{acc}")
        A("s_cselect_b64 s[50:51], 0, -1")
        if tv is not None: A("s_wqm_b64 vcc, vcc")
        A("s_and_b64 exec, vcc, s[50:51]")
        A(f"s_cbranch_scc1 L_poll_{name}")
        A("s_mov_b64 exec, -1")
    def untag(self, r0, tv, acc):
        A = self.A
        for r in range(r0, r0 + 8): A(f"v_xor_b32 v{r}, v{tv + (r & 1)}, v{r}")
        A(f"v_or3_b32 v{acc}, v{r0}, v{r0+1}, v{r0+2}"); A(f"v_or3_b32 v{acc+1}, v{r0+3}, v{r0+4}, v{r0+5}")
        A(f"v_or3_b32 v{acc}, v{acc}, v{r0+6}, v{r0+7}")
        A(f"v_bitop3_b32 v{acc}, v{acc}, v{acc+1}, s11 bitop3:0xa8")
    def ldsspin(self, name, off, target, reads, sleep=1):
        A = self.A
        A(f"s_mov_b32 s38, {self.spin * 16}")
        if sleep: A(f"s_branch L_spl_{name}")
        self.lab(f"L_sp_{name}")
        if sleep: A(f"s_sleep {sleep}")
        self.lab(f"L_spl_{name}")
        A(f"ds_read_b32 v2, {self.vz} offset:{L_F+off}")
        for r in reads: A(r)
        A("s_sub_u32 s38, s38, 1")
        A("s_cselect_b32 s3, 0, -1")
        A("s_waitcnt lgkmcnt(0)")
        A("v_readfirstlane_b32 s40, v2")
        A("s_orn2_b32 s40, s40, s3")
        A(f"s_cmp_lt_u32 s40, {target}")
        A(f"s_cbranch_scc1 L_sp_{name}")
    def cnt(self, off, one):
        A = self.A
        A("s_mov_b64 exec, 1")
        A(f"ds_add_u32 {self.vz}, {one} offset:{L_F+off}")
    def vissue(self, VB, p):
        for T in (2*p, 2*p+1):
            for e in range(4):
                self.A(f"buffer_load_dwordx4 {self.v4(VB+16*T+4*e)}, v5, s[8:11], s35 offen offset:{256*e}{self.nt}")
            if T < 3: self.A("s_add_u32 s35, s35, 16384")
    def mspin(self, name, B, d):
        A = self.A
        self.ldsspin(name, 8, 8, [f"ds_read_b128 {self.v4(B)}, v6 offset:{L_M}", f"ds_read_b128 {self.v4(B+4)}, v6 offset:{L_M+16}"], sleep=2)
        A(f"v_max3_f32 v{B}, v{B}, v{B+1}, v{B+2}")
        A(f"v_max3_f32 v{B+3}, v{B+3}, v{B+4}, v{B+5}")
        A(f"v_max3_f32 v{B}, v{B}, v{B+6}, v{B+7}")
        A(f"v_max_f32 v{d}, v{B}, v{B+3}")

    def gen(self):
        A = self.A; nt = self.nt; pol = self.pol; v4 = self.v4; v2 = self.v2
        OP = 0x100000 if self.ovl else 0x40000
        L = self.L
        L.append(HDR.rstrip("\n"))
        L.append(f"; @launch grid=(256,1,1) block=(768,1,1) lds={LDS_BYTES}")
        L.append('.amdgcn_target "amdgcn-amd-amdhsa--gfx950"')
        L.append(".text"); L.append(f".globl {KN}"); L.append(".p2align 12"); L.append(".p2align 8"); L.append(f".type {KN},@function"); L.append(f"{KN}:")
        self.stamp(0)
        if self.pad: A("s_memrealtime s[90:91]")
        if self.stamps:
            for i in range(1, NS): A(f"s_mov_b64 s[{64+2*i}:{65+2*i}], 0")
        if self.xperm == 1:
            A("s_lshr_b32 s3, s2, 3"); A("s_and_b32 s29, s2, 7"); A("s_lshl_b32 s29, s29, 5"); A("s_or_b32 s2, s3, s29")
        if self.xperm == 2:
            A("s_xor_b32 s3, s2, 1"); A("s_and_b32 s29, s2, 0xf8"); A("s_cmp_eq_u32 s29, 0x48"); A("s_cselect_b32 s2, s3, s2")
        A("s_bfe_u32 s29, s2, 0x10002")
        A("s_mul_i32 s3, s29, 40")
        A("s_cmp_ge_u32 s2, 256"); A("s_cbranch_scc1 L_end")
        A("s_load_dwordx2 s[16:17], s[0:1], s3 offset:24")
        A("s_load_dwordx2 s[24:25], s[0:1], 0")
        A("s_load_dwordx2 s[4:5], s[0:1], s3 offset:8")
        A("s_load_dwordx2 s[8:9], s[0:1], s3 offset:16")
        A("s_load_dwordx2 s[12:13], s[0:1], 104")
        A("v_lshrrev_b32 v1, 6, v0")
        A("s_lshr_b32 s30, s2, 3")
        if self.tx: A(f"s_xor_b32 s30, s30, {self.tx}")
        A("v_readfirstlane_b32 s33, v1")
        A("s_and_b32 s28, s2, 3"); A("s_lshl_b32 s28, s28, 1"); A("s_lshr_b32 s31, s30, 4"); A("s_or_b32 s28, s28, s31")
        A("s_bfe_u32 s31, s30, 0x20002"); A("s_and_b32 s32, s30, 3")
        A("v_and_b32 v0, 63, v0")
        A("v_and_b32 v3, 15, v0")
        A("v_lshrrev_b32 v4, 4, v0")
        A("v_bfe_u32 v5, v0, 2, 2")
        A("v_and_b32 v6, 3, v0")
        A("s_cmp_ge_u32 s33, 4"); A("s_cbranch_scc1 L_S")
        WB, PB, DB, XB = 8, 40, 72, 104
        A("s_setprio 3")
        if self.pf:
            A("s_getpc_b64 s[42:43]")
            if self.lean:
                A("s_lshl_b32 s3, s33, 11"); A("v_lshl_add_u32 v12, v3, 7, s3"); A("s_mov_b64 exec, 0xffff")
            else: A("v_lshlrev_b32 v12, 7, v0")
            A("v_min_u32 v12, L_last-L_pfbase, v12")
            self.lab("L_pfbase")
            A("global_load_dword v108, v12, s[42:43]")
            if self.lean: A("s_mov_b64 exec, -1"); A("s_mul_i32 s3, s29, 40")
        A("s_mov_b32 s18, 0x400000"); A("s_mov_b32 s19, 0x20000")
        A("s_mov_b32 s26, 4096"); A("s_mov_b32 s27, 0x20000")
        A("v_lshlrev_b32 v1, 16, v4"); A("v_lshl_add_u32 v1, v3, 4, v1")
        if self.wqr:
            A("v_lshl_add_u32 v1, v4, 13, v1")
            for e in range(1, self.cw): A(f"v_xor_b32 v{64+e}, {e << 13}, v1")
        def wql(e):
            if self.wqr:
                if e >= self.cw: A(f"v_xor_b32 v{64+e}, {e << 13}, v1")
                A(f"buffer_load_dwordx4 {v4(WB+4*e)}, v{64+e if e else 1}, s[16:19], s35 offen{nt}")
            else:
                A(f"buffer_load_dwordx4 {v4(WB+4*e)}, v1, s[16:19], s35 offen{nt}")
                if e < 7: A("s_add_u32 s35, s35, 8192")
        A("v_lshlrev_b32 v2, 10, v5"); A("v_lshl_add_u32 v2, v4, 4, v2")
        A("s_lshl_b32 s44, s28, 2"); A("s_add_u32 s44, s44, s31")
        A("s_lshl_b32 s39, s32, 2"); A("s_add_u32 s39, s39, s33")
        A("s_lshl_b32 s35, s39, 18"); A("s_lshl_b32 s45, s44, 8"); A("s_add_u32 s35, s35, s45")
        A("s_lshl_b32 s39, s39, 6")
        A("s_waitcnt lgkmcnt(0)")
        self.stamp(1)
        A(f"buffer_load_dwordx4 {v4(136 if self.wqr else XB)}, v2, s[24:27], s39 offen")
        for e in range(self.cw): wql(e)
        A("v_mov_b32 v112, 0"); A("v_mov_b32 v113, 0"); A("v_mov_b32 v114, 0"); A("v_mov_b32 v115, 0")
        A(f"ds_write_b128 v112, v[112:115] offset:{L_F}")
        A(f"ds_write_b128 v112, v[112:115] offset:{L_F+16}")
        A("s_waitcnt lgkmcnt(0)")
        A("s_barrier")
        A("s_branch L_C")
        self.lab("L_S")
        KB, VB, QB, SB = 8, 72, 136, 152
        self.vz = "v7"
        esh = 10 if self.lan else 8
        A("s_setprio 1")
        A("s_mov_b32 s6, 0x4000000"); A("s_mov_b32 s7, 0x20000")
        A("s_mov_b32 s10, 0x4000000"); A("s_mov_b32 s11, 0x20000")
        A("s_lshl_b32 s35, s31, 3"); A("s_add_u32 s35, s35, s28"); A("s_lshl_b32 s35, s35, 4"); A("s_add_u32 s35, s35, s32")
        A("s_lshl_b32 s35, s35, 5"); A("s_add_u32 s35, s35, s33")
        A("s_lshl_b32 s35, s35, 12"); A(f"s_add_u32 s35, s35, {0x180000 - 4*4096}")
        if self.rot & 1: A(f"s_lshl_b32 s3, s32, {esh}"); A("s_add_u32 s35, s35, s3")
        if self.rot & 2: A("s_and_b32 s3, s2, 7"); A("s_lshl_b32 s3, s3, 12"); A("s_xor_b32 s35, s35, s3")
        A(f"v_lshlrev_b32 v1, {18-esh}, v5"); A("v_lshl_add_u32 v1, v4, 6, v1"); A("v_lshl_add_u32 v1, v6, 4, v1")
        A(f"v_mul_u32_u24 v2, {QH}, v6"); A("v_lshl_add_u32 v2, v4, 6, v2"); A(f"v_lshl_add_u32 v{QB+12}, v5, 4, v2")
        A("v_lshlrev_b32 v5, 4, v3"); A(f"v_lshl_add_u32 v5, v4, {18-esh}, v5")
        if self.pr == 1:
            A("s_cmp_lt_u32 s33, 8"); A("s_cbranch_scc1 L_pr1"); A("s_setprio 2"); self.lab("L_pr1")
        if not self.b0late: A("s_barrier")
        A("s_waitcnt lgkmcnt(0)")
        self.stamp(1)
        st = dict(i=0)
        def trig(i):
            if i in (self.wj, self.wj2):
                self.cnt(24, f"v{QB+15}"); A("s_mov_b64 exec, -1")
        def nxt(k=1):
            for _ in range(k):
                i = st["i"]; st["i"] += 1
                n = self.N + (1 if i >= self.up else 0)
                wt = lambda p: (None if p[i] == "x" else int(p[i])) if i < len(p) else (n - 1 if i >= n else None)
                w1 = wt(self.pat); w2 = wt(self.pat2) if self.pat2 else w1
                if i == self.lup: w2 = n
                if w1 == w2:
                    if w1 is not None: A(f"s_waitcnt vmcnt({w1})")
                else:
                    A("s_cmp_ge_u32 s33, 8"); A(f"s_cbranch_scc1 L_p{i}")
                    if w1 is not None: A(f"s_waitcnt vmcnt({w1})")
                    if w2 is not None and (w1 is None or w2 < w1):
                        A(f"s_branch L_q{i}"); self.lab(f"L_p{i}"); A(f"s_waitcnt vmcnt({w2})"); self.lab(f"L_q{i}")
                    else:
                        self.lab(f"L_p{i}")
                        if w2 is not None: A(f"s_waitcnt vmcnt({w2})")
                if self.pr == 2: A(f"s_setprio {2 - i % 3}")
                if self.pr == 3: A(f"s_setprio {1 - i % 2}")
                T, e = (i >> 2) & 3, i & 3
                so = "s35"
                if T or e: A(f"s_xor_b32 s39, s35, {T*32768 + (e << esh)}"); so = "s39"
                if i < 16: A(f"buffer_load_dwordx4 {v4(KB+4*i)}, v1, s[4:7], {so} offen{nt}")
                else: A(f"buffer_load_dwordx4 {v4(VB+4*(i-16))}, v5, s[8:11], {so} offen{nt}")
                trig(i)
                if self.xdirty and i == 8:
                    A("s_mov_b32 s14, 0x4000000")
                    A("s_lshl_b32 s46, s2, 3"); A("s_add_u32 s46, s46, s33"); A(f"s_mul_i32 s46, s46, {self.xdirty*1024}"); A("s_add_u32 s46, s46, 0x800000")
                    A(f"v_lshlrev_b32 v{SB}, 4, v0")
                    for k in range(self.xdirty): A(f"buffer_store_dwordx4 v[0:3], v{SB}, s[12:15], s46 offen offset:{1024*k}")
        def upto(j):
            while st["i"] <= j: nxt()
        nxt(len(self.pat) - len(self.pat.lstrip("x")) if self.pat else self.N)
        A("s_load_dword s34, s[12:13], 0")
        A(f"s_mov_b32 s14, {WS_BYTES}"); A("s_mov_b32 s15, 0x20000")
        A("s_mov_b32 s36, 0x05040100"); A("s_mov_b32 s37, 0x07060302")
        A("v_mov_b32 v7, 0")
        A(f"v_mov_b32 v{QB+15}, 1")
        A("v_lshlrev_b32 v6, 5, v6"); A("s_lshl_b32 s3, s33, 2"); A("s_sub_u32 s3, s3, 16"); A("v_add_u32 v3, s3, v6")
        A(f"v_and_b32 v{QB+13}, 3, v0"); A(f"v_mul_u32_u24 v{QB+13}, 528, v{QB+13}"); A(f"v_lshl_add_u32 v{QB+13}, v4, 7, v{QB+13}")
        A("s_mul_i32 s3, s33, 2112"); A(f"s_add_u32 s3, s3, {L_O - 4*2112}"); A(f"v_add_u32 v{QB+13}, s3, v{QB+13}")
        A("s_mov_b32 s42, 0x000f000f"); A("s_mov_b32 s43, 0x000f000f")
        if self.b0late: A("s_barrier")
        upto(15)
        self.stamp(2)
        upto(15 + self.qpos)
        A(f"s_waitcnt vmcnt({self.qpos})")
        self.stamp(3)
        self.ldsspin("q", 4, 4, [f"ds_read_b128 {v4(QB)}, v{QB+12} offset:{L_Q}"], sleep=4)
        self.stamp(4)
        Dj = lambda j: (QB + 4 + 4*j) if j < 2 else (KB + 4*(j-2))
        for j in range(16):
            A(f"v_mfma_f32_16x16x32_bf16 {v4(Dj(j))}, {v4(KB+4*j)}, {v4(QB)}, 0")
        A(f"s_mov_b32 s40, {SCALE}"); A(f"s_mov_b32 s41, {LOG2E}")
        A("s_mul_i32 s34, s34, 1664525"); A("s_add_u32 s34, s34, 1013904223")
        nxt()
        for j in range(16): self.dpp("v_add_f32", SB+j, Dj(j)+1, Dj(j), "row_ror:12")
        for j in range(16): self.dpp("v_add_f32", SB+j, Dj(j)+2, SB+j, "row_ror:8")
        for j in range(16): self.dpp("v_add_f32", SB+j, Dj(j)+3, SB+j, "row_ror:4")
        for i in range(8):
            A(f"v_cvt_pk_bf16_f32 v{QB+i}, v{SB+2*i}, v{SB+2*i+1}")
        for i in range(8):
            A(f"v_lshlrev_b32 v{SB+2*i}, 16, v{QB+i}"); A(f"v_and_b32 v{SB+2*i+1}, 0xffff0000, v{QB+i}")
        nxt()
        for i in range(8):
            A(f"v_pk_mul_f32 {v2(SB+2*i)}, {v2(SB+2*i)}, s[40:41] op_sel_hi:[1,0]")
        for i in range(8):
            A(f"v_cvt_pk_bf16_f32 v{QB+i}, v{SB+2*i}, v{SB+2*i+1}")
        for i in range(8):
            A(f"v_lshlrev_b32 v{SB+2*i}, 16, v{QB+i}"); A(f"v_and_b32 v{SB+2*i+1}, 0xffff0000, v{QB+i}")
        A(f"v_max3_f32 v1, v{SB}, v{SB+1}, v{SB+2}")
        A(f"v_max3_f32 v2, v{SB+3}, v{SB+4}, v{SB+5}")
        A(f"v_max3_f32 v1, v1, v{SB+6}, v{SB+7}")
        A(f"v_max3_f32 v2, v2, v{SB+8}, v{SB+9}")
        A(f"v_max3_f32 v1, v1, v{SB+10}, v{SB+11}")
        A(f"v_max3_f32 v2, v2, v{SB+12}, v{SB+13}")
        A(f"v_max3_f32 v1, v1, v{SB+14}, v{SB+15}")
        A("v_max_f32 v1, v1, v2")
        self.allred_rows("v_max_f32", 1, 2)
        A("v_mul_f32 v1, s41, v1")
        A("s_mov_b64 exec, 15")
        A(f"ds_write_b32 v3, v1 offset:{L_M}")
        self.cnt(8, f"v{QB+15}")
        A("s_mov_b64 exec, -1")
        self.stamp(5)
        nxt()
        self.stamp(6)
        self.mspin("m", QB, 1)
        for i in range(16):
            A(f"v_fma_f32 v{SB+i}, v{SB+i}, s41, -v1")
        for i in range(16):
            A(f"v_exp_f32 v{SB+i}, v{SB+i}")
        nxt()
        for i in range(8):
            A(f"v_cvt_pk_bf16_f32 v{QB+i}, v{SB+2*i}, v{SB+2*i+1}")
        for i in range(4):
            A(f"v_pk_add_f32 {v2(SB+2*i)}, {v2(SB+2*i)}, {v2(SB+8+2*i)}")
        for i in range(2):
            A(f"v_pk_add_f32 {v2(SB+2*i)}, {v2(SB+2*i)}, {v2(SB+4+2*i)}")
        A(f"v_pk_add_f32 {v2(SB)}, {v2(SB)}, {v2(SB+2)}")
        A(f"v_add_f32 v{SB+8}, v{SB}, v{SB+1}")
        self.allred_rows("v_add_f32", SB+8, SB)
        OB, P0, P1 = 8, 40, 72
        A("s_mov_b64 exec, 15")
        A(f"ds_write_b32 v3, v{SB+8} offset:{L_L}")
        self.cnt(20, f"v{QB+15}")
        A("s_mov_b64 exec, -1")
        self.stamp(7)
        def need(j):
            upto(min(31, j + self.N + (1 if j + self.N + 1 >= self.up else 0)))
            A(f"s_waitcnt vmcnt({st['i'] - 1 - j})")
        need(23)
        self.perms(P0, VB, pairs=(0, 1))
        if st["i"] < 32: nxt()
        self.perms(P0, VB, pairs=(2, 3))
        for j in range(8):
            A(f"v_mfma_f32_16x16x32_bf16 {v4(OB+4*j)}, {v4(P0+4*j)}, {v4(QB)}, 0")
        self.stamp(8)
        need(25)
        self.perms(P1, VB+32, pairs=(0,))
        A("s_cmp_ge_u32 s33, 8"); A("s_cbranch_scc1 L_S_nr")
        A("s_mul_i32 s3, s33, 528"); A(f"s_add_u32 s3, s3, {L_O - 4*528}")
        A(f"v_lshl_add_u32 v{SB+9}, v0, 3, s3")
        A("s_lshl_b32 s3, s33, 5"); A("s_sub_u32 s3, s3, 128"); A(f"v_mov_b32 v{SB+10}, s3")
        A("s_lshl_b32 s3, s29, 3"); A("s_add_u32 s3, s3, s28"); A("s_lshl_b32 s3, s3, 2"); A("s_add_u32 s3, s3, s33"); A("s_sub_u32 s3, s3, 4")
        A("s_lshl_b32 s3, s3, 2"); A("s_add_u32 s3, s3, s32"); A("s_lshl_b32 s3, s3, 2"); A("s_add_u32 s3, s3, s31")
        A("s_lshl_b32 s46, s3, 9"); A(f"s_add_u32 s46, s46, {OP}")
        A(f"v_lshlrev_b32 v{SB+11}, 3, v0")
        A(f"v_mov_b32 v{SB+13}, s34")
        self.ldsspin("l", 20, 8, [f"ds_read_b128 {v4(SB)}, v{SB+10} offset:{L_L}", f"ds_read_b128 {v4(SB+4)}, v{SB+10} offset:{L_L+16}",
                                  f"ds_read_b32 v1, v7 offset:{L_F+12}"], sleep=2)
        A("v_readfirstlane_b32 s45, v1")
        A(f"v_pk_add_f32 {v2(SB)}, {v2(SB)}, {v2(SB+4)}"); A(f"v_pk_add_f32 {v2(SB+2)}, {v2(SB+2)}, {v2(SB+6)}")
        A(f"v_pk_add_f32 {v2(SB)}, {v2(SB)}, {v2(SB+2)}")
        A(f"v_add_f32 v{SB+14}, v{SB}, v{SB+1}")
        A(f"v_rcp_f32 v{SB+14}, v{SB+14}")
        self.lab("L_S_nr")
        for q in range(1, 4):
            if q == 3 and 33 in (self.wj, self.wj2):
                need(30); trig(33)
            need(25 + 2*q)
            if q == 2: trig(32)
            if q == 3: trig(34); A("s_setprio 3"); self.stamp(9)
            self.perms(P1, VB+32, pairs=(q,))
        for j in range(8):
            A(f"v_mfma_f32_16x16x32_bf16 {v4(OB+4*j)}, {v4(P1+4*j)}, {v4(QB+4)}, {v4(OB+4*j)}")
        A("s_mov_b64 exec, s[42:43]")
        A("s_cmp_ge_u32 s33, 8")
        for j in range(8):
            A(f"ds_write_b128 v{QB+13}, {v4(OB+4*j)} offset:{16*j}")
        A("s_mov_b64 exec, -1")
        A("s_waitcnt lgkmcnt(0)")
        A("s_barrier")
        self.stamp(10)
        A("s_cbranch_scc1 L_S_x")
        for w in range(8): A(f"ds_read_b64 {v2(8+2*w)}, v{SB+9} offset:{2112*w}")
        A("s_waitcnt lgkmcnt(0)")
        for w in (0, 1, 2, 3):
            A(f"v_pk_add_f32 {v2(8+2*w)}, {v2(8+2*w)}, {v2(16+2*w)}")
        A("v_pk_add_f32 v[8:9], v[8:9], v[12:13]"); A("v_pk_add_f32 v[10:11], v[10:11], v[14:15]")
        A("s_cmp_lg_u32 s45, 0")
        A("v_pk_add_f32 v[8:9], v[8:9], v[10:11]")
        A(f"v_pk_mul_f32 v[8:9], v[8:9], {v2(SB+14)} op_sel_hi:[1,0]")
        A(f"v_cvt_pk_bf16_f32 v{SB+12}, v8, v9")
        A("s_cbranch_scc1 L_S_y2")
        A(f"buffer_store_dwordx2 {v2(SB+12)}, v{SB+11}, s[12:15], s46 offen" + ["", " sc1", " nt", " sc0 sc1"][self.owt])
        self.lab("L_S_x")
        self.stamp(11)
        if self.stamps: A("s_sleep 127"); A("s_sleep 127")
        self.stamp_out("S")
        A("s_endpgm")
        self.lab("L_C")
        self.vz = "v110"
        A("s_load_dword s34, s[12:13], 0")
        A("s_load_dwordx2 s[20:21], s[0:1], s3 offset:32")
        A("s_load_dwordx2 s[52:53], s[0:1], 80")
        A("s_load_dwordx2 s[56:57], s[0:1], 88")
        A(f"s_mov_b32 s14, {WS_BYTES}"); A("s_mov_b32 s15, 0x20000")
        A("s_mov_b32 s22, 0x400000"); A("s_mov_b32 s23, 0x20000")
        A("s_mov_b32 s36, 0x05040100"); A("s_mov_b32 s37, 0x07060302")
        A("s_mov_b32 s54, 1024"); A("s_mov_b32 s55, 0x20000")
        A("s_mov_b32 s58, 4096"); A("s_mov_b32 s59, 0x20000")
        A("s_lshl_b32 s45, s29, 1"); A("s_lshr_b32 s3, s28, 2"); A("s_add_u32 s45, s45, s3")
        A("v_lshlrev_b32 v109, 4, v0")
        A("s_lshl_b32 s3, s29, 5"); A("s_add_u32 s47, s44, s3")
        A("v_mov_b32 v110, 0"); A("v_mov_b32 v111, 1"); A("v_mov_b32 v133, 1024")
        A("v_lshlrev_b32 v127, 3, v0")
        A("v_mul_u32_u24 v7, 528, v5"); A("v_lshl_add_u32 v7, v4, 7, v7")
        A("s_mul_i32 s3, s33, 2112"); A(f"s_add_u32 s3, s3, {L_R}"); A("v_add_u32 v7, s3, v7")
        A("v_lshlrev_b32 v122, 7, v4"); A("v_lshl_add_u32 v122, v6, 5, v122"); A("v_lshl_add_u32 v122, v5, 2, v122")
        A("s_mul_i32 s3, s33, 528"); A(f"s_add_u32 s3, s3, {L_R}"); A("v_add_u32 v122, s3, v122")
        A("v_add_u32 v123, 2112, v122"); A("v_add_u32 v124, 4224, v122"); A("v_add_u32 v125, 6336, v122")
        A("s_lshl_b32 s46, s47, 2"); A("s_add_u32 s46, s46, s32"); A("s_lshl_b32 s46, s46, 2"); A("s_add_u32 s46, s46, s33")
        A("s_lshl_b32 s46, s46, 9"); A(f"s_add_u32 s46, s46, {QP}")
        A("s_lshl_b32 s4, s29, 3"); A("s_add_u32 s4, s4, s28"); A("s_lshl_b32 s4, s4, 2"); A("s_add_u32 s4, s4, s33")
        A("s_lshl_b32 s4, s4, 2"); A("s_add_u32 s4, s4, s31"); A("s_lshl_b32 s4, s4, 2"); A("s_add_u32 s4, s4, s32")
        A("s_lshl_b32 s4, s4, 3"); A(f"s_add_u32 s4, s4, {SP}")
        if self.rm >= 0:
            A("s_sub_u32 s3, s32, s31"); A("s_add_u32 s44, s44, s3"); A("s_add_u32 s47, s47, s3")
            A(f"s_add_u32 s32, s31, {self.rm}"); A("s_and_b32 s32, s32, 3")
        A("s_mov_b32 s42, 0x11111111"); A("s_mov_b32 s43, 0x11111111")
        A("s_mov_b32 s41, 0")
        A("s_getreg_b32 s30, hwreg(HW_REG_XCC_ID, 0, 4)")
        if self.forcey: A("s_lshr_b32 s30, s2, 3"); A("s_and_b32 s30, s30, 1")
        A("s_lshl_b32 s3, s45, 10")
        A("s_waitcnt lgkmcnt(0)")
        if self.lean: A("s_cmp_eq_u32 s33, 0"); A("s_cselect_b64 exec, -1, 1")
        A("buffer_load_dwordx4 v[112:115], v109, s[24:27], s3 offen")
        A("buffer_load_dwordx4 v[116:119], v109, s[52:55], 0 offen")
        if self.lean: A("s_mov_b64 exec, -1")
        for e in range(self.cw, 8):
            A(f"s_waitcnt vmcnt({self.cw-1 + (2 if e < 2*self.cw else 0)})")
            wql(e)
        if self.wqr:
            A("s_mov_b32 s3, 0x02020202"); A("v_mul_lo_u32 v140, v4, s3"); A("v_xor_b32 v140, 0x03020100, v140")
            for q in range(4): A(f"v_perm_b32 v{XB+q}, v{136 + (q ^ 1)}, v{136 + q}, v140")
        A("s_mul_i32 s34, s34, 1664525"); A("s_add_u32 s34, s34, 1013904223")
        A("v_mov_b32 v129, s34")
        A("s_and_b32 s3, s34, -16"); A("s_or_b32 s30, s30, s3")
        A("v_and_b32 v160, 1, v0"); A("v_lshlrev_b32 v160, 4, v160")
        A("v_lshrrev_b32 v166, v160, s30"); A("v_lshrrev_b32 v160, v160, s34")
        A("v_bfe_u32 v167, v166, 8, 8"); A("v_bfe_u32 v161, v160, 8, 8")
        A("v_and_b32 v166, 0xff, v166"); A("v_and_b32 v160, 0xff, v160")
        A("s_movk_i32 s11, 0xff"); A("s_and_b32 s30, s30, 0xffff"); A("s_mov_b32 s10, 0x0c0c0400")
        SG = 136
        CF = 144
        OG = 152
        ol = [f"buffer_load_dwordx2 {v2(OG+2*s)}, v1, s[12:15], s{39 if s < 2 else 48} offen offset:{2048*(s&1)}{pol}" for s in range(4)]
        stl = [f"buffer_load_dwordx4 {v4(SG+4*s)}, v57, s[12:15], s35 offen offset:{16*s}{pol}" for s in range(2)]
        self.lab("L_tile")
        for q in range(3):
            A(f"s_waitcnt vmcnt({6-2*q})")
            self.perms(PB, WB, pairs=(q,))
        A("s_cmp_eq_u32 s41, 0"); A("s_cbranch_scc0 L_t1")
        A("s_waitcnt vmcnt(0)")
        self.perms(PB, WB, pairs=(3,))
        self.stamp(2); A("s_branch L_mm")
        self.lab("L_t1")
        for l in ol: A(l)
        A(f"s_mov_b32 s38, {self.spin}")
        A("s_waitcnt vmcnt(4)")
        self.perms(PB, WB, pairs=(3,))
        self.stamp(7)
        A("s_branch L_og")
        self.lab("L_ogr")
        if self.osleep: A(f"s_sleep {self.osleep}")
        for l in ol: A(l)
        self.lab("L_og")
        A("s_waitcnt vmcnt(0)")
        A(f"v_xor_b32 v20, s34, v{OG+1}")
        for s in range(1, 4): A(f"v_bitop3_b32 v20, v{OG+1+2*s}, s34, v20 bitop3:0xbe")
        A("s_sub_u32 s38, s38, 1")
        A("v_cmp_ne_u32 vcc, 0, v20")
        A("s_cbranch_scc1 L_ogd")
        A("s_cbranch_vccnz L_ogr")
        self.lab("L_ogd")
        for s in range(4):
            A(f"v_lshlrev_b32 v{24+2*s}, 16, v{OG+2*s}"); A(f"v_and_b32 v{25+2*s}, 0xffff0000, v{OG+2*s}")
        A("s_cmp_lg_u32 s49, 0"); A("s_cbranch_scc1 L_ogn")
        A(f"s_mov_b64 exec, {(1 << self.er) - 1}")
        A(f"buffer_store_dword v129, v135, s[12:15], 0 offen{pol}")
        A("s_mov_b64 exec, -1")
        self.lab("L_ogn")
        self.stamp(8)
        A(f"v_pk_mul_f32 v[24:25], v[24:25], {v2(CF)} op_sel_hi:[1,0]")
        A(f"v_pk_mul_f32 v[28:29], v[28:29], {v2(CF+4)} op_sel_hi:[1,0]")
        A(f"v_pk_fma_f32 v[24:25], v[26:27], {v2(CF+2)}, v[24:25] op_sel_hi:[1,0,1]")
        A(f"v_pk_fma_f32 v[28:29], v[30:31], {v2(CF+6)}, v[28:29] op_sel_hi:[1,0,1]")
        A(f"v_pk_add_f32 v[24:25], v[24:25], v[28:29]")
        A("v_cvt_pk_bf16_f32 v24, v24, v25"); self.nop(2)
        for q in range(4):
            A(f"v_mov_b32_dpp v{XB+q}, v24 quad_perm:[{q},{q},{q},{q}] row_mask:0xf bank_mask:0xf")
        self.nop(2)
        self.lab("L_mm")
        for j in range(8):
            A(f"v_mfma_f32_16x16x32_bf16 {v4(DB+4*j)}, {v4(PB+4*j)}, {v4(XB)}, 0")
        A("s_mov_b64 exec, s[42:43]")
        A("s_cmp_eq_u32 s41, 0")
        for j in range(8):
            A(f"ds_write_b128 v7, {v4(DB+4*j)} offset:{16*j}")
        A("s_cbranch_scc0 L_fin")
        self.cnt(0, "v111")
        A("s_mov_b64 exec, -1")
        rd = [f"ds_read2_b32 {v2(12+2*i)}, v{122+i} offset0:0 offset1:4" for i in range(4)]
        self.ldsspin("c", 0, 4, rd, sleep=0)
        A("v_pk_add_f32 v[12:13], v[12:13], v[14:15]"); A("v_pk_add_f32 v[16:17], v[16:17], v[18:19]")
        A("v_pk_add_f32 v[12:13], v[12:13], v[16:17]")
        A("v_bfi_b32 v164, s11, v166, v12"); A("v_bfi_b32 v165, s11, v167, v13")
        A("buffer_store_dwordx2 v[164:165], v127, s[12:15], s46 offen" + ["", " sc1", " nt", " sc0 sc1"][self.qwt])
        self.stamp(3)
        if self.pretouch:
            A("s_lshl_b32 s3, s32, 2"); A("s_add_u32 s3, s3, s33"); A("s_lshl_b32 s3, s3, 9")
            A("s_lshl_b32 s40, s47, 13"); A("s_add_u32 s3, s3, s40"); A(f"s_add_u32 s3, s3, {OP}")
            A("s_or_b32 s40, s32, s33"); A("s_cbranch_scc1 L_pt")
            A("s_lshl_b32 s40, s47, 7"); A(f"s_add_u32 s40, s40, {SP}")
            A("s_load_dword s49, s[12:13], s40")
            self.lab("L_pt")
            for i in range(4): A(f"s_load_dword s49, s[12:13], s3 offset:{128*i}")
        for i in range(4):
            A(f"v_lshlrev_b32 v{24+2*i}, 16, v{112+i}"); A(f"v_and_b32 v{25+2*i}, 0xffff0000, v{112+i}")
            A(f"v_lshlrev_b32 v{32+2*i}, 16, v{116+i}"); A(f"v_and_b32 v{33+2*i}, 0xffff0000, v{116+i}")
        for i in range(4):
            A(f"v_pk_mul_f32 {v2(24+2*i)}, {v2(24+2*i)}, {v2(32+2*i)}")
        for i in range(4):
            A(f"v_cvt_pk_bf16_f32 v{32+i}, v{24+2*i}, v{25+2*i}")
        for i in range(4):
            A(f"v_lshlrev_b32 v{24+2*i}, 16, v{32+i}"); A(f"v_and_b32 v{25+2*i}, 0xffff0000, v{32+i}")
        A("v_pk_add_f32 v[24:25], v[24:25], v[28:29]"); A("v_pk_add_f32 v[26:27], v[26:27], v[30:31]")
        A("v_pk_add_f32 v[24:25], v[24:25], v[26:27]"); A("v_add_f32 v8, v24, v25")
        for ror in (8, 4, 2, 1):
            self.nop(2); self.dpp("v_add_f32", 8, 8, 8, f"row_ror:{ror}")
        self.allred_rows("v_add_f32", 8, 9)
        A("v_cvt_pk_bf16_f32 v8, v8, v8"); A("v_lshlrev_b32 v8, 16, v8")
        A(f"v_mul_f32 v8, {0xbfb8aa3b}, v8"); A("v_exp_f32 v8, v8"); self.nop(1)
        A("v_add_f32 v8, 1.0, v8"); A("v_rcp_f32 v8, v8"); self.nop(1)
        A("v_cvt_pk_bf16_f32 v8, v8, v8"); A("v_lshlrev_b32 v8, 16, v8")
        A("v_sub_f32 v9, 1.0, v8"); A("v_cvt_pk_bf16_f32 v9, v9, v9"); A("v_lshlrev_b32 v9, 16, v9")
        A("v_cmp_gt_u32 vcc, 32, v0")
        A("s_lshl_b32 s39, s29, 3"); A("s_add_u32 s39, s39, s28"); A("s_lshl_b32 s39, s39, 2"); A("s_add_u32 s39, s39, s33")
        A("v_cndmask_b32 v120, v9, v8, vcc")
        A("s_lshl_b32 s39, s39, 4"); A("s_add_u32 s39, s39, s31"); A("s_lshl_b32 s39, s39, 9"); A(f"s_add_u32 s39, s39, {QP}")
        A("s_add_u32 s60, s39, 4096")
        A("s_mov_b32 s63, 0")
        A("v_mov_b32 v18, 0")
        A("v_lshlrev_b32 v19, 11, v6")
        A(f"s_mov_b32 s38, {self.n0}"); A(f"s_mov_b32 s62, {self.spin}")
        self.stamp(13)
        D = self.qdepth
        ld = lambda i: A(f"buffer_load_dwordx2 {v2(40+2*i)}, v19, s[12:15], s39 offen{pol}")
        qg = lambda vo: [f"buffer_load_dwordx2 {v2(24+2*i)}, {vo}, s[12:15], s{39 if i < 2 else 60} offen offset:{2048*(i&1)}{pol}" for i in range(4)]
        for i in range(D - 1):
            ld(i); A(f"s_sleep {self.qsleep}")
        self.lab("L_qf")
        for i in range(D):
            ld((i + D - 1) % D)
            A(f"s_waitcnt vmcnt({D-1})")
            A(f"v_perm_b32 v20, v{41+2*i}, v{40+2*i}, s10")
            A("v_cmp_ne_u32 vcc, s30, v20")
            A("s_cmp_eq_u64 vcc, 0"); A("s_cbranch_scc1 L_qfd")
        self.lab("L_qfr")
        A("s_sub_u32 s38, s38, 1")
        A("s_cbranch_scc0 L_qf")
        A("s_branch L_slow")
        self.lab("L_qfd")
        self.stamp(14)
        for l in qg("v127"): A(l)
        A(f"s_mul_i32 s3, s33, {QH}"); A("v_lshl_add_u32 v16, v0, 2, s3")
        A("v_lshlrev_b32 v1, 11, v4"); A("v_lshl_add_u32 v1, v3, 4, v1")
        A("s_lshl_b32 s48, s44, 17"); A("s_lshl_b32 s3, s33, 15"); A("s_add_u32 s48, s48, s3")
        A("s_lshl_b32 s3, s32, 8"); A("s_add_u32 s48, s48, s3")
        A("s_waitcnt vmcnt(0) lgkmcnt(0)")
        self.untag(24, 166, 8)
        A("v_cmp_ne_u32 vcc, 0, v8"); A("s_cmp_eq_u64 vcc, 0"); A("s_cbranch_scc0 L_qfr")
        self.lab("L_qok")
        A("v_pk_add_f32 v[24:25], v[24:25], v[26:27]"); A("v_pk_add_f32 v[28:29], v[28:29], v[30:31]")
        A("v_pk_add_f32 v[24:25], v[24:25], v[28:29]")
        A("v_cvt_pk_bf16_f32 v17, v24, v25")
        A(f"ds_write_b32 v16, v17 offset:{L_Q}")
        self.cnt(12, "v18")
        A(f"ds_add_u32 v110, v111 offset:{L_F+4}")
        A("s_mov_b64 exec, -1")
        self.stamp(4)
        self.lab("L_vd")
        A(f"ds_read_b32 v2, v110 offset:{L_F+4}")
        A(f"ds_read2_b32 v[134:135], v133 offset0:{(L_F+12)//4 - 256} offset1:{(L_F+16)//4 - 256}")
        A("s_waitcnt lgkmcnt(0)")
        A("v_readfirstlane_b32 s40, v2"); A("v_readfirstlane_b32 s3, v135"); A("v_readfirstlane_b32 s49, v134")
        A("s_andn2_b32 s3, s3, s63"); A("s_cbranch_scc1 L_puby2")
        A("s_cmp_ge_u32 s40, 4"); A("s_cbranch_scc1 L_vdd")
        A("s_sleep 2"); A("s_sub_u32 s62, s62, 1"); A("s_cbranch_scc0 L_vd")
        self.lab("L_vdd")
        A("s_lshl_b32 s3, s33, 5"); A("v_mov_b32 v56, s3")
        self.ldsspin("l2", 20, 8, [f"ds_read_b128 v[40:43], v56 offset:{L_M}", f"ds_read_b128 v[44:47], v56 offset:{L_M+16}",
                                   f"ds_read_b128 v[48:51], v56 offset:{L_L}", f"ds_read_b128 v[52:55], v56 offset:{L_L+16}"], sleep=4)
        A("v_max3_f32 v40, v40, v41, v42"); A("v_max3_f32 v43, v43, v44, v45"); A("v_max3_f32 v40, v40, v46, v47")
        A("v_pk_add_f32 v[48:49], v[48:49], v[52:53]"); A("v_pk_add_f32 v[50:51], v[50:51], v[54:55]")
        A("v_pk_add_f32 v[48:49], v[48:49], v[50:51]"); A("v_add_f32 v48, v48, v49")
        A("v_log_f32 v48, v48"); A("v_max_f32 v40, v40, v43")
        A("s_cmp_lg_u32 s49, 0")
        A("v_add_f32 v128, v40, v48")
        A("s_mov_b64 exec, 1")
        A("s_cbranch_scc1 L_S_y1")
        A("buffer_store_dwordx2 v[128:129], v110, s[12:15], s4 offen")
        self.lab("L_S_y1r")
        A("s_mov_b64 exec, -1")
        A("s_cmp_lg_u32 s49, 0"); A(f"s_cselect_b32 s49, {YD}, 0")
        A("s_lshl_b32 s35, s47, 7"); A(f"s_add_u32 s35, s35, {SP}"); A("s_add_u32 s35, s35, s49")
        A("v_lshlrev_b32 v57, 5, v5")
        self.poll("s", stl, [SG+1, SG+3, SG+5, SG+7], 20, sleep=self.ssleep)
        self.stamp(15)
        A(f"v_max3_f32 v20, v{SG}, v{SG+2}, v{SG+4}"); A(f"v_max_f32 v20, v20, v{SG+6}")
        for s in range(4): A(f"v_sub_f32 v{CF+2*s}, v{SG+2*s}, v20")
        for s in range(4): A(f"v_exp_f32 v{CF+2*s}, v{CF+2*s}")
        self.nop(1)
        A(f"v_add_f32 v20, v{CF}, v{CF+2}"); A(f"v_add_f32 v21, v{CF+4}, v{CF+6}"); A("v_add_f32 v20, v20, v21")
        A("v_rcp_f32 v20, v20"); self.nop(1)
        for s in range(4): A(f"v_mul_f32 v{CF+2*s}, v{CF+2*s}, v20")
        for e in range(8):
            if e == self.wo1: self.ldsspin("w", 24, self.th1, [], sleep=2)
            if e == self.wa: self.ldsspin("w2", 24, self.th2, [], sleep=1)
            if e == self.wo_early: A("s_setprio 0")
            A(f"buffer_load_dwordx4 {v4(WB+4*e)}, v1, s[20:23], s48 offen offset:{1024*(e>>2)}{nt}")
            if e == 3: A("s_sub_u32 s48, s48, 24576")
            elif e < 7: A("s_add_u32 s48, s48, 8192")
        A("s_setprio 3")
        self.stamp(5)
        A("s_lshl_b32 s39, s47, 13"); A("s_lshl_b32 s3, s33, 7"); A("s_add_u32 s39, s39, s3"); A(f"s_add_u32 s39, s39, {OP}")
        A("s_add_u32 s39, s39, s49"); A("s_add_u32 s48, s39, 4096")
        A("v_lshlrev_b32 v1, 9, v5"); A("v_lshl_add_u32 v1, v4, 5, v1"); A("v_lshl_add_u32 v1, v6, 3, v1")
        A("s_lshl_b32 s63, s32, 17"); A(f"s_add_u32 s63, s63, {FP}")
        A("s_lshl_b32 s3, s47, 11"); A("s_add_u32 s46, s63, s3"); A("s_lshl_b32 s3, s33, 9"); A("s_add_u32 s46, s46, s3")
        A("v_lshrrev_b32 v121, 2, v0"); A("v_lshlrev_b32 v121, 11, v121"); A("v_lshl_add_u32 v121, v6, 3, v121")
        A("s_lshl_b32 s3, s47, 5"); A("s_add_u32 s63, s63, s3")
        A("s_add_u32 s60, s63, 0x8000"); A("s_add_u32 s61, s63, 0x10000"); A("s_add_u32 s62, s63, 0x18000")
        A("s_lshl_b32 s45, s45, 10"); A("s_lshl_b32 s3, s32, 8"); A("s_add_u32 s45, s45, s3")
        A("s_and_b32 s3, s47, 15"); A("s_lshl_b32 s3, s3, 4"); A("s_add_u32 s45, s45, s3")
        A("v_lshlrev_b32 v126, 2, v6"); A("v_lshl_add_u32 v126, v4, 1, v126")
        A("s_mov_b32 s41, 1")
        A("s_and_b32 s49, s44, 3"); A("s_or_b32 s49, s49, s32"); A("s_or_b32 s49, s49, s33")
        A("s_lshr_b32 s3, s47, 2"); A("s_lshl_b32 s3, s3, 10"); A(f"s_add_u32 s3, s3, {EP}"); A("v_lshl_add_u32 v135, v0, 7, s3")
        A("v_lshlrev_b32 v134, 10, v3"); A(f"v_add_u32 v134, {EP}, v134")
        if self.er > self.ed:
            A(f"s_lshr_b32 s3, s2, 3"); A(f"s_and_b32 s3, s3, {self.er // self.ed - 1}"); A(f"s_mul_i32 s3, s3, {128 * self.ed}"); A("v_add_u32 v134, s3, v134")
        A("s_barrier")
        self.stamp(6)
        A("s_branch L_tile")
        self.lab("L_fin")
        if self.b4spin:
            self.cnt(28, "v111")
            A("s_mov_b64 exec, -1")
            self.ldsspin("c2", 28, 4, rd, sleep=0)
        else:
            A("s_mov_b64 exec, -1")
            A("s_waitcnt lgkmcnt(0)")
            A("s_barrier")
            for r in rd: A(r)
            A("s_waitcnt lgkmcnt(0)")
        A("v_pk_add_f32 v[12:13], v[12:13], v[14:15]"); A("v_pk_add_f32 v[16:17], v[16:17], v[18:19]")
        A("v_pk_add_f32 v[12:13], v[12:13], v[16:17]")
        A("v_bfi_b32 v12, s11, v160, v12"); A("v_bfi_b32 v13, s11, v161, v13")
        A(f"buffer_store_dwordx2 v[12:13], v127, s[12:15], s46 offen{pol}")
        self.stamp(9)
        if self.wbl == 1:
            A("s_lshr_b32 s3, s2, 3"); A("s_lshl_b32 s3, s3, 2"); A("s_add_u32 s5, s3, s33"); A("s_cmp_eq_u32 s5, 1"); A("s_cbranch_scc1 L_wb1")
        if self.wbl == 2:
            A("s_lshr_b32 s3, s2, 3"); A("s_lshl_b32 s3, s3, 2"); A("s_add_u32 s5, s3, s33"); A("s_cmp_eq_u32 s5, 1"); A("s_cbranch_scc0 L_wb1")
            A("buffer_wbl2 sc1")
            self.lab("L_wb1")
        A("s_cmp_lg_u32 s33, 0"); A("s_cbranch_scc1 L_C_exit")
        if self.wbl == 1: self.lab("L_wb1")
        if self.fdelay: A(f"s_sleep {self.fdelay}")
        if self.eta:
            if self.ed == 1:
                self.poll("e", [f"buffer_load_dword v41, v134, s[12:15], 0 offen{pol}"], [41], 40)
            else:
                D = self.ed
                A("s_mov_b64 exec, 0xffff")
                el = lambda i: A(f"buffer_load_dword v{41+i}, v134, s[12:15], 0 offen offset:{128 * (i % self.er)}{pol}")
                A(f"s_mov_b32 s38, {self.spin}")
                for i in range(D - 1):
                    el(i); A(f"s_sleep {self.es}")
                self.lab("L_ep")
                for i in range(D):
                    el((i + D - 1) % D)
                    A(f"s_waitcnt vmcnt({D-1})")
                    A(f"v_cmp_ne_u32 vcc, s34, v{41+i}")
                    A("s_cmp_eq_u64 vcc, 0"); A("s_cbranch_scc1 L_epd")
                A("s_sub_u32 s38, s38, 1"); A("s_cbranch_scc0 L_ep")
                self.lab("L_epd")
                A("s_mov_b64 exec, -1")
            self.stamp(12)
            if self.wbl == 1:
                A("s_cmp_eq_u32 s33, 0"); A("s_cbranch_scc1 L_wb2")
                A("buffer_wbl2 sc1"); A("s_branch L_C_exit")
                self.lab("L_wb2")
            if self.edly: A(f"s_sleep {self.edly}")
            self.lab("L_eok")
        self.poll("f", [f"buffer_load_dwordx2 {v2(24+2*i)}, v121, s[12:15], s{(63,60,61,62)[i]} offen{pol}" for i in range(4)],
                  list(range(24, 32)), 40, sleep=self.fsleep, tv=160)
        self.stamp(10)
        if self.stamps: A(f"s_sub_u32 s66, {self.spin}, s38"); A("s_mov_b32 s67, 0")
        A("v_pk_add_f32 v[24:25], v[24:25], v[26:27]"); A("v_pk_add_f32 v[28:29], v[28:29], v[30:31]")
        self.nop(2)
        A("v_permlane32_swap_b32 v24, v28"); A("v_permlane32_swap_b32 v25, v29")
        A("v_pk_add_f32 v[24:25], v[24:25], v[28:29]"); self.nop(2)
        A("v_permlane16_swap_b32 v24, v25")
        A("v_add_f32 v24, v24, v25"); self.nop(2)
        self.dpp("v_add_f32", 24, 24, 24, "row_ror:4"); self.nop(2)
        self.dpp("v_add_f32", 24, 24, 24, "row_ror:8")
        A("v_cvt_pk_bf16_f32 v24, v24, v24"); A("v_lshlrev_b32 v24, 16, v24")
        A("v_mul_f32 v24, v24, v120")
        A("v_cvt_pk_bf16_f32 v24, v24, v24"); A("v_lshlrev_b32 v24, 16, v24")
        A("v_mov_b32 v25, v24"); self.nop(2)
        A("v_permlane32_swap_b32 v24, v25")
        A("v_add_f32 v24, v24, v25")
        A("v_cvt_pk_bf16_f32 v24, v24, v24")
        A("s_mov_b64 exec, 0x000f000f")
        A("buffer_store_short v24, v126, s[56:59], s45 offen")
        if self.pad:
            if self.padk >= 0:
                A("s_waitcnt lgkmcnt(0)"); A("s_mov_b32 s90, s92")
            self.lab("L_pad")
            A("s_memrealtime s[94:95]"); A("s_waitcnt lgkmcnt(0)"); A("s_sub_u32 s94, s94, s90")
            A(f"s_cmp_lt_u32 s94, {self.pad}"); A("s_cbranch_scc1 L_pad")
        A("s_cmp_lg_u32 s2, 0"); A("s_cbranch_scc1 L_C_exit")
        A("s_mov_b64 exec, 1")
        A("buffer_store_dword v129, v110, s[12:15], 0 offen")
        self.lab("L_C_exit")
        self.stamp(11)
        if self.stamps: A("s_sleep 127")
        self.stamp_out()
        self.lab("L_end")
        A("s_endpgm")
        self.lab("L_last")
        self.lab("L_S_y1")
        A(f"s_add_u32 s4, s4, {YD}")
        A(f"buffer_store_dwordx2 v[128:129], v110, s[12:15], s4 offen{pol}")
        A("s_branch L_S_y1r")
        self.lab("L_S_y2")
        A(f"s_add_u32 s46, s46, {YD}")
        A(f"buffer_store_dwordx2 {v2(SB+12)}, v{SB+11}, s[12:15], s46 offen{pol}")
        A("s_branch L_S_x")
        def puby():
            A(f"s_add_u32 s3, s46, {YD}")
            A(f"buffer_store_dwordx2 v[164:165], v127, s[12:15], s3 offen{pol}")
            A("s_mov_b32 s63, 1")
        self.lab("L_puby2")
        puby()
        A("s_branch L_vd")
        self.lab("L_slow")
        A("s_cmp_lg_u32 s63, 0"); A("s_cbranch_scc1 L_slow2")
        A(f"ds_write_b32 v110, v111 offset:{L_F+16}")
        puby()
        self.lab("L_slow2")
        A(f"v_add_u32 v9, {YD}, v127")
        for l in qg("v9"): A(l)
        A("v_and_b32 v9, 1, v0"); A("v_mul_u32_u24 v9, 15, v9"); A("v_or_b32 v9, 0xf0, v9")
        A("s_waitcnt vmcnt(0)")
        A("v_xor_b32 v8, v166, v24"); A("v_xor_b32 v10, v167, v25")
        for r in range(26, 32): A(f"v_bitop3_b32 v{8 + 2*(r & 1)}, v{r}, v{166 + (r & 1)}, v{8 + 2*(r & 1)} bitop3:0xbe")
        A("v_and_b32 v10, 0xff, v10"); A("v_and_or_b32 v9, v8, v9, v10"); A("v_and_b32 v10, 15, v8")
        A("s_mov_b32 s38, 0")
        A("v_cmp_ne_u32 vcc, 0, v9"); A("s_cmp_eq_u64 vcc, 0"); A("s_cbranch_scc1 L_slow3")
        A("s_sleep 8")
        A("s_sub_u32 s62, s62, 1"); A("s_cbranch_scc0 L_qf")
        self.lab("L_slow3")
        for r in range(24, 32): A(f"v_and_b32 v{r}, 0xffffff00, v{r}")
        A("v_cmp_ne_u32 vcc, 0, v10"); A("s_cmp_lg_u64 vcc, 0")
        A("s_cselect_b32 s3, 1, 0"); A("v_mov_b32 v18, s3")
        A(f"s_mul_i32 s3, s33, {QH}"); A("v_lshl_add_u32 v16, v0, 2, s3")
        A("v_lshlrev_b32 v1, 11, v4"); A("v_lshl_add_u32 v1, v3, 4, v1")
        A("s_lshl_b32 s48, s44, 17"); A("s_lshl_b32 s3, s33, 15"); A("s_add_u32 s48, s48, s3")
        A("s_lshl_b32 s3, s32, 8"); A("s_add_u32 s48, s48, s3")
        A("s_waitcnt lgkmcnt(0)")
        A("s_branch L_qok")
        L.append('.section .rodata,"a"'); L.append(".p2align 6"); L.append(f".amdhsa_kernel {KN}")
        L.append("  .amdhsa_next_free_vgpr 168"); L.append("  .amdhsa_next_free_sgpr 96"); L.append("  .amdhsa_accum_offset 168")
        L.append("  .amdhsa_group_segment_fixed_size 0"); L.append("  .amdhsa_kernarg_size 112"); L.append("  .amdhsa_user_sgpr_count 2")
        L.append("  .amdhsa_user_sgpr_kernarg_segment_ptr 1"); L.append("  .amdhsa_system_sgpr_workgroup_id_x 1")
        L.append("  .amdhsa_float_denorm_mode_32 3")
        L.append(".end_amdhsa_kernel")
        return "\n".join(L) + "\n"

if __name__ == "__main__":
    out = sys.argv[1]
    kw = {}
    for a in sys.argv[2:]:
        k, v = a.split("=")
        kw[k] = v.replace("+", " ") if k in ("pol", "pat", "pat2") else int(v)
    open(out, "w").write(G(**kw).gen())
```

```python
import sys
KN = "gated_mix__sliding_block_cached__sliding_block_cached__decode_kernel"
HDR = open("gated_mix__sliding_block_cached__sliding_block_cached__decode.s.ref").read().split("; Override launch")[0]

FL = 0x1000
YD = 0x400000
OP = 0x100000
SP = 0xC0000
EP = 0xD0000
QP = 0x100000
FP = 0x180000
WS_BYTES = 0x600000
STAMP_OFF = 0x4000000
L_Q = 0
QH = 272
L_M = 1280
L_L = 1408
L_F = 1536
L_O = 2048
L_R = L_O + 8*2112
LDS_BYTES = L_R + 4*2112
LOG2E = 0x3fb8aa3b
SCALE = 0x3db504f3
NS = 16

class G:
    def __init__(self, **kw):
        d = dict(padk=-1, pad=0, stamps=0, nt=1, pol="sc1", spin=1 << 16, pf=1, wo_early=0, qsleep=12, forcey=0, pretouch=0,
                 n0=8, qdepth=4, lsplit=1, osleep=0, fsleep=0, b4spin=0, fdelay=0, eta=1, edly=0, tx=0, rm=2, N=3, rot=1, lan=1, qpos=3, wj=31, pat='x0x11x', cw=3, up=99, wo1=0, wj2=32, wa=2, th1=8, th2=16, opos=3, pr=0, tlbs=0, tlbv=0, lean=1, xdirty=0, qwt=0, owt=0, xperm=0, b0late=0, ed=1, es=4, early=0, ldly=0, ssleep=8, ovl=1, pat2='', lup=99, wbl=0, wqr=0, er=1, dbg=0, amp='')
        d.update(kw)
        self.__dict__.update(d)
        self.L = []
        self.nt = " nt" if self.nt else ""
        self.pol = " " + self.pol
    def A(self, s): self.L.append("    " + s)
    def lab(self, s): self.L.append(s + ":")
    def nop(self, n):
        while n > 0:
            k = min(n, 16); self.A(f"s_nop {k-1}"); n -= k
    def stamp(self, i):
        if self.amp and i not in (0, int(self.amp[1:])): return
        if self.padk == i: self.A("s_memrealtime s[92:93]")
        if self.stamps: self.A(f"s_memrealtime s[{64+2*i}:{65+2*i}]")
    def stamp_out(self, cls="C"):
        if not self.stamps: return
        A = self.A
        if self.amp:
            k = int(self.amp[1:]); mine = self.amp[0].upper() == cls; mean = self.amp[0].islower()
            A("s_load_dwordx2 s[62:63], s[0:1], 96")
            A("s_waitcnt lgkmcnt(0)")
            A("s_mov_b64 exec, 1"); A("v_mov_b32 v4, 0"); A("v_mov_b32 v3, 1")
            if cls == "C":
                A("s_not_b32 s60, s64"); A("v_mov_b32 v2, s60"); A("global_atomic_umax v4, v2, s[62:63]")
            if mine:
                A(f"v_mov_b32 v2, s{64+2*k}"); A(f"global_atomic_{'add' if mean else 'umax'} v4, v2, s[62:63] offset:64")
            if cls == "C" or mine:
                A("s_waitcnt vmcnt(0)"); A("global_atomic_add v4, v3, s[62:63] offset:128")
            if cls == "C":
                n = 1024 + (2048 if self.amp[0].upper() == "S" else 0)
                A("s_or_b32 s60, s2, s33"); A("s_cmp_lg_u32 s60, 0"); A("s_cbranch_scc1 L_amp_x")
                A("s_mov_b32 s38, 100000")
                self.lab("L_amp_p")
                A("s_sleep 32"); A("global_load_dword v2, v4, s[62:63] offset:128 sc1"); A("s_waitcnt vmcnt(0)"); A("v_readfirstlane_b32 s60, v2")
                A("s_sub_u32 s38, s38, 1"); A("s_cbranch_scc1 L_amp_x")
                A(f"s_cmp_lt_u32 s60, {n}"); A("s_cbranch_scc1 L_amp_p")
                A("global_load_dword v2, v4, s[62:63] sc1"); A("global_load_dword v3, v4, s[62:63] offset:64 sc1"); A("s_waitcnt vmcnt(0)")
                A("v_readfirstlane_b32 s60, v2"); A("v_readfirstlane_b32 s61, v3"); A("s_not_b32 s60, s60")
                if mean:
                    sh = 11 if self.amp[0] == "s" else 10
                    A(f"s_lshl_b32 s59, s60, {sh}"); A("s_sub_u32 s61, s61, s59"); A("s_mul_i32 s61, s61, 10"); A(f"s_lshr_b32 s61, s61, {sh}")
                else:
                    A("s_sub_u32 s61, s61, s60"); A("s_mul_i32 s61, s61, 10")
                A("s_min_u32 s61, s61, 100000"); A("s_add_u32 s61, s61, 15000")
                self.lab("L_amp_s")
                A("s_memrealtime s[58:59]"); A("s_waitcnt lgkmcnt(0)"); A("s_sub_u32 s58, s58, s60"); A("s_cmp_lt_u32 s58, s61"); A("s_cbranch_scc1 L_amp_s")
                self.lab("L_amp_x")
            return
        if self.dbg:
            A("s_load_dwordx2 s[62:63], s[0:1], 96")
            A("s_waitcnt lgkmcnt(0)")
            A("s_mov_b64 exec, 1"); A("v_mov_b32 v4, 0")
            A("s_not_b32 s60, s64"); A("v_mov_b32 v2, s60"); A("global_atomic_umax v4, v2, s[62:63]")
            m = {"C": {0: 15, 2: 2, 4: 3, 7: 10, 8: 11, 9: 12, 12: 13, 10: 14}, "S": {1: 1, 2: 4, 3: 5, 7: 6, 9: 7, 10: 8, 11: 9}}[cls]
            for k, d in m.items():
                A(f"v_mov_b32 v2, s{64+2*k}"); A(f"global_atomic_umax v4, v2, s[62:63] offset:{4*d}"); A("s_nop 1")
            if self.dbg == 2:
                m2 = {"C": {7: 16, 0: 17}, "S": {9: 18, 1: 19}}[cls]
                for k, d in m2.items():
                    A(f"v_mov_b32 v2, s{64+2*k}"); A(f"global_atomic_add v4, v2, s[62:63] offset:{4*d}"); A("s_nop 1")
            return
        A("s_waitcnt lgkmcnt(0)")
        A("s_mul_i32 s60, s2, 12"); A("s_add_u32 s60, s60, s33"); A(f"s_mul_i32 s60, s60, {NS*8}")
        A(f"s_add_u32 s60, s60, {STAMP_OFF}")
        A("s_add_u32 s62, s12, s60"); A("s_addc_u32 s63, s13, 0")
        A("s_mov_b64 exec, 1"); A("v_mov_b32 v4, 0")
        for i in range(NS):
            A(f"v_mov_b32 v2, s{64+2*i}"); A(f"v_mov_b32 v3, s{65+2*i}")
            A(f"global_store_dwordx2 v4, v[2:3], s[62:63] offset:{i*8}"); A("s_nop 1")
    def v4(self, r): return f"v[{r}:{r+3}]"
    def v2(self, r): return f"v[{r}:{r+1}]"
    def perms(self, dst, src, pairs=(0, 1, 2, 3)):
        for q in pairs:
            for w in range(4):
                for hh in range(2):
                    j = 2*w + hh
                    self.A(f"v_perm_b32 v{dst+4*j+q}, v{src+4*(2*q+1)+w}, v{src+4*(2*q)+w}, s{36+hh}")
    def allred_rows(self, op, v, t):
        A = self.A
        A(f"v_mov_b32 v{t}, v{v}"); self.nop(2)
        A(f"v_permlane32_swap_b32 v{v}, v{t}")
        A(f"{op} v{v}, v{v}, v{t}")
        A(f"v_mov_b32 v{t}, v{v}"); self.nop(2)
        A(f"v_permlane16_swap_b32 v{v}, v{t}")
        A(f"{op} v{v}, v{v}, v{t}")
    def dpp(self, op, d, a, b, ctl):
        self.A(f"{op}_dpp v{d}, v{a}, v{b} {ctl} row_mask:0xf bank_mask:0xf")
    def poll(self, name, loads, tagregs, acc, first_issued=False, sleep=0, tv=None):
        A = self.A
        A(f"s_mov_b32 s38, {self.spin}")
        if first_issued: A(f"s_branch L_chk_{name}")
        elif sleep: A(f"s_branch L_ld_{name}")
        self.lab(f"L_poll_{name}")
        if sleep: A(f"s_sleep {sleep}")
        self.lab(f"L_ld_{name}")
        for l in loads: A(l)
        self.lab(f"L_chk_{name}")
        A("s_waitcnt vmcnt(0)")
        if tv is None:
            A(f"v_xor_b32 v{acc}, s34, v{tagregs[0]}")
            for r in tagregs[1:]:
                A(f"v_bitop3_b32 v{acc}, v{r}, s34, v{acc} bitop3:0xbe")
        else: self.untag(tagregs[0], tv, acc)
        A("s_sub_u32 s38, s38, 1")
        A(f"v_cmp_ne_u32 vcc, 0, v{acc}")
        A("s_cselect_b64 s[50:51], 0, -1")
        if tv is not None: A("s_wqm_b64 vcc, vcc")
        A("s_and_b64 exec, vcc, s[50:51]")
        A(f"s_cbranch_scc1 L_poll_{name}")
        A("s_mov_b64 exec, -1")
    def untag(self, r0, tv, acc):
        A = self.A
        for r in range(r0, r0 + 8): A(f"v_xor_b32 v{r}, v{tv + (r & 1)}, v{r}")
        A(f"v_or3_b32 v{acc}, v{r0}, v{r0+1}, v{r0+2}"); A(f"v_or3_b32 v{acc+1}, v{r0+3}, v{r0+4}, v{r0+5}")
        A(f"v_or3_b32 v{acc}, v{acc}, v{r0+6}, v{r0+7}")
        A(f"v_bitop3_b32 v{acc}, v{acc}, v{acc+1}, s11 bitop3:0xa8")
    def ldsspin(self, name, off, target, reads, sleep=1):
        A = self.A
        A(f"s_mov_b32 s38, {self.spin * 16}")
        if sleep: A(f"s_branch L_spl_{name}")
        self.lab(f"L_sp_{name}")
        if sleep: A(f"s_sleep {sleep}")
        self.lab(f"L_spl_{name}")
        A(f"ds_read_b32 v2, {self.vz} offset:{L_F+off}")
        for r in reads: A(r)
        A("s_sub_u32 s38, s38, 1")
        A("s_cselect_b32 s3, 0, -1")
        A("s_waitcnt lgkmcnt(0)")
        A("v_readfirstlane_b32 s40, v2")
        A("s_orn2_b32 s40, s40, s3")
        A(f"s_cmp_lt_u32 s40, {target}")
        A(f"s_cbranch_scc1 L_sp_{name}")
    def cnt(self, off, one):
        A = self.A
        A("s_mov_b64 exec, 1")
        A(f"ds_add_u32 {self.vz}, {one} offset:{L_F+off}")
    def vissue(self, VB, p):
        for T in (2*p, 2*p+1):
            for e in range(4):
                self.A(f"buffer_load_dwordx4 {self.v4(VB+16*T+4*e)}, v5, s[8:11], s35 offen offset:{256*e}{self.nt}")
            if T < 3: self.A("s_add_u32 s35, s35, 16384")
    def mspin(self, name, B, d):
        A = self.A
        self.ldsspin(name, 8, 8, [f"ds_read_b128 {self.v4(B)}, v6 offset:{L_M}", f"ds_read_b128 {self.v4(B+4)}, v6 offset:{L_M+16}"], sleep=2)
        A(f"v_max3_f32 v{B}, v{B}, v{B+1}, v{B+2}")
        A(f"v_max3_f32 v{B+3}, v{B+3}, v{B+4}, v{B+5}")
        A(f"v_max3_f32 v{B}, v{B}, v{B+6}, v{B+7}")
        A(f"v_max_f32 v{d}, v{B}, v{B+3}")

    def gen(self):
        A = self.A; nt = self.nt; pol = self.pol; v4 = self.v4; v2 = self.v2
        OP = 0x100000 if self.ovl else 0x40000
        L = self.L
        L.append(HDR.rstrip("\n"))
        L.append(f"; @launch grid=(256,1,1) block=(768,1,1) lds={LDS_BYTES}")
        L.append('.amdgcn_target "amdgcn-amd-amdhsa--gfx950"')
        L.append(".text"); L.append(f".globl {KN}"); L.append(".p2align 12"); L.append(".p2align 8"); L.append(f".type {KN},@function"); L.append(f"{KN}:")
        self.stamp(0)
        if self.pad: A("s_memrealtime s[90:91]")
        if self.stamps:
            for i in range(1, NS): A(f"s_mov_b64 s[{64+2*i}:{65+2*i}], 0")
        if self.xperm == 1:
            A("s_lshr_b32 s3, s2, 3"); A("s_and_b32 s29, s2, 7"); A("s_lshl_b32 s29, s29, 5"); A("s_or_b32 s2, s3, s29")
        if self.xperm == 2:
            A("s_xor_b32 s3, s2, 1"); A("s_and_b32 s29, s2, 0xf8"); A("s_cmp_eq_u32 s29, 0x48"); A("s_cselect_b32 s2, s3, s2")
        A("s_bfe_u32 s29, s2, 0x10002")
        A("s_mul_i32 s3, s29, 40")
        A("s_cmp_ge_u32 s2, 256"); A("s_cbranch_scc1 L_end")
        A("s_load_dwordx2 s[16:17], s[0:1], s3 offset:24")
        A("s_load_dwordx2 s[24:25], s[0:1], 0")
        A("s_load_dwordx2 s[4:5], s[0:1], s3 offset:8")
        A("s_load_dwordx2 s[8:9], s[0:1], s3 offset:16")
        A("s_load_dwordx2 s[12:13], s[0:1], 104")
        A("v_lshrrev_b32 v1, 6, v0")
        A("s_lshr_b32 s30, s2, 3")
        if self.tx: A(f"s_xor_b32 s30, s30, {self.tx}")
        A("v_readfirstlane_b32 s33, v1")
        A("s_and_b32 s28, s2, 3"); A("s_lshl_b32 s28, s28, 1"); A("s_lshr_b32 s31, s30, 4"); A("s_or_b32 s28, s28, s31")
        A("s_bfe_u32 s31, s30, 0x20002"); A("s_and_b32 s32, s30, 3")
        A("v_and_b32 v0, 63, v0")
        A("v_and_b32 v3, 15, v0")
        A("v_lshrrev_b32 v4, 4, v0")
        A("v_bfe_u32 v5, v0, 2, 2")
        A("v_and_b32 v6, 3, v0")
        A("s_cmp_ge_u32 s33, 4"); A("s_cbranch_scc1 L_S")
        WB, PB, DB, XB = 8, 40, 72, 104
        A("s_setprio 3")
        if self.pf:
            A("s_getpc_b64 s[42:43]")
            if self.lean:
                A("s_lshl_b32 s3, s33, 11"); A("v_lshl_add_u32 v12, v3, 7, s3"); A("s_mov_b64 exec, 0xffff")
            else: A("v_lshlrev_b32 v12, 7, v0")
            A("v_min_u32 v12, L_last-L_pfbase, v12")
            self.lab("L_pfbase")
            A("global_load_dword v108, v12, s[42:43]")
            if self.lean: A("s_mov_b64 exec, -1"); A("s_mul_i32 s3, s29, 40")
        A("s_mov_b32 s18, 0x400000"); A("s_mov_b32 s19, 0x20000")
        A("s_mov_b32 s26, 4096"); A("s_mov_b32 s27, 0x20000")
        A("v_lshlrev_b32 v1, 16, v4"); A("v_lshl_add_u32 v1, v3, 4, v1")
        if self.wqr:
            A("v_lshl_add_u32 v1, v4, 13, v1")
            for e in range(1, self.cw): A(f"v_xor_b32 v{64+e}, {e << 13}, v1")
        def wql(e):
            if self.wqr:
                if e >= self.cw: A(f"v_xor_b32 v{64+e}, {e << 13}, v1")
                A(f"buffer_load_dwordx4 {v4(WB+4*e)}, v{64+e if e else 1}, s[16:19], s35 offen{nt}")
            else:
                A(f"buffer_load_dwordx4 {v4(WB+4*e)}, v1, s[16:19], s35 offen{nt}")
                if e < 7: A("s_add_u32 s35, s35, 8192")
        A("v_lshlrev_b32 v2, 10, v5"); A("v_lshl_add_u32 v2, v4, 4, v2")
        A("s_lshl_b32 s44, s28, 2"); A("s_add_u32 s44, s44, s31")
        A("s_lshl_b32 s39, s32, 2"); A("s_add_u32 s39, s39, s33")
        A("s_lshl_b32 s35, s39, 18"); A("s_lshl_b32 s45, s44, 8"); A("s_add_u32 s35, s35, s45")
        A("s_lshl_b32 s39, s39, 6")
        A("s_waitcnt lgkmcnt(0)")
        self.stamp(1)
        A(f"buffer_load_dwordx4 {v4(136 if self.wqr else XB)}, v2, s[24:27], s39 offen")
        for e in range(self.cw): wql(e)
        A("v_mov_b32 v112, 0"); A("v_mov_b32 v113, 0"); A("v_mov_b32 v114, 0"); A("v_mov_b32 v115, 0")
        A(f"ds_write_b128 v112, v[112:115] offset:{L_F}")
        A(f"ds_write_b128 v112, v[112:115] offset:{L_F+16}")
        A("s_waitcnt lgkmcnt(0)")
        A("s_barrier")
        A("s_branch L_C")
        self.lab("L_S")
        KB, VB, QB, SB = 8, 72, 136, 152
        self.vz = "v7"
        esh = 10 if self.lan else 8
        A("s_setprio 1")
        A("s_mov_b32 s6, 0x4000000"); A("s_mov_b32 s7, 0x20000")
        A("s_mov_b32 s10, 0x4000000"); A("s_mov_b32 s11, 0x20000")
        A("s_lshl_b32 s35, s31, 3"); A("s_add_u32 s35, s35, s28"); A("s_lshl_b32 s35, s35, 4"); A("s_add_u32 s35, s35, s32")
        A("s_lshl_b32 s35, s35, 5"); A("s_add_u32 s35, s35, s33")
        A("s_lshl_b32 s35, s35, 12"); A(f"s_add_u32 s35, s35, {0x180000 - 4*4096}")
        if self.rot & 1: A(f"s_lshl_b32 s3, s32, {esh}"); A("s_add_u32 s35, s35, s3")
        if self.rot & 2: A("s_and_b32 s3, s2, 7"); A("s_lshl_b32 s3, s3, 12"); A("s_xor_b32 s35, s35, s3")
        A(f"v_lshlrev_b32 v1, {18-esh}, v5"); A("v_lshl_add_u32 v1, v4, 6, v1"); A("v_lshl_add_u32 v1, v6, 4, v1")
        A(f"v_mul_u32_u24 v2, {QH}, v6"); A("v_lshl_add_u32 v2, v4, 6, v2"); A(f"v_lshl_add_u32 v{QB+12}, v5, 4, v2")
        A("v_lshlrev_b32 v5, 4, v3"); A(f"v_lshl_add_u32 v5, v4, {18-esh}, v5")
        if self.pr == 1:
            A("s_cmp_lt_u32 s33, 8"); A("s_cbranch_scc1 L_pr1"); A("s_setprio 2"); self.lab("L_pr1")
        if not self.b0late: A("s_barrier")
        A("s_waitcnt lgkmcnt(0)")
        self.stamp(1)
        st = dict(i=0)
        def trig(i):
            if i in (self.wj, self.wj2):
                self.cnt(24, f"v{QB+15}"); A("s_mov_b64 exec, -1")
        def nxt(k=1):
            for _ in range(k):
                i = st["i"]; st["i"] += 1
                n = self.N + (1 if i >= self.up else 0)
                wt = lambda p: (None if p[i] == "x" else int(p[i])) if i < len(p) else (n - 1 if i >= n else None)
                w1 = wt(self.pat); w2 = wt(self.pat2) if self.pat2 else w1
                if i == self.lup: w2 = n
                if w1 == w2:
                    if w1 is not None: A(f"s_waitcnt vmcnt({w1})")
                else:
                    A("s_cmp_ge_u32 s33, 8"); A(f"s_cbranch_scc1 L_p{i}")
                    if w1 is not None: A(f"s_waitcnt vmcnt({w1})")
                    if w2 is not None and (w1 is None or w2 < w1):
                        A(f"s_branch L_q{i}"); self.lab(f"L_p{i}"); A(f"s_waitcnt vmcnt({w2})"); self.lab(f"L_q{i}")
                    else:
                        self.lab(f"L_p{i}")
                        if w2 is not None: A(f"s_waitcnt vmcnt({w2})")
                if self.pr == 2: A(f"s_setprio {2 - i % 3}")
                if self.pr == 3: A(f"s_setprio {1 - i % 2}")
                T, e = (i >> 2) & 3, i & 3
                so = "s35"
                if T or e: A(f"s_xor_b32 s39, s35, {T*32768 + (e << esh)}"); so = "s39"
                if i < 16: A(f"buffer_load_dwordx4 {v4(KB+4*i)}, v1, s[4:7], {so} offen{nt}")
                else: A(f"buffer_load_dwordx4 {v4(VB+4*(i-16))}, v5, s[8:11], {so} offen{nt}")
                trig(i)
                if self.xdirty and i == 8:
                    A("s_mov_b32 s14, 0x4000000")
                    A("s_lshl_b32 s46, s2, 3"); A("s_add_u32 s46, s46, s33"); A(f"s_mul_i32 s46, s46, {self.xdirty*1024}"); A("s_add_u32 s46, s46, 0x800000")
                    A(f"v_lshlrev_b32 v{SB}, 4, v0")
                    for k in range(self.xdirty): A(f"buffer_store_dwordx4 v[0:3], v{SB}, s[12:15], s46 offen offset:{1024*k}")
        def upto(j):
            while st["i"] <= j: nxt()
        nxt(len(self.pat) - len(self.pat.lstrip("x")) if self.pat else self.N)
        A("s_load_dword s34, s[12:13], 0")
        A(f"s_mov_b32 s14, {WS_BYTES}"); A("s_mov_b32 s15, 0x20000")
        A("s_mov_b32 s36, 0x05040100"); A("s_mov_b32 s37, 0x07060302")
        A("v_mov_b32 v7, 0")
        A(f"v_mov_b32 v{QB+15}, 1")
        A("v_lshlrev_b32 v6, 5, v6"); A("s_lshl_b32 s3, s33, 2"); A("s_sub_u32 s3, s3, 16"); A("v_add_u32 v3, s3, v6")
        A(f"v_and_b32 v{QB+13}, 3, v0"); A(f"v_mul_u32_u24 v{QB+13}, 528, v{QB+13}"); A(f"v_lshl_add_u32 v{QB+13}, v4, 7, v{QB+13}")
        A("s_mul_i32 s3, s33, 2112"); A(f"s_add_u32 s3, s3, {L_O - 4*2112}"); A(f"v_add_u32 v{QB+13}, s3, v{QB+13}")
        A("s_mov_b32 s42, 0x000f000f"); A("s_mov_b32 s43, 0x000f000f")
        if self.b0late: A("s_barrier")
        upto(15)
        self.stamp(2)
        upto(15 + self.qpos)
        A(f"s_waitcnt vmcnt({self.qpos})")
        self.stamp(3)
        self.ldsspin("q", 4, 4, [f"ds_read_b128 {v4(QB)}, v{QB+12} offset:{L_Q}"], sleep=4)
        self.stamp(4)
        Dj = lambda j: (QB + 4 + 4*j) if j < 2 else (KB + 4*(j-2))
        for j in range(16):
            A(f"v_mfma_f32_16x16x32_bf16 {v4(Dj(j))}, {v4(KB+4*j)}, {v4(QB)}, 0")
        A(f"s_mov_b32 s40, {SCALE}"); A(f"s_mov_b32 s41, {LOG2E}")
        A("s_mul_i32 s34, s34, 1664525"); A("s_add_u32 s34, s34, 1013904223")
        nxt()
        for j in range(16): self.dpp("v_add_f32", SB+j, Dj(j)+1, Dj(j), "row_ror:12")
        for j in range(16): self.dpp("v_add_f32", SB+j, Dj(j)+2, SB+j, "row_ror:8")
        for j in range(16): self.dpp("v_add_f32", SB+j, Dj(j)+3, SB+j, "row_ror:4")
        for i in range(8):
            A(f"v_cvt_pk_bf16_f32 v{QB+i}, v{SB+2*i}, v{SB+2*i+1}")
        for i in range(8):
            A(f"v_lshlrev_b32 v{SB+2*i}, 16, v{QB+i}"); A(f"v_and_b32 v{SB+2*i+1}, 0xffff0000, v{QB+i}")
        nxt()
        for i in range(8):
            A(f"v_pk_mul_f32 {v2(SB+2*i)}, {v2(SB+2*i)}, s[40:41] op_sel_hi:[1,0]")
        for i in range(8):
            A(f"v_cvt_pk_bf16_f32 v{QB+i}, v{SB+2*i}, v{SB+2*i+1}")
        for i in range(8):
            A(f"v_lshlrev_b32 v{SB+2*i}, 16, v{QB+i}"); A(f"v_and_b32 v{SB+2*i+1}, 0xffff0000, v{QB+i}")
        A(f"v_max3_f32 v1, v{SB}, v{SB+1}, v{SB+2}")
        A(f"v_max3_f32 v2, v{SB+3}, v{SB+4}, v{SB+5}")
        A(f"v_max3_f32 v1, v1, v{SB+6}, v{SB+7}")
        A(f"v_max3_f32 v2, v2, v{SB+8}, v{SB+9}")
        A(f"v_max3_f32 v1, v1, v{SB+10}, v{SB+11}")
        A(f"v_max3_f32 v2, v2, v{SB+12}, v{SB+13}")
        A(f"v_max3_f32 v1, v1, v{SB+14}, v{SB+15}")
        A("v_max_f32 v1, v1, v2")
        self.allred_rows("v_max_f32", 1, 2)
        A("v_mul_f32 v1, s41, v1")
        A("s_mov_b64 exec, 15")
        A(f"ds_write_b32 v3, v1 offset:{L_M}")
        self.cnt(8, f"v{QB+15}")
        A("s_mov_b64 exec, -1")
        self.stamp(5)
        nxt()
        self.stamp(6)
        self.mspin("m", QB, 1)
        for i in range(16):
            A(f"v_fma_f32 v{SB+i}, v{SB+i}, s41, -v1")
        for i in range(16):
            A(f"v_exp_f32 v{SB+i}, v{SB+i}")
        nxt()
        for i in range(8):
            A(f"v_cvt_pk_bf16_f32 v{QB+i}, v{SB+2*i}, v{SB+2*i+1}")
        for i in range(4):
            A(f"v_pk_add_f32 {v2(SB+2*i)}, {v2(SB+2*i)}, {v2(SB+8+2*i)}")
        for i in range(2):
            A(f"v_pk_add_f32 {v2(SB+2*i)}, {v2(SB+2*i)}, {v2(SB+4+2*i)}")
        A(f"v_pk_add_f32 {v2(SB)}, {v2(SB)}, {v2(SB+2)}")
        A(f"v_add_f32 v{SB+8}, v{SB}, v{SB+1}")
        self.allred_rows("v_add_f32", SB+8, SB)
        OB, P0, P1 = 8, 40, 72
        A("s_mov_b64 exec, 15")
        A(f"ds_write_b32 v3, v{SB+8} offset:{L_L}")
        self.cnt(20, f"v{QB+15}")
        A("s_mov_b64 exec, -1")
        self.stamp(7)
        def need(j):
            upto(min(31, j + self.N + (1 if j + self.N + 1 >= self.up else 0)))
            A(f"s_waitcnt vmcnt({st['i'] - 1 - j})")
        need(23)
        self.perms(P0, VB, pairs=(0, 1))
        if st["i"] < 32: nxt()
        self.perms(P0, VB, pairs=(2, 3))
        for j in range(8):
            A(f"v_mfma_f32_16x16x32_bf16 {v4(OB+4*j)}, {v4(P0+4*j)}, {v4(QB)}, 0")
        self.stamp(8)
        need(25)
        self.perms(P1, VB+32, pairs=(0,))
        A("s_cmp_ge_u32 s33, 8"); A("s_cbranch_scc1 L_S_nr")
        A("s_mul_i32 s3, s33, 528"); A(f"s_add_u32 s3, s3, {L_O - 4*528}")
        A(f"v_lshl_add_u32 v{SB+9}, v0, 3, s3")
        A("s_lshl_b32 s3, s33, 5"); A("s_sub_u32 s3, s3, 128"); A(f"v_mov_b32 v{SB+10}, s3")
        A("s_lshl_b32 s3, s29, 3"); A("s_add_u32 s3, s3, s28"); A("s_lshl_b32 s3, s3, 2"); A("s_add_u32 s3, s3, s33"); A("s_sub_u32 s3, s3, 4")
        A("s_lshl_b32 s3, s3, 2"); A("s_add_u32 s3, s3, s32"); A("s_lshl_b32 s3, s3, 2"); A("s_add_u32 s3, s3, s31")
        A("s_lshl_b32 s46, s3, 9"); A(f"s_add_u32 s46, s46, {OP}")
        A(f"v_lshlrev_b32 v{SB+11}, 3, v0")
        A(f"v_mov_b32 v{SB+13}, s34")
        self.ldsspin("l", 20, 8, [f"ds_read_b128 {v4(SB)}, v{SB+10} offset:{L_L}", f"ds_read_b128 {v4(SB+4)}, v{SB+10} offset:{L_L+16}",
                                  f"ds_read_b32 v1, v7 offset:{L_F+12}"], sleep=2)
        A("v_readfirstlane_b32 s45, v1")
        A(f"v_pk_add_f32 {v2(SB)}, {v2(SB)}, {v2(SB+4)}"); A(f"v_pk_add_f32 {v2(SB+2)}, {v2(SB+2)}, {v2(SB+6)}")
        A(f"v_pk_add_f32 {v2(SB)}, {v2(SB)}, {v2(SB+2)}")
        A(f"v_add_f32 v{SB+14}, v{SB}, v{SB+1}")
        A(f"v_rcp_f32 v{SB+14}, v{SB+14}")
        self.lab("L_S_nr")
        for q in range(1, 4):
            if q == 3 and 33 in (self.wj, self.wj2):
                need(30); trig(33)
            need(25 + 2*q)
            if q == 2: trig(32)
            if q == 3: trig(34); A("s_setprio 3"); self.stamp(9)
            self.perms(P1, VB+32, pairs=(q,))
        for j in range(8):
            A(f"v_mfma_f32_16x16x32_bf16 {v4(OB+4*j)}, {v4(P1+4*j)}, {v4(QB+4)}, {v4(OB+4*j)}")
        A("s_mov_b64 exec, s[42:43]")
        A("s_cmp_ge_u32 s33, 8")
        for j in range(8):
            A(f"ds_write_b128 v{QB+13}, {v4(OB+4*j)} offset:{16*j}")
        A("s_mov_b64 exec, -1")
        A("s_waitcnt lgkmcnt(0)")
        A("s_barrier")
        self.stamp(10)
        A("s_cbranch_scc1 L_S_x")
        for w in range(8): A(f"ds_read_b64 {v2(8+2*w)}, v{SB+9} offset:{2112*w}")
        A("s_waitcnt lgkmcnt(0)")
        for w in (0, 1, 2, 3):
            A(f"v_pk_add_f32 {v2(8+2*w)}, {v2(8+2*w)}, {v2(16+2*w)}")
        A("v_pk_add_f32 v[8:9], v[8:9], v[12:13]"); A("v_pk_add_f32 v[10:11], v[10:11], v[14:15]")
        A("s_cmp_lg_u32 s45, 0")
        A("v_pk_add_f32 v[8:9], v[8:9], v[10:11]")
        A(f"v_pk_mul_f32 v[8:9], v[8:9], {v2(SB+14)} op_sel_hi:[1,0]")
        A(f"v_cvt_pk_bf16_f32 v{SB+12}, v8, v9")
        A("s_cbranch_scc1 L_S_y2")
        A(f"buffer_store_dwordx2 {v2(SB+12)}, v{SB+11}, s[12:15], s46 offen" + ["", " sc1", " nt", " sc0 sc1"][self.owt])
        self.lab("L_S_x")
        self.stamp(11)
        if self.stamps: A("s_sleep 127"); A("s_sleep 127")
        self.stamp_out("S")
        A("s_endpgm")
        self.lab("L_C")
        self.vz = "v110"
        A("s_load_dword s34, s[12:13], 0")
        A("s_load_dwordx2 s[20:21], s[0:1], s3 offset:32")
        A("s_load_dwordx2 s[52:53], s[0:1], 80")
        A("s_load_dwordx2 s[56:57], s[0:1], 88")
        A(f"s_mov_b32 s14, {WS_BYTES}"); A("s_mov_b32 s15, 0x20000")
        A("s_mov_b32 s22, 0x400000"); A("s_mov_b32 s23, 0x20000")
        A("s_mov_b32 s36, 0x05040100"); A("s_mov_b32 s37, 0x07060302")
        A("s_mov_b32 s54, 1024"); A("s_mov_b32 s55, 0x20000")
        A("s_mov_b32 s58, 4096"); A("s_mov_b32 s59, 0x20000")
        A("s_lshl_b32 s45, s29, 1"); A("s_lshr_b32 s3, s28, 2"); A("s_add_u32 s45, s45, s3")
        A("v_lshlrev_b32 v109, 4, v0")
        A("s_lshl_b32 s3, s29, 5"); A("s_add_u32 s47, s44, s3")
        A("v_mov_b32 v110, 0"); A("v_mov_b32 v111, 1"); A("v_mov_b32 v133, 1024")
        A("v_lshlrev_b32 v127, 3, v0")
        A("v_mul_u32_u24 v7, 528, v5"); A("v_lshl_add_u32 v7, v4, 7, v7")
        A("s_mul_i32 s3, s33, 2112"); A(f"s_add_u32 s3, s3, {L_R}"); A("v_add_u32 v7, s3, v7")
        A("v_lshlrev_b32 v122, 7, v4"); A("v_lshl_add_u32 v122, v6, 5, v122"); A("v_lshl_add_u32 v122, v5, 2, v122")
        A("s_mul_i32 s3, s33, 528"); A(f"s_add_u32 s3, s3, {L_R}"); A("v_add_u32 v122, s3, v122")
        A("v_add_u32 v123, 2112, v122"); A("v_add_u32 v124, 4224, v122"); A("v_add_u32 v125, 6336, v122")
        A("s_lshl_b32 s46, s47, 2"); A("s_add_u32 s46, s46, s32"); A("s_lshl_b32 s46, s46, 2"); A("s_add_u32 s46, s46, s33")
        A("s_lshl_b32 s46, s46, 9"); A(f"s_add_u32 s46, s46, {QP}")
        A("s_lshl_b32 s4, s29, 3"); A("s_add_u32 s4, s4, s28"); A("s_lshl_b32 s4, s4, 2"); A("s_add_u32 s4, s4, s33")
        A("s_lshl_b32 s4, s4, 2"); A("s_add_u32 s4, s4, s31"); A("s_lshl_b32 s4, s4, 2"); A("s_add_u32 s4, s4, s32")
        A("s_lshl_b32 s4, s4, 3"); A(f"s_add_u32 s4, s4, {SP}")
        if self.rm >= 0:
            A("s_sub_u32 s3, s32, s31"); A("s_add_u32 s44, s44, s3"); A("s_add_u32 s47, s47, s3")
            A(f"s_add_u32 s32, s31, {self.rm}"); A("s_and_b32 s32, s32, 3")
        A("s_mov_b32 s42, 0x11111111"); A("s_mov_b32 s43, 0x11111111")
        A("s_mov_b32 s41, 0")
        A("s_getreg_b32 s30, hwreg(HW_REG_XCC_ID, 0, 4)")
        if self.forcey: A("s_lshr_b32 s30, s2, 3"); A("s_and_b32 s30, s30, 1")
        A("s_lshl_b32 s3, s45, 10")
        A("s_waitcnt lgkmcnt(0)")
        if self.lean: A("s_cmp_eq_u32 s33, 0"); A("s_cselect_b64 exec, -1, 1")
        A("buffer_load_dwordx4 v[112:115], v109, s[24:27], s3 offen")
        A("buffer_load_dwordx4 v[116:119], v109, s[52:55], 0 offen")
        if self.lean: A("s_mov_b64 exec, -1")
        for e in range(self.cw, 8):
            A(f"s_waitcnt vmcnt({self.cw-1 + (2 if e < 2*self.cw else 0)})")
            wql(e)
        if self.wqr:
            A("s_mov_b32 s3, 0x02020202"); A("v_mul_lo_u32 v140, v4, s3"); A("v_xor_b32 v140, 0x03020100, v140")
            for q in range(4): A(f"v_perm_b32 v{XB+q}, v{136 + (q ^ 1)}, v{136 + q}, v140")
        A("s_mul_i32 s34, s34, 1664525"); A("s_add_u32 s34, s34, 1013904223")
        A("v_mov_b32 v129, s34")
        A("s_and_b32 s3, s34, -16"); A("s_or_b32 s30, s30, s3")
        A("v_and_b32 v160, 1, v0"); A("v_lshlrev_b32 v160, 4, v160")
        A("v_lshrrev_b32 v166, v160, s30"); A("v_lshrrev_b32 v160, v160, s34")
        A("v_bfe_u32 v167, v166, 8, 8"); A("v_bfe_u32 v161, v160, 8, 8")
        A("v_and_b32 v166, 0xff, v166"); A("v_and_b32 v160, 0xff, v160")
        A("s_movk_i32 s11, 0xff"); A("s_and_b32 s30, s30, 0xffff"); A("s_mov_b32 s10, 0x0c0c0400")
        SG = 136
        CF = 144
        OG = 152
        ol = [f"buffer_load_dwordx2 {v2(OG+2*s)}, v1, s[12:15], s{39 if s < 2 else 48} offen offset:{2048*(s&1)}{pol}" for s in range(4)]
        stl = [f"buffer_load_dwordx4 {v4(SG+4*s)}, v57, s[12:15], s35 offen offset:{16*s}{pol}" for s in range(2)]
        self.lab("L_tile")
        for q in range(3):
            A(f"s_waitcnt vmcnt({6-2*q})")
            self.perms(PB, WB, pairs=(q,))
        A("s_cmp_eq_u32 s41, 0"); A("s_cbranch_scc0 L_t1")
        A("s_waitcnt vmcnt(0)")
        self.perms(PB, WB, pairs=(3,))
        self.stamp(2); A("s_branch L_mm")
        self.lab("L_t1")
        for l in ol: A(l)
        A(f"s_mov_b32 s38, {self.spin}")
        A("s_waitcnt vmcnt(4)")
        self.perms(PB, WB, pairs=(3,))
        self.stamp(7)
        A("s_branch L_og")
        self.lab("L_ogr")
        if self.osleep: A(f"s_sleep {self.osleep}")
        for l in ol: A(l)
        self.lab("L_og")
        A("s_waitcnt vmcnt(0)")
        A(f"v_xor_b32 v20, s34, v{OG+1}")
        for s in range(1, 4): A(f"v_bitop3_b32 v20, v{OG+1+2*s}, s34, v20 bitop3:0xbe")
        A("s_sub_u32 s38, s38, 1")
        A("v_cmp_ne_u32 vcc, 0, v20")
        A("s_cbranch_scc1 L_ogd")
        A("s_cbranch_vccnz L_ogr")
        self.lab("L_ogd")
        for s in range(4):
            A(f"v_lshlrev_b32 v{24+2*s}, 16, v{OG+2*s}"); A(f"v_and_b32 v{25+2*s}, 0xffff0000, v{OG+2*s}")
        A("s_cmp_lg_u32 s49, 0"); A("s_cbranch_scc1 L_ogn")
        A(f"s_mov_b64 exec, {(1 << self.er) - 1}")
        A(f"buffer_store_dword v129, v135, s[12:15], 0 offen{pol}")
        A("s_mov_b64 exec, -1")
        self.lab("L_ogn")
        self.stamp(8)
        A(f"v_pk_mul_f32 v[24:25], v[24:25], {v2(CF)} op_sel_hi:[1,0]")
        A(f"v_pk_mul_f32 v[28:29], v[28:29], {v2(CF+4)} op_sel_hi:[1,0]")
        A(f"v_pk_fma_f32 v[24:25], v[26:27], {v2(CF+2)}, v[24:25] op_sel_hi:[1,0,1]")
        A(f"v_pk_fma_f32 v[28:29], v[30:31], {v2(CF+6)}, v[28:29] op_sel_hi:[1,0,1]")
        A(f"v_pk_add_f32 v[24:25], v[24:25], v[28:29]")
        A("v_cvt_pk_bf16_f32 v24, v24, v25"); self.nop(2)
        for q in range(4):
            A(f"v_mov_b32_dpp v{XB+q}, v24 quad_perm:[{q},{q},{q},{q}] row_mask:0xf bank_mask:0xf")
        self.nop(2)
        self.lab("L_mm")
        for j in range(8):
            A(f"v_mfma_f32_16x16x32_bf16 {v4(DB+4*j)}, {v4(PB+4*j)}, {v4(XB)}, 0")
        A("s_mov_b64 exec, s[42:43]")
        A("s_cmp_eq_u32 s41, 0")
        for j in range(8):
            A(f"ds_write_b128 v7, {v4(DB+4*j)} offset:{16*j}")
        A("s_cbranch_scc0 L_fin")
        self.cnt(0, "v111")
        A("s_mov_b64 exec, -1")
        rd = [f"ds_read2_b32 {v2(12+2*i)}, v{122+i} offset0:0 offset1:4" for i in range(4)]
        self.ldsspin("c", 0, 4, rd, sleep=0)
        A("v_pk_add_f32 v[12:13], v[12:13], v[14:15]"); A("v_pk_add_f32 v[16:17], v[16:17], v[18:19]")
        A("v_pk_add_f32 v[12:13], v[12:13], v[16:17]")
        A("v_bfi_b32 v164, s11, v166, v12"); A("v_bfi_b32 v165, s11, v167, v13")
        A("buffer_store_dwordx2 v[164:165], v127, s[12:15], s46 offen" + ["", " sc1", " nt", " sc0 sc1"][self.qwt])
        self.stamp(3)
        if self.pretouch:
            A("s_lshl_b32 s3, s32, 2"); A("s_add_u32 s3, s3, s33"); A("s_lshl_b32 s3, s3, 9")
            A("s_lshl_b32 s40, s47, 13"); A("s_add_u32 s3, s3, s40"); A(f"s_add_u32 s3, s3, {OP}")
            A("s_or_b32 s40, s32, s33"); A("s_cbranch_scc1 L_pt")
            A("s_lshl_b32 s40, s47, 7"); A(f"s_add_u32 s40, s40, {SP}")
            A("s_load_dword s49, s[12:13], s40")
            self.lab("L_pt")
            for i in range(4): A(f"s_load_dword s49, s[12:13], s3 offset:{128*i}")
        for i in range(4):
            A(f"v_lshlrev_b32 v{24+2*i}, 16, v{112+i}"); A(f"v_and_b32 v{25+2*i}, 0xffff0000, v{112+i}")
            A(f"v_lshlrev_b32 v{32+2*i}, 16, v{116+i}"); A(f"v_and_b32 v{33+2*i}, 0xffff0000, v{116+i}")
        for i in range(4):
            A(f"v_pk_mul_f32 {v2(24+2*i)}, {v2(24+2*i)}, {v2(32+2*i)}")
        for i in range(4):
            A(f"v_cvt_pk_bf16_f32 v{32+i}, v{24+2*i}, v{25+2*i}")
        for i in range(4):
            A(f"v_lshlrev_b32 v{24+2*i}, 16, v{32+i}"); A(f"v_and_b32 v{25+2*i}, 0xffff0000, v{32+i}")
        A("v_pk_add_f32 v[24:25], v[24:25], v[28:29]"); A("v_pk_add_f32 v[26:27], v[26:27], v[30:31]")
        A("v_pk_add_f32 v[24:25], v[24:25], v[26:27]"); A("v_add_f32 v8, v24, v25")
        for ror in (8, 4, 2, 1):
            self.nop(2); self.dpp("v_add_f32", 8, 8, 8, f"row_ror:{ror}")
        self.allred_rows("v_add_f32", 8, 9)
        A("v_cvt_pk_bf16_f32 v8, v8, v8"); A("v_lshlrev_b32 v8, 16, v8")
        A(f"v_mul_f32 v8, {0xbfb8aa3b}, v8"); A("v_exp_f32 v8, v8"); self.nop(1)
        A("v_add_f32 v8, 1.0, v8"); A("v_rcp_f32 v8, v8"); self.nop(1)
        A("v_cvt_pk_bf16_f32 v8, v8, v8"); A("v_lshlrev_b32 v8, 16, v8")
        A("v_sub_f32 v9, 1.0, v8"); A("v_cvt_pk_bf16_f32 v9, v9, v9"); A("v_lshlrev_b32 v9, 16, v9")
        A("v_cmp_gt_u32 vcc, 32, v0")
        A("s_lshl_b32 s39, s29, 3"); A("s_add_u32 s39, s39, s28"); A("s_lshl_b32 s39, s39, 2"); A("s_add_u32 s39, s39, s33")
        A("v_cndmask_b32 v120, v9, v8, vcc")
        A("s_lshl_b32 s39, s39, 4"); A("s_add_u32 s39, s39, s31"); A("s_lshl_b32 s39, s39, 9"); A(f"s_add_u32 s39, s39, {QP}")
        A("s_add_u32 s60, s39, 4096")
        A("s_mov_b32 s63, 0")
        A("v_mov_b32 v18, 0")
        A("v_lshlrev_b32 v19, 11, v6")
        A(f"s_mov_b32 s38, {self.n0}"); A(f"s_mov_b32 s62, {self.spin}")
        self.stamp(13)
        D = self.qdepth
        ld = lambda i: A(f"buffer_load_dwordx2 {v2(40+2*i)}, v19, s[12:15], s39 offen{pol}")
        qg = lambda vo: [f"buffer_load_dwordx2 {v2(24+2*i)}, {vo}, s[12:15], s{39 if i < 2 else 60} offen offset:{2048*(i&1)}{pol}" for i in range(4)]
        for i in range(D - 1):
            ld(i); A(f"s_sleep {self.qsleep}")
        self.lab("L_qf")
        for i in range(D):
            ld((i + D - 1) % D)
            A(f"s_waitcnt vmcnt({D-1})")
            A(f"v_perm_b32 v20, v{41+2*i}, v{40+2*i}, s10")
            A("v_cmp_ne_u32 vcc, s30, v20")
            A("s_cmp_eq_u64 vcc, 0"); A("s_cbranch_scc1 L_qfd")
        self.lab("L_qfr")
        A("s_sub_u32 s38, s38, 1")
        A("s_cbranch_scc0 L_qf")
        A("s_branch L_slow")
        self.lab("L_qfd")
        self.stamp(14)
        for l in qg("v127"): A(l)
        A(f"s_mul_i32 s3, s33, {QH}"); A("v_lshl_add_u32 v16, v0, 2, s3")
        A("v_lshlrev_b32 v1, 11, v4"); A("v_lshl_add_u32 v1, v3, 4, v1")
        A("s_lshl_b32 s48, s44, 17"); A("s_lshl_b32 s3, s33, 15"); A("s_add_u32 s48, s48, s3")
        A("s_lshl_b32 s3, s32, 8"); A("s_add_u32 s48, s48, s3")
        A("s_waitcnt vmcnt(0) lgkmcnt(0)")
        self.untag(24, 166, 8)
        A("v_cmp_ne_u32 vcc, 0, v8"); A("s_cmp_eq_u64 vcc, 0"); A("s_cbranch_scc0 L_qfr")
        self.lab("L_qok")
        A("v_pk_add_f32 v[24:25], v[24:25], v[26:27]"); A("v_pk_add_f32 v[28:29], v[28:29], v[30:31]")
        A("v_pk_add_f32 v[24:25], v[24:25], v[28:29]")
        A("v_cvt_pk_bf16_f32 v17, v24, v25")
        A(f"ds_write_b32 v16, v17 offset:{L_Q}")
        self.cnt(12, "v18")
        A(f"ds_add_u32 v110, v111 offset:{L_F+4}")
        A("s_mov_b64 exec, -1")
        self.stamp(4)
        self.lab("L_vd")
        A(f"ds_read_b32 v2, v110 offset:{L_F+4}")
        A(f"ds_read2_b32 v[134:135], v133 offset0:{(L_F+12)//4 - 256} offset1:{(L_F+16)//4 - 256}")
        A("s_waitcnt lgkmcnt(0)")
        A("v_readfirstlane_b32 s40, v2"); A("v_readfirstlane_b32 s3, v135"); A("v_readfirstlane_b32 s49, v134")
        A("s_andn2_b32 s3, s3, s63"); A("s_cbranch_scc1 L_puby2")
        A("s_cmp_ge_u32 s40, 4"); A("s_cbranch_scc1 L_vdd")
        A("s_sleep 2"); A("s_sub_u32 s62, s62, 1"); A("s_cbranch_scc0 L_vd")
        self.lab("L_vdd")
        A("s_lshl_b32 s3, s33, 5"); A("v_mov_b32 v56, s3")
        self.ldsspin("l2", 20, 8, [f"ds_read_b128 v[40:43], v56 offset:{L_M}", f"ds_read_b128 v[44:47], v56 offset:{L_M+16}",
                                   f"ds_read_b128 v[48:51], v56 offset:{L_L}", f"ds_read_b128 v[52:55], v56 offset:{L_L+16}"], sleep=4)
        A("v_max3_f32 v40, v40, v41, v42"); A("v_max3_f32 v43, v43, v44, v45"); A("v_max3_f32 v40, v40, v46, v47")
        A("v_pk_add_f32 v[48:49], v[48:49], v[52:53]"); A("v_pk_add_f32 v[50:51], v[50:51], v[54:55]")
        A("v_pk_add_f32 v[48:49], v[48:49], v[50:51]"); A("v_add_f32 v48, v48, v49")
        A("v_log_f32 v48, v48"); A("v_max_f32 v40, v40, v43")
        A("s_cmp_lg_u32 s49, 0")
        A("v_add_f32 v128, v40, v48")
        A("s_mov_b64 exec, 1")
        A("s_cbranch_scc1 L_S_y1")
        A("buffer_store_dwordx2 v[128:129], v110, s[12:15], s4 offen")
        self.lab("L_S_y1r")
        A("s_mov_b64 exec, -1")
        A("s_cmp_lg_u32 s49, 0"); A(f"s_cselect_b32 s49, {YD}, 0")
        A("s_lshl_b32 s35, s47, 7"); A(f"s_add_u32 s35, s35, {SP}"); A("s_add_u32 s35, s35, s49")
        A("v_lshlrev_b32 v57, 5, v5")
        self.poll("s", stl, [SG+1, SG+3, SG+5, SG+7], 20, sleep=self.ssleep)
        self.stamp(15)
        A(f"v_max3_f32 v20, v{SG}, v{SG+2}, v{SG+4}"); A(f"v_max_f32 v20, v20, v{SG+6}")
        for s in range(4): A(f"v_sub_f32 v{CF+2*s}, v{SG+2*s}, v20")
        for s in range(4): A(f"v_exp_f32 v{CF+2*s}, v{CF+2*s}")
        self.nop(1)
        A(f"v_add_f32 v20, v{CF}, v{CF+2}"); A(f"v_add_f32 v21, v{CF+4}, v{CF+6}"); A("v_add_f32 v20, v20, v21")
        A("v_rcp_f32 v20, v20"); self.nop(1)
        for s in range(4): A(f"v_mul_f32 v{CF+2*s}, v{CF+2*s}, v20")
        for e in range(8):
            if e == self.wo1: self.ldsspin("w", 24, self.th1, [], sleep=2)
            if e == self.wa: self.ldsspin("w2", 24, self.th2, [], sleep=1)
            if e == self.wo_early: A("s_setprio 0")
            A(f"buffer_load_dwordx4 {v4(WB+4*e)}, v1, s[20:23], s48 offen offset:{1024*(e>>2)}{nt}")
            if e == 3: A("s_sub_u32 s48, s48, 24576")
            elif e < 7: A("s_add_u32 s48, s48, 8192")
        A("s_setprio 3")
        self.stamp(5)
        A("s_lshl_b32 s39, s47, 13"); A("s_lshl_b32 s3, s33, 7"); A("s_add_u32 s39, s39, s3"); A(f"s_add_u32 s39, s39, {OP}")
        A("s_add_u32 s39, s39, s49"); A("s_add_u32 s48, s39, 4096")
        A("v_lshlrev_b32 v1, 9, v5"); A("v_lshl_add_u32 v1, v4, 5, v1"); A("v_lshl_add_u32 v1, v6, 3, v1")
        A("s_lshl_b32 s63, s32, 17"); A(f"s_add_u32 s63, s63, {FP}")
        A("s_lshl_b32 s3, s47, 11"); A("s_add_u32 s46, s63, s3"); A("s_lshl_b32 s3, s33, 9"); A("s_add_u32 s46, s46, s3")
        A("v_lshrrev_b32 v121, 2, v0"); A("v_lshlrev_b32 v121, 11, v121"); A("v_lshl_add_u32 v121, v6, 3, v121")
        A("s_lshl_b32 s3, s47, 5"); A("s_add_u32 s63, s63, s3")
        A("s_add_u32 s60, s63, 0x8000"); A("s_add_u32 s61, s63, 0x10000"); A("s_add_u32 s62, s63, 0x18000")
        A("s_lshl_b32 s45, s45, 10"); A("s_lshl_b32 s3, s32, 8"); A("s_add_u32 s45, s45, s3")
        A("s_and_b32 s3, s47, 15"); A("s_lshl_b32 s3, s3, 4"); A("s_add_u32 s45, s45, s3")
        A("v_lshlrev_b32 v126, 2, v6"); A("v_lshl_add_u32 v126, v4, 1, v126")
        A("s_mov_b32 s41, 1")
        A("s_and_b32 s49, s44, 3"); A("s_or_b32 s49, s49, s32"); A("s_or_b32 s49, s49, s33")
        A("s_lshr_b32 s3, s47, 2"); A("s_lshl_b32 s3, s3, 10"); A(f"s_add_u32 s3, s3, {EP}"); A("v_lshl_add_u32 v135, v0, 7, s3")
        A("v_lshlrev_b32 v134, 10, v3"); A(f"v_add_u32 v134, {EP}, v134")
        if self.er > self.ed:
            A(f"s_lshr_b32 s3, s2, 3"); A(f"s_and_b32 s3, s3, {self.er // self.ed - 1}"); A(f"s_mul_i32 s3, s3, {128 * self.ed}"); A("v_add_u32 v134, s3, v134")
        A("s_barrier")
        self.stamp(6)
        A("s_branch L_tile")
        self.lab("L_fin")
        if self.b4spin:
            self.cnt(28, "v111")
            A("s_mov_b64 exec, -1")
            self.ldsspin("c2", 28, 4, rd, sleep=0)
        else:
            A("s_mov_b64 exec, -1")
            A("s_waitcnt lgkmcnt(0)")
            A("s_barrier")
            for r in rd: A(r)
            A("s_waitcnt lgkmcnt(0)")
        A("v_pk_add_f32 v[12:13], v[12:13], v[14:15]"); A("v_pk_add_f32 v[16:17], v[16:17], v[18:19]")
        A("v_pk_add_f32 v[12:13], v[12:13], v[16:17]")
        A("v_bfi_b32 v12, s11, v160, v12"); A("v_bfi_b32 v13, s11, v161, v13")
        A(f"buffer_store_dwordx2 v[12:13], v127, s[12:15], s46 offen{pol}")
        self.stamp(9)
        if self.wbl == 1:
            A("s_lshr_b32 s3, s2, 3"); A("s_lshl_b32 s3, s3, 2"); A("s_add_u32 s5, s3, s33"); A("s_cmp_eq_u32 s5, 1"); A("s_cbranch_scc1 L_wb1")
        if self.wbl == 2:
            A("s_lshr_b32 s3, s2, 3"); A("s_lshl_b32 s3, s3, 2"); A("s_add_u32 s5, s3, s33"); A("s_cmp_eq_u32 s5, 1"); A("s_cbranch_scc0 L_wb1")
            A("buffer_wbl2 sc1")
            self.lab("L_wb1")
        A("s_cmp_lg_u32 s33, 0"); A("s_cbranch_scc1 L_C_exit")
        if self.wbl == 1: self.lab("L_wb1")
        if self.fdelay: A(f"s_sleep {self.fdelay}")
        if self.eta:
            if self.ed == 1:
                self.poll("e", [f"buffer_load_dword v41, v134, s[12:15], 0 offen{pol}"], [41], 40)
            else:
                D = self.ed
                A("s_mov_b64 exec, 0xffff")
                el = lambda i: A(f"buffer_load_dword v{41+i}, v134, s[12:15], 0 offen offset:{128 * (i % self.er)}{pol}")
                A(f"s_mov_b32 s38, {self.spin}")
                for i in range(D - 1):
                    el(i); A(f"s_sleep {self.es}")
                self.lab("L_ep")
                for i in range(D):
                    el((i + D - 1) % D)
                    A(f"s_waitcnt vmcnt({D-1})")
                    A(f"v_cmp_ne_u32 vcc, s34, v{41+i}")
                    A("s_cmp_eq_u64 vcc, 0"); A("s_cbranch_scc1 L_epd")
                A("s_sub_u32 s38, s38, 1"); A("s_cbranch_scc0 L_ep")
                self.lab("L_epd")
                A("s_mov_b64 exec, -1")
            self.stamp(12)
            if self.wbl == 1:
                A("s_cmp_eq_u32 s33, 0"); A("s_cbranch_scc1 L_wb2")
                A("buffer_wbl2 sc1"); A("s_branch L_C_exit")
                self.lab("L_wb2")
            if self.edly: A(f"s_sleep {self.edly}")
            self.lab("L_eok")
        self.poll("f", [f"buffer_load_dwordx2 {v2(24+2*i)}, v121, s[12:15], s{(63,60,61,62)[i]} offen{pol}" for i in range(4)],
                  list(range(24, 32)), 40, sleep=self.fsleep, tv=160)
        self.stamp(10)
        if self.stamps and not self.amp: A(f"s_sub_u32 s66, {self.spin}, s38"); A("s_mov_b32 s67, 0")
        A("v_pk_add_f32 v[24:25], v[24:25], v[26:27]"); A("v_pk_add_f32 v[28:29], v[28:29], v[30:31]")
        self.nop(2)
        A("v_permlane32_swap_b32 v24, v28"); A("v_permlane32_swap_b32 v25, v29")
        A("v_pk_add_f32 v[24:25], v[24:25], v[28:29]"); self.nop(2)
        A("v_permlane16_swap_b32 v24, v25")
        A("v_add_f32 v24, v24, v25"); self.nop(2)
        self.dpp("v_add_f32", 24, 24, 24, "row_ror:4"); self.nop(2)
        self.dpp("v_add_f32", 24, 24, 24, "row_ror:8")
        A("v_cvt_pk_bf16_f32 v24, v24, v24"); A("v_lshlrev_b32 v24, 16, v24")
        A("v_mul_f32 v24, v24, v120")
        A("v_cvt_pk_bf16_f32 v24, v24, v24"); A("v_lshlrev_b32 v24, 16, v24")
        A("v_mov_b32 v25, v24"); self.nop(2)
        A("v_permlane32_swap_b32 v24, v25")
        A("v_add_f32 v24, v24, v25")
        A("v_cvt_pk_bf16_f32 v24, v24, v24")
        A("s_mov_b64 exec, 0x000f000f")
        A("buffer_store_short v24, v126, s[56:59], s45 offen")
        if self.pad:
            if self.padk >= 0:
                A("s_waitcnt lgkmcnt(0)"); A("s_mov_b32 s90, s92")
            self.lab("L_pad")
            A("s_memrealtime s[94:95]"); A("s_waitcnt lgkmcnt(0)"); A("s_sub_u32 s94, s94, s90")
            A(f"s_cmp_lt_u32 s94, {self.pad}"); A("s_cbranch_scc1 L_pad")
        A("s_cmp_lg_u32 s2, 0"); A("s_cbranch_scc1 L_C_exit")
        A("s_mov_b64 exec, 1")
        A("buffer_store_dword v129, v110, s[12:15], 0 offen")
        self.lab("L_C_exit")
        self.stamp(11)
        if self.stamps: A("s_sleep 127")
        self.stamp_out()
        self.lab("L_end")
        A("s_endpgm")
        self.lab("L_last")
        self.lab("L_S_y1")
        A(f"s_add_u32 s4, s4, {YD}")
        A(f"buffer_store_dwordx2 v[128:129], v110, s[12:15], s4 offen{pol}")
        A("s_branch L_S_y1r")
        self.lab("L_S_y2")
        A(f"s_add_u32 s46, s46, {YD}")
        A(f"buffer_store_dwordx2 {v2(SB+12)}, v{SB+11}, s[12:15], s46 offen{pol}")
        A("s_branch L_S_x")
        def puby():
            A(f"s_add_u32 s3, s46, {YD}")
            A(f"buffer_store_dwordx2 v[164:165], v127, s[12:15], s3 offen{pol}")
            A("s_mov_b32 s63, 1")
        self.lab("L_puby2")
        puby()
        A("s_branch L_vd")
        self.lab("L_slow")
        A("s_cmp_lg_u32 s63, 0"); A("s_cbranch_scc1 L_slow2")
        A(f"ds_write_b32 v110, v111 offset:{L_F+16}")
        puby()
        self.lab("L_slow2")
        A(f"v_add_u32 v9, {YD}, v127")
        for l in qg("v9"): A(l)
        A("v_and_b32 v9, 1, v0"); A("v_mul_u32_u24 v9, 15, v9"); A("v_or_b32 v9, 0xf0, v9")
        A("s_waitcnt vmcnt(0)")
        A("v_xor_b32 v8, v166, v24"); A("v_xor_b32 v10, v167, v25")
        for r in range(26, 32): A(f"v_bitop3_b32 v{8 + 2*(r & 1)}, v{r}, v{166 + (r & 1)}, v{8 + 2*(r & 1)} bitop3:0xbe")
        A("v_and_b32 v10, 0xff, v10"); A("v_and_or_b32 v9, v8, v9, v10"); A("v_and_b32 v10, 15, v8")
        A("s_mov_b32 s38, 0")
        A("v_cmp_ne_u32 vcc, 0, v9"); A("s_cmp_eq_u64 vcc, 0"); A("s_cbranch_scc1 L_slow3")
        A("s_sleep 8")
        A("s_sub_u32 s62, s62, 1"); A("s_cbranch_scc0 L_qf")
        self.lab("L_slow3")
        for r in range(24, 32): A(f"v_and_b32 v{r}, 0xffffff00, v{r}")
        A("v_cmp_ne_u32 vcc, 0, v10"); A("s_cmp_lg_u64 vcc, 0")
        A("s_cselect_b32 s3, 1, 0"); A("v_mov_b32 v18, s3")
        A(f"s_mul_i32 s3, s33, {QH}"); A("v_lshl_add_u32 v16, v0, 2, s3")
        A("v_lshlrev_b32 v1, 11, v4"); A("v_lshl_add_u32 v1, v3, 4, v1")
        A("s_lshl_b32 s48, s44, 17"); A("s_lshl_b32 s3, s33, 15"); A("s_add_u32 s48, s48, s3")
        A("s_lshl_b32 s3, s32, 8"); A("s_add_u32 s48, s48, s3")
        A("s_waitcnt lgkmcnt(0)")
        A("s_branch L_qok")
        L.append('.section .rodata,"a"'); L.append(".p2align 6"); L.append(f".amdhsa_kernel {KN}")
        L.append("  .amdhsa_next_free_vgpr 168"); L.append("  .amdhsa_next_free_sgpr 96"); L.append("  .amdhsa_accum_offset 168")
        L.append("  .amdhsa_group_segment_fixed_size 0"); L.append("  .amdhsa_kernarg_size 112"); L.append("  .amdhsa_user_sgpr_count 2")
        L.append("  .amdhsa_user_sgpr_kernarg_segment_ptr 1"); L.append("  .amdhsa_system_sgpr_workgroup_id_x 1")
        L.append("  .amdhsa_float_denorm_mode_32 3")
        L.append(".end_amdhsa_kernel")
        return "\n".join(L) + "\n"

if __name__ == "__main__":
    out = sys.argv[1]
    kw = {}
    for a in sys.argv[2:]:
        k, v = a.split("=")
        kw[k] = v.replace("+", " ") if k in ("pol", "pat", "pat2", "amp") else int(v)
    open(out, "w").write(G(**kw).gen())
```

```python
import sys
KN = "gated_mix__sliding_block_cached__sliding_block_cached__decode_kernel"
HDR = open("gated_mix__sliding_block_cached__sliding_block_cached__decode.s.ref").read().split("; Override launch")[0]

FL = 0x1000
YD = 0x400000
OP = 0x100000
SP = 0xC0000
EP = 0xD0000
QP = 0x100000
FP = 0x180000
WS_BYTES = 0x600000
STAMP_OFF = 0x4000000
L_Q = 0
QH = 272
L_M = 1280
L_L = 1408
L_F = 1536
L_O = 2048
L_R = L_O + 8*2112
LDS_BYTES = L_R + 4*2112
LOG2E = 0x3fb8aa3b
SCALE = 0x3db504f3
NS = 16

class G:
    def __init__(self, **kw):
        d = dict(padk=-1, pad=0, stamps=0, nt=1, pol="sc1", spin=1 << 16, pf=1, wo_early=0, qsleep=12, forcey=0, pretouch=0,
                 n0=8, qdepth=4, lsplit=1, osleep=0, fsleep=0, b4spin=0, fdelay=0, eta=1, edly=0, tx=0, rm=2, N=3, rot=1, lan=1, qpos=3, wj=31, pat='x0x11x', cw=3, up=99, wo1=0, wj2=32, wa=2, th1=8, th2=16, opos=3, pr=0, tlbs=0, tlbv=0, lean=1, xdirty=0, qwt=0, owt=0, xperm=0, b0late=0, ed=1, es=4, early=0, ldly=0, ssleep=8, ovl=1, pat2='', lup=99, wbl=0, wqr=0, er=1, dbg=0, amp='', ampf=10)
        d.update(kw)
        self.__dict__.update(d)
        self.L = []
        self.nt = " nt" if self.nt else ""
        self.pol = " " + self.pol
    def A(self, s): self.L.append("    " + s)
    def lab(self, s): self.L.append(s + ":")
    def nop(self, n):
        while n > 0:
            k = min(n, 16); self.A(f"s_nop {k-1}"); n -= k
    def stamp(self, i):
        if self.amp and i not in [0] + [int(a[1:]) for a in self.amp.split(',')]: return
        if self.padk == i: self.A("s_memrealtime s[92:93]")
        if self.stamps: self.A(f"s_memrealtime s[{64+2*i}:{65+2*i}]")
    def stamp_out(self, cls="C"):
        if not self.stamps: return
        A = self.A
        if self.amp:
            parts = self.amp.split(",")
            anyS = any(a[0].upper() == "S" for a in parts)
            A("s_load_dwordx2 s[62:63], s[0:1], 96")
            A("s_waitcnt lgkmcnt(0)")
            A("s_mov_b64 exec, 1"); A("v_mov_b32 v4, 0"); A("v_mov_b32 v3, 1")
            if cls == "C":
                A("s_not_b32 s60, s64"); A("v_mov_b32 v2, s60"); A("global_atomic_umax v4, v2, s[62:63]")
            for j, a in enumerate(parts):
                if a[0].upper() == cls:
                    A(f"v_mov_b32 v2, s{64+2*int(a[1:])}"); A(f"global_atomic_{'add' if a[0].islower() else 'umax'} v4, v2, s[62:63] offset:{64+4*j}"); A("s_nop 1")
            if cls == "C" or anyS:
                A("s_waitcnt vmcnt(0)"); A("global_atomic_add v4, v3, s[62:63] offset:128")
            if cls == "C":
                n = 1024 + (2048 if anyS else 0)
                A("s_or_b32 s60, s2, s33"); A("s_cmp_lg_u32 s60, 0"); A("s_cbranch_scc1 L_amp_x")
                A("s_mov_b32 s38, 100000")
                self.lab("L_amp_p")
                A("s_sleep 32"); A("global_load_dword v2, v4, s[62:63] offset:128 sc1"); A("s_waitcnt vmcnt(0)"); A("v_readfirstlane_b32 s60, v2")
                A("s_sub_u32 s38, s38, 1"); A("s_cbranch_scc1 L_amp_x")
                A(f"s_cmp_lt_u32 s60, {n}"); A("s_cbranch_scc1 L_amp_p")
                A("global_load_dword v2, v4, s[62:63] sc1"); A("global_load_dwordx2 v[6:7], v4, s[62:63] offset:64 sc1"); A("s_waitcnt vmcnt(0)")
                A("v_readfirstlane_b32 s60, v2"); A("v_readfirstlane_b32 s56, v6"); A("v_readfirstlane_b32 s57, v7"); A("s_not_b32 s60, s60")
                for j, a in enumerate(parts):
                    r = f"s{56+j}"
                    if a[0].islower():
                        sh = 11 if a[0] == "s" else 10
                        A(f"s_lshl_b32 s59, s60, {sh}"); A(f"s_sub_u32 {r}, {r}, s59"); A(f"s_mul_i32 {r}, {r}, {self.ampf}"); A(f"s_lshr_b32 {r}, {r}, {sh}")
                    else:
                        A(f"s_sub_u32 {r}, {r}, s60"); A(f"s_mul_i32 {r}, {r}, {self.ampf}")
                if len(parts) == 2: A("s_sub_u32 s56, s56, s57")
                A("s_add_u32 s61, s56, 15000"); A("s_min_u32 s61, s61, 100000")
                self.lab("L_amp_s")
                A("s_memrealtime s[58:59]"); A("s_waitcnt lgkmcnt(0)"); A("s_sub_u32 s58, s58, s60"); A("s_cmp_lt_u32 s58, s61"); A("s_cbranch_scc1 L_amp_s")
                self.lab("L_amp_x")
            return
        if self.dbg:
            A("s_load_dwordx2 s[62:63], s[0:1], 96")
            A("s_waitcnt lgkmcnt(0)")
            A("s_mov_b64 exec, 1"); A("v_mov_b32 v4, 0")
            A("s_not_b32 s60, s64"); A("v_mov_b32 v2, s60"); A("global_atomic_umax v4, v2, s[62:63]")
            m = {"C": {0: 15, 2: 2, 4: 3, 7: 10, 8: 11, 9: 12, 12: 13, 10: 14}, "S": {1: 1, 2: 4, 3: 5, 7: 6, 9: 7, 10: 8, 11: 9}}[cls]
            for k, d in m.items():
                A(f"v_mov_b32 v2, s{64+2*k}"); A(f"global_atomic_umax v4, v2, s[62:63] offset:{4*d}"); A("s_nop 1")
            if self.dbg == 2:
                m2 = {"C": {7: 16, 0: 17}, "S": {9: 18, 1: 19}}[cls]
                for k, d in m2.items():
                    A(f"v_mov_b32 v2, s{64+2*k}"); A(f"global_atomic_add v4, v2, s[62:63] offset:{4*d}"); A("s_nop 1")
            return
        A("s_waitcnt lgkmcnt(0)")
        A("s_mul_i32 s60, s2, 12"); A("s_add_u32 s60, s60, s33"); A(f"s_mul_i32 s60, s60, {NS*8}")
        A(f"s_add_u32 s60, s60, {STAMP_OFF}")
        A("s_add_u32 s62, s12, s60"); A("s_addc_u32 s63, s13, 0")
        A("s_mov_b64 exec, 1"); A("v_mov_b32 v4, 0")
        for i in range(NS):
            A(f"v_mov_b32 v2, s{64+2*i}"); A(f"v_mov_b32 v3, s{65+2*i}")
            A(f"global_store_dwordx2 v4, v[2:3], s[62:63] offset:{i*8}"); A("s_nop 1")
    def v4(self, r): return f"v[{r}:{r+3}]"
    def v2(self, r): return f"v[{r}:{r+1}]"
    def perms(self, dst, src, pairs=(0, 1, 2, 3)):
        for q in pairs:
            for w in range(4):
                for hh in range(2):
                    j = 2*w + hh
                    self.A(f"v_perm_b32 v{dst+4*j+q}, v{src+4*(2*q+1)+w}, v{src+4*(2*q)+w}, s{36+hh}")
    def allred_rows(self, op, v, t):
        A = self.A
        A(f"v_mov_b32 v{t}, v{v}"); self.nop(2)
        A(f"v_permlane32_swap_b32 v{v}, v{t}")
        A(f"{op} v{v}, v{v}, v{t}")
        A(f"v_mov_b32 v{t}, v{v}"); self.nop(2)
        A(f"v_permlane16_swap_b32 v{v}, v{t}")
        A(f"{op} v{v}, v{v}, v{t}")
    def dpp(self, op, d, a, b, ctl):
        self.A(f"{op}_dpp v{d}, v{a}, v{b} {ctl} row_mask:0xf bank_mask:0xf")
    def poll(self, name, loads, tagregs, acc, first_issued=False, sleep=0, tv=None):
        A = self.A
        A(f"s_mov_b32 s38, {self.spin}")
        if first_issued: A(f"s_branch L_chk_{name}")
        elif sleep: A(f"s_branch L_ld_{name}")
        self.lab(f"L_poll_{name}")
        if sleep: A(f"s_sleep {sleep}")
        self.lab(f"L_ld_{name}")
        for l in loads: A(l)
        self.lab(f"L_chk_{name}")
        A("s_waitcnt vmcnt(0)")
        if tv is None:
            A(f"v_xor_b32 v{acc}, s34, v{tagregs[0]}")
            for r in tagregs[1:]:
                A(f"v_bitop3_b32 v{acc}, v{r}, s34, v{acc} bitop3:0xbe")
        else: self.untag(tagregs[0], tv, acc)
        A("s_sub_u32 s38, s38, 1")
        A(f"v_cmp_ne_u32 vcc, 0, v{acc}")
        A("s_cselect_b64 s[50:51], 0, -1")
        if tv is not None: A("s_wqm_b64 vcc, vcc")
        A("s_and_b64 exec, vcc, s[50:51]")
        A(f"s_cbranch_scc1 L_poll_{name}")
        A("s_mov_b64 exec, -1")
    def untag(self, r0, tv, acc):
        A = self.A
        for r in range(r0, r0 + 8): A(f"v_xor_b32 v{r}, v{tv + (r & 1)}, v{r}")
        A(f"v_or3_b32 v{acc}, v{r0}, v{r0+1}, v{r0+2}"); A(f"v_or3_b32 v{acc+1}, v{r0+3}, v{r0+4}, v{r0+5}")
        A(f"v_or3_b32 v{acc}, v{acc}, v{r0+6}, v{r0+7}")
        A(f"v_bitop3_b32 v{acc}, v{acc}, v{acc+1}, s11 bitop3:0xa8")
    def ldsspin(self, name, off, target, reads, sleep=1):
        A = self.A
        A(f"s_mov_b32 s38, {self.spin * 16}")
        if sleep: A(f"s_branch L_spl_{name}")
        self.lab(f"L_sp_{name}")
        if sleep: A(f"s_sleep {sleep}")
        self.lab(f"L_spl_{name}")
        A(f"ds_read_b32 v2, {self.vz} offset:{L_F+off}")
        for r in reads: A(r)
        A("s_sub_u32 s38, s38, 1")
        A("s_cselect_b32 s3, 0, -1")
        A("s_waitcnt lgkmcnt(0)")
        A("v_readfirstlane_b32 s40, v2")
        A("s_orn2_b32 s40, s40, s3")
        A(f"s_cmp_lt_u32 s40, {target}")
        A(f"s_cbranch_scc1 L_sp_{name}")
    def cnt(self, off, one):
        A = self.A
        A("s_mov_b64 exec, 1")
        A(f"ds_add_u32 {self.vz}, {one} offset:{L_F+off}")
    def vissue(self, VB, p):
        for T in (2*p, 2*p+1):
            for e in range(4):
                self.A(f"buffer_load_dwordx4 {self.v4(VB+16*T+4*e)}, v5, s[8:11], s35 offen offset:{256*e}{self.nt}")
            if T < 3: self.A("s_add_u32 s35, s35, 16384")
    def mspin(self, name, B, d):
        A = self.A
        self.ldsspin(name, 8, 8, [f"ds_read_b128 {self.v4(B)}, v6 offset:{L_M}", f"ds_read_b128 {self.v4(B+4)}, v6 offset:{L_M+16}"], sleep=2)
        A(f"v_max3_f32 v{B}, v{B}, v{B+1}, v{B+2}")
        A(f"v_max3_f32 v{B+3}, v{B+3}, v{B+4}, v{B+5}")
        A(f"v_max3_f32 v{B}, v{B}, v{B+6}, v{B+7}")
        A(f"v_max_f32 v{d}, v{B}, v{B+3}")

    def gen(self):
        A = self.A; nt = self.nt; pol = self.pol; v4 = self.v4; v2 = self.v2
        OP = 0x100000 if self.ovl else 0x40000
        L = self.L
        L.append(HDR.rstrip("\n"))
        L.append(f"; @launch grid=(256,1,1) block=(768,1,1) lds={LDS_BYTES}")
        L.append('.amdgcn_target "amdgcn-amd-amdhsa--gfx950"')
        L.append(".text"); L.append(f".globl {KN}"); L.append(".p2align 12"); L.append(".p2align 8"); L.append(f".type {KN},@function"); L.append(f"{KN}:")
        self.stamp(0)
        if self.pad: A("s_memrealtime s[90:91]")
        if self.stamps:
            for i in range(1, NS): A(f"s_mov_b64 s[{64+2*i}:{65+2*i}], 0")
        if self.xperm == 1:
            A("s_lshr_b32 s3, s2, 3"); A("s_and_b32 s29, s2, 7"); A("s_lshl_b32 s29, s29, 5"); A("s_or_b32 s2, s3, s29")
        if self.xperm == 2:
            A("s_xor_b32 s3, s2, 1"); A("s_and_b32 s29, s2, 0xf8"); A("s_cmp_eq_u32 s29, 0x48"); A("s_cselect_b32 s2, s3, s2")
        A("s_bfe_u32 s29, s2, 0x10002")
        A("s_mul_i32 s3, s29, 40")
        A("s_cmp_ge_u32 s2, 256"); A("s_cbranch_scc1 L_end")
        A("s_load_dwordx2 s[16:17], s[0:1], s3 offset:24")
        A("s_load_dwordx2 s[24:25], s[0:1], 0")
        A("s_load_dwordx2 s[4:5], s[0:1], s3 offset:8")
        A("s_load_dwordx2 s[8:9], s[0:1], s3 offset:16")
        A("s_load_dwordx2 s[12:13], s[0:1], 104")
        A("v_lshrrev_b32 v1, 6, v0")
        A("s_lshr_b32 s30, s2, 3")
        if self.tx: A(f"s_xor_b32 s30, s30, {self.tx}")
        A("v_readfirstlane_b32 s33, v1")
        A("s_and_b32 s28, s2, 3"); A("s_lshl_b32 s28, s28, 1"); A("s_lshr_b32 s31, s30, 4"); A("s_or_b32 s28, s28, s31")
        A("s_bfe_u32 s31, s30, 0x20002"); A("s_and_b32 s32, s30, 3")
        A("v_and_b32 v0, 63, v0")
        A("v_and_b32 v3, 15, v0")
        A("v_lshrrev_b32 v4, 4, v0")
        A("v_bfe_u32 v5, v0, 2, 2")
        A("v_and_b32 v6, 3, v0")
        A("s_cmp_ge_u32 s33, 4"); A("s_cbranch_scc1 L_S")
        WB, PB, DB, XB = 8, 40, 72, 104
        A("s_setprio 3")
        if self.pf:
            A("s_getpc_b64 s[42:43]")
            if self.lean:
                A("s_lshl_b32 s3, s33, 11"); A("v_lshl_add_u32 v12, v3, 7, s3"); A("s_mov_b64 exec, 0xffff")
            else: A("v_lshlrev_b32 v12, 7, v0")
            A("v_min_u32 v12, L_last-L_pfbase, v12")
            self.lab("L_pfbase")
            A("global_load_dword v108, v12, s[42:43]")
            if self.lean: A("s_mov_b64 exec, -1"); A("s_mul_i32 s3, s29, 40")
        A("s_mov_b32 s18, 0x400000"); A("s_mov_b32 s19, 0x20000")
        A("s_mov_b32 s26, 4096"); A("s_mov_b32 s27, 0x20000")
        A("v_lshlrev_b32 v1, 16, v4"); A("v_lshl_add_u32 v1, v3, 4, v1")
        if self.wqr:
            A("v_lshl_add_u32 v1, v4, 13, v1")
            for e in range(1, self.cw): A(f"v_xor_b32 v{64+e}, {e << 13}, v1")
        def wql(e):
            if self.wqr:
                if e >= self.cw: A(f"v_xor_b32 v{64+e}, {e << 13}, v1")
                A(f"buffer_load_dwordx4 {v4(WB+4*e)}, v{64+e if e else 1}, s[16:19], s35 offen{nt}")
            else:
                A(f"buffer_load_dwordx4 {v4(WB+4*e)}, v1, s[16:19], s35 offen{nt}")
                if e < 7: A("s_add_u32 s35, s35, 8192")
        A("v_lshlrev_b32 v2, 10, v5"); A("v_lshl_add_u32 v2, v4, 4, v2")
        A("s_lshl_b32 s44, s28, 2"); A("s_add_u32 s44, s44, s31")
        A("s_lshl_b32 s39, s32, 2"); A("s_add_u32 s39, s39, s33")
        A("s_lshl_b32 s35, s39, 18"); A("s_lshl_b32 s45, s44, 8"); A("s_add_u32 s35, s35, s45")
        A("s_lshl_b32 s39, s39, 6")
        A("s_waitcnt lgkmcnt(0)")
        self.stamp(1)
        A(f"buffer_load_dwordx4 {v4(136 if self.wqr else XB)}, v2, s[24:27], s39 offen")
        for e in range(self.cw): wql(e)
        A("v_mov_b32 v112, 0"); A("v_mov_b32 v113, 0"); A("v_mov_b32 v114, 0"); A("v_mov_b32 v115, 0")
        A(f"ds_write_b128 v112, v[112:115] offset:{L_F}")
        A(f"ds_write_b128 v112, v[112:115] offset:{L_F+16}")
        A("s_waitcnt lgkmcnt(0)")
        A("s_barrier")
        A("s_branch L_C")
        self.lab("L_S")
        KB, VB, QB, SB = 8, 72, 136, 152
        self.vz = "v7"
        esh = 10 if self.lan else 8
        A("s_setprio 1")
        A("s_mov_b32 s6, 0x4000000"); A("s_mov_b32 s7, 0x20000")
        A("s_mov_b32 s10, 0x4000000"); A("s_mov_b32 s11, 0x20000")
        A("s_lshl_b32 s35, s31, 3"); A("s_add_u32 s35, s35, s28"); A("s_lshl_b32 s35, s35, 4"); A("s_add_u32 s35, s35, s32")
        A("s_lshl_b32 s35, s35, 5"); A("s_add_u32 s35, s35, s33")
        A("s_lshl_b32 s35, s35, 12"); A(f"s_add_u32 s35, s35, {0x180000 - 4*4096}")
        if self.rot & 1: A(f"s_lshl_b32 s3, s32, {esh}"); A("s_add_u32 s35, s35, s3")
        if self.rot & 2: A("s_and_b32 s3, s2, 7"); A("s_lshl_b32 s3, s3, 12"); A("s_xor_b32 s35, s35, s3")
        A(f"v_lshlrev_b32 v1, {18-esh}, v5"); A("v_lshl_add_u32 v1, v4, 6, v1"); A("v_lshl_add_u32 v1, v6, 4, v1")
        A(f"v_mul_u32_u24 v2, {QH}, v6"); A("v_lshl_add_u32 v2, v4, 6, v2"); A(f"v_lshl_add_u32 v{QB+12}, v5, 4, v2")
        A("v_lshlrev_b32 v5, 4, v3"); A(f"v_lshl_add_u32 v5, v4, {18-esh}, v5")
        if self.pr == 1:
            A("s_cmp_lt_u32 s33, 8"); A("s_cbranch_scc1 L_pr1"); A("s_setprio 2"); self.lab("L_pr1")
        if not self.b0late: A("s_barrier")
        A("s_waitcnt lgkmcnt(0)")
        self.stamp(1)
        st = dict(i=0)
        def trig(i):
            if i in (self.wj, self.wj2):
                self.cnt(24, f"v{QB+15}"); A("s_mov_b64 exec, -1")
        def nxt(k=1):
            for _ in range(k):
                i = st["i"]; st["i"] += 1
                n = self.N + (1 if i >= self.up else 0)
                wt = lambda p: (None if p[i] == "x" else int(p[i])) if i < len(p) else (n - 1 if i >= n else None)
                w1 = wt(self.pat); w2 = wt(self.pat2) if self.pat2 else w1
                if i == self.lup: w2 = n
                if w1 == w2:
                    if w1 is not None: A(f"s_waitcnt vmcnt({w1})")
                else:
                    A("s_cmp_ge_u32 s33, 8"); A(f"s_cbranch_scc1 L_p{i}")
                    if w1 is not None: A(f"s_waitcnt vmcnt({w1})")
                    if w2 is not None and (w1 is None or w2 < w1):
                        A(f"s_branch L_q{i}"); self.lab(f"L_p{i}"); A(f"s_waitcnt vmcnt({w2})"); self.lab(f"L_q{i}")
                    else:
                        self.lab(f"L_p{i}")
                        if w2 is not None: A(f"s_waitcnt vmcnt({w2})")
                if self.pr == 2: A(f"s_setprio {2 - i % 3}")
                if self.pr == 3: A(f"s_setprio {1 - i % 2}")
                T, e = (i >> 2) & 3, i & 3
                so = "s35"
                if T or e: A(f"s_xor_b32 s39, s35, {T*32768 + (e << esh)}"); so = "s39"
                if i < 16: A(f"buffer_load_dwordx4 {v4(KB+4*i)}, v1, s[4:7], {so} offen{nt}")
                else: A(f"buffer_load_dwordx4 {v4(VB+4*(i-16))}, v5, s[8:11], {so} offen{nt}")
                trig(i)
                if self.xdirty and i == 8:
                    A("s_mov_b32 s14, 0x4000000")
                    A("s_lshl_b32 s46, s2, 3"); A("s_add_u32 s46, s46, s33"); A(f"s_mul_i32 s46, s46, {self.xdirty*1024}"); A("s_add_u32 s46, s46, 0x800000")
                    A(f"v_lshlrev_b32 v{SB}, 4, v0")
                    for k in range(self.xdirty): A(f"buffer_store_dwordx4 v[0:3], v{SB}, s[12:15], s46 offen offset:{1024*k}")
        def upto(j):
            while st["i"] <= j: nxt()
        nxt(len(self.pat) - len(self.pat.lstrip("x")) if self.pat else self.N)
        A("s_load_dword s34, s[12:13], 0")
        A(f"s_mov_b32 s14, {WS_BYTES}"); A("s_mov_b32 s15, 0x20000")
        A("s_mov_b32 s36, 0x05040100"); A("s_mov_b32 s37, 0x07060302")
        A("v_mov_b32 v7, 0")
        A(f"v_mov_b32 v{QB+15}, 1")
        A("v_lshlrev_b32 v6, 5, v6"); A("s_lshl_b32 s3, s33, 2"); A("s_sub_u32 s3, s3, 16"); A("v_add_u32 v3, s3, v6")
        A(f"v_and_b32 v{QB+13}, 3, v0"); A(f"v_mul_u32_u24 v{QB+13}, 528, v{QB+13}"); A(f"v_lshl_add_u32 v{QB+13}, v4, 7, v{QB+13}")
        A("s_mul_i32 s3, s33, 2112"); A(f"s_add_u32 s3, s3, {L_O - 4*2112}"); A(f"v_add_u32 v{QB+13}, s3, v{QB+13}")
        A("s_mov_b32 s42, 0x000f000f"); A("s_mov_b32 s43, 0x000f000f")
        if self.b0late: A("s_barrier")
        upto(15)
        self.stamp(2)
        upto(15 + self.qpos)
        A(f"s_waitcnt vmcnt({self.qpos})")
        self.stamp(3)
        self.ldsspin("q", 4, 4, [f"ds_read_b128 {v4(QB)}, v{QB+12} offset:{L_Q}"], sleep=4)
        self.stamp(4)
        Dj = lambda j: (QB + 4 + 4*j) if j < 2 else (KB + 4*(j-2))
        for j in range(16):
            A(f"v_mfma_f32_16x16x32_bf16 {v4(Dj(j))}, {v4(KB+4*j)}, {v4(QB)}, 0")
        A(f"s_mov_b32 s40, {SCALE}"); A(f"s_mov_b32 s41, {LOG2E}")
        A("s_mul_i32 s34, s34, 1664525"); A("s_add_u32 s34, s34, 1013904223")
        nxt()
        for j in range(16): self.dpp("v_add_f32", SB+j, Dj(j)+1, Dj(j), "row_ror:12")
        for j in range(16): self.dpp("v_add_f32", SB+j, Dj(j)+2, SB+j, "row_ror:8")
        for j in range(16): self.dpp("v_add_f32", SB+j, Dj(j)+3, SB+j, "row_ror:4")
        for i in range(8):
            A(f"v_cvt_pk_bf16_f32 v{QB+i}, v{SB+2*i}, v{SB+2*i+1}")
        for i in range(8):
            A(f"v_lshlrev_b32 v{SB+2*i}, 16, v{QB+i}"); A(f"v_and_b32 v{SB+2*i+1}, 0xffff0000, v{QB+i}")
        nxt()
        for i in range(8):
            A(f"v_pk_mul_f32 {v2(SB+2*i)}, {v2(SB+2*i)}, s[40:41] op_sel_hi:[1,0]")
        for i in range(8):
            A(f"v_cvt_pk_bf16_f32 v{QB+i}, v{SB+2*i}, v{SB+2*i+1}")
        for i in range(8):
            A(f"v_lshlrev_b32 v{SB+2*i}, 16, v{QB+i}"); A(f"v_and_b32 v{SB+2*i+1}, 0xffff0000, v{QB+i}")
        A(f"v_max3_f32 v1, v{SB}, v{SB+1}, v{SB+2}")
        A(f"v_max3_f32 v2, v{SB+3}, v{SB+4}, v{SB+5}")
        A(f"v_max3_f32 v1, v1, v{SB+6}, v{SB+7}")
        A(f"v_max3_f32 v2, v2, v{SB+8}, v{SB+9}")
        A(f"v_max3_f32 v1, v1, v{SB+10}, v{SB+11}")
        A(f"v_max3_f32 v2, v2, v{SB+12}, v{SB+13}")
        A(f"v_max3_f32 v1, v1, v{SB+14}, v{SB+15}")
        A("v_max_f32 v1, v1, v2")
        self.allred_rows("v_max_f32", 1, 2)
        A("v_mul_f32 v1, s41, v1")
        A("s_mov_b64 exec, 15")
        A(f"ds_write_b32 v3, v1 offset:{L_M}")
        self.cnt(8, f"v{QB+15}")
        A("s_mov_b64 exec, -1")
        self.stamp(5)
        nxt()
        self.stamp(6)
        self.mspin("m", QB, 1)
        for i in range(16):
            A(f"v_fma_f32 v{SB+i}, v{SB+i}, s41, -v1")
        for i in range(16):
            A(f"v_exp_f32 v{SB+i}, v{SB+i}")
        nxt()
        for i in range(8):
            A(f"v_cvt_pk_bf16_f32 v{QB+i}, v{SB+2*i}, v{SB+2*i+1}")
        for i in range(4):
            A(f"v_pk_add_f32 {v2(SB+2*i)}, {v2(SB+2*i)}, {v2(SB+8+2*i)}")
        for i in range(2):
            A(f"v_pk_add_f32 {v2(SB+2*i)}, {v2(SB+2*i)}, {v2(SB+4+2*i)}")
        A(f"v_pk_add_f32 {v2(SB)}, {v2(SB)}, {v2(SB+2)}")
        A(f"v_add_f32 v{SB+8}, v{SB}, v{SB+1}")
        self.allred_rows("v_add_f32", SB+8, SB)
        OB, P0, P1 = 8, 40, 72
        A("s_mov_b64 exec, 15")
        A(f"ds_write_b32 v3, v{SB+8} offset:{L_L}")
        self.cnt(20, f"v{QB+15}")
        A("s_mov_b64 exec, -1")
        self.stamp(7)
        def need(j):
            upto(min(31, j + self.N + (1 if j + self.N + 1 >= self.up else 0)))
            A(f"s_waitcnt vmcnt({st['i'] - 1 - j})")
        need(23)
        self.perms(P0, VB, pairs=(0, 1))
        if st["i"] < 32: nxt()
        self.perms(P0, VB, pairs=(2, 3))
        for j in range(8):
            A(f"v_mfma_f32_16x16x32_bf16 {v4(OB+4*j)}, {v4(P0+4*j)}, {v4(QB)}, 0")
        self.stamp(8)
        need(25)
        self.perms(P1, VB+32, pairs=(0,))
        A("s_cmp_ge_u32 s33, 8"); A("s_cbranch_scc1 L_S_nr")
        A("s_mul_i32 s3, s33, 528"); A(f"s_add_u32 s3, s3, {L_O - 4*528}")
        A(f"v_lshl_add_u32 v{SB+9}, v0, 3, s3")
        A("s_lshl_b32 s3, s33, 5"); A("s_sub_u32 s3, s3, 128"); A(f"v_mov_b32 v{SB+10}, s3")
        A("s_lshl_b32 s3, s29, 3"); A("s_add_u32 s3, s3, s28"); A("s_lshl_b32 s3, s3, 2"); A("s_add_u32 s3, s3, s33"); A("s_sub_u32 s3, s3, 4")
        A("s_lshl_b32 s3, s3, 2"); A("s_add_u32 s3, s3, s32"); A("s_lshl_b32 s3, s3, 2"); A("s_add_u32 s3, s3, s31")
        A("s_lshl_b32 s46, s3, 9"); A(f"s_add_u32 s46, s46, {OP}")
        A(f"v_lshlrev_b32 v{SB+11}, 3, v0")
        A(f"v_mov_b32 v{SB+13}, s34")
        self.ldsspin("l", 20, 8, [f"ds_read_b128 {v4(SB)}, v{SB+10} offset:{L_L}", f"ds_read_b128 {v4(SB+4)}, v{SB+10} offset:{L_L+16}",
                                  f"ds_read_b32 v1, v7 offset:{L_F+12}"], sleep=2)
        A("v_readfirstlane_b32 s45, v1")
        A(f"v_pk_add_f32 {v2(SB)}, {v2(SB)}, {v2(SB+4)}"); A(f"v_pk_add_f32 {v2(SB+2)}, {v2(SB+2)}, {v2(SB+6)}")
        A(f"v_pk_add_f32 {v2(SB)}, {v2(SB)}, {v2(SB+2)}")
        A(f"v_add_f32 v{SB+14}, v{SB}, v{SB+1}")
        A(f"v_rcp_f32 v{SB+14}, v{SB+14}")
        self.lab("L_S_nr")
        for q in range(1, 4):
            if q == 3 and 33 in (self.wj, self.wj2):
                need(30); trig(33)
            need(25 + 2*q)
            if q == 2: trig(32)
            if q == 3: trig(34); A("s_setprio 3"); self.stamp(9)
            self.perms(P1, VB+32, pairs=(q,))
        for j in range(8):
            A(f"v_mfma_f32_16x16x32_bf16 {v4(OB+4*j)}, {v4(P1+4*j)}, {v4(QB+4)}, {v4(OB+4*j)}")
        A("s_mov_b64 exec, s[42:43]")
        A("s_cmp_ge_u32 s33, 8")
        for j in range(8):
            A(f"ds_write_b128 v{QB+13}, {v4(OB+4*j)} offset:{16*j}")
        A("s_mov_b64 exec, -1")
        A("s_waitcnt lgkmcnt(0)")
        A("s_barrier")
        self.stamp(10)
        A("s_cbranch_scc1 L_S_x")
        for w in range(8): A(f"ds_read_b64 {v2(8+2*w)}, v{SB+9} offset:{2112*w}")
        A("s_waitcnt lgkmcnt(0)")
        for w in (0, 1, 2, 3):
            A(f"v_pk_add_f32 {v2(8+2*w)}, {v2(8+2*w)}, {v2(16+2*w)}")
        A("v_pk_add_f32 v[8:9], v[8:9], v[12:13]"); A("v_pk_add_f32 v[10:11], v[10:11], v[14:15]")
        A("s_cmp_lg_u32 s45, 0")
        A("v_pk_add_f32 v[8:9], v[8:9], v[10:11]")
        A(f"v_pk_mul_f32 v[8:9], v[8:9], {v2(SB+14)} op_sel_hi:[1,0]")
        A(f"v_cvt_pk_bf16_f32 v{SB+12}, v8, v9")
        A("s_cbranch_scc1 L_S_y2")
        A(f"buffer_store_dwordx2 {v2(SB+12)}, v{SB+11}, s[12:15], s46 offen" + ["", " sc1", " nt", " sc0 sc1"][self.owt])
        self.lab("L_S_x")
        self.stamp(11)
        if self.stamps: A("s_sleep 127"); A("s_sleep 127")
        self.stamp_out("S")
        A("s_endpgm")
        self.lab("L_C")
        self.vz = "v110"
        A("s_load_dword s34, s[12:13], 0")
        A("s_load_dwordx2 s[20:21], s[0:1], s3 offset:32")
        A("s_load_dwordx2 s[52:53], s[0:1], 80")
        A("s_load_dwordx2 s[56:57], s[0:1], 88")
        A(f"s_mov_b32 s14, {WS_BYTES}"); A("s_mov_b32 s15, 0x20000")
        A("s_mov_b32 s22, 0x400000"); A("s_mov_b32 s23, 0x20000")
        A("s_mov_b32 s36, 0x05040100"); A("s_mov_b32 s37, 0x07060302")
        A("s_mov_b32 s54, 1024"); A("s_mov_b32 s55, 0x20000")
        A("s_mov_b32 s58, 4096"); A("s_mov_b32 s59, 0x20000")
        A("s_lshl_b32 s45, s29, 1"); A("s_lshr_b32 s3, s28, 2"); A("s_add_u32 s45, s45, s3")
        A("v_lshlrev_b32 v109, 4, v0")
        A("s_lshl_b32 s3, s29, 5"); A("s_add_u32 s47, s44, s3")
        A("v_mov_b32 v110, 0"); A("v_mov_b32 v111, 1"); A("v_mov_b32 v133, 1024")
        A("v_lshlrev_b32 v127, 3, v0")
        A("v_mul_u32_u24 v7, 528, v5"); A("v_lshl_add_u32 v7, v4, 7, v7")
        A("s_mul_i32 s3, s33, 2112"); A(f"s_add_u32 s3, s3, {L_R}"); A("v_add_u32 v7, s3, v7")
        A("v_lshlrev_b32 v122, 7, v4"); A("v_lshl_add_u32 v122, v6, 5, v122"); A("v_lshl_add_u32 v122, v5, 2, v122")
        A("s_mul_i32 s3, s33, 528"); A(f"s_add_u32 s3, s3, {L_R}"); A("v_add_u32 v122, s3, v122")
        A("v_add_u32 v123, 2112, v122"); A("v_add_u32 v124, 4224, v122"); A("v_add_u32 v125, 6336, v122")
        A("s_lshl_b32 s46, s47, 2"); A("s_add_u32 s46, s46, s32"); A("s_lshl_b32 s46, s46, 2"); A("s_add_u32 s46, s46, s33")
        A("s_lshl_b32 s46, s46, 9"); A(f"s_add_u32 s46, s46, {QP}")
        A("s_lshl_b32 s4, s29, 3"); A("s_add_u32 s4, s4, s28"); A("s_lshl_b32 s4, s4, 2"); A("s_add_u32 s4, s4, s33")
        A("s_lshl_b32 s4, s4, 2"); A("s_add_u32 s4, s4, s31"); A("s_lshl_b32 s4, s4, 2"); A("s_add_u32 s4, s4, s32")
        A("s_lshl_b32 s4, s4, 3"); A(f"s_add_u32 s4, s4, {SP}")
        if self.rm >= 0:
            A("s_sub_u32 s3, s32, s31"); A("s_add_u32 s44, s44, s3"); A("s_add_u32 s47, s47, s3")
            A(f"s_add_u32 s32, s31, {self.rm}"); A("s_and_b32 s32, s32, 3")
        A("s_mov_b32 s42, 0x11111111"); A("s_mov_b32 s43, 0x11111111")
        A("s_mov_b32 s41, 0")
        A("s_getreg_b32 s30, hwreg(HW_REG_XCC_ID, 0, 4)")
        if self.forcey: A("s_lshr_b32 s30, s2, 3"); A("s_and_b32 s30, s30, 1")
        A("s_lshl_b32 s3, s45, 10")
        A("s_waitcnt lgkmcnt(0)")
        if self.lean: A("s_cmp_eq_u32 s33, 0"); A("s_cselect_b64 exec, -1, 1")
        A("buffer_load_dwordx4 v[112:115], v109, s[24:27], s3 offen")
        A("buffer_load_dwordx4 v[116:119], v109, s[52:55], 0 offen")
        if self.lean: A("s_mov_b64 exec, -1")
        for e in range(self.cw, 8):
            A(f"s_waitcnt vmcnt({self.cw-1 + (2 if e < 2*self.cw else 0)})")
            wql(e)
        if self.wqr:
            A("s_mov_b32 s3, 0x02020202"); A("v_mul_lo_u32 v140, v4, s3"); A("v_xor_b32 v140, 0x03020100, v140")
            for q in range(4): A(f"v_perm_b32 v{XB+q}, v{136 + (q ^ 1)}, v{136 + q}, v140")
        A("s_mul_i32 s34, s34, 1664525"); A("s_add_u32 s34, s34, 1013904223")
        A("v_mov_b32 v129, s34")
        A("s_and_b32 s3, s34, -16"); A("s_or_b32 s30, s30, s3")
        A("v_and_b32 v160, 1, v0"); A("v_lshlrev_b32 v160, 4, v160")
        A("v_lshrrev_b32 v166, v160, s30"); A("v_lshrrev_b32 v160, v160, s34")
        A("v_bfe_u32 v167, v166, 8, 8"); A("v_bfe_u32 v161, v160, 8, 8")
        A("v_and_b32 v166, 0xff, v166"); A("v_and_b32 v160, 0xff, v160")
        A("s_movk_i32 s11, 0xff"); A("s_and_b32 s30, s30, 0xffff"); A("s_mov_b32 s10, 0x0c0c0400")
        SG = 136
        CF = 144
        OG = 152
        ol = [f"buffer_load_dwordx2 {v2(OG+2*s)}, v1, s[12:15], s{39 if s < 2 else 48} offen offset:{2048*(s&1)}{pol}" for s in range(4)]
        stl = [f"buffer_load_dwordx4 {v4(SG+4*s)}, v57, s[12:15], s35 offen offset:{16*s}{pol}" for s in range(2)]
        self.lab("L_tile")
        for q in range(3):
            A(f"s_waitcnt vmcnt({6-2*q})")
            self.perms(PB, WB, pairs=(q,))
        A("s_cmp_eq_u32 s41, 0"); A("s_cbranch_scc0 L_t1")
        A("s_waitcnt vmcnt(0)")
        self.perms(PB, WB, pairs=(3,))
        self.stamp(2); A("s_branch L_mm")
        self.lab("L_t1")
        for l in ol: A(l)
        A(f"s_mov_b32 s38, {self.spin}")
        A("s_waitcnt vmcnt(4)")
        self.perms(PB, WB, pairs=(3,))
        self.stamp(7)
        A("s_branch L_og")
        self.lab("L_ogr")
        if self.osleep: A(f"s_sleep {self.osleep}")
        for l in ol: A(l)
        self.lab("L_og")
        A("s_waitcnt vmcnt(0)")
        A(f"v_xor_b32 v20, s34, v{OG+1}")
        for s in range(1, 4): A(f"v_bitop3_b32 v20, v{OG+1+2*s}, s34, v20 bitop3:0xbe")
        A("s_sub_u32 s38, s38, 1")
        A("v_cmp_ne_u32 vcc, 0, v20")
        A("s_cbranch_scc1 L_ogd")
        A("s_cbranch_vccnz L_ogr")
        self.lab("L_ogd")
        for s in range(4):
            A(f"v_lshlrev_b32 v{24+2*s}, 16, v{OG+2*s}"); A(f"v_and_b32 v{25+2*s}, 0xffff0000, v{OG+2*s}")
        A("s_cmp_lg_u32 s49, 0"); A("s_cbranch_scc1 L_ogn")
        A(f"s_mov_b64 exec, {(1 << self.er) - 1}")
        A(f"buffer_store_dword v129, v135, s[12:15], 0 offen{pol}")
        A("s_mov_b64 exec, -1")
        self.lab("L_ogn")
        self.stamp(8)
        A(f"v_pk_mul_f32 v[24:25], v[24:25], {v2(CF)} op_sel_hi:[1,0]")
        A(f"v_pk_mul_f32 v[28:29], v[28:29], {v2(CF+4)} op_sel_hi:[1,0]")
        A(f"v_pk_fma_f32 v[24:25], v[26:27], {v2(CF+2)}, v[24:25] op_sel_hi:[1,0,1]")
        A(f"v_pk_fma_f32 v[28:29], v[30:31], {v2(CF+6)}, v[28:29] op_sel_hi:[1,0,1]")
        A(f"v_pk_add_f32 v[24:25], v[24:25], v[28:29]")
        A("v_cvt_pk_bf16_f32 v24, v24, v25"); self.nop(2)
        for q in range(4):
            A(f"v_mov_b32_dpp v{XB+q}, v24 quad_perm:[{q},{q},{q},{q}] row_mask:0xf bank_mask:0xf")
        self.nop(2)
        self.lab("L_mm")
        for j in range(8):
            A(f"v_mfma_f32_16x16x32_bf16 {v4(DB+4*j)}, {v4(PB+4*j)}, {v4(XB)}, 0")
        A("s_mov_b64 exec, s[42:43]")
        A("s_cmp_eq_u32 s41, 0")
        for j in range(8):
            A(f"ds_write_b128 v7, {v4(DB+4*j)} offset:{16*j}")
        A("s_cbranch_scc0 L_fin")
        self.cnt(0, "v111")
        A("s_mov_b64 exec, -1")
        rd = [f"ds_read2_b32 {v2(12+2*i)}, v{122+i} offset0:0 offset1:4" for i in range(4)]
        self.ldsspin("c", 0, 4, rd, sleep=0)
        A("v_pk_add_f32 v[12:13], v[12:13], v[14:15]"); A("v_pk_add_f32 v[16:17], v[16:17], v[18:19]")
        A("v_pk_add_f32 v[12:13], v[12:13], v[16:17]")
        A("v_bfi_b32 v164, s11, v166, v12"); A("v_bfi_b32 v165, s11, v167, v13")
        A("buffer_store_dwordx2 v[164:165], v127, s[12:15], s46 offen" + ["", " sc1", " nt", " sc0 sc1"][self.qwt])
        self.stamp(3)
        if self.pretouch:
            A("s_lshl_b32 s3, s32, 2"); A("s_add_u32 s3, s3, s33"); A("s_lshl_b32 s3, s3, 9")
            A("s_lshl_b32 s40, s47, 13"); A("s_add_u32 s3, s3, s40"); A(f"s_add_u32 s3, s3, {OP}")
            A("s_or_b32 s40, s32, s33"); A("s_cbranch_scc1 L_pt")
            A("s_lshl_b32 s40, s47, 7"); A(f"s_add_u32 s40, s40, {SP}")
            A("s_load_dword s49, s[12:13], s40")
            self.lab("L_pt")
            for i in range(4): A(f"s_load_dword s49, s[12:13], s3 offset:{128*i}")
        for i in range(4):
            A(f"v_lshlrev_b32 v{24+2*i}, 16, v{112+i}"); A(f"v_and_b32 v{25+2*i}, 0xffff0000, v{112+i}")
            A(f"v_lshlrev_b32 v{32+2*i}, 16, v{116+i}"); A(f"v_and_b32 v{33+2*i}, 0xffff0000, v{116+i}")
        for i in range(4):
            A(f"v_pk_mul_f32 {v2(24+2*i)}, {v2(24+2*i)}, {v2(32+2*i)}")
        for i in range(4):
            A(f"v_cvt_pk_bf16_f32 v{32+i}, v{24+2*i}, v{25+2*i}")
        for i in range(4):
            A(f"v_lshlrev_b32 v{24+2*i}, 16, v{32+i}"); A(f"v_and_b32 v{25+2*i}, 0xffff0000, v{32+i}")
        A("v_pk_add_f32 v[24:25], v[24:25], v[28:29]"); A("v_pk_add_f32 v[26:27], v[26:27], v[30:31]")
        A("v_pk_add_f32 v[24:25], v[24:25], v[26:27]"); A("v_add_f32 v8, v24, v25")
        for ror in (8, 4, 2, 1):
            self.nop(2); self.dpp("v_add_f32", 8, 8, 8, f"row_ror:{ror}")
        self.allred_rows("v_add_f32", 8, 9)
        A("v_cvt_pk_bf16_f32 v8, v8, v8"); A("v_lshlrev_b32 v8, 16, v8")
        A(f"v_mul_f32 v8, {0xbfb8aa3b}, v8"); A("v_exp_f32 v8, v8"); self.nop(1)
        A("v_add_f32 v8, 1.0, v8"); A("v_rcp_f32 v8, v8"); self.nop(1)
        A("v_cvt_pk_bf16_f32 v8, v8, v8"); A("v_lshlrev_b32 v8, 16, v8")
        A("v_sub_f32 v9, 1.0, v8"); A("v_cvt_pk_bf16_f32 v9, v9, v9"); A("v_lshlrev_b32 v9, 16, v9")
        A("v_cmp_gt_u32 vcc, 32, v0")
        A("s_lshl_b32 s39, s29, 3"); A("s_add_u32 s39, s39, s28"); A("s_lshl_b32 s39, s39, 2"); A("s_add_u32 s39, s39, s33")
        A("v_cndmask_b32 v120, v9, v8, vcc")
        A("s_lshl_b32 s39, s39, 4"); A("s_add_u32 s39, s39, s31"); A("s_lshl_b32 s39, s39, 9"); A(f"s_add_u32 s39, s39, {QP}")
        A("s_add_u32 s60, s39, 4096")
        A("s_mov_b32 s63, 0")
        A("v_mov_b32 v18, 0")
        A("v_lshlrev_b32 v19, 11, v6")
        A(f"s_mov_b32 s38, {self.n0}"); A(f"s_mov_b32 s62, {self.spin}")
        self.stamp(13)
        D = self.qdepth
        ld = lambda i: A(f"buffer_load_dwordx2 {v2(40+2*i)}, v19, s[12:15], s39 offen{pol}")
        qg = lambda vo: [f"buffer_load_dwordx2 {v2(24+2*i)}, {vo}, s[12:15], s{39 if i < 2 else 60} offen offset:{2048*(i&1)}{pol}" for i in range(4)]
        for i in range(D - 1):
            ld(i); A(f"s_sleep {self.qsleep}")
        self.lab("L_qf")
        for i in range(D):
            ld((i + D - 1) % D)
            A(f"s_waitcnt vmcnt({D-1})")
            A(f"v_perm_b32 v20, v{41+2*i}, v{40+2*i}, s10")
            A("v_cmp_ne_u32 vcc, s30, v20")
            A("s_cmp_eq_u64 vcc, 0"); A("s_cbranch_scc1 L_qfd")
        self.lab("L_qfr")
        A("s_sub_u32 s38, s38, 1")
        A("s_cbranch_scc0 L_qf")
        A("s_branch L_slow")
        self.lab("L_qfd")
        self.stamp(14)
        for l in qg("v127"): A(l)
        A(f"s_mul_i32 s3, s33, {QH}"); A("v_lshl_add_u32 v16, v0, 2, s3")
        A("v_lshlrev_b32 v1, 11, v4"); A("v_lshl_add_u32 v1, v3, 4, v1")
        A("s_lshl_b32 s48, s44, 17"); A("s_lshl_b32 s3, s33, 15"); A("s_add_u32 s48, s48, s3")
        A("s_lshl_b32 s3, s32, 8"); A("s_add_u32 s48, s48, s3")
        A("s_waitcnt vmcnt(0) lgkmcnt(0)")
        self.untag(24, 166, 8)
        A("v_cmp_ne_u32 vcc, 0, v8"); A("s_cmp_eq_u64 vcc, 0"); A("s_cbranch_scc0 L_qfr")
        self.lab("L_qok")
        A("v_pk_add_f32 v[24:25], v[24:25], v[26:27]"); A("v_pk_add_f32 v[28:29], v[28:29], v[30:31]")
        A("v_pk_add_f32 v[24:25], v[24:25], v[28:29]")
        A("v_cvt_pk_bf16_f32 v17, v24, v25")
        A(f"ds_write_b32 v16, v17 offset:{L_Q}")
        self.cnt(12, "v18")
        A(f"ds_add_u32 v110, v111 offset:{L_F+4}")
        A("s_mov_b64 exec, -1")
        self.stamp(4)
        self.lab("L_vd")
        A(f"ds_read_b32 v2, v110 offset:{L_F+4}")
        A(f"ds_read2_b32 v[134:135], v133 offset0:{(L_F+12)//4 - 256} offset1:{(L_F+16)//4 - 256}")
        A("s_waitcnt lgkmcnt(0)")
        A("v_readfirstlane_b32 s40, v2"); A("v_readfirstlane_b32 s3, v135"); A("v_readfirstlane_b32 s49, v134")
        A("s_andn2_b32 s3, s3, s63"); A("s_cbranch_scc1 L_puby2")
        A("s_cmp_ge_u32 s40, 4"); A("s_cbranch_scc1 L_vdd")
        A("s_sleep 2"); A("s_sub_u32 s62, s62, 1"); A("s_cbranch_scc0 L_vd")
        self.lab("L_vdd")
        A("s_lshl_b32 s3, s33, 5"); A("v_mov_b32 v56, s3")
        self.ldsspin("l2", 20, 8, [f"ds_read_b128 v[40:43], v56 offset:{L_M}", f"ds_read_b128 v[44:47], v56 offset:{L_M+16}",
                                   f"ds_read_b128 v[48:51], v56 offset:{L_L}", f"ds_read_b128 v[52:55], v56 offset:{L_L+16}"], sleep=4)
        A("v_max3_f32 v40, v40, v41, v42"); A("v_max3_f32 v43, v43, v44, v45"); A("v_max3_f32 v40, v40, v46, v47")
        A("v_pk_add_f32 v[48:49], v[48:49], v[52:53]"); A("v_pk_add_f32 v[50:51], v[50:51], v[54:55]")
        A("v_pk_add_f32 v[48:49], v[48:49], v[50:51]"); A("v_add_f32 v48, v48, v49")
        A("v_log_f32 v48, v48"); A("v_max_f32 v40, v40, v43")
        A("s_cmp_lg_u32 s49, 0")
        A("v_add_f32 v128, v40, v48")
        A("s_mov_b64 exec, 1")
        A("s_cbranch_scc1 L_S_y1")
        A("buffer_store_dwordx2 v[128:129], v110, s[12:15], s4 offen")
        self.lab("L_S_y1r")
        A("s_mov_b64 exec, -1")
        A("s_cmp_lg_u32 s49, 0"); A(f"s_cselect_b32 s49, {YD}, 0")
        A("s_lshl_b32 s35, s47, 7"); A(f"s_add_u32 s35, s35, {SP}"); A("s_add_u32 s35, s35, s49")
        A("v_lshlrev_b32 v57, 5, v5")
        self.poll("s", stl, [SG+1, SG+3, SG+5, SG+7], 20, sleep=self.ssleep)
        self.stamp(15)
        A(f"v_max3_f32 v20, v{SG}, v{SG+2}, v{SG+4}"); A(f"v_max_f32 v20, v20, v{SG+6}")
        for s in range(4): A(f"v_sub_f32 v{CF+2*s}, v{SG+2*s}, v20")
        for s in range(4): A(f"v_exp_f32 v{CF+2*s}, v{CF+2*s}")
        self.nop(1)
        A(f"v_add_f32 v20, v{CF}, v{CF+2}"); A(f"v_add_f32 v21, v{CF+4}, v{CF+6}"); A("v_add_f32 v20, v20, v21")
        A("v_rcp_f32 v20, v20"); self.nop(1)
        for s in range(4): A(f"v_mul_f32 v{CF+2*s}, v{CF+2*s}, v20")
        for e in range(8):
            if e == self.wo1: self.ldsspin("w", 24, self.th1, [], sleep=2)
            if e == self.wa: self.ldsspin("w2", 24, self.th2, [], sleep=1)
            if e == self.wo_early: A("s_setprio 0")
            A(f"buffer_load_dwordx4 {v4(WB+4*e)}, v1, s[20:23], s48 offen offset:{1024*(e>>2)}{nt}")
            if e == 3: A("s_sub_u32 s48, s48, 24576")
            elif e < 7: A("s_add_u32 s48, s48, 8192")
        A("s_setprio 3")
        self.stamp(5)
        A("s_lshl_b32 s39, s47, 13"); A("s_lshl_b32 s3, s33, 7"); A("s_add_u32 s39, s39, s3"); A(f"s_add_u32 s39, s39, {OP}")
        A("s_add_u32 s39, s39, s49"); A("s_add_u32 s48, s39, 4096")
        A("v_lshlrev_b32 v1, 9, v5"); A("v_lshl_add_u32 v1, v4, 5, v1"); A("v_lshl_add_u32 v1, v6, 3, v1")
        A("s_lshl_b32 s63, s32, 17"); A(f"s_add_u32 s63, s63, {FP}")
        A("s_lshl_b32 s3, s47, 11"); A("s_add_u32 s46, s63, s3"); A("s_lshl_b32 s3, s33, 9"); A("s_add_u32 s46, s46, s3")
        A("v_lshrrev_b32 v121, 2, v0"); A("v_lshlrev_b32 v121, 11, v121"); A("v_lshl_add_u32 v121, v6, 3, v121")
        A("s_lshl_b32 s3, s47, 5"); A("s_add_u32 s63, s63, s3")
        A("s_add_u32 s60, s63, 0x8000"); A("s_add_u32 s61, s63, 0x10000"); A("s_add_u32 s62, s63, 0x18000")
        A("s_lshl_b32 s45, s45, 10"); A("s_lshl_b32 s3, s32, 8"); A("s_add_u32 s45, s45, s3")
        A("s_and_b32 s3, s47, 15"); A("s_lshl_b32 s3, s3, 4"); A("s_add_u32 s45, s45, s3")
        A("v_lshlrev_b32 v126, 2, v6"); A("v_lshl_add_u32 v126, v4, 1, v126")
        A("s_mov_b32 s41, 1")
        A("s_and_b32 s49, s44, 3"); A("s_or_b32 s49, s49, s32"); A("s_or_b32 s49, s49, s33")
        A("s_lshr_b32 s3, s47, 2"); A("s_lshl_b32 s3, s3, 10"); A(f"s_add_u32 s3, s3, {EP}"); A("v_lshl_add_u32 v135, v0, 7, s3")
        A("v_lshlrev_b32 v134, 10, v3"); A(f"v_add_u32 v134, {EP}, v134")
        if self.er > self.ed:
            A(f"s_lshr_b32 s3, s2, 3"); A(f"s_and_b32 s3, s3, {self.er // self.ed - 1}"); A(f"s_mul_i32 s3, s3, {128 * self.ed}"); A("v_add_u32 v134, s3, v134")
        A("s_barrier")
        self.stamp(6)
        A("s_branch L_tile")
        self.lab("L_fin")
        if self.b4spin:
            self.cnt(28, "v111")
            A("s_mov_b64 exec, -1")
            self.ldsspin("c2", 28, 4, rd, sleep=0)
        else:
            A("s_mov_b64 exec, -1")
            A("s_waitcnt lgkmcnt(0)")
            A("s_barrier")
            for r in rd: A(r)
            A("s_waitcnt lgkmcnt(0)")
        A("v_pk_add_f32 v[12:13], v[12:13], v[14:15]"); A("v_pk_add_f32 v[16:17], v[16:17], v[18:19]")
        A("v_pk_add_f32 v[12:13], v[12:13], v[16:17]")
        A("v_bfi_b32 v12, s11, v160, v12"); A("v_bfi_b32 v13, s11, v161, v13")
        A(f"buffer_store_dwordx2 v[12:13], v127, s[12:15], s46 offen{pol}")
        self.stamp(9)
        if self.wbl == 1:
            A("s_lshr_b32 s3, s2, 3"); A("s_lshl_b32 s3, s3, 2"); A("s_add_u32 s5, s3, s33"); A("s_cmp_eq_u32 s5, 1"); A("s_cbranch_scc1 L_wb1")
        if self.wbl == 2:
            A("s_lshr_b32 s3, s2, 3"); A("s_lshl_b32 s3, s3, 2"); A("s_add_u32 s5, s3, s33"); A("s_cmp_eq_u32 s5, 1"); A("s_cbranch_scc0 L_wb1")
            A("buffer_wbl2 sc1")
            self.lab("L_wb1")
        A("s_cmp_lg_u32 s33, 0"); A("s_cbranch_scc1 L_C_exit")
        if self.wbl == 1: self.lab("L_wb1")
        if self.fdelay: A(f"s_sleep {self.fdelay}")
        if self.eta:
            if self.ed == 1:
                self.poll("e", [f"buffer_load_dword v41, v134, s[12:15], 0 offen{pol}"], [41], 40)
            else:
                D = self.ed
                A("s_mov_b64 exec, 0xffff")
                el = lambda i: A(f"buffer_load_dword v{41+i}, v134, s[12:15], 0 offen offset:{128 * (i % self.er)}{pol}")
                A(f"s_mov_b32 s38, {self.spin}")
                for i in range(D - 1):
                    el(i); A(f"s_sleep {self.es}")
                self.lab("L_ep")
                for i in range(D):
                    el((i + D - 1) % D)
                    A(f"s_waitcnt vmcnt({D-1})")
                    A(f"v_cmp_ne_u32 vcc, s34, v{41+i}")
                    A("s_cmp_eq_u64 vcc, 0"); A("s_cbranch_scc1 L_epd")
                A("s_sub_u32 s38, s38, 1"); A("s_cbranch_scc0 L_ep")
                self.lab("L_epd")
                A("s_mov_b64 exec, -1")
            self.stamp(12)
            if self.wbl == 1:
                A("s_cmp_eq_u32 s33, 0"); A("s_cbranch_scc1 L_wb2")
                A("buffer_wbl2 sc1"); A("s_branch L_C_exit")
                self.lab("L_wb2")
            if self.edly: A(f"s_sleep {self.edly}")
            self.lab("L_eok")
        self.poll("f", [f"buffer_load_dwordx2 {v2(24+2*i)}, v121, s[12:15], s{(63,60,61,62)[i]} offen{pol}" for i in range(4)],
                  list(range(24, 32)), 40, sleep=self.fsleep, tv=160)
        self.stamp(10)
        if self.stamps and not self.amp: A(f"s_sub_u32 s66, {self.spin}, s38"); A("s_mov_b32 s67, 0")
        A("v_pk_add_f32 v[24:25], v[24:25], v[26:27]"); A("v_pk_add_f32 v[28:29], v[28:29], v[30:31]")
        self.nop(2)
        A("v_permlane32_swap_b32 v24, v28"); A("v_permlane32_swap_b32 v25, v29")
        A("v_pk_add_f32 v[24:25], v[24:25], v[28:29]"); self.nop(2)
        A("v_permlane16_swap_b32 v24, v25")
        A("v_add_f32 v24, v24, v25"); self.nop(2)
        self.dpp("v_add_f32", 24, 24, 24, "row_ror:4"); self.nop(2)
        self.dpp("v_add_f32", 24, 24, 24, "row_ror:8")
        A("v_cvt_pk_bf16_f32 v24, v24, v24"); A("v_lshlrev_b32 v24, 16, v24")
        A("v_mul_f32 v24, v24, v120")
        A("v_cvt_pk_bf16_f32 v24, v24, v24"); A("v_lshlrev_b32 v24, 16, v24")
        A("v_mov_b32 v25, v24"); self.nop(2)
        A("v_permlane32_swap_b32 v24, v25")
        A("v_add_f32 v24, v24, v25")
        A("v_cvt_pk_bf16_f32 v24, v24, v24")
        A("s_mov_b64 exec, 0x000f000f")
        A("buffer_store_short v24, v126, s[56:59], s45 offen")
        if self.pad:
            if self.padk >= 0:
                A("s_waitcnt lgkmcnt(0)"); A("s_mov_b32 s90, s92")
            self.lab("L_pad")
            A("s_memrealtime s[94:95]"); A("s_waitcnt lgkmcnt(0)"); A("s_sub_u32 s94, s94, s90")
            A(f"s_cmp_lt_u32 s94, {self.pad}"); A("s_cbranch_scc1 L_pad")
        A("s_cmp_lg_u32 s2, 0"); A("s_cbranch_scc1 L_C_exit")
        A("s_mov_b64 exec, 1")
        A("buffer_store_dword v129, v110, s[12:15], 0 offen")
        self.lab("L_C_exit")
        self.stamp(11)
        if self.stamps: A("s_sleep 127")
        self.stamp_out()
        self.lab("L_end")
        A("s_endpgm")
        self.lab("L_last")
        self.lab("L_S_y1")
        A(f"s_add_u32 s4, s4, {YD}")
        A(f"buffer_store_dwordx2 v[128:129], v110, s[12:15], s4 offen{pol}")
        A("s_branch L_S_y1r")
        self.lab("L_S_y2")
        A(f"s_add_u32 s46, s46, {YD}")
        A(f"buffer_store_dwordx2 {v2(SB+12)}, v{SB+11}, s[12:15], s46 offen{pol}")
        A("s_branch L_S_x")
        def puby():
            A(f"s_add_u32 s3, s46, {YD}")
            A(f"buffer_store_dwordx2 v[164:165], v127, s[12:15], s3 offen{pol}")
            A("s_mov_b32 s63, 1")
        self.lab("L_puby2")
        puby()
        A("s_branch L_vd")
        self.lab("L_slow")
        A("s_cmp_lg_u32 s63, 0"); A("s_cbranch_scc1 L_slow2")
        A(f"ds_write_b32 v110, v111 offset:{L_F+16}")
        puby()
        self.lab("L_slow2")
        A(f"v_add_u32 v9, {YD}, v127")
        for l in qg("v9"): A(l)
        A("v_and_b32 v9, 1, v0"); A("v_mul_u32_u24 v9, 15, v9"); A("v_or_b32 v9, 0xf0, v9")
        A("s_waitcnt vmcnt(0)")
        A("v_xor_b32 v8, v166, v24"); A("v_xor_b32 v10, v167, v25")
        for r in range(26, 32): A(f"v_bitop3_b32 v{8 + 2*(r & 1)}, v{r}, v{166 + (r & 1)}, v{8 + 2*(r & 1)} bitop3:0xbe")
        A("v_and_b32 v10, 0xff, v10"); A("v_and_or_b32 v9, v8, v9, v10"); A("v_and_b32 v10, 15, v8")
        A("s_mov_b32 s38, 0")
        A("v_cmp_ne_u32 vcc, 0, v9"); A("s_cmp_eq_u64 vcc, 0"); A("s_cbranch_scc1 L_slow3")
        A("s_sleep 8")
        A("s_sub_u32 s62, s62, 1"); A("s_cbranch_scc0 L_qf")
        self.lab("L_slow3")
        for r in range(24, 32): A(f"v_and_b32 v{r}, 0xffffff00, v{r}")
        A("v_cmp_ne_u32 vcc, 0, v10"); A("s_cmp_lg_u64 vcc, 0")
        A("s_cselect_b32 s3, 1, 0"); A("v_mov_b32 v18, s3")
        A(f"s_mul_i32 s3, s33, {QH}"); A("v_lshl_add_u32 v16, v0, 2, s3")
        A("v_lshlrev_b32 v1, 11, v4"); A("v_lshl_add_u32 v1, v3, 4, v1")
        A("s_lshl_b32 s48, s44, 17"); A("s_lshl_b32 s3, s33, 15"); A("s_add_u32 s48, s48, s3")
        A("s_lshl_b32 s3, s32, 8"); A("s_add_u32 s48, s48, s3")
        A("s_waitcnt lgkmcnt(0)")
        A("s_branch L_qok")
        L.append('.section .rodata,"a"'); L.append(".p2align 6"); L.append(f".amdhsa_kernel {KN}")
        L.append("  .amdhsa_next_free_vgpr 168"); L.append("  .amdhsa_next_free_sgpr 96"); L.append("  .amdhsa_accum_offset 168")
        L.append("  .amdhsa_group_segment_fixed_size 0"); L.append("  .amdhsa_kernarg_size 112"); L.append("  .amdhsa_user_sgpr_count 2")
        L.append("  .amdhsa_user_sgpr_kernarg_segment_ptr 1"); L.append("  .amdhsa_system_sgpr_workgroup_id_x 1")
        L.append("  .amdhsa_float_denorm_mode_32 3")
        L.append(".end_amdhsa_kernel")
        return "\n".join(L) + "\n"

if __name__ == "__main__":
    out = sys.argv[1]
    kw = {}
    for a in sys.argv[2:]:
        k, v = a.split("=")
        kw[k] = v.replace("+", " ") if k in ("pol", "pat", "pat2", "amp") else int(v)
    open(out, "w").write(G(**kw).gen())
```

```python
import sys
KN = "gated_mix__sliding_block_cached__sliding_block_cached__decode_kernel"
HDR = open("gated_mix__sliding_block_cached__sliding_block_cached__decode.s.ref").read().split("; Override launch")[0]

FL = 0x1000
YD = 0x400000
OP = 0x100000
SP = 0xC0000
EP = 0xD0000
QP = 0x100000
FP = 0x180000
WS_BYTES = 0x600000
STAMP_OFF = 0x4000000
L_Q = 0
QH = 272
L_M = 1280
L_L = 1408
L_F = 1536
L_O = 2048
OH, OW = 544, 2176
RU, RB, RW = 144, 576, 2304
L_R = L_O + 8*OW
LDS_BYTES = L_R + 4*RW
LOG2E = 0x3fb8aa3b
SCALE = 0x3db504f3
NS = 16

class G:
    def __init__(self, **kw):
        d = dict(padk=-1, pad=0, stamps=0, nt=1, pol="sc1", spin=1 << 16, pf=1, wo_early=0, qsleep=12, forcey=0, pretouch=0,
                 n0=8, qdepth=4, lsplit=1, osleep=0, fsleep=0, b4spin=0, fdelay=0, eta=1, edly=0, tx=0, rm=2, N=3, rot=1, lan=1, qpos=3, wj=31, pat='x0x11x', cw=3, up=99, wo1=0, wj2=32, wa=2, th1=8, th2=16, opos=3, pr=0, tlbs=0, tlbv=0, lean=1, xdirty=0, qwt=0, owt=0, xperm=0, b0late=0, ed=1, es=4, early=0, ldly=0, ssleep=8, ovl=1, pat2='', lup=99, wbl=0, wqr=0, er=1, dbg=0, amp='', ampf=10, only='', xst='', nos=0)
        d.update(kw)
        self.__dict__.update(d)
        self.L = []
        self.nt = " nt" if self.nt else ""
        self.pol = " " + self.pol
    def A(self, s): self.L.append("    " + s)
    def lab(self, s): self.L.append(s + ":")
    def nop(self, n):
        while n > 0:
            k = min(n, 16); self.A(f"s_nop {k-1}"); n -= k
    def xs(self, name):
        d = dict(a.split(":") for a in self.xst.split(",")) if self.xst else {}
        if name in d: self.A(f"s_memrealtime s[{64+2*int(d[name])}:{65+2*int(d[name])}]")
    def stamp(self, i):
        if self.only and i not in [0] + [int(a) for a in self.only.split(",")]: return
        if self.amp and i not in [0] + [int(a[1:]) for a in self.amp.split(',')]: return
        if self.padk == i: self.A("s_memrealtime s[92:93]")
        if self.stamps: self.A(f"s_memrealtime s[{64+2*i}:{65+2*i}]")
    def stamp_out(self, cls="C"):
        if not self.stamps: return
        A = self.A
        if self.amp:
            parts = self.amp.split(",")
            anyS = any(a[0].upper() == "S" for a in parts)
            A("s_load_dwordx2 s[62:63], s[0:1], 96")
            A("s_waitcnt lgkmcnt(0)")
            A("s_mov_b64 exec, 1"); A("v_mov_b32 v4, 0"); A("v_mov_b32 v3, 1")
            if cls == "C":
                A("s_not_b32 s60, s64"); A("v_mov_b32 v2, s60"); A("global_atomic_umax v4, v2, s[62:63]")
            for j, a in enumerate(parts):
                if a[0].upper() == cls:
                    A(f"v_mov_b32 v2, s{64+2*int(a[1:])}"); A(f"global_atomic_{'add' if a[0].islower() else 'umax'} v4, v2, s[62:63] offset:{64+4*j}"); A("s_nop 1")
            if cls == "C" or anyS:
                A("s_waitcnt vmcnt(0)"); A("global_atomic_add v4, v3, s[62:63] offset:128")
            if cls == "C":
                n = 1024 + (2048 if anyS else 0)
                A("s_or_b32 s60, s2, s33"); A("s_cmp_lg_u32 s60, 0"); A("s_cbranch_scc1 L_amp_x")
                A("s_mov_b32 s38, 100000")
                self.lab("L_amp_p")
                A("s_sleep 32"); A("global_load_dword v2, v4, s[62:63] offset:128 sc1"); A("s_waitcnt vmcnt(0)"); A("v_readfirstlane_b32 s60, v2")
                A("s_sub_u32 s38, s38, 1"); A("s_cbranch_scc1 L_amp_x")
                A(f"s_cmp_lt_u32 s60, {n}"); A("s_cbranch_scc1 L_amp_p")
                A("global_load_dword v2, v4, s[62:63] sc1"); A("global_load_dwordx2 v[6:7], v4, s[62:63] offset:64 sc1"); A("s_waitcnt vmcnt(0)")
                A("v_readfirstlane_b32 s60, v2"); A("v_readfirstlane_b32 s56, v6"); A("v_readfirstlane_b32 s57, v7"); A("s_not_b32 s60, s60")
                for j, a in enumerate(parts):
                    r = f"s{56+j}"
                    if a[0].islower():
                        sh = 11 if a[0] == "s" else 10
                        A(f"s_lshl_b32 s59, s60, {sh}"); A(f"s_sub_u32 {r}, {r}, s59"); A(f"s_mul_i32 {r}, {r}, {self.ampf}"); A(f"s_lshr_b32 {r}, {r}, {sh}")
                    else:
                        A(f"s_sub_u32 {r}, {r}, s60"); A(f"s_mul_i32 {r}, {r}, {self.ampf}")
                if len(parts) == 2: A("s_sub_u32 s56, s56, s57")
                A("s_add_u32 s61, s56, 15000"); A("s_min_u32 s61, s61, 100000")
                self.lab("L_amp_s")
                A("s_memrealtime s[58:59]"); A("s_waitcnt lgkmcnt(0)"); A("s_sub_u32 s58, s58, s60"); A("s_cmp_lt_u32 s58, s61"); A("s_cbranch_scc1 L_amp_s")
                self.lab("L_amp_x")
            return
        if self.dbg:
            A("s_load_dwordx2 s[62:63], s[0:1], 96")
            A("s_waitcnt lgkmcnt(0)")
            A("s_mov_b64 exec, 1"); A("v_mov_b32 v4, 0")
            A("s_not_b32 s60, s64"); A("v_mov_b32 v2, s60"); A("global_atomic_umax v4, v2, s[62:63]")
            m = {"C": {0: 15, 2: 2, 4: 3, 7: 10, 8: 11, 9: 12, 12: 13, 10: 14}, "S": {1: 1, 2: 4, 3: 5, 7: 6, 9: 7, 10: 8, 11: 9}}[cls]
            for k, d in m.items():
                A(f"v_mov_b32 v2, s{64+2*k}"); A(f"global_atomic_umax v4, v2, s[62:63] offset:{4*d}"); A("s_nop 1")
            if self.dbg == 2:
                m2 = {"C": {7: 16, 0: 17}, "S": {9: 18, 1: 19}}[cls]
                for k, d in m2.items():
                    A(f"v_mov_b32 v2, s{64+2*k}"); A(f"global_atomic_add v4, v2, s[62:63] offset:{4*d}"); A("s_nop 1")
            return
        A("s_waitcnt lgkmcnt(0)")
        A("s_mul_i32 s60, s2, 12"); A("s_add_u32 s60, s60, s33"); A(f"s_mul_i32 s60, s60, {NS*8}")
        A(f"s_add_u32 s60, s60, {STAMP_OFF}")
        A("s_add_u32 s62, s12, s60"); A("s_addc_u32 s63, s13, 0")
        A("s_mov_b64 exec, 1"); A("v_mov_b32 v4, 0")
        for i in range(NS):
            A(f"v_mov_b32 v2, s{64+2*i}"); A(f"v_mov_b32 v3, s{65+2*i}")
            A(f"global_store_dwordx2 v4, v[2:3], s[62:63] offset:{i*8}"); A("s_nop 1")
    def v4(self, r): return f"v[{r}:{r+3}]"
    def v2(self, r): return f"v[{r}:{r+1}]"
    def perms(self, dst, src, pairs=(0, 1, 2, 3)):
        for q in pairs:
            for w in range(4):
                for hh in range(2):
                    j = 2*w + hh
                    self.A(f"v_perm_b32 v{dst+4*j+q}, v{src+4*(2*q+1)+w}, v{src+4*(2*q)+w}, s{36+hh}")
    def allred_rows(self, op, v, t):
        A = self.A
        A(f"v_mov_b32 v{t}, v{v}"); self.nop(2)
        A(f"v_permlane32_swap_b32 v{v}, v{t}")
        A(f"{op} v{v}, v{v}, v{t}")
        A(f"v_mov_b32 v{t}, v{v}"); self.nop(2)
        A(f"v_permlane16_swap_b32 v{v}, v{t}")
        A(f"{op} v{v}, v{v}, v{t}")
    def masks(self, m, bank):
        for i in range(4):
            self.A(f"v_cmp_eq_u32 vcc, {i}, v{bank}"); self.A(f"v_cndmask_b32 v{m+i}, 0, -1, vcc")
    def dpp(self, op, d, a, b, ctl):
        self.A(f"{op}_dpp v{d}, v{a}, v{b} {ctl} row_mask:0xf bank_mask:0xf")
    def poll(self, name, loads, tagregs, acc, first_issued=False, sleep=0, tv=None):
        A = self.A
        A(f"s_mov_b32 s38, {self.spin}")
        if first_issued: A(f"s_branch L_chk_{name}")
        elif sleep: A(f"s_branch L_ld_{name}")
        self.lab(f"L_poll_{name}")
        if sleep: A(f"s_sleep {sleep}")
        self.lab(f"L_ld_{name}")
        for l in loads: A(l)
        self.lab(f"L_chk_{name}")
        A("s_waitcnt vmcnt(0)")
        if tv is None:
            A(f"v_xor_b32 v{acc}, s34, v{tagregs[0]}")
            for r in tagregs[1:]:
                A(f"v_bitop3_b32 v{acc}, v{r}, s34, v{acc} bitop3:0xbe")
        else: self.untag(tagregs[0], tv, acc)
        A("s_sub_u32 s38, s38, 1")
        A(f"v_cmp_ne_u32 vcc, 0, v{acc}")
        A("s_cselect_b64 s[50:51], 0, -1")
        if tv is not None: A("s_wqm_b64 vcc, vcc")
        A("s_and_b64 exec, vcc, s[50:51]")
        A(f"s_cbranch_scc1 L_poll_{name}")
        A("s_mov_b64 exec, -1")
    def untag(self, r0, tv, acc):
        A = self.A
        for r in range(r0, r0 + 8): A(f"v_xor_b32 v{r}, v{tv + (r & 1)}, v{r}")
        A(f"v_or3_b32 v{acc}, v{r0}, v{r0+1}, v{r0+2}"); A(f"v_or3_b32 v{acc+1}, v{r0+3}, v{r0+4}, v{r0+5}")
        A(f"v_or3_b32 v{acc}, v{acc}, v{r0+6}, v{r0+7}")
        A(f"v_bitop3_b32 v{acc}, v{acc}, v{acc+1}, s11 bitop3:0xa8")
    def ldsspin(self, name, off, target, reads, sleep=1):
        A = self.A
        A(f"s_mov_b32 s38, {self.spin * 16}")
        if sleep: A(f"s_branch L_spl_{name}")
        self.lab(f"L_sp_{name}")
        if sleep: A(f"s_sleep {sleep}")
        self.lab(f"L_spl_{name}")
        A(f"ds_read_b32 v2, {self.vz} offset:{L_F+off}")
        for r in reads: A(r)
        A("s_sub_u32 s38, s38, 1")
        A("s_cselect_b32 s3, 0, -1")
        A("s_waitcnt lgkmcnt(0)")
        A("v_readfirstlane_b32 s40, v2")
        A("s_orn2_b32 s40, s40, s3")
        A(f"s_cmp_lt_u32 s40, {target}")
        A(f"s_cbranch_scc1 L_sp_{name}")
    def cnt(self, off, one):
        A = self.A
        A("s_mov_b64 exec, 1")
        A(f"ds_add_u32 {self.vz}, {one} offset:{L_F+off}")
    def vissue(self, VB, p):
        for T in (2*p, 2*p+1):
            for e in range(4):
                self.A(f"buffer_load_dwordx4 {self.v4(VB+16*T+4*e)}, v5, s[8:11], s35 offen offset:{256*e}{self.nt}")
            if T < 3: self.A("s_add_u32 s35, s35, 16384")
    def mspin(self, name, B, d):
        A = self.A
        self.ldsspin(name, 8, 8, [f"ds_read_b128 {self.v4(B)}, v6 offset:{L_M}", f"ds_read_b128 {self.v4(B+4)}, v6 offset:{L_M+16}"], sleep=2)
        A(f"v_max3_f32 v{B}, v{B}, v{B+1}, v{B+2}")
        A(f"v_max3_f32 v{B+3}, v{B+3}, v{B+4}, v{B+5}")
        A(f"v_max3_f32 v{B}, v{B}, v{B+6}, v{B+7}")
        A(f"v_max_f32 v{d}, v{B}, v{B+3}")

    def gen(self):
        A = self.A; nt = self.nt; pol = self.pol; v4 = self.v4; v2 = self.v2
        OP = 0x100000 if self.ovl else 0x40000
        L = self.L
        L.append(HDR.rstrip("\n"))
        L.append(f"; @launch grid=(256,1,1) block=(768,1,1) lds={LDS_BYTES}")
        L.append('.amdgcn_target "amdgcn-amd-amdhsa--gfx950"')
        L.append(".text"); L.append(f".globl {KN}"); L.append(".p2align 12"); L.append(".p2align 8"); L.append(f".type {KN},@function"); L.append(f"{KN}:")
        self.stamp(0)
        if self.pad: A("s_memrealtime s[90:91]")
        if self.stamps:
            for i in range(1, NS): A(f"s_mov_b64 s[{64+2*i}:{65+2*i}], 0")
        if self.xperm == 1:
            A("s_lshr_b32 s3, s2, 3"); A("s_and_b32 s29, s2, 7"); A("s_lshl_b32 s29, s29, 5"); A("s_or_b32 s2, s3, s29")
        if self.xperm == 2:
            A("s_xor_b32 s3, s2, 1"); A("s_and_b32 s29, s2, 0xf8"); A("s_cmp_eq_u32 s29, 0x48"); A("s_cselect_b32 s2, s3, s2")
        A("s_bfe_u32 s29, s2, 0x10002")
        A("s_mul_i32 s3, s29, 40")
        A("s_cmp_ge_u32 s2, 256"); A("s_cbranch_scc1 L_end")
        A("s_load_dwordx2 s[16:17], s[0:1], s3 offset:24")
        A("s_load_dwordx2 s[24:25], s[0:1], 0")
        A("s_load_dwordx2 s[4:5], s[0:1], s3 offset:8")
        A("s_load_dwordx2 s[8:9], s[0:1], s3 offset:16")
        A("s_load_dwordx2 s[12:13], s[0:1], 104")
        A("v_lshrrev_b32 v1, 6, v0")
        A("s_lshr_b32 s30, s2, 3")
        if self.tx: A(f"s_xor_b32 s30, s30, {self.tx}")
        A("v_readfirstlane_b32 s33, v1")
        A("s_and_b32 s28, s2, 3"); A("s_lshl_b32 s28, s28, 1"); A("s_lshr_b32 s31, s30, 4"); A("s_or_b32 s28, s28, s31")
        A("s_bfe_u32 s31, s30, 0x20002"); A("s_and_b32 s32, s30, 3")
        A("v_and_b32 v0, 63, v0")
        A("v_and_b32 v3, 15, v0")
        A("v_lshrrev_b32 v4, 4, v0")
        A("v_bfe_u32 v5, v0, 2, 2")
        A("v_and_b32 v6, 3, v0")
        A("s_cmp_ge_u32 s33, 4"); A("s_cbranch_scc1 L_S")
        WB, PB, DB, XB, XM, CK = 8, 40, 72, 104, 80, 96
        A("s_setprio 3")
        if self.pf:
            A("s_getpc_b64 s[42:43]")
            if self.lean:
                A("s_lshl_b32 s3, s33, 11"); A("v_lshl_add_u32 v12, v3, 7, s3"); A("s_mov_b64 exec, 0xffff")
            else: A("v_lshlrev_b32 v12, 7, v0")
            A("v_min_u32 v12, L_last-L_pfbase, v12")
            self.lab("L_pfbase")
            A("global_load_dword v108, v12, s[42:43]")
            if self.lean: A("s_mov_b64 exec, -1"); A("s_mul_i32 s3, s29, 40")
        A("s_mov_b32 s18, 0x400000"); A("s_mov_b32 s19, 0x20000")
        A("s_mov_b32 s26, 4096"); A("s_mov_b32 s27, 0x20000")
        A("v_lshlrev_b32 v1, 16, v4"); A("v_lshl_add_u32 v1, v3, 4, v1")
        if self.wqr:
            A("v_lshl_add_u32 v1, v4, 13, v1")
            for e in range(1, self.cw): A(f"v_xor_b32 v{64+e}, {e << 13}, v1")
        def wql(e):
            if self.wqr:
                if e >= self.cw: A(f"v_xor_b32 v{64+e}, {e << 13}, v1")
                A(f"buffer_load_dwordx4 {v4(WB+4*e)}, v{64+e if e else 1}, s[16:19], s35 offen{nt}")
            else:
                A(f"buffer_load_dwordx4 {v4(WB+4*e)}, v1, s[16:19], s35 offen{nt}")
                if e < 7: A("s_add_u32 s35, s35, 8192")
        A("v_lshlrev_b32 v2, 10, v5"); A("v_lshl_add_u32 v2, v4, 4, v2")
        A("s_lshl_b32 s44, s28, 2"); A("s_add_u32 s44, s44, s31")
        A("s_lshl_b32 s39, s32, 2"); A("s_add_u32 s39, s39, s33")
        A("s_lshl_b32 s35, s39, 18"); A("s_lshl_b32 s45, s44, 8"); A("s_add_u32 s35, s35, s45")
        A("s_lshl_b32 s39, s39, 6")
        A("s_waitcnt lgkmcnt(0)")
        self.stamp(1)
        A(f"buffer_load_dwordx4 {v4(136 if self.wqr else XB)}, v2, s[24:27], s39 offen")
        for e in range(self.cw): wql(e)
        A("v_mov_b32 v112, 0"); A("v_mov_b32 v113, 0"); A("v_mov_b32 v114, 0"); A("v_mov_b32 v115, 0")
        A(f"ds_write_b128 v112, v[112:115] offset:{L_F}")
        A(f"ds_write_b128 v112, v[112:115] offset:{L_F+16}")
        A("s_waitcnt lgkmcnt(0)")
        A("s_barrier")
        A("s_branch L_C")
        self.lab("L_S")
        KB, VB, QB, SB = 8, 72, 136, 152
        self.vz = "v7"
        esh = 10 if self.lan else 8
        A("s_setprio 1")
        A("s_mov_b32 s6, 0x4000000"); A("s_mov_b32 s7, 0x20000")
        A("s_mov_b32 s10, 0x4000000"); A("s_mov_b32 s11, 0x20000")
        A("s_lshl_b32 s35, s31, 3"); A("s_add_u32 s35, s35, s28"); A("s_lshl_b32 s35, s35, 4"); A("s_add_u32 s35, s35, s32")
        A("s_lshl_b32 s35, s35, 5"); A("s_add_u32 s35, s35, s33")
        A("s_lshl_b32 s35, s35, 12"); A(f"s_add_u32 s35, s35, {0x180000 - 4*4096}")
        if self.rot & 1: A(f"s_lshl_b32 s3, s32, {esh}"); A("s_add_u32 s35, s35, s3")
        if self.rot & 2: A("s_and_b32 s3, s2, 7"); A("s_lshl_b32 s3, s3, 12"); A("s_xor_b32 s35, s35, s3")
        A(f"v_lshlrev_b32 v1, {18-esh}, v5"); A("v_lshl_add_u32 v1, v4, 6, v1"); A("v_lshl_add_u32 v1, v6, 4, v1")
        A(f"v_mul_u32_u24 v2, {QH}, v6"); A("v_lshl_add_u32 v2, v4, 6, v2"); A(f"v_lshl_add_u32 v{QB+12}, v5, 4, v2")
        A("v_lshlrev_b32 v5, 4, v3"); A(f"v_lshl_add_u32 v5, v4, {18-esh}, v5")
        if self.pr == 1:
            A("s_cmp_lt_u32 s33, 8"); A("s_cbranch_scc1 L_pr1"); A("s_setprio 2"); self.lab("L_pr1")
        if not self.b0late: A("s_barrier")
        A("s_waitcnt lgkmcnt(0)")
        self.stamp(1)
        st = dict(i=0)
        def trig(i):
            if i in (self.wj, self.wj2):
                self.cnt(24, f"v{QB+15}"); A("s_mov_b64 exec, -1")
        def nxt(k=1):
            for _ in range(k):
                i = st["i"]; st["i"] += 1
                n = self.N + (1 if i >= self.up else 0)
                wt = lambda p: (None if p[i] == "x" else int(p[i])) if i < len(p) else (n - 1 if i >= n else None)
                w1 = wt(self.pat); w2 = wt(self.pat2) if self.pat2 else w1
                if i == self.lup: w2 = n
                if w1 == w2:
                    if w1 is not None: A(f"s_waitcnt vmcnt({w1})")
                else:
                    A("s_cmp_ge_u32 s33, 8"); A(f"s_cbranch_scc1 L_p{i}")
                    if w1 is not None: A(f"s_waitcnt vmcnt({w1})")
                    if w2 is not None and (w1 is None or w2 < w1):
                        A(f"s_branch L_q{i}"); self.lab(f"L_p{i}"); A(f"s_waitcnt vmcnt({w2})"); self.lab(f"L_q{i}")
                    else:
                        self.lab(f"L_p{i}")
                        if w2 is not None: A(f"s_waitcnt vmcnt({w2})")
                if self.pr == 2: A(f"s_setprio {2 - i % 3}")
                if self.pr == 3: A(f"s_setprio {1 - i % 2}")
                T, e = (i >> 2) & 3, i & 3
                so = "s35"
                if T or e: A(f"s_xor_b32 s39, s35, {T*32768 + (e << esh)}"); so = "s39"
                if i < 16: A(f"buffer_load_dwordx4 {v4(KB+4*i)}, v1, s[4:7], {so} offen{nt}")
                else: A(f"buffer_load_dwordx4 {v4(VB+4*(i-16))}, v5, s[8:11], {so} offen{nt}")
                trig(i)
                if self.xdirty and i == 8:
                    A("s_mov_b32 s14, 0x4000000")
                    A("s_lshl_b32 s46, s2, 3"); A("s_add_u32 s46, s46, s33"); A(f"s_mul_i32 s46, s46, {self.xdirty*1024}"); A("s_add_u32 s46, s46, 0x800000")
                    A(f"v_lshlrev_b32 v{SB}, 4, v0")
                    for k in range(self.xdirty): A(f"buffer_store_dwordx4 v[0:3], v{SB}, s[12:15], s46 offen offset:{1024*k}")
        def upto(j):
            while st["i"] <= j: nxt()
        nxt(len(self.pat) - len(self.pat.lstrip("x")) if self.pat else self.N)
        A("s_load_dword s34, s[12:13], 0")
        A(f"s_mov_b32 s14, {WS_BYTES}"); A("s_mov_b32 s15, 0x20000")
        A("s_mov_b32 s36, 0x05040100"); A("s_mov_b32 s37, 0x07060302")
        A("v_mov_b32 v7, 0")
        A(f"v_mov_b32 v{QB+15}, 1")
        A("v_lshlrev_b32 v6, 5, v6"); A("s_lshl_b32 s3, s33, 2"); A("s_sub_u32 s3, s3, 16"); A("v_add_u32 v3, s3, v6")
        A(f"v_and_b32 v{QB+13}, 3, v0"); A(f"v_mul_u32_u24 v{QB+13}, {OH}, v{QB+13}"); A(f"v_lshl_add_u32 v{QB+13}, v4, 7, v{QB+13}")
        A(f"v_bfe_u32 v{QB+14}, v0, 2, 2"); A(f"v_lshl_add_u32 v{QB+13}, v{QB+14}, 4, v{QB+13}")
        A(f"s_mul_i32 s3, s33, {OW}"); A(f"s_add_u32 s3, s3, {L_O - 4*OW}"); A(f"v_add_u32 v{QB+13}, s3, v{QB+13}")
        if self.b0late: A("s_barrier")
        upto(15)
        self.stamp(2)
        upto(15 + self.qpos)
        A(f"s_waitcnt vmcnt({self.qpos})")
        self.stamp(3)
        self.ldsspin("q", 4, 4, [f"ds_read_b128 {v4(QB)}, v{QB+12} offset:{L_Q}"], sleep=4)
        self.stamp(4)
        Dj = lambda j: (QB + 4 + 4*j) if j < 2 else (KB + 4*(j-2))
        for j in range(16):
            A(f"v_mfma_f32_16x16x32_bf16 {v4(Dj(j))}, {v4(KB+4*j)}, {v4(QB)}, 0")
        A(f"s_mov_b32 s40, {SCALE}"); A(f"s_mov_b32 s41, {LOG2E}")
        A("s_mul_i32 s34, s34, 1664525"); A("s_add_u32 s34, s34, 1013904223")
        nxt()
        for j in range(16): self.dpp("v_add_f32", SB+j, Dj(j)+1, Dj(j), "row_ror:12")
        for j in range(16): self.dpp("v_add_f32", SB+j, Dj(j)+2, SB+j, "row_ror:8")
        for j in range(16): self.dpp("v_add_f32", SB+j, Dj(j)+3, SB+j, "row_ror:4")
        for i in range(8):
            A(f"v_cvt_pk_bf16_f32 v{QB+i}, v{SB+2*i}, v{SB+2*i+1}")
        for i in range(8):
            A(f"v_lshlrev_b32 v{SB+2*i}, 16, v{QB+i}"); A(f"v_and_b32 v{SB+2*i+1}, 0xffff0000, v{QB+i}")
        nxt()
        for i in range(8):
            A(f"v_pk_mul_f32 {v2(SB+2*i)}, {v2(SB+2*i)}, s[40:41] op_sel_hi:[1,0]")
        for i in range(8):
            A(f"v_cvt_pk_bf16_f32 v{QB+i}, v{SB+2*i}, v{SB+2*i+1}")
        for i in range(8):
            A(f"v_lshlrev_b32 v{SB+2*i}, 16, v{QB+i}"); A(f"v_and_b32 v{SB+2*i+1}, 0xffff0000, v{QB+i}")
        A(f"v_max3_f32 v1, v{SB}, v{SB+1}, v{SB+2}")
        A(f"v_max3_f32 v2, v{SB+3}, v{SB+4}, v{SB+5}")
        A(f"v_max3_f32 v1, v1, v{SB+6}, v{SB+7}")
        A(f"v_max3_f32 v2, v2, v{SB+8}, v{SB+9}")
        A(f"v_max3_f32 v1, v1, v{SB+10}, v{SB+11}")
        A(f"v_max3_f32 v2, v2, v{SB+12}, v{SB+13}")
        A(f"v_max3_f32 v1, v1, v{SB+14}, v{SB+15}")
        A("v_max_f32 v1, v1, v2")
        self.allred_rows("v_max_f32", 1, 2)
        A("v_mul_f32 v1, s41, v1")
        A("s_mov_b64 exec, 15")
        A(f"ds_write_b32 v3, v1 offset:{L_M}")
        self.cnt(8, f"v{QB+15}")
        A("s_mov_b64 exec, -1")
        self.stamp(5)
        nxt()
        self.stamp(6)
        self.mspin("m", QB, 1)
        for i in range(16):
            A(f"v_fma_f32 v{SB+i}, v{SB+i}, s41, -v1")
        for i in range(16):
            A(f"v_exp_f32 v{SB+i}, v{SB+i}")
        nxt()
        for i in range(8):
            A(f"v_cvt_pk_bf16_f32 v{QB+i}, v{SB+2*i}, v{SB+2*i+1}")
        for i in range(4):
            A(f"v_pk_add_f32 {v2(SB+2*i)}, {v2(SB+2*i)}, {v2(SB+8+2*i)}")
        for i in range(2):
            A(f"v_pk_add_f32 {v2(SB+2*i)}, {v2(SB+2*i)}, {v2(SB+4+2*i)}")
        A(f"v_pk_add_f32 {v2(SB)}, {v2(SB)}, {v2(SB+2)}")
        A(f"v_add_f32 v{SB+8}, v{SB}, v{SB+1}")
        self.allred_rows("v_add_f32", SB+8, SB)
        OB, P0, P1 = 8, 40, 72
        A("s_mov_b64 exec, 15")
        A(f"ds_write_b32 v3, v{SB+8} offset:{L_L}")
        self.cnt(20, f"v{QB+15}")
        A("s_mov_b64 exec, -1")
        self.stamp(7)
        def need(j):
            upto(min(31, j + self.N + (1 if j + self.N + 1 >= self.up else 0)))
            A(f"s_waitcnt vmcnt({st['i'] - 1 - j})")
        BM0, BM1, MK = 16, 40, 32
        def spread(dst, src):
            for i in range(4):
                for q in range(4):
                    if i == 0: A(f"v_and_b32 v{dst+q}, v{src+q}, v{MK}")
                    else: self.dpp("v_and_b32", dst+4*i+q, src+q, MK+i, f"row_ror:{4*i}")
        JO = (0, 4, 1, 5, 2, 6, 3, 7)
        self.masks(MK, QB+14)
        if st["i"] < 24: nxt()
        spread(BM0, QB)
        need(23)
        self.perms(P0, VB, pairs=(0, 1))
        if st["i"] < 32: nxt()
        self.perms(P0, VB, pairs=(2, 3))
        for j in JO:
            A(f"v_mfma_f32_16x16x32_bf16 {v4(OB+4*(j>>2))}, {v4(P0+4*j)}, {v4(BM0+4*(j&3))}, {v4(OB+4*(j>>2)) if j & 3 else 0}")
        self.stamp(8)
        need(25)
        self.perms(P1, VB+32, pairs=(0,))
        spread(BM1, QB+4)
        A("s_cmp_ge_u32 s33, 8"); A("s_cbranch_scc1 L_S_nr")
        A(f"s_mul_i32 s3, s33, {OH}"); A(f"s_add_u32 s3, s3, {L_O - 4*OH}")
        A(f"v_lshl_add_u32 v{SB+9}, v0, 3, s3")
        A("s_lshl_b32 s3, s33, 5"); A("s_sub_u32 s3, s3, 128"); A(f"v_mov_b32 v{SB+10}, s3")
        A("s_lshl_b32 s3, s29, 3"); A("s_add_u32 s3, s3, s28"); A("s_lshl_b32 s3, s3, 2"); A("s_add_u32 s3, s3, s33"); A("s_sub_u32 s3, s3, 4")
        A("s_lshl_b32 s3, s3, 2"); A("s_add_u32 s3, s3, s32"); A("s_lshl_b32 s3, s3, 2"); A("s_add_u32 s3, s3, s31")
        A("s_lshl_b32 s46, s3, 9"); A(f"s_add_u32 s46, s46, {OP}")
        A(f"v_lshlrev_b32 v{SB+11}, 3, v0")
        A(f"v_mov_b32 v{SB+13}, s34")
        self.ldsspin("l", 20, 8, [f"ds_read_b128 {v4(SB)}, v{SB+10} offset:{L_L}", f"ds_read_b128 {v4(SB+4)}, v{SB+10} offset:{L_L+16}",
                                  f"ds_read_b32 v1, v7 offset:{L_F+12}"], sleep=2)
        A("v_readfirstlane_b32 s45, v1")
        A(f"v_pk_add_f32 {v2(SB)}, {v2(SB)}, {v2(SB+4)}"); A(f"v_pk_add_f32 {v2(SB+2)}, {v2(SB+2)}, {v2(SB+6)}")
        A(f"v_pk_add_f32 {v2(SB)}, {v2(SB)}, {v2(SB+2)}")
        A(f"v_add_f32 v{SB+14}, v{SB}, v{SB+1}")
        A(f"v_rcp_f32 v{SB+14}, v{SB+14}")
        self.lab("L_S_nr")
        for q in range(1, 4):
            if q == 3 and 33 in (self.wj, self.wj2):
                need(30); trig(33)
            need(25 + 2*q)
            if q == 2: trig(32)
            if q == 3: trig(34); A("s_setprio 3"); self.stamp(9)
            self.perms(P1, VB+32, pairs=(q,))
        self.xs("sp")
        for j in JO:
            A(f"v_mfma_f32_16x16x32_bf16 {v4(OB+4*(j>>2))}, {v4(P1+4*j)}, {v4(BM1+4*(j&3))}, {v4(OB+4*(j>>2))}")
        self.xs("sm")
        A("s_cmp_ge_u32 s33, 8")
        self.nop(7)
        A(f"ds_write_b128 v{QB+13}, {v4(OB)}")
        A(f"ds_write_b128 v{QB+13}, {v4(OB+4)} offset:64")
        self.xs("sw")
        A("s_waitcnt lgkmcnt(0)")
        self.xs("sd")
        A("s_barrier")
        self.stamp(10)
        A("s_cbranch_scc1 L_S_x")
        for w in range(8): A(f"ds_read_b64 {v2(8+2*w)}, v{SB+9} offset:{OW*w}")
        A("s_waitcnt lgkmcnt(0)")
        self.xs("sr")
        for w in (0, 1, 2, 3):
            A(f"v_pk_add_f32 {v2(8+2*w)}, {v2(8+2*w)}, {v2(16+2*w)}")
        A("v_pk_add_f32 v[8:9], v[8:9], v[12:13]"); A("v_pk_add_f32 v[10:11], v[10:11], v[14:15]")
        A("s_cmp_lg_u32 s45, 0")
        A("v_pk_add_f32 v[8:9], v[8:9], v[10:11]")
        A(f"v_pk_mul_f32 v[8:9], v[8:9], {v2(SB+14)} op_sel_hi:[1,0]")
        A(f"v_cvt_pk_bf16_f32 v{SB+12}, v8, v9")
        A("s_cbranch_scc1 L_S_y2")
        A(f"buffer_store_dwordx2 {v2(SB+12)}, v{SB+11}, s[12:15], s46 offen" + ["", " sc1", " nt", " sc0 sc1"][self.owt])
        self.lab("L_S_x")
        self.stamp(11)
        if self.stamps and not self.nos:
            A("s_sleep 127"); A("s_sleep 127")
            self.stamp_out("S")
        A("s_endpgm")
        self.lab("L_C")
        self.vz = "v110"
        A("s_load_dword s34, s[12:13], 0")
        A("s_load_dwordx2 s[20:21], s[0:1], s3 offset:32")
        A("s_load_dwordx2 s[52:53], s[0:1], 80")
        A("s_load_dwordx2 s[56:57], s[0:1], 88")
        A(f"s_mov_b32 s14, {WS_BYTES}"); A("s_mov_b32 s15, 0x20000")
        A("s_mov_b32 s22, 0x400000"); A("s_mov_b32 s23, 0x20000")
        A("s_mov_b32 s36, 0x05040100"); A("s_mov_b32 s37, 0x07060302")
        A("s_mov_b32 s54, 1024"); A("s_mov_b32 s55, 0x20000")
        A("s_mov_b32 s58, 4096"); A("s_mov_b32 s59, 0x20000")
        A("s_lshl_b32 s45, s29, 1"); A("s_lshr_b32 s3, s28, 2"); A("s_add_u32 s45, s45, s3")
        A("v_lshlrev_b32 v109, 4, v0")
        A("s_lshl_b32 s3, s29, 5"); A("s_add_u32 s47, s44, s3")
        A("v_mov_b32 v110, 0"); A("v_mov_b32 v111, 1"); A("v_mov_b32 v133, 1024")
        A("v_lshlrev_b32 v127, 3, v0")
        A(f"v_mul_u32_u24 v122, {RU}, v4")
        A(f"v_mul_u32_u24 v7, {RB}, v5"); A("v_add_u32 v7, v7, v122"); A("v_lshl_add_u32 v7, v6, 4, v7")
        A(f"s_mul_i32 s3, s33, {RW}"); A(f"s_add_u32 s3, s3, {L_R}"); A("v_add_u32 v7, s3, v7")
        A("v_lshl_add_u32 v122, v6, 5, v122"); A("v_lshl_add_u32 v122, v5, 2, v122")
        A(f"s_mul_i32 s3, s33, {RB}"); A(f"s_add_u32 s3, s3, {L_R}"); A("v_add_u32 v122, s3, v122")
        A(f"v_add_u32 v123, {RW}, v122"); A(f"v_add_u32 v124, {2*RW}, v122"); A(f"v_add_u32 v125, {3*RW}, v122")
        self.masks(CK, 6)
        A("s_lshl_b32 s46, s47, 2"); A("s_add_u32 s46, s46, s32"); A("s_lshl_b32 s46, s46, 2"); A("s_add_u32 s46, s46, s33")
        A("s_lshl_b32 s46, s46, 9"); A(f"s_add_u32 s46, s46, {QP}")
        A("s_lshl_b32 s4, s29, 3"); A("s_add_u32 s4, s4, s28"); A("s_lshl_b32 s4, s4, 2"); A("s_add_u32 s4, s4, s33")
        A("s_lshl_b32 s4, s4, 2"); A("s_add_u32 s4, s4, s31"); A("s_lshl_b32 s4, s4, 2"); A("s_add_u32 s4, s4, s32")
        A("s_lshl_b32 s4, s4, 3"); A(f"s_add_u32 s4, s4, {SP}")
        if self.rm >= 0:
            A("s_sub_u32 s3, s32, s31"); A("s_add_u32 s44, s44, s3"); A("s_add_u32 s47, s47, s3")
            A(f"s_add_u32 s32, s31, {self.rm}"); A("s_and_b32 s32, s32, 3")
        A("s_mov_b32 s41, 0")
        A("s_getreg_b32 s30, hwreg(HW_REG_XCC_ID, 0, 4)")
        if self.forcey: A("s_lshr_b32 s30, s2, 3"); A("s_and_b32 s30, s30, 1")
        A("s_lshl_b32 s3, s45, 10")
        A("s_waitcnt lgkmcnt(0)")
        if self.lean: A("s_cmp_eq_u32 s33, 0"); A("s_cselect_b64 exec, -1, 1")
        A("buffer_load_dwordx4 v[112:115], v109, s[24:27], s3 offen")
        A("buffer_load_dwordx4 v[116:119], v109, s[52:55], 0 offen")
        if self.lean: A("s_mov_b64 exec, -1")
        for e in range(self.cw, 8):
            A(f"s_waitcnt vmcnt({self.cw-1 + (2 if e < 2*self.cw else 0)})")
            wql(e)
        if self.wqr:
            A("s_mov_b32 s3, 0x02020202"); A("v_mul_lo_u32 v140, v4, s3"); A("v_xor_b32 v140, 0x03020100, v140")
            for q in range(4): A(f"v_perm_b32 v{XB+q}, v{136 + (q ^ 1)}, v{136 + q}, v140")
        for i in range(4):
            for q in range(4): A(f"v_and_b32 v{XM+4*i+q}, v{XB+q}, v{CK+i}")
        A("s_mul_i32 s34, s34, 1664525"); A("s_add_u32 s34, s34, 1013904223")
        A("v_mov_b32 v129, s34")
        A("s_and_b32 s3, s34, -16"); A("s_or_b32 s30, s30, s3")
        A("v_and_b32 v160, 1, v0"); A("v_lshlrev_b32 v160, 4, v160")
        A("v_lshrrev_b32 v166, v160, s30"); A("v_lshrrev_b32 v160, v160, s34")
        A("v_bfe_u32 v167, v166, 8, 8"); A("v_bfe_u32 v161, v160, 8, 8")
        A("v_and_b32 v166, 0xff, v166"); A("v_and_b32 v160, 0xff, v160")
        A("s_movk_i32 s11, 0xff"); A("s_and_b32 s30, s30, 0xffff"); A("s_mov_b32 s10, 0x0c0c0400")
        SG = 136
        CF = 144
        OG = 152
        ol = [f"buffer_load_dwordx2 {v2(OG+2*s)}, v1, s[12:15], s{39 if s < 2 else 48} offen offset:{2048*(s&1)}{pol}" for s in range(4)]
        stl = [f"buffer_load_dwordx4 {v4(SG+4*s)}, v57, s[12:15], s35 offen offset:{16*s}{pol}" for s in range(2)]
        self.lab("L_tile")
        for q in range(3):
            A(f"s_waitcnt vmcnt({6-2*q})")
            self.perms(PB, WB, pairs=(q,))
        A("s_cmp_eq_u32 s41, 0"); A("s_cbranch_scc0 L_t1")
        A("s_waitcnt vmcnt(0)")
        self.perms(PB, WB, pairs=(3,))
        self.stamp(2); A("s_branch L_mm")
        self.lab("L_t1")
        for l in ol: A(l)
        A(f"s_mov_b32 s38, {self.spin}")
        A("s_waitcnt vmcnt(4)")
        self.perms(PB, WB, pairs=(3,))
        self.stamp(7)
        A("s_branch L_og")
        self.lab("L_ogr")
        if self.osleep: A(f"s_sleep {self.osleep}")
        for l in ol: A(l)
        self.lab("L_og")
        A("s_waitcnt vmcnt(0)")
        self.xs("ow")
        A(f"v_xor_b32 v20, s34, v{OG+1}")
        for s in range(1, 4): A(f"v_bitop3_b32 v20, v{OG+1+2*s}, s34, v20 bitop3:0xbe")
        A("s_sub_u32 s38, s38, 1")
        A("v_cmp_ne_u32 vcc, 0, v20")
        A("s_cbranch_scc1 L_ogd")
        A("s_cbranch_vccnz L_ogr")
        self.lab("L_ogd")
        for s in range(4):
            A(f"v_lshlrev_b32 v{24+2*s}, 16, v{OG+2*s}"); A(f"v_and_b32 v{25+2*s}, 0xffff0000, v{OG+2*s}")
        A("s_cmp_lg_u32 s49, 0"); A("s_cbranch_scc1 L_ogn")
        A(f"s_mov_b64 exec, {(1 << self.er) - 1}")
        A(f"buffer_store_dword v129, v135, s[12:15], 0 offen{pol}")
        A("s_mov_b64 exec, -1")
        self.lab("L_ogn")
        self.stamp(8)
        A(f"v_pk_mul_f32 v[24:25], v[24:25], {v2(CF)} op_sel_hi:[1,0]")
        A(f"v_pk_mul_f32 v[28:29], v[28:29], {v2(CF+4)} op_sel_hi:[1,0]")
        A(f"v_pk_fma_f32 v[24:25], v[26:27], {v2(CF+2)}, v[24:25] op_sel_hi:[1,0,1]")
        A(f"v_pk_fma_f32 v[28:29], v[30:31], {v2(CF+6)}, v[28:29] op_sel_hi:[1,0,1]")
        A(f"v_pk_add_f32 v[24:25], v[24:25], v[28:29]")
        A("v_cvt_pk_bf16_f32 v24, v24, v25"); self.nop(2)
        for i in range(4):
            for q in range(4):
                self.dpp("v_and_b32", XM+4*i+q, 24, CK+i, f"quad_perm:[{q},{q},{q},{q}]")
        self.lab("L_mm")
        self.xs("mm")
        for j in (0, 4, 1, 5, 2, 6, 3, 7):
            A(f"v_mfma_f32_16x16x32_bf16 {v4(DB+4*(j>>2))}, {v4(PB+4*j)}, {v4(XM+4*(j&3))}, {v4(DB+4*(j>>2)) if j & 3 else 0}")
        self.xs("mf")
        A("s_cmp_eq_u32 s41, 0")
        self.nop(7)
        A(f"ds_write_b128 v7, {v4(DB)}")
        A(f"ds_write_b128 v7, {v4(DB+4)} offset:64")
        A("s_cbranch_scc0 L_fin")
        self.cnt(0, "v111")
        A("s_mov_b64 exec, -1")
        rd = [f"ds_read2_b32 {v2(12+2*i)}, v{122+i} offset0:0 offset1:4" for i in range(4)]
        self.ldsspin("c", 0, 4, rd, sleep=0)
        A("v_pk_add_f32 v[12:13], v[12:13], v[14:15]"); A("v_pk_add_f32 v[16:17], v[16:17], v[18:19]")
        A("v_pk_add_f32 v[12:13], v[12:13], v[16:17]")
        A("v_bfi_b32 v164, s11, v166, v12"); A("v_bfi_b32 v165, s11, v167, v13")
        A("buffer_store_dwordx2 v[164:165], v127, s[12:15], s46 offen" + ["", " sc1", " nt", " sc0 sc1"][self.qwt])
        self.stamp(3)
        if self.pretouch:
            A("s_lshl_b32 s3, s32, 2"); A("s_add_u32 s3, s3, s33"); A("s_lshl_b32 s3, s3, 9")
            A("s_lshl_b32 s40, s47, 13"); A("s_add_u32 s3, s3, s40"); A(f"s_add_u32 s3, s3, {OP}")
            A("s_or_b32 s40, s32, s33"); A("s_cbranch_scc1 L_pt")
            A("s_lshl_b32 s40, s47, 7"); A(f"s_add_u32 s40, s40, {SP}")
            A("s_load_dword s49, s[12:13], s40")
            self.lab("L_pt")
            for i in range(4): A(f"s_load_dword s49, s[12:13], s3 offset:{128*i}")
        for i in range(4):
            A(f"v_lshlrev_b32 v{24+2*i}, 16, v{112+i}"); A(f"v_and_b32 v{25+2*i}, 0xffff0000, v{112+i}")
            A(f"v_lshlrev_b32 v{32+2*i}, 16, v{116+i}"); A(f"v_and_b32 v{33+2*i}, 0xffff0000, v{116+i}")
        for i in range(4):
            A(f"v_pk_mul_f32 {v2(24+2*i)}, {v2(24+2*i)}, {v2(32+2*i)}")
        for i in range(4):
            A(f"v_cvt_pk_bf16_f32 v{32+i}, v{24+2*i}, v{25+2*i}")
        for i in range(4):
            A(f"v_lshlrev_b32 v{24+2*i}, 16, v{32+i}"); A(f"v_and_b32 v{25+2*i}, 0xffff0000, v{32+i}")
        A("v_pk_add_f32 v[24:25], v[24:25], v[28:29]"); A("v_pk_add_f32 v[26:27], v[26:27], v[30:31]")
        A("v_pk_add_f32 v[24:25], v[24:25], v[26:27]"); A("v_add_f32 v8, v24, v25")
        for ror in (8, 4, 2, 1):
            self.nop(2); self.dpp("v_add_f32", 8, 8, 8, f"row_ror:{ror}")
        self.allred_rows("v_add_f32", 8, 9)
        A("v_cvt_pk_bf16_f32 v8, v8, v8"); A("v_lshlrev_b32 v8, 16, v8")
        A(f"v_mul_f32 v8, {0xbfb8aa3b}, v8"); A("v_exp_f32 v8, v8"); self.nop(1)
        A("v_add_f32 v8, 1.0, v8"); A("v_rcp_f32 v8, v8"); self.nop(1)
        A("v_cvt_pk_bf16_f32 v8, v8, v8"); A("v_lshlrev_b32 v8, 16, v8")
        A("v_sub_f32 v9, 1.0, v8"); A("v_cvt_pk_bf16_f32 v9, v9, v9"); A("v_lshlrev_b32 v9, 16, v9")
        A("v_cmp_gt_u32 vcc, 32, v0")
        A("s_lshl_b32 s39, s29, 3"); A("s_add_u32 s39, s39, s28"); A("s_lshl_b32 s39, s39, 2"); A("s_add_u32 s39, s39, s33")
        A("v_cndmask_b32 v120, v9, v8, vcc")
        A("s_lshl_b32 s39, s39, 4"); A("s_add_u32 s39, s39, s31"); A("s_lshl_b32 s39, s39, 9"); A(f"s_add_u32 s39, s39, {QP}")
        A("s_add_u32 s60, s39, 4096")
        A("s_mov_b32 s63, 0")
        A("v_mov_b32 v18, 0")
        A("v_lshlrev_b32 v19, 11, v6")
        A(f"s_mov_b32 s38, {self.n0}"); A(f"s_mov_b32 s62, {self.spin}")
        self.stamp(13)
        D = self.qdepth
        ld = lambda i: A(f"buffer_load_dwordx2 {v2(40+2*i)}, v19, s[12:15], s39 offen{pol}")
        qg = lambda vo: [f"buffer_load_dwordx2 {v2(24+2*i)}, {vo}, s[12:15], s{39 if i < 2 else 60} offen offset:{2048*(i&1)}{pol}" for i in range(4)]
        for i in range(D - 1):
            ld(i); A(f"s_sleep {self.qsleep}")
        self.lab("L_qf")
        for i in range(D):
            ld((i + D - 1) % D)
            A(f"s_waitcnt vmcnt({D-1})")
            A(f"v_perm_b32 v20, v{41+2*i}, v{40+2*i}, s10")
            A("v_cmp_ne_u32 vcc, s30, v20")
            A("s_cmp_eq_u64 vcc, 0"); A("s_cbranch_scc1 L_qfd")
        self.lab("L_qfr")
        A("s_sub_u32 s38, s38, 1")
        A("s_cbranch_scc0 L_qf")
        A("s_branch L_slow")
        self.lab("L_qfd")
        self.stamp(14)
        for l in qg("v127"): A(l)
        A(f"s_mul_i32 s3, s33, {QH}"); A("v_lshl_add_u32 v16, v0, 2, s3")
        A("v_lshlrev_b32 v1, 11, v4"); A("v_lshl_add_u32 v1, v3, 4, v1")
        A("s_lshl_b32 s48, s44, 17"); A("s_lshl_b32 s3, s33, 15"); A("s_add_u32 s48, s48, s3")
        A("s_lshl_b32 s3, s32, 8"); A("s_add_u32 s48, s48, s3")
        A("s_waitcnt vmcnt(0) lgkmcnt(0)")
        self.untag(24, 166, 8)
        A("v_cmp_ne_u32 vcc, 0, v8"); A("s_cmp_eq_u64 vcc, 0"); A("s_cbranch_scc0 L_qfr")
        self.lab("L_qok")
        A("v_pk_add_f32 v[24:25], v[24:25], v[26:27]"); A("v_pk_add_f32 v[28:29], v[28:29], v[30:31]")
        A("v_pk_add_f32 v[24:25], v[24:25], v[28:29]")
        A("v_cvt_pk_bf16_f32 v17, v24, v25")
        A(f"ds_write_b32 v16, v17 offset:{L_Q}")
        self.cnt(12, "v18")
        A(f"ds_add_u32 v110, v111 offset:{L_F+4}")
        A("s_mov_b64 exec, -1")
        self.stamp(4)
        self.lab("L_vd")
        A(f"ds_read_b32 v2, v110 offset:{L_F+4}")
        A(f"ds_read2_b32 v[134:135], v133 offset0:{(L_F+12)//4 - 256} offset1:{(L_F+16)//4 - 256}")
        A("s_waitcnt lgkmcnt(0)")
        A("v_readfirstlane_b32 s40, v2"); A("v_readfirstlane_b32 s3, v135"); A("v_readfirstlane_b32 s49, v134")
        A("s_andn2_b32 s3, s3, s63"); A("s_cbranch_scc1 L_puby2")
        A("s_cmp_ge_u32 s40, 4"); A("s_cbranch_scc1 L_vdd")
        A("s_sleep 2"); A("s_sub_u32 s62, s62, 1"); A("s_cbranch_scc0 L_vd")
        self.lab("L_vdd")
        A("s_lshl_b32 s3, s33, 5"); A("v_mov_b32 v56, s3")
        self.ldsspin("l2", 20, 8, [f"ds_read_b128 v[40:43], v56 offset:{L_M}", f"ds_read_b128 v[44:47], v56 offset:{L_M+16}",
                                   f"ds_read_b128 v[48:51], v56 offset:{L_L}", f"ds_read_b128 v[52:55], v56 offset:{L_L+16}"], sleep=4)
        A("v_max3_f32 v40, v40, v41, v42"); A("v_max3_f32 v43, v43, v44, v45"); A("v_max3_f32 v40, v40, v46, v47")
        A("v_pk_add_f32 v[48:49], v[48:49], v[52:53]"); A("v_pk_add_f32 v[50:51], v[50:51], v[54:55]")
        A("v_pk_add_f32 v[48:49], v[48:49], v[50:51]"); A("v_add_f32 v48, v48, v49")
        A("v_log_f32 v48, v48"); A("v_max_f32 v40, v40, v43")
        A("s_cmp_lg_u32 s49, 0")
        A("v_add_f32 v128, v40, v48")
        A("s_mov_b64 exec, 1")
        A("s_cbranch_scc1 L_S_y1")
        A("buffer_store_dwordx2 v[128:129], v110, s[12:15], s4 offen")
        self.lab("L_S_y1r")
        A("s_mov_b64 exec, -1")
        A("s_cmp_lg_u32 s49, 0"); A(f"s_cselect_b32 s49, {YD}, 0")
        A("s_lshl_b32 s35, s47, 7"); A(f"s_add_u32 s35, s35, {SP}"); A("s_add_u32 s35, s35, s49")
        A("v_lshlrev_b32 v57, 5, v5")
        self.poll("s", stl, [SG+1, SG+3, SG+5, SG+7], 20, sleep=self.ssleep)
        self.stamp(15)
        A(f"v_max3_f32 v20, v{SG}, v{SG+2}, v{SG+4}"); A(f"v_max_f32 v20, v20, v{SG+6}")
        for s in range(4): A(f"v_sub_f32 v{CF+2*s}, v{SG+2*s}, v20")
        for s in range(4): A(f"v_exp_f32 v{CF+2*s}, v{CF+2*s}")
        self.nop(1)
        A(f"v_add_f32 v20, v{CF}, v{CF+2}"); A(f"v_add_f32 v21, v{CF+4}, v{CF+6}"); A("v_add_f32 v20, v20, v21")
        A("v_rcp_f32 v20, v20"); self.nop(1)
        for s in range(4): A(f"v_mul_f32 v{CF+2*s}, v{CF+2*s}, v20")
        for e in range(8):
            if e == self.wo1: self.ldsspin("w", 24, self.th1, [], sleep=2)
            if e == self.wa: self.ldsspin("w2", 24, self.th2, [], sleep=1)
            if e == self.wo_early: A("s_setprio 0")
            A(f"buffer_load_dwordx4 {v4(WB+4*e)}, v1, s[20:23], s48 offen offset:{1024*(e>>2)}{nt}")
            if e == 3: A("s_sub_u32 s48, s48, 24576")
            elif e < 7: A("s_add_u32 s48, s48, 8192")
        A("s_setprio 3")
        self.stamp(5)
        A("s_lshl_b32 s39, s47, 13"); A("s_lshl_b32 s3, s33, 7"); A("s_add_u32 s39, s39, s3"); A(f"s_add_u32 s39, s39, {OP}")
        A("s_add_u32 s39, s39, s49"); A("s_add_u32 s48, s39, 4096")
        A("v_lshlrev_b32 v1, 9, v5"); A("v_lshl_add_u32 v1, v4, 5, v1"); A("v_lshl_add_u32 v1, v6, 3, v1")
        A("s_lshl_b32 s63, s32, 17"); A(f"s_add_u32 s63, s63, {FP}")
        A("s_lshl_b32 s3, s47, 11"); A("s_add_u32 s46, s63, s3"); A("s_lshl_b32 s3, s33, 9"); A("s_add_u32 s46, s46, s3")
        A("v_lshrrev_b32 v121, 2, v0"); A("v_lshlrev_b32 v121, 11, v121"); A("v_lshl_add_u32 v121, v6, 3, v121")
        A("s_lshl_b32 s3, s47, 5"); A("s_add_u32 s63, s63, s3")
        A("s_add_u32 s60, s63, 0x8000"); A("s_add_u32 s61, s63, 0x10000"); A("s_add_u32 s62, s63, 0x18000")
        A("s_lshl_b32 s45, s45, 10"); A("s_lshl_b32 s3, s32, 8"); A("s_add_u32 s45, s45, s3")
        A("s_and_b32 s3, s47, 15"); A("s_lshl_b32 s3, s3, 4"); A("s_add_u32 s45, s45, s3")
        A("v_lshlrev_b32 v126, 2, v6"); A("v_lshl_add_u32 v126, v4, 1, v126")
        A("s_mov_b32 s41, 1")
        A("s_and_b32 s49, s44, 3"); A("s_or_b32 s49, s49, s32"); A("s_or_b32 s49, s49, s33")
        A("s_lshr_b32 s3, s47, 2"); A("s_lshl_b32 s3, s3, 10"); A(f"s_add_u32 s3, s3, {EP}"); A("v_lshl_add_u32 v135, v0, 7, s3")
        A("v_lshlrev_b32 v134, 10, v3"); A(f"v_add_u32 v134, {EP}, v134")
        if self.er > self.ed:
            A(f"s_lshr_b32 s3, s2, 3"); A(f"s_and_b32 s3, s3, {self.er // self.ed - 1}"); A(f"s_mul_i32 s3, s3, {128 * self.ed}"); A("v_add_u32 v134, s3, v134")
        A("s_barrier")
        self.stamp(6)
        A("s_branch L_tile")
        self.lab("L_fin")
        self.xs("wr")
        if self.b4spin:
            self.cnt(28, "v111")
            A("s_mov_b64 exec, -1")
            self.ldsspin("c2", 28, 4, rd, sleep=0)
        else:
            A("s_mov_b64 exec, -1")
            A("s_waitcnt lgkmcnt(0)")
            self.xs("wd")
            A("s_barrier")
            self.xs("bar")
            for r in rd: A(r)
            A("s_waitcnt lgkmcnt(0)")
        A("v_pk_add_f32 v[12:13], v[12:13], v[14:15]"); A("v_pk_add_f32 v[16:17], v[16:17], v[18:19]")
        self.xs("rd")
        A("v_pk_add_f32 v[12:13], v[12:13], v[16:17]")
        A("v_bfi_b32 v12, s11, v160, v12"); A("v_bfi_b32 v13, s11, v161, v13")
        A(f"buffer_store_dwordx2 v[12:13], v127, s[12:15], s46 offen{pol}")
        self.stamp(9)
        if self.wbl == 1:
            A("s_lshr_b32 s3, s2, 3"); A("s_lshl_b32 s3, s3, 2"); A("s_add_u32 s5, s3, s33"); A("s_cmp_eq_u32 s5, 1"); A("s_cbranch_scc1 L_wb1")
        if self.wbl == 2:
            A("s_lshr_b32 s3, s2, 3"); A("s_lshl_b32 s3, s3, 2"); A("s_add_u32 s5, s3, s33"); A("s_cmp_eq_u32 s5, 1"); A("s_cbranch_scc0 L_wb1")
            A("buffer_wbl2 sc1")
            self.lab("L_wb1")
        A("s_cmp_lg_u32 s33, 0"); A("s_cbranch_scc1 L_C_exit")
        if self.wbl == 1: self.lab("L_wb1")
        if self.fdelay: A(f"s_sleep {self.fdelay}")
        if self.eta:
            if self.ed == 1:
                self.poll("e", [f"buffer_load_dword v41, v134, s[12:15], 0 offen{pol}"], [41], 40)
            else:
                D = self.ed
                A("s_mov_b64 exec, 0xffff")
                el = lambda i: A(f"buffer_load_dword v{41+i}, v134, s[12:15], 0 offen offset:{128 * (i % self.er)}{pol}")
                A(f"s_mov_b32 s38, {self.spin}")
                for i in range(D - 1):
                    el(i); A(f"s_sleep {self.es}")
                self.lab("L_ep")
                for i in range(D):
                    el((i + D - 1) % D)
                    A(f"s_waitcnt vmcnt({D-1})")
                    A(f"v_cmp_ne_u32 vcc, s34, v{41+i}")
                    A("s_cmp_eq_u64 vcc, 0"); A("s_cbranch_scc1 L_epd")
                A("s_sub_u32 s38, s38, 1"); A("s_cbranch_scc0 L_ep")
                self.lab("L_epd")
                A("s_mov_b64 exec, -1")
            self.stamp(12)
            if self.wbl == 1:
                A("s_cmp_eq_u32 s33, 0"); A("s_cbranch_scc1 L_wb2")
                A("buffer_wbl2 sc1"); A("s_branch L_C_exit")
                self.lab("L_wb2")
            if self.edly: A(f"s_sleep {self.edly}")
            self.lab("L_eok")
        self.poll("f", [f"buffer_load_dwordx2 {v2(24+2*i)}, v121, s[12:15], s{(63,60,61,62)[i]} offen{pol}" for i in range(4)],
                  list(range(24, 32)), 40, sleep=self.fsleep, tv=160)
        self.stamp(10)
        if self.stamps and not self.amp and not self.only: A(f"s_sub_u32 s66, {self.spin}, s38"); A("s_mov_b32 s67, 0")
        A("v_pk_add_f32 v[24:25], v[24:25], v[26:27]"); A("v_pk_add_f32 v[28:29], v[28:29], v[30:31]")
        self.nop(2)
        A("v_permlane32_swap_b32 v24, v28"); A("v_permlane32_swap_b32 v25, v29")
        A("v_pk_add_f32 v[24:25], v[24:25], v[28:29]"); self.nop(2)
        A("v_permlane16_swap_b32 v24, v25")
        A("v_add_f32 v24, v24, v25"); self.nop(2)
        self.dpp("v_add_f32", 24, 24, 24, "row_ror:4"); self.nop(2)
        self.dpp("v_add_f32", 24, 24, 24, "row_ror:8")
        A("v_cvt_pk_bf16_f32 v24, v24, v24"); A("v_lshlrev_b32 v24, 16, v24")
        A("v_mul_f32 v24, v24, v120")
        A("v_cvt_pk_bf16_f32 v24, v24, v24"); A("v_lshlrev_b32 v24, 16, v24")
        A("v_mov_b32 v25, v24"); self.nop(2)
        A("v_permlane32_swap_b32 v24, v25")
        A("v_add_f32 v24, v24, v25")
        A("v_cvt_pk_bf16_f32 v24, v24, v24")
        A("s_mov_b64 exec, 0x000f000f")
        A("buffer_store_short v24, v126, s[56:59], s45 offen")
        self.xs("fo")
        if self.pad:
            if self.padk >= 0:
                A("s_waitcnt lgkmcnt(0)"); A("s_mov_b32 s90, s92")
            self.lab("L_pad")
            A("s_memrealtime s[94:95]"); A("s_waitcnt lgkmcnt(0)"); A("s_sub_u32 s94, s94, s90")
            A(f"s_cmp_lt_u32 s94, {self.pad}"); A("s_cbranch_scc1 L_pad")
        A("s_cmp_lg_u32 s2, 0"); A("s_cbranch_scc1 L_C_exit")
        A("s_mov_b64 exec, 1")
        A("buffer_store_dword v129, v110, s[12:15], 0 offen")
        self.lab("L_C_exit")
        self.stamp(11)
        if self.stamps: A("s_sleep 127")
        self.stamp_out()
        self.lab("L_end")
        A("s_endpgm")
        self.lab("L_last")
        self.lab("L_S_y1")
        A(f"s_add_u32 s4, s4, {YD}")
        A(f"buffer_store_dwordx2 v[128:129], v110, s[12:15], s4 offen{pol}")
        A("s_branch L_S_y1r")
        self.lab("L_S_y2")
        A(f"s_add_u32 s46, s46, {YD}")
        A(f"buffer_store_dwordx2 {v2(SB+12)}, v{SB+11}, s[12:15], s46 offen{pol}")
        A("s_branch L_S_x")
        def puby():
            A(f"s_add_u32 s3, s46, {YD}")
            A(f"buffer_store_dwordx2 v[164:165], v127, s[12:15], s3 offen{pol}")
            A("s_mov_b32 s63, 1")
        self.lab("L_puby2")
        puby()
        A("s_branch L_vd")
        self.lab("L_slow")
        A("s_cmp_lg_u32 s63, 0"); A("s_cbranch_scc1 L_slow2")
        A(f"ds_write_b32 v110, v111 offset:{L_F+16}")
        puby()
        self.lab("L_slow2")
        A(f"v_add_u32 v9, {YD}, v127")
        for l in qg("v9"): A(l)
        A("v_and_b32 v9, 1, v0"); A("v_mul_u32_u24 v9, 15, v9"); A("v_or_b32 v9, 0xf0, v9")
        A("s_waitcnt vmcnt(0)")
        A("v_xor_b32 v8, v166, v24"); A("v_xor_b32 v10, v167, v25")
        for r in range(26, 32): A(f"v_bitop3_b32 v{8 + 2*(r & 1)}, v{r}, v{166 + (r & 1)}, v{8 + 2*(r & 1)} bitop3:0xbe")
        A("v_and_b32 v10, 0xff, v10"); A("v_and_or_b32 v9, v8, v9, v10"); A("v_and_b32 v10, 15, v8")
        A("s_mov_b32 s38, 0")
        A("v_cmp_ne_u32 vcc, 0, v9"); A("s_cmp_eq_u64 vcc, 0"); A("s_cbranch_scc1 L_slow3")
        A("s_sleep 8")
        A("s_sub_u32 s62, s62, 1"); A("s_cbranch_scc0 L_qf")
        self.lab("L_slow3")
        for r in range(24, 32): A(f"v_and_b32 v{r}, 0xffffff00, v{r}")
        A("v_cmp_ne_u32 vcc, 0, v10"); A("s_cmp_lg_u64 vcc, 0")
        A("s_cselect_b32 s3, 1, 0"); A("v_mov_b32 v18, s3")
        A(f"s_mul_i32 s3, s33, {QH}"); A("v_lshl_add_u32 v16, v0, 2, s3")
        A("v_lshlrev_b32 v1, 11, v4"); A("v_lshl_add_u32 v1, v3, 4, v1")
        A("s_lshl_b32 s48, s44, 17"); A("s_lshl_b32 s3, s33, 15"); A("s_add_u32 s48, s48, s3")
        A("s_lshl_b32 s3, s32, 8"); A("s_add_u32 s48, s48, s3")
        A("s_waitcnt lgkmcnt(0)")
        A("s_branch L_qok")
        L.append('.section .rodata,"a"'); L.append(".p2align 6"); L.append(f".amdhsa_kernel {KN}")
        L.append("  .amdhsa_next_free_vgpr 168"); L.append("  .amdhsa_next_free_sgpr 96"); L.append("  .amdhsa_accum_offset 168")
        L.append("  .amdhsa_group_segment_fixed_size 0"); L.append("  .amdhsa_kernarg_size 112"); L.append("  .amdhsa_user_sgpr_count 2")
        L.append("  .amdhsa_user_sgpr_kernarg_segment_ptr 1"); L.append("  .amdhsa_system_sgpr_workgroup_id_x 1")
        L.append("  .amdhsa_float_denorm_mode_32 3")
        L.append(".end_amdhsa_kernel")
        return "\n".join(L) + "\n"

if __name__ == "__main__":
    out = sys.argv[1]
    kw = {}
    for a in sys.argv[2:]:
        k, v = a.split("=")
        kw[k] = v.replace("+", " ") if k in ("pol", "pat", "pat2", "amp", "only", "xst") else int(v)
    open(out, "w").write(G(**kw).gen())
```

```python
import sys
KN = "gated_mix__sliding_block_cached__sliding_block_cached__decode_kernel"
HDR = open("gated_mix__sliding_block_cached__sliding_block_cached__decode.s.ref").read().split("; Override launch")[0]

FL = 0x1000
YD = 0x400000
OP = 0x100000
SP = 0xC0000
EP = 0xD0000
QP = 0x100000
FP = 0x180000
WS_BYTES = 0x600000
STAMP_OFF = 0x4000000
L_Q = 0
QH = 272
L_M = 1280
L_L = 1408
L_F = 1536
L_O = 2048
OH, OW = 544, 2176
RU, RB, RW = 144, 576, 2304
L_R = L_O + 8*OW
LDS_BYTES = L_R + 4*RW
LOG2E = 0x3fb8aa3b
SCALE = 0x3db504f3
NS = 16

class G:
    def __init__(self, **kw):
        d = dict(padk=-1, pad=0, stamps=0, nt=1, pol="sc1", spin=1 << 16, pf=1, wo_early=0, qsleep=12, forcey=0, pretouch=0,
                 n0=8, qdepth=4, lsplit=1, osleep=0, fsleep=0, b4spin=0, fdelay=0, eta=1, edly=0, tx=0, rm=2, N=3, rot=1, lan=1, qpos=3, wj=31, pat='x0x11x', cw=3, up=99, wo1=0, wj2=-1, wa=8, th1=8, th2=16, opos=3, pr=0, tlbs=0, tlbv=0, lean=1, xdirty=0, qwt=0, owt=0, xperm=0, b0late=0, ed=1, es=4, early=0, ldly=0, ssleep=8, ovl=1, pat2='', lup=99, wbl=0, wqr=0, er=1, dbg=0, amp='', ampf=10, only='', xst='', nos=0)
        d.update(kw)
        self.__dict__.update(d)
        self.L = []
        self.nt = " nt" if self.nt else ""
        self.pol = " " + self.pol
    def A(self, s): self.L.append("    " + s)
    def lab(self, s): self.L.append(s + ":")
    def nop(self, n):
        while n > 0:
            k = min(n, 16); self.A(f"s_nop {k-1}"); n -= k
    def xs(self, name):
        d = dict(a.split(":") for a in self.xst.split(",")) if self.xst else {}
        if name in d: self.A(f"s_memrealtime s[{64+2*int(d[name])}:{65+2*int(d[name])}]")
    def stamp(self, i):
        if self.only and i not in [0] + [int(a) for a in self.only.split(",")]: return
        if self.amp and i not in [0] + [int(a[1:]) for a in self.amp.split(',')]: return
        if self.padk == i: self.A("s_memrealtime s[92:93]")
        if self.stamps: self.A(f"s_memrealtime s[{64+2*i}:{65+2*i}]")
    def stamp_out(self, cls="C"):
        if not self.stamps: return
        A = self.A
        if self.amp:
            parts = self.amp.split(",")
            anyS = any(a[0].upper() == "S" for a in parts)
            A("s_load_dwordx2 s[62:63], s[0:1], 96")
            A("s_waitcnt lgkmcnt(0)")
            A("s_mov_b64 exec, 1"); A("v_mov_b32 v4, 0"); A("v_mov_b32 v3, 1")
            if cls == "C":
                A("s_not_b32 s60, s64"); A("v_mov_b32 v2, s60"); A("global_atomic_umax v4, v2, s[62:63]")
            for j, a in enumerate(parts):
                if a[0].upper() == cls:
                    A(f"v_mov_b32 v2, s{64+2*int(a[1:])}"); A(f"global_atomic_{'add' if a[0].islower() else 'umax'} v4, v2, s[62:63] offset:{64+4*j}"); A("s_nop 1")
            if cls == "C" or anyS:
                A("s_waitcnt vmcnt(0)"); A("global_atomic_add v4, v3, s[62:63] offset:128")
            if cls == "C":
                n = 1024 + (2048 if anyS else 0)
                A("s_or_b32 s60, s2, s33"); A("s_cmp_lg_u32 s60, 0"); A("s_cbranch_scc1 L_amp_x")
                A("s_mov_b32 s38, 100000")
                self.lab("L_amp_p")
                A("s_sleep 32"); A("global_load_dword v2, v4, s[62:63] offset:128 sc1"); A("s_waitcnt vmcnt(0)"); A("v_readfirstlane_b32 s60, v2")
                A("s_sub_u32 s38, s38, 1"); A("s_cbranch_scc1 L_amp_x")
                A(f"s_cmp_lt_u32 s60, {n}"); A("s_cbranch_scc1 L_amp_p")
                A("global_load_dword v2, v4, s[62:63] sc1"); A("global_load_dwordx2 v[6:7], v4, s[62:63] offset:64 sc1"); A("s_waitcnt vmcnt(0)")
                A("v_readfirstlane_b32 s60, v2"); A("v_readfirstlane_b32 s56, v6"); A("v_readfirstlane_b32 s57, v7"); A("s_not_b32 s60, s60")
                for j, a in enumerate(parts):
                    r = f"s{56+j}"
                    if a[0].islower():
                        sh = 11 if a[0] == "s" else 10
                        A(f"s_lshl_b32 s59, s60, {sh}"); A(f"s_sub_u32 {r}, {r}, s59"); A(f"s_mul_i32 {r}, {r}, {self.ampf}"); A(f"s_lshr_b32 {r}, {r}, {sh}")
                    else:
                        A(f"s_sub_u32 {r}, {r}, s60"); A(f"s_mul_i32 {r}, {r}, {self.ampf}")
                if len(parts) == 2: A("s_sub_u32 s56, s56, s57")
                A("s_add_u32 s61, s56, 15000"); A("s_min_u32 s61, s61, 100000")
                self.lab("L_amp_s")
                A("s_memrealtime s[58:59]"); A("s_waitcnt lgkmcnt(0)"); A("s_sub_u32 s58, s58, s60"); A("s_cmp_lt_u32 s58, s61"); A("s_cbranch_scc1 L_amp_s")
                self.lab("L_amp_x")
            return
        if self.dbg:
            A("s_load_dwordx2 s[62:63], s[0:1], 96")
            A("s_waitcnt lgkmcnt(0)")
            A("s_mov_b64 exec, 1"); A("v_mov_b32 v4, 0")
            A("s_not_b32 s60, s64"); A("v_mov_b32 v2, s60"); A("global_atomic_umax v4, v2, s[62:63]")
            m = {"C": {0: 15, 2: 2, 4: 3, 7: 10, 8: 11, 9: 12, 12: 13, 10: 14}, "S": {1: 1, 2: 4, 3: 5, 7: 6, 9: 7, 10: 8, 11: 9}}[cls]
            for k, d in m.items():
                A(f"v_mov_b32 v2, s{64+2*k}"); A(f"global_atomic_umax v4, v2, s[62:63] offset:{4*d}"); A("s_nop 1")
            if self.dbg == 2:
                m2 = {"C": {7: 16, 0: 17}, "S": {9: 18, 1: 19}}[cls]
                for k, d in m2.items():
                    A(f"v_mov_b32 v2, s{64+2*k}"); A(f"global_atomic_add v4, v2, s[62:63] offset:{4*d}"); A("s_nop 1")
            return
        A("s_waitcnt lgkmcnt(0)")
        A("s_mul_i32 s60, s2, 12"); A("s_add_u32 s60, s60, s33"); A(f"s_mul_i32 s60, s60, {NS*8}")
        A(f"s_add_u32 s60, s60, {STAMP_OFF}")
        A("s_add_u32 s62, s12, s60"); A("s_addc_u32 s63, s13, 0")
        A("s_mov_b64 exec, 1"); A("v_mov_b32 v4, 0")
        for i in range(NS):
            A(f"v_mov_b32 v2, s{64+2*i}"); A(f"v_mov_b32 v3, s{65+2*i}")
            A(f"global_store_dwordx2 v4, v[2:3], s[62:63] offset:{i*8}"); A("s_nop 1")
    def v4(self, r): return f"v[{r}:{r+3}]"
    def v2(self, r): return f"v[{r}:{r+1}]"
    def perms(self, dst, src, pairs=(0, 1, 2, 3)):
        for q in pairs:
            for w in range(4):
                for hh in range(2):
                    j = 2*w + hh
                    self.A(f"v_perm_b32 v{dst+4*j+q}, v{src+4*(2*q+1)+w}, v{src+4*(2*q)+w}, s{36+hh}")
    def allred_rows(self, op, v, t):
        A = self.A
        A(f"v_mov_b32 v{t}, v{v}"); self.nop(2)
        A(f"v_permlane32_swap_b32 v{v}, v{t}")
        A(f"{op} v{v}, v{v}, v{t}")
        A(f"v_mov_b32 v{t}, v{v}"); self.nop(2)
        A(f"v_permlane16_swap_b32 v{v}, v{t}")
        A(f"{op} v{v}, v{v}, v{t}")
    def masks(self, m, bank):
        for i in range(4):
            self.A(f"v_cmp_eq_u32 vcc, {i}, v{bank}"); self.A(f"v_cndmask_b32 v{m+i}, 0, -1, vcc")
    def dpp(self, op, d, a, b, ctl):
        self.A(f"{op}_dpp v{d}, v{a}, v{b} {ctl} row_mask:0xf bank_mask:0xf")
    def poll(self, name, loads, tagregs, acc, first_issued=False, sleep=0, tv=None):
        A = self.A
        A(f"s_mov_b32 s38, {self.spin}")
        if first_issued: A(f"s_branch L_chk_{name}")
        elif sleep: A(f"s_branch L_ld_{name}")
        self.lab(f"L_poll_{name}")
        if sleep: A(f"s_sleep {sleep}")
        self.lab(f"L_ld_{name}")
        for l in loads: A(l)
        self.lab(f"L_chk_{name}")
        A("s_waitcnt vmcnt(0)")
        if tv is None:
            A(f"v_xor_b32 v{acc}, s34, v{tagregs[0]}")
            for r in tagregs[1:]:
                A(f"v_bitop3_b32 v{acc}, v{r}, s34, v{acc} bitop3:0xbe")
        else: self.untag(tagregs[0], tv, acc)
        A("s_sub_u32 s38, s38, 1")
        A(f"v_cmp_ne_u32 vcc, 0, v{acc}")
        A("s_cselect_b64 s[50:51], 0, -1")
        if tv is not None: A("s_wqm_b64 vcc, vcc")
        A("s_and_b64 exec, vcc, s[50:51]")
        A(f"s_cbranch_scc1 L_poll_{name}")
        A("s_mov_b64 exec, -1")
    def untag(self, r0, tv, acc):
        A = self.A
        for r in range(r0, r0 + 8): A(f"v_xor_b32 v{r}, v{tv + (r & 1)}, v{r}")
        A(f"v_or3_b32 v{acc}, v{r0}, v{r0+1}, v{r0+2}"); A(f"v_or3_b32 v{acc+1}, v{r0+3}, v{r0+4}, v{r0+5}")
        A(f"v_or3_b32 v{acc}, v{acc}, v{r0+6}, v{r0+7}")
        A(f"v_bitop3_b32 v{acc}, v{acc}, v{acc+1}, s11 bitop3:0xa8")
    def ldsspin(self, name, off, target, reads, sleep=1):
        A = self.A
        A(f"s_mov_b32 s38, {self.spin * 16}")
        if sleep: A(f"s_branch L_spl_{name}")
        self.lab(f"L_sp_{name}")
        if sleep: A(f"s_sleep {sleep}")
        self.lab(f"L_spl_{name}")
        A(f"ds_read_b32 v2, {self.vz} offset:{L_F+off}")
        for r in reads: A(r)
        A("s_sub_u32 s38, s38, 1")
        A("s_cselect_b32 s3, 0, -1")
        A("s_waitcnt lgkmcnt(0)")
        A("v_readfirstlane_b32 s40, v2")
        A("s_orn2_b32 s40, s40, s3")
        A(f"s_cmp_lt_u32 s40, {target}")
        A(f"s_cbranch_scc1 L_sp_{name}")
    def cnt(self, off, one):
        A = self.A
        A("s_mov_b64 exec, 1")
        A(f"ds_add_u32 {self.vz}, {one} offset:{L_F+off}")
    def vissue(self, VB, p):
        for T in (2*p, 2*p+1):
            for e in range(4):
                self.A(f"buffer_load_dwordx4 {self.v4(VB+16*T+4*e)}, v5, s[8:11], s35 offen offset:{256*e}{self.nt}")
            if T < 3: self.A("s_add_u32 s35, s35, 16384")
    def mspin(self, name, B, d):
        A = self.A
        self.ldsspin(name, 8, 8, [f"ds_read_b128 {self.v4(B)}, v6 offset:{L_M}", f"ds_read_b128 {self.v4(B+4)}, v6 offset:{L_M+16}"], sleep=2)
        A(f"v_max3_f32 v{B}, v{B}, v{B+1}, v{B+2}")
        A(f"v_max3_f32 v{B+3}, v{B+3}, v{B+4}, v{B+5}")
        A(f"v_max3_f32 v{B}, v{B}, v{B+6}, v{B+7}")
        A(f"v_max_f32 v{d}, v{B}, v{B+3}")

    def gen(self):
        A = self.A; nt = self.nt; pol = self.pol; v4 = self.v4; v2 = self.v2
        OP = 0x100000 if self.ovl else 0x40000
        L = self.L
        L.append(HDR.rstrip("\n"))
        L.append(f"; @launch grid=(256,1,1) block=(768,1,1) lds={LDS_BYTES}")
        L.append('.amdgcn_target "amdgcn-amd-amdhsa--gfx950"')
        L.append(".text"); L.append(f".globl {KN}"); L.append(".p2align 12"); L.append(".p2align 8"); L.append(f".type {KN},@function"); L.append(f"{KN}:")
        self.stamp(0)
        if self.pad: A("s_memrealtime s[90:91]")
        if self.stamps:
            for i in range(1, NS): A(f"s_mov_b64 s[{64+2*i}:{65+2*i}], 0")
        if self.xperm == 1:
            A("s_lshr_b32 s3, s2, 3"); A("s_and_b32 s29, s2, 7"); A("s_lshl_b32 s29, s29, 5"); A("s_or_b32 s2, s3, s29")
        if self.xperm == 2:
            A("s_xor_b32 s3, s2, 1"); A("s_and_b32 s29, s2, 0xf8"); A("s_cmp_eq_u32 s29, 0x48"); A("s_cselect_b32 s2, s3, s2")
        A("s_bfe_u32 s29, s2, 0x10002")
        A("s_mul_i32 s3, s29, 40")
        A("s_cmp_ge_u32 s2, 256"); A("s_cbranch_scc1 L_end")
        A("s_load_dwordx2 s[16:17], s[0:1], s3 offset:24")
        A("s_load_dwordx2 s[24:25], s[0:1], 0")
        A("s_load_dwordx2 s[4:5], s[0:1], s3 offset:8")
        A("s_load_dwordx2 s[8:9], s[0:1], s3 offset:16")
        A("s_load_dwordx2 s[12:13], s[0:1], 104")
        A("v_lshrrev_b32 v1, 6, v0")
        A("s_lshr_b32 s30, s2, 3")
        if self.tx: A(f"s_xor_b32 s30, s30, {self.tx}")
        A("v_readfirstlane_b32 s33, v1")
        A("s_and_b32 s28, s2, 3"); A("s_lshl_b32 s28, s28, 1"); A("s_lshr_b32 s31, s30, 4"); A("s_or_b32 s28, s28, s31")
        A("s_bfe_u32 s31, s30, 0x20002"); A("s_and_b32 s32, s30, 3")
        A("v_and_b32 v0, 63, v0")
        A("v_and_b32 v3, 15, v0")
        A("v_lshrrev_b32 v4, 4, v0")
        A("v_bfe_u32 v5, v0, 2, 2")
        A("v_and_b32 v6, 3, v0")
        A("s_cmp_ge_u32 s33, 4"); A("s_cbranch_scc1 L_S")
        WB, PB, DB, XB, XM, CK = 8, 40, 72, 104, 80, 96
        A("s_setprio 3")
        if self.pf:
            A("s_getpc_b64 s[42:43]")
            if self.lean:
                A("s_mul_i32 s3, s33, 2176"); A("v_lshl_add_u32 v12, v0, 7, s3"); A("s_mov_b64 exec, 0x1ffff")
            else: A("v_lshlrev_b32 v12, 7, v0")
            A("v_min_u32 v12, L_last-L_pfbase, v12")
            self.lab("L_pfbase")
            A("global_load_dword v108, v12, s[42:43]")
            if self.lean: A("s_mov_b64 exec, -1"); A("s_mul_i32 s3, s29, 40")
        A("s_mov_b32 s18, 0x400000"); A("s_mov_b32 s19, 0x20000")
        A("s_mov_b32 s26, 4096"); A("s_mov_b32 s27, 0x20000")
        A("v_lshlrev_b32 v1, 16, v4"); A("v_lshl_add_u32 v1, v3, 4, v1")
        if self.wqr:
            A("v_lshl_add_u32 v1, v4, 13, v1")
            for e in range(1, self.cw): A(f"v_xor_b32 v{64+e}, {e << 13}, v1")
        def wql(e):
            if self.wqr:
                if e >= self.cw: A(f"v_xor_b32 v{64+e}, {e << 13}, v1")
                A(f"buffer_load_dwordx4 {v4(WB+4*e)}, v{64+e if e else 1}, s[16:19], s35 offen{nt}")
            else:
                A(f"buffer_load_dwordx4 {v4(WB+4*e)}, v1, s[16:19], s35 offen{nt}")
                if e < 7: A("s_add_u32 s35, s35, 8192")
        A("v_lshlrev_b32 v2, 10, v5"); A("v_lshl_add_u32 v2, v4, 4, v2"); A("v_lshl_add_u32 v2, v6, 2, v2")
        A("s_lshl_b32 s44, s28, 2"); A("s_add_u32 s44, s44, s31")
        A("s_lshl_b32 s39, s32, 2"); A("s_add_u32 s39, s39, s33")
        A("s_lshl_b32 s35, s39, 18"); A("s_lshl_b32 s45, s44, 8"); A("s_add_u32 s35, s35, s45")
        A("s_lshl_b32 s39, s39, 6")
        A("s_waitcnt lgkmcnt(0)")
        self.stamp(1)
        A(f"buffer_load_dword v{XB}, v2, s[24:27], s39 offen")
        for e in range(self.cw): wql(e)
        A("v_mov_b32 v112, 0"); A("v_mov_b32 v113, 0"); A("v_mov_b32 v114, 0"); A("v_mov_b32 v115, 0")
        A(f"ds_write_b128 v112, v[112:115] offset:{L_F}")
        A(f"ds_write_b128 v112, v[112:115] offset:{L_F+16}")
        A("s_waitcnt lgkmcnt(0)")
        A("s_barrier")
        A("s_branch L_C")
        self.lab("L_S")
        KB, VB, QB, SB = 8, 72, 136, 152
        self.vz = "v7"
        esh = 10 if self.lan else 8
        A("s_setprio 1")
        A("s_mov_b32 s6, 0x4000000"); A("s_mov_b32 s7, 0x20000")
        A("s_mov_b32 s10, 0x4000000"); A("s_mov_b32 s11, 0x20000")
        A("s_lshl_b32 s35, s31, 3"); A("s_add_u32 s35, s35, s28"); A("s_lshl_b32 s35, s35, 4"); A("s_add_u32 s35, s35, s32")
        A("s_lshl_b32 s35, s35, 5"); A("s_add_u32 s35, s35, s33")
        A("s_lshl_b32 s35, s35, 12"); A(f"s_add_u32 s35, s35, {0x180000 - 4*4096}")
        if self.rot & 1: A(f"s_lshl_b32 s3, s32, {esh}"); A("s_add_u32 s35, s35, s3")
        if self.rot & 2: A("s_and_b32 s3, s2, 7"); A("s_lshl_b32 s3, s3, 12"); A("s_xor_b32 s35, s35, s3")
        A(f"v_lshlrev_b32 v1, {18-esh}, v5"); A("v_lshl_add_u32 v1, v4, 6, v1"); A("v_lshl_add_u32 v1, v6, 4, v1")
        A(f"v_mul_u32_u24 v2, {QH}, v6"); A("v_lshl_add_u32 v2, v4, 6, v2"); A(f"v_lshl_add_u32 v{QB+12}, v5, 4, v2")
        A("v_lshlrev_b32 v5, 4, v3"); A(f"v_lshl_add_u32 v5, v4, {18-esh}, v5")
        if self.pr == 1:
            A("s_cmp_lt_u32 s33, 8"); A("s_cbranch_scc1 L_pr1"); A("s_setprio 2"); self.lab("L_pr1")
        if not self.b0late: A("s_barrier")
        A("s_waitcnt lgkmcnt(0)")
        self.stamp(1)
        st = dict(i=0)
        def trig(i):
            if i in (self.wj, self.wj2):
                self.cnt(24, f"v{QB+15}"); A("s_mov_b64 exec, -1")
        def nxt(k=1):
            for _ in range(k):
                i = st["i"]; st["i"] += 1
                n = self.N + (1 if i >= self.up else 0)
                wt = lambda p: (None if p[i] == "x" else int(p[i])) if i < len(p) else (n - 1 if i >= n else None)
                w1 = wt(self.pat); w2 = wt(self.pat2) if self.pat2 else w1
                if i == self.lup: w2 = n
                if w1 == w2:
                    if w1 is not None: A(f"s_waitcnt vmcnt({w1})")
                else:
                    A("s_cmp_ge_u32 s33, 8"); A(f"s_cbranch_scc1 L_p{i}")
                    if w1 is not None: A(f"s_waitcnt vmcnt({w1})")
                    if w2 is not None and (w1 is None or w2 < w1):
                        A(f"s_branch L_q{i}"); self.lab(f"L_p{i}"); A(f"s_waitcnt vmcnt({w2})"); self.lab(f"L_q{i}")
                    else:
                        self.lab(f"L_p{i}")
                        if w2 is not None: A(f"s_waitcnt vmcnt({w2})")
                if self.pr == 2: A(f"s_setprio {2 - i % 3}")
                if self.pr == 3: A(f"s_setprio {1 - i % 2}")
                T, e = (i >> 2) & 3, i & 3
                so = "s35"
                if T or e: A(f"s_xor_b32 s39, s35, {T*32768 + (e << esh)}"); so = "s39"
                if i < 16: A(f"buffer_load_dwordx4 {v4(KB+4*i)}, v1, s[4:7], {so} offen{nt}")
                else: A(f"buffer_load_dwordx4 {v4(VB+4*(i-16))}, v5, s[8:11], {so} offen{nt}")
                trig(i)
                if self.xdirty and i == 8:
                    A("s_mov_b32 s14, 0x4000000")
                    A("s_lshl_b32 s46, s2, 3"); A("s_add_u32 s46, s46, s33"); A(f"s_mul_i32 s46, s46, {self.xdirty*1024}"); A("s_add_u32 s46, s46, 0x800000")
                    A(f"v_lshlrev_b32 v{SB}, 4, v0")
                    for k in range(self.xdirty): A(f"buffer_store_dwordx4 v[0:3], v{SB}, s[12:15], s46 offen offset:{1024*k}")
        def upto(j):
            while st["i"] <= j: nxt()
        nxt(len(self.pat) - len(self.pat.lstrip("x")) if self.pat else self.N)
        A("s_load_dword s34, s[12:13], 0")
        A(f"s_mov_b32 s14, {WS_BYTES}"); A("s_mov_b32 s15, 0x20000")
        A("s_mov_b32 s36, 0x05040100"); A("s_mov_b32 s37, 0x07060302")
        A("v_mov_b32 v7, 0")
        A(f"v_mov_b32 v{QB+15}, 1")
        A("v_lshlrev_b32 v6, 5, v6"); A("s_lshl_b32 s3, s33, 2"); A("s_sub_u32 s3, s3, 16"); A("v_add_u32 v3, s3, v6")
        A(f"v_and_b32 v{QB+13}, 3, v0"); A(f"v_mul_u32_u24 v{QB+13}, {OH}, v{QB+13}"); A(f"v_lshl_add_u32 v{QB+13}, v4, 7, v{QB+13}")
        A(f"v_bfe_u32 v{QB+14}, v0, 2, 2"); A(f"v_lshl_add_u32 v{QB+13}, v{QB+14}, 4, v{QB+13}")
        A(f"s_mul_i32 s3, s33, {OW}"); A(f"s_add_u32 s3, s3, {L_O - 4*OW}"); A(f"v_add_u32 v{QB+13}, s3, v{QB+13}")
        if self.b0late: A("s_barrier")
        upto(15)
        self.stamp(2)
        upto(15 + self.qpos)
        A(f"s_waitcnt vmcnt({self.qpos})")
        self.stamp(3)
        self.ldsspin("q", 4, 4, [f"ds_read_b128 {v4(QB)}, v{QB+12} offset:{L_Q}"], sleep=4)
        self.stamp(4)
        Dj = lambda j: (QB + 4 + 4*j) if j < 2 else (KB + 4*(j-2))
        for j in range(16):
            A(f"v_mfma_f32_16x16x32_bf16 {v4(Dj(j))}, {v4(KB+4*j)}, {v4(QB)}, 0")
        A(f"s_mov_b32 s40, {SCALE}"); A(f"s_mov_b32 s41, {LOG2E}")
        A("s_mul_i32 s34, s34, 1664525"); A("s_add_u32 s34, s34, 1013904223")
        nxt()
        for j in range(16): self.dpp("v_add_f32", SB+j, Dj(j)+1, Dj(j), "row_ror:12")
        for j in range(16): self.dpp("v_add_f32", SB+j, Dj(j)+2, SB+j, "row_ror:8")
        for j in range(16): self.dpp("v_add_f32", SB+j, Dj(j)+3, SB+j, "row_ror:4")
        for i in range(8):
            A(f"v_cvt_pk_bf16_f32 v{QB+i}, v{SB+2*i}, v{SB+2*i+1}")
        for i in range(8):
            A(f"v_lshlrev_b32 v{SB+2*i}, 16, v{QB+i}"); A(f"v_and_b32 v{SB+2*i+1}, 0xffff0000, v{QB+i}")
        nxt()
        for i in range(8):
            A(f"v_pk_mul_f32 {v2(SB+2*i)}, {v2(SB+2*i)}, s[40:41] op_sel_hi:[1,0]")
        for i in range(8):
            A(f"v_cvt_pk_bf16_f32 v{QB+i}, v{SB+2*i}, v{SB+2*i+1}")
        for i in range(8):
            A(f"v_lshlrev_b32 v{SB+2*i}, 16, v{QB+i}"); A(f"v_and_b32 v{SB+2*i+1}, 0xffff0000, v{QB+i}")
        A(f"v_max3_f32 v1, v{SB}, v{SB+1}, v{SB+2}")
        A(f"v_max3_f32 v2, v{SB+3}, v{SB+4}, v{SB+5}")
        A(f"v_max3_f32 v1, v1, v{SB+6}, v{SB+7}")
        A(f"v_max3_f32 v2, v2, v{SB+8}, v{SB+9}")
        A(f"v_max3_f32 v1, v1, v{SB+10}, v{SB+11}")
        A(f"v_max3_f32 v2, v2, v{SB+12}, v{SB+13}")
        A(f"v_max3_f32 v1, v1, v{SB+14}, v{SB+15}")
        A("v_max_f32 v1, v1, v2")
        self.allred_rows("v_max_f32", 1, 2)
        A("v_mul_f32 v1, s41, v1")
        A("s_mov_b64 exec, 15")
        A(f"ds_write_b32 v3, v1 offset:{L_M}")
        self.cnt(8, f"v{QB+15}")
        A("s_mov_b64 exec, -1")
        self.stamp(5)
        nxt()
        self.stamp(6)
        self.mspin("m", QB, 1)
        for i in range(16):
            A(f"v_fma_f32 v{SB+i}, v{SB+i}, s41, -v1")
        for i in range(16):
            A(f"v_exp_f32 v{SB+i}, v{SB+i}")
        nxt()
        for i in range(8):
            A(f"v_cvt_pk_bf16_f32 v{QB+i}, v{SB+2*i}, v{SB+2*i+1}")
        for i in range(4):
            A(f"v_pk_add_f32 {v2(SB+2*i)}, {v2(SB+2*i)}, {v2(SB+8+2*i)}")
        for i in range(2):
            A(f"v_pk_add_f32 {v2(SB+2*i)}, {v2(SB+2*i)}, {v2(SB+4+2*i)}")
        A(f"v_pk_add_f32 {v2(SB)}, {v2(SB)}, {v2(SB+2)}")
        A(f"v_add_f32 v{SB+8}, v{SB}, v{SB+1}")
        self.allred_rows("v_add_f32", SB+8, SB)
        OB, P0, P1 = 8, 40, 72
        A("s_mov_b64 exec, 15")
        A(f"ds_write_b32 v3, v{SB+8} offset:{L_L}")
        self.cnt(20, f"v{QB+15}")
        A("s_mov_b64 exec, -1")
        self.stamp(7)
        def need(j):
            upto(min(31, j + self.N + (1 if j + self.N + 1 >= self.up else 0)))
            A(f"s_waitcnt vmcnt({st['i'] - 1 - j})")
        BM0, BM1, MK = 16, 40, 32
        def spread(dst, src):
            for i in range(4):
                for q in range(4):
                    if i == 0: A(f"v_and_b32 v{dst+q}, v{src+q}, v{MK}")
                    else: self.dpp("v_and_b32", dst+4*i+q, src+q, MK+i, f"row_ror:{4*i}")
        JO = (0, 4, 1, 5, 2, 6, 3, 7)
        self.masks(MK, QB+14)
        if st["i"] < 24: nxt()
        spread(BM0, QB)
        need(23)
        self.perms(P0, VB, pairs=(0, 1))
        if st["i"] < 32: nxt()
        self.perms(P0, VB, pairs=(2, 3))
        for j in JO:
            A(f"v_mfma_f32_16x16x32_bf16 {v4(OB+4*(j>>2))}, {v4(P0+4*j)}, {v4(BM0+4*(j&3))}, {v4(OB+4*(j>>2)) if j & 3 else 0}")
        self.stamp(8)
        need(25)
        self.perms(P1, VB+32, pairs=(0,))
        spread(BM1, QB+4)
        A("s_cmp_ge_u32 s33, 8"); A("s_cbranch_scc1 L_S_nr")
        A(f"s_mul_i32 s3, s33, {OH}"); A(f"s_add_u32 s3, s3, {L_O - 4*OH}")
        A(f"v_lshl_add_u32 v{SB+9}, v0, 3, s3")
        A("s_lshl_b32 s3, s33, 5"); A("s_sub_u32 s3, s3, 128"); A(f"v_mov_b32 v{SB+10}, s3")
        A("s_lshl_b32 s3, s29, 3"); A("s_add_u32 s3, s3, s28"); A("s_lshl_b32 s3, s3, 2"); A("s_add_u32 s3, s3, s33"); A("s_sub_u32 s3, s3, 4")
        A("s_lshl_b32 s3, s3, 2"); A("s_add_u32 s3, s3, s32"); A("s_lshl_b32 s3, s3, 2"); A("s_add_u32 s3, s3, s31")
        A("s_lshl_b32 s46, s3, 9"); A(f"s_add_u32 s46, s46, {OP}")
        A(f"v_lshlrev_b32 v{SB+11}, 3, v0")
        A(f"v_mov_b32 v{SB+13}, s34")
        self.ldsspin("l", 20, 8, [f"ds_read_b128 {v4(SB)}, v{SB+10} offset:{L_L}", f"ds_read_b128 {v4(SB+4)}, v{SB+10} offset:{L_L+16}",
                                  f"ds_read_b32 v1, v7 offset:{L_F+12}"], sleep=2)
        A("v_readfirstlane_b32 s45, v1")
        A(f"v_pk_add_f32 {v2(SB)}, {v2(SB)}, {v2(SB+4)}"); A(f"v_pk_add_f32 {v2(SB+2)}, {v2(SB+2)}, {v2(SB+6)}")
        A(f"v_pk_add_f32 {v2(SB)}, {v2(SB)}, {v2(SB+2)}")
        A(f"v_add_f32 v{SB+14}, v{SB}, v{SB+1}")
        A(f"v_rcp_f32 v{SB+14}, v{SB+14}")
        self.lab("L_S_nr")
        for q in range(1, 4):
            if q == 3 and 33 in (self.wj, self.wj2):
                need(30); trig(33)
            need(25 + 2*q)
            if q == 2: trig(32)
            if q == 2: A("s_setprio 3")
            if q == 3: trig(34); self.stamp(9)
            else: self.perms(P1, VB+32, pairs=(q,))
        for k in range(11):
            if k < 8:
                j = JO[k]; A(f"v_perm_b32 v{P1+4*j+3}, v{VB+32+28+(j>>1)}, v{VB+32+24+(j>>1)}, s{36+(j&1)}")
            if k >= 2 and k < 10:
                j = JO[k-2]; A(f"v_mfma_f32_16x16x32_bf16 {v4(OB+4*(j>>2))}, {v4(P1+4*j)}, {v4(BM1+4*(j&3))}, {v4(OB+4*(j>>2))}")
        self.xs("sm")
        A("s_cmp_ge_u32 s33, 8")
        self.nop(7)
        A(f"ds_write_b128 v{QB+13}, {v4(OB)}")
        A(f"ds_write_b128 v{QB+13}, {v4(OB+4)} offset:64")
        self.xs("sw")
        A("s_waitcnt lgkmcnt(0)")
        self.xs("sd")
        A("s_barrier")
        self.stamp(10)
        A("s_cbranch_scc1 L_S_x")
        for w in range(8): A(f"ds_read_b64 {v2(8+2*w)}, v{SB+9} offset:{OW*w}")
        A("s_cmp_lg_u32 s45, 0")
        A("s_waitcnt lgkmcnt(4)")
        A("v_pk_add_f32 v[8:9], v[8:9], v[10:11]"); A("v_pk_add_f32 v[12:13], v[12:13], v[14:15]")
        A("s_waitcnt lgkmcnt(2)")
        A("v_pk_add_f32 v[16:17], v[16:17], v[18:19]"); A("v_pk_add_f32 v[8:9], v[8:9], v[12:13]")
        A("s_waitcnt lgkmcnt(0)")
        self.xs("sr")
        A("v_pk_add_f32 v[20:21], v[20:21], v[22:23]"); A("v_pk_add_f32 v[8:9], v[8:9], v[16:17]")
        A("v_pk_add_f32 v[8:9], v[8:9], v[20:21]")
        A(f"v_pk_mul_f32 v[8:9], v[8:9], {v2(SB+14)} op_sel_hi:[1,0]")
        A(f"v_cvt_pk_bf16_f32 v{SB+12}, v8, v9")
        A("s_cbranch_scc1 L_S_y2")
        A(f"buffer_store_dwordx2 {v2(SB+12)}, v{SB+11}, s[12:15], s46 offen" + ["", " sc1", " nt", " sc0 sc1"][self.owt])
        self.lab("L_S_x")
        self.stamp(11)
        if self.stamps and not self.nos:
            A("s_sleep 127"); A("s_sleep 127")
            self.stamp_out("S")
        A("s_endpgm")
        self.lab("L_C")
        self.vz = "v110"
        A("s_load_dword s34, s[12:13], 0")
        A("s_load_dwordx2 s[20:21], s[0:1], s3 offset:32")
        A("s_load_dwordx2 s[52:53], s[0:1], 80")
        A("s_load_dwordx2 s[56:57], s[0:1], 88")
        A(f"s_mov_b32 s14, {WS_BYTES}"); A("s_mov_b32 s15, 0x20000")
        A("s_mov_b32 s22, 0x400000"); A("s_mov_b32 s23, 0x20000")
        A("s_mov_b32 s36, 0x05040100"); A("s_mov_b32 s37, 0x07060302")
        A("s_mov_b32 s54, 1024"); A("s_mov_b32 s55, 0x20000")
        A("s_mov_b32 s58, 4096"); A("s_mov_b32 s59, 0x20000")
        A("s_lshl_b32 s45, s29, 1"); A("s_lshr_b32 s3, s28, 2"); A("s_add_u32 s45, s45, s3")
        A("v_lshlrev_b32 v109, 4, v0")
        A("s_lshl_b32 s3, s29, 5"); A("s_add_u32 s47, s44, s3")
        A("v_mov_b32 v110, 0"); A("v_mov_b32 v111, 1"); A("v_mov_b32 v133, 1024")
        A("v_lshlrev_b32 v127, 3, v0")
        A(f"v_mul_u32_u24 v122, {RU}, v4")
        A(f"v_mul_u32_u24 v7, {RB}, v5"); A("v_add_u32 v7, v7, v122"); A("v_lshl_add_u32 v7, v6, 4, v7")
        A(f"s_mul_i32 s3, s33, {RW}"); A(f"s_add_u32 s3, s3, {L_R}"); A("v_add_u32 v7, s3, v7")
        A("v_lshl_add_u32 v122, v6, 5, v122"); A("v_lshl_add_u32 v122, v5, 2, v122")
        A(f"s_mul_i32 s3, s33, {RB}"); A(f"s_add_u32 s3, s3, {L_R}"); A("v_add_u32 v122, s3, v122")
        A(f"v_add_u32 v123, {RW}, v122"); A(f"v_add_u32 v124, {2*RW}, v122"); A(f"v_add_u32 v125, {3*RW}, v122")
        self.masks(CK, 6)
        A("s_lshl_b32 s46, s47, 2"); A("s_add_u32 s46, s46, s32"); A("s_lshl_b32 s46, s46, 2"); A("s_add_u32 s46, s46, s33")
        A("s_lshl_b32 s46, s46, 9"); A(f"s_add_u32 s46, s46, {QP}")
        A("s_lshl_b32 s4, s29, 3"); A("s_add_u32 s4, s4, s28"); A("s_lshl_b32 s4, s4, 2"); A("s_add_u32 s4, s4, s33")
        A("s_lshl_b32 s4, s4, 2"); A("s_add_u32 s4, s4, s31"); A("s_lshl_b32 s4, s4, 2"); A("s_add_u32 s4, s4, s32")
        A("s_lshl_b32 s4, s4, 3"); A(f"s_add_u32 s4, s4, {SP}")
        if self.rm >= 0:
            A("s_sub_u32 s3, s32, s31"); A("s_add_u32 s44, s44, s3"); A("s_add_u32 s47, s47, s3")
            A(f"s_add_u32 s32, s31, {self.rm}"); A("s_and_b32 s32, s32, 3")
        A("s_mov_b32 s41, 0")
        A("s_getreg_b32 s30, hwreg(HW_REG_XCC_ID, 0, 4)")
        if self.forcey: A("s_lshr_b32 s30, s2, 3"); A("s_and_b32 s30, s30, 1")
        A("s_lshl_b32 s3, s45, 10")
        A("s_waitcnt lgkmcnt(0)")
        if self.lean: A("s_cmp_eq_u32 s33, 0"); A("s_cselect_b64 exec, -1, 1")
        A("buffer_load_dwordx4 v[112:115], v109, s[24:27], s3 offen")
        A("buffer_load_dwordx4 v[116:119], v109, s[52:55], 0 offen")
        if self.lean: A("s_mov_b64 exec, -1")
        for e in range(self.cw, 8):
            A(f"s_waitcnt vmcnt({self.cw-1 + (2 if e < 2*self.cw else 0)})")
            wql(e)
        if self.wqr:
            A("s_mov_b32 s3, 0x02020202"); A("v_mul_lo_u32 v140, v4, s3"); A("v_xor_b32 v140, 0x03020100, v140")
            for q in range(4): A(f"v_perm_b32 v{XB+q}, v{136 + (q ^ 1)}, v{136 + q}, v140")
        A("s_mul_i32 s34, s34, 1664525"); A("s_add_u32 s34, s34, 1013904223")
        A("v_mov_b32 v129, s34")
        A("s_and_b32 s3, s34, -16"); A("s_or_b32 s30, s30, s3")
        A("v_and_b32 v160, 1, v0"); A("v_lshlrev_b32 v160, 4, v160")
        A("v_lshrrev_b32 v166, v160, s30"); A("v_lshrrev_b32 v160, v160, s34")
        A("v_bfe_u32 v167, v166, 8, 8"); A("v_bfe_u32 v161, v160, 8, 8")
        A("v_and_b32 v166, 0xff, v166"); A("v_and_b32 v160, 0xff, v160")
        A("s_movk_i32 s11, 0xff"); A("s_and_b32 s30, s30, 0xffff"); A("s_mov_b32 s10, 0x0c0c0400")
        SG = 136
        CF = 144
        OG = 152
        ol = [f"buffer_load_dwordx2 {v2(OG+2*s)}, v1, s[12:15], s{39 if s < 2 else 48} offen offset:{2048*(s&1)}{pol}" for s in range(4)]
        stl = [f"buffer_load_dwordx4 {v4(SG+4*s)}, v57, s[12:15], s35 offen offset:{16*s}{pol}" for s in range(2)]
        self.lab("L_tile")
        for q in range(3):
            A(f"s_waitcnt vmcnt({6-2*q})")
            self.perms(PB, WB, pairs=(q,))
        A("s_cmp_eq_u32 s41, 0"); A("s_cbranch_scc0 L_t1")
        A("s_waitcnt vmcnt(0)")
        self.perms(PB, WB, pairs=(3,))
        self.stamp(2); A("s_branch L_mm")
        self.lab("L_t1")
        for l in ol: A(l)
        A(f"s_mov_b32 s38, {self.spin}")
        A("s_waitcnt vmcnt(4)")
        self.perms(PB, WB, pairs=(3,))
        self.stamp(7)
        A("s_branch L_og")
        self.lab("L_ogr")
        self.xs("or")
        if self.osleep: A(f"s_sleep {self.osleep}")
        for l in ol: A(l)
        self.lab("L_og")
        A("s_waitcnt vmcnt(0)")
        self.xs("ow")
        A(f"v_xor_b32 v20, s34, v{OG+1}")
        for s in range(1, 4): A(f"v_bitop3_b32 v20, v{OG+1+2*s}, s34, v20 bitop3:0xbe")
        A("s_sub_u32 s38, s38, 1")
        A("v_cmp_ne_u32 vcc, 0, v20")
        A("s_cbranch_scc1 L_ogd")
        A("s_cbranch_vccnz L_ogr")
        self.lab("L_ogd")
        if "oc" in self.xst: A(f"s_sub_u32 s80, {self.spin}, s38"); A("s_mov_b32 s81, 0")
        A("s_mov_b64 exec, s[6:7]")
        A(f"buffer_store_dword v129, v135, s[12:15], 0 offen{pol}")
        A("s_mov_b64 exec, -1")
        for s in (0, 2, 1, 3):
            A(f"v_lshlrev_b32 v{24+2*s}, 16, v{OG+2*s}"); A(f"v_and_b32 v{25+2*s}, 0xffff0000, v{OG+2*s}")
        self.stamp(8)
        A(f"v_pk_mul_f32 v[24:25], v[24:25], {v2(CF)} op_sel_hi:[1,0]")
        A(f"v_pk_mul_f32 v[28:29], v[28:29], {v2(CF+4)} op_sel_hi:[1,0]")
        A(f"v_pk_fma_f32 v[24:25], v[26:27], {v2(CF+2)}, v[24:25] op_sel_hi:[1,0,1]")
        A(f"v_pk_fma_f32 v[28:29], v[30:31], {v2(CF+6)}, v[28:29] op_sel_hi:[1,0,1]")
        A(f"v_pk_add_f32 v[24:25], v[24:25], v[28:29]")
        A(f"v_cvt_pk_bf16_f32 v{XB}, v24, v25"); self.nop(2)
        self.lab("L_mm")
        self.xs("mm")
        sp = [(i, q) for i in range(4) for q in range(4)]
        def spr(n):
            for _ in range(n):
                if sp:
                    i, q = sp.pop(0); self.dpp("v_and_b32", XM+4*i+q, XB, CK+i, f"quad_perm:[{q},{q},{q},{q}]")
        spr(6)
        for j in (0, 4, 1, 5, 2, 6, 3, 7):
            A(f"v_mfma_f32_16x16x32_bf16 {v4(DB+4*(j>>2))}, {v4(PB+4*j)}, {v4(XM+4*(j&3))}, {v4(DB+4*(j>>2)) if j & 3 else 0}")
            spr(2)
        self.xs("mf")
        A("s_cmp_eq_u32 s41, 0")
        self.nop(7)
        A(f"ds_write_b128 v7, {v4(DB)}")
        A(f"ds_write_b128 v7, {v4(DB+4)} offset:64")
        A("s_cbranch_scc0 L_fin")
        self.cnt(0, "v111")
        A("s_mov_b64 exec, -1")
        rd = [f"ds_read2_b32 {v2(12+2*i)}, v{122+i} offset0:0 offset1:4" for i in range(4)]
        self.ldsspin("c", 0, 4, rd, sleep=0)
        A("v_pk_add_f32 v[12:13], v[12:13], v[14:15]"); A("v_pk_add_f32 v[16:17], v[16:17], v[18:19]")
        A("v_pk_add_f32 v[12:13], v[12:13], v[16:17]")
        A("v_bfi_b32 v164, s11, v166, v12"); A("v_bfi_b32 v165, s11, v167, v13")
        A("buffer_store_dwordx2 v[164:165], v127, s[12:15], s46 offen" + ["", " sc1", " nt", " sc0 sc1"][self.qwt])
        self.stamp(3)
        if self.pretouch:
            A("s_lshl_b32 s3, s32, 2"); A("s_add_u32 s3, s3, s33"); A("s_lshl_b32 s3, s3, 9")
            A("s_lshl_b32 s40, s47, 13"); A("s_add_u32 s3, s3, s40"); A(f"s_add_u32 s3, s3, {OP}")
            A("s_or_b32 s40, s32, s33"); A("s_cbranch_scc1 L_pt")
            A("s_lshl_b32 s40, s47, 7"); A(f"s_add_u32 s40, s40, {SP}")
            A("s_load_dword s49, s[12:13], s40")
            self.lab("L_pt")
            for i in range(4): A(f"s_load_dword s49, s[12:13], s3 offset:{128*i}")
        for i in range(4):
            A(f"v_lshlrev_b32 v{24+2*i}, 16, v{112+i}"); A(f"v_and_b32 v{25+2*i}, 0xffff0000, v{112+i}")
            A(f"v_lshlrev_b32 v{32+2*i}, 16, v{116+i}"); A(f"v_and_b32 v{33+2*i}, 0xffff0000, v{116+i}")
        for i in range(4):
            A(f"v_pk_mul_f32 {v2(24+2*i)}, {v2(24+2*i)}, {v2(32+2*i)}")
        for i in range(4):
            A(f"v_cvt_pk_bf16_f32 v{32+i}, v{24+2*i}, v{25+2*i}")
        for i in range(4):
            A(f"v_lshlrev_b32 v{24+2*i}, 16, v{32+i}"); A(f"v_and_b32 v{25+2*i}, 0xffff0000, v{32+i}")
        A("v_pk_add_f32 v[24:25], v[24:25], v[28:29]"); A("v_pk_add_f32 v[26:27], v[26:27], v[30:31]")
        A("v_pk_add_f32 v[24:25], v[24:25], v[26:27]"); A("v_add_f32 v8, v24, v25")
        for ror in (8, 4, 2, 1):
            self.nop(2); self.dpp("v_add_f32", 8, 8, 8, f"row_ror:{ror}")
        self.allred_rows("v_add_f32", 8, 9)
        A("v_cvt_pk_bf16_f32 v8, v8, v8"); A("v_lshlrev_b32 v8, 16, v8")
        A(f"v_mul_f32 v8, {0xbfb8aa3b}, v8"); A("v_exp_f32 v8, v8"); self.nop(1)
        A("v_add_f32 v8, 1.0, v8"); A("v_rcp_f32 v8, v8"); self.nop(1)
        A("v_cvt_pk_bf16_f32 v8, v8, v8"); A("v_lshlrev_b32 v8, 16, v8")
        A("v_sub_f32 v9, 1.0, v8"); A("v_cvt_pk_bf16_f32 v9, v9, v9"); A("v_lshlrev_b32 v9, 16, v9")
        A("v_cmp_gt_u32 vcc, 32, v0")
        A("s_lshl_b32 s39, s29, 3"); A("s_add_u32 s39, s39, s28"); A("s_lshl_b32 s39, s39, 2"); A("s_add_u32 s39, s39, s33")
        A("v_cndmask_b32 v120, v9, v8, vcc")
        A("s_lshl_b32 s39, s39, 4"); A("s_add_u32 s39, s39, s31"); A("s_lshl_b32 s39, s39, 9"); A(f"s_add_u32 s39, s39, {QP}")
        A("s_add_u32 s60, s39, 4096")
        A("s_mov_b32 s63, 0")
        A("v_mov_b32 v18, 0")
        A("v_lshlrev_b32 v19, 11, v6")
        A(f"s_mov_b32 s38, {self.n0}"); A(f"s_mov_b32 s62, {self.spin}")
        self.stamp(13)
        D = self.qdepth
        ld = lambda i: A(f"buffer_load_dwordx2 {v2(40+2*i)}, v19, s[12:15], s39 offen{pol}")
        qg = lambda vo: [f"buffer_load_dwordx2 {v2(24+2*i)}, {vo}, s[12:15], s{39 if i < 2 else 60} offen offset:{2048*(i&1)}{pol}" for i in range(4)]
        for i in range(D - 1):
            ld(i); A(f"s_sleep {self.qsleep}")
        self.lab("L_qf")
        for i in range(D):
            ld((i + D - 1) % D)
            A(f"s_waitcnt vmcnt({D-1})")
            A(f"v_perm_b32 v20, v{41+2*i}, v{40+2*i}, s10")
            A("v_cmp_ne_u32 vcc, s30, v20")
            A("s_cmp_eq_u64 vcc, 0"); A("s_cbranch_scc1 L_qfd")
        self.lab("L_qfr")
        A("s_sub_u32 s38, s38, 1")
        A("s_cbranch_scc0 L_qf")
        A("s_branch L_slow")
        self.lab("L_qfd")
        self.stamp(14)
        for l in qg("v127"): A(l)
        A(f"s_mul_i32 s3, s33, {QH}"); A("v_lshl_add_u32 v16, v0, 2, s3")
        A("v_lshlrev_b32 v1, 11, v4"); A("v_lshl_add_u32 v1, v3, 4, v1")
        A("s_lshl_b32 s48, s44, 17"); A("s_lshl_b32 s3, s33, 15"); A("s_add_u32 s48, s48, s3")
        A("s_lshl_b32 s3, s32, 8"); A("s_add_u32 s48, s48, s3")
        A("s_waitcnt vmcnt(0) lgkmcnt(0)")
        self.untag(24, 166, 8)
        A("v_cmp_ne_u32 vcc, 0, v8"); A("s_cmp_eq_u64 vcc, 0"); A("s_cbranch_scc0 L_qfr")
        self.lab("L_qok")
        A("v_pk_add_f32 v[24:25], v[24:25], v[26:27]"); A("v_pk_add_f32 v[28:29], v[28:29], v[30:31]")
        A("v_pk_add_f32 v[24:25], v[24:25], v[28:29]")
        A("v_cvt_pk_bf16_f32 v17, v24, v25")
        A(f"ds_write_b32 v16, v17 offset:{L_Q}")
        self.cnt(12, "v18")
        A(f"ds_add_u32 v110, v111 offset:{L_F+4}")
        A("s_mov_b64 exec, -1")
        self.stamp(4)
        self.lab("L_vd")
        A(f"ds_read_b32 v2, v110 offset:{L_F+4}")
        A(f"ds_read2_b32 v[134:135], v133 offset0:{(L_F+12)//4 - 256} offset1:{(L_F+16)//4 - 256}")
        A("s_waitcnt lgkmcnt(0)")
        A("v_readfirstlane_b32 s40, v2"); A("v_readfirstlane_b32 s3, v135"); A("v_readfirstlane_b32 s49, v134")
        A("s_andn2_b32 s3, s3, s63"); A("s_cbranch_scc1 L_puby2")
        A("s_cmp_ge_u32 s40, 4"); A("s_cbranch_scc1 L_vdd")
        A("s_sleep 2"); A("s_sub_u32 s62, s62, 1"); A("s_cbranch_scc0 L_vd")
        self.lab("L_vdd")
        A("s_lshl_b32 s3, s33, 5"); A("v_mov_b32 v56, s3")
        self.ldsspin("l2", 20, 8, [f"ds_read_b128 v[40:43], v56 offset:{L_M}", f"ds_read_b128 v[44:47], v56 offset:{L_M+16}",
                                   f"ds_read_b128 v[48:51], v56 offset:{L_L}", f"ds_read_b128 v[52:55], v56 offset:{L_L+16}"], sleep=4)
        A("v_max3_f32 v40, v40, v41, v42"); A("v_max3_f32 v43, v43, v44, v45"); A("v_max3_f32 v40, v40, v46, v47")
        A("v_pk_add_f32 v[48:49], v[48:49], v[52:53]"); A("v_pk_add_f32 v[50:51], v[50:51], v[54:55]")
        A("v_pk_add_f32 v[48:49], v[48:49], v[50:51]"); A("v_add_f32 v48, v48, v49")
        A("v_log_f32 v48, v48"); A("v_max_f32 v40, v40, v43")
        A("s_cmp_lg_u32 s49, 0")
        A("v_add_f32 v128, v40, v48")
        A("s_mov_b64 exec, 1")
        A("s_cbranch_scc1 L_S_y1")
        A("buffer_store_dwordx2 v[128:129], v110, s[12:15], s4 offen")
        self.lab("L_S_y1r")
        A("s_mov_b64 exec, -1")
        A("s_cmp_lg_u32 s49, 0"); A(f"s_cselect_b32 s49, {YD}, 0")
        A("s_lshl_b32 s35, s47, 7"); A(f"s_add_u32 s35, s35, {SP}"); A("s_add_u32 s35, s35, s49")
        A("v_lshlrev_b32 v57, 5, v5")
        self.poll("s", stl, [SG+1, SG+3, SG+5, SG+7], 20, sleep=self.ssleep)
        self.stamp(15)
        A(f"v_max3_f32 v20, v{SG}, v{SG+2}, v{SG+4}"); A(f"v_max_f32 v20, v20, v{SG+6}")
        for s in range(4): A(f"v_sub_f32 v{CF+2*s}, v{SG+2*s}, v20")
        for s in range(4): A(f"v_exp_f32 v{CF+2*s}, v{CF+2*s}")
        self.nop(1)
        A(f"v_add_f32 v20, v{CF}, v{CF+2}"); A(f"v_add_f32 v21, v{CF+4}, v{CF+6}"); A("v_add_f32 v20, v20, v21")
        A("v_rcp_f32 v20, v20"); self.nop(1)
        for s in range(4): A(f"v_mul_f32 v{CF+2*s}, v{CF+2*s}, v20")
        for e in range(8):
            if e == self.wo1: self.ldsspin("w", 24, self.th1, [], sleep=2)
            if e == self.wa: self.ldsspin("w2", 24, self.th2, [], sleep=1)
            if e == self.wo_early: A("s_setprio 0")
            A(f"buffer_load_dwordx4 {v4(WB+4*e)}, v1, s[20:23], s48 offen offset:{1024*(e>>2)}{nt}")
            if e == 3: A("s_sub_u32 s48, s48, 24576")
            elif e < 7: A("s_add_u32 s48, s48, 8192")
        A("s_setprio 3")
        self.stamp(5)
        A("s_lshl_b32 s39, s47, 13"); A("s_lshl_b32 s3, s33, 7"); A("s_add_u32 s39, s39, s3"); A(f"s_add_u32 s39, s39, {OP}")
        A("s_add_u32 s39, s39, s49"); A("s_add_u32 s48, s39, 4096")
        A("v_lshlrev_b32 v1, 9, v5"); A("v_lshl_add_u32 v1, v4, 5, v1"); A("v_lshl_add_u32 v1, v6, 3, v1")
        A("s_lshl_b32 s63, s32, 17"); A(f"s_add_u32 s63, s63, {FP}")
        A("s_lshl_b32 s3, s47, 11"); A("s_add_u32 s46, s63, s3"); A("s_lshl_b32 s3, s33, 9"); A("s_add_u32 s46, s46, s3")
        A("v_lshrrev_b32 v121, 2, v0"); A("v_lshlrev_b32 v121, 11, v121"); A("v_lshl_add_u32 v121, v6, 3, v121")
        A("s_lshl_b32 s3, s47, 5"); A("s_add_u32 s63, s63, s3")
        A("s_add_u32 s60, s63, 0x8000"); A("s_add_u32 s61, s63, 0x10000"); A("s_add_u32 s62, s63, 0x18000")
        A("s_lshl_b32 s45, s45, 10"); A("s_lshl_b32 s3, s32, 8"); A("s_add_u32 s45, s45, s3")
        A("s_and_b32 s3, s47, 15"); A("s_lshl_b32 s3, s3, 4"); A("s_add_u32 s45, s45, s3")
        A("v_lshlrev_b32 v126, 2, v6"); A("v_lshl_add_u32 v126, v4, 1, v126")
        A("s_mov_b32 s41, 1")
        A("s_and_b32 s49, s44, 3"); A("s_or_b32 s49, s49, s32"); A("s_or_b32 s49, s49, s33")
        A(f"s_cselect_b64 s[6:7], 0, {(1 << self.er) - 1}")
        A("s_lshr_b32 s3, s47, 2"); A("s_lshl_b32 s3, s3, 10"); A(f"s_add_u32 s3, s3, {EP}"); A("v_lshl_add_u32 v135, v0, 7, s3")
        A("v_lshlrev_b32 v134, 10, v3"); A(f"v_add_u32 v134, {EP}, v134")
        if self.er > self.ed:
            A(f"s_lshr_b32 s3, s2, 3"); A(f"s_and_b32 s3, s3, {self.er // self.ed - 1}"); A(f"s_mul_i32 s3, s3, {128 * self.ed}"); A("v_add_u32 v134, s3, v134")
        A("s_barrier")
        self.stamp(6)
        A("s_branch L_tile")
        self.lab("L_fin")
        self.xs("wr")
        if self.b4spin:
            self.cnt(28, "v111")
            A("s_mov_b64 exec, -1")
            self.ldsspin("c2", 28, 4, rd, sleep=0)
        else:
            A("s_mov_b64 exec, -1")
            A("s_waitcnt lgkmcnt(0)")
            self.xs("wd")
            A("s_barrier")
            self.xs("bar")
            for r in rd: A(r)
            A("s_waitcnt lgkmcnt(2)")
        A("v_pk_add_f32 v[12:13], v[12:13], v[14:15]")
        A("s_waitcnt lgkmcnt(0)")
        A("v_pk_add_f32 v[16:17], v[16:17], v[18:19]")
        self.xs("rd")
        A("v_pk_add_f32 v[12:13], v[12:13], v[16:17]")
        A("v_bfi_b32 v12, s11, v160, v12"); A("v_bfi_b32 v13, s11, v161, v13")
        A(f"buffer_store_dwordx2 v[12:13], v127, s[12:15], s46 offen{pol}")
        self.stamp(9)
        if self.wbl == 1:
            A("s_lshr_b32 s3, s2, 3"); A("s_lshl_b32 s3, s3, 2"); A("s_add_u32 s5, s3, s33"); A("s_cmp_eq_u32 s5, 1"); A("s_cbranch_scc1 L_wb1")
        if self.wbl == 2:
            A("s_lshr_b32 s3, s2, 3"); A("s_lshl_b32 s3, s3, 2"); A("s_add_u32 s5, s3, s33"); A("s_cmp_eq_u32 s5, 1"); A("s_cbranch_scc0 L_wb1")
            A("buffer_wbl2 sc1")
            self.lab("L_wb1")
        A("s_cmp_lg_u32 s33, 0"); A("s_cbranch_scc1 L_C_exit")
        if self.wbl == 1: self.lab("L_wb1")
        if self.fdelay: A(f"s_sleep {self.fdelay}")
        if self.eta:
            if self.ed == 1:
                self.poll("e", [f"buffer_load_dword v41, v134, s[12:15], 0 offen{pol}"], [41], 40)
            else:
                D = self.ed
                A("s_mov_b64 exec, 0xffff")
                el = lambda i: A(f"buffer_load_dword v{41+i}, v134, s[12:15], 0 offen offset:{128 * (i % self.er)}{pol}")
                A(f"s_mov_b32 s38, {self.spin}")
                for i in range(D - 1):
                    el(i); A(f"s_sleep {self.es}")
                self.lab("L_ep")
                for i in range(D):
                    el((i + D - 1) % D)
                    A(f"s_waitcnt vmcnt({D-1})")
                    A(f"v_cmp_ne_u32 vcc, s34, v{41+i}")
                    A("s_cmp_eq_u64 vcc, 0"); A("s_cbranch_scc1 L_epd")
                A("s_sub_u32 s38, s38, 1"); A("s_cbranch_scc0 L_ep")
                self.lab("L_epd")
                A("s_mov_b64 exec, -1")
            self.stamp(12)
            if self.wbl == 1:
                A("s_cmp_eq_u32 s33, 0"); A("s_cbranch_scc1 L_wb2")
                A("buffer_wbl2 sc1"); A("s_branch L_C_exit")
                self.lab("L_wb2")
            if self.edly: A(f"s_sleep {self.edly}")
            self.lab("L_eok")
        self.poll("f", [f"buffer_load_dwordx2 {v2(24+2*i)}, v121, s[12:15], s{(63,60,61,62)[i]} offen{pol}" for i in range(4)],
                  list(range(24, 32)), 40, sleep=self.fsleep, tv=160)
        self.stamp(10)
        if self.stamps and not self.amp and not self.xst: A(f"s_sub_u32 s66, {self.spin}, s38"); A("s_mov_b32 s67, 0")
        A("v_pk_add_f32 v[24:25], v[24:25], v[26:27]"); A("v_pk_add_f32 v[28:29], v[28:29], v[30:31]")
        self.nop(2)
        A("v_permlane32_swap_b32 v24, v28"); A("v_permlane32_swap_b32 v25, v29")
        A("v_pk_add_f32 v[24:25], v[24:25], v[28:29]"); self.nop(2)
        A("v_permlane16_swap_b32 v24, v25")
        A("v_add_f32 v24, v24, v25"); self.nop(2)
        self.dpp("v_add_f32", 24, 24, 24, "row_ror:4"); self.nop(2)
        self.dpp("v_add_f32", 24, 24, 24, "row_ror:8")
        A("v_cvt_pk_bf16_f32 v24, v24, v24"); A("v_lshlrev_b32 v24, 16, v24")
        A("v_mul_f32 v24, v24, v120")
        A("v_cvt_pk_bf16_f32 v24, v24, v24"); A("v_lshlrev_b32 v24, 16, v24")
        A("v_mov_b32 v25, v24"); self.nop(2)
        A("v_permlane32_swap_b32 v24, v25")
        A("v_add_f32 v24, v24, v25")
        A("v_cvt_pk_bf16_f32 v24, v24, v24")
        A("s_mov_b64 exec, 0x000f000f")
        A("buffer_store_short v24, v126, s[56:59], s45 offen")
        self.xs("fo")
        if self.pad:
            if self.padk >= 0:
                A("s_waitcnt lgkmcnt(0)"); A("s_mov_b32 s90, s92")
            self.lab("L_pad")
            A("s_memrealtime s[94:95]"); A("s_waitcnt lgkmcnt(0)"); A("s_sub_u32 s94, s94, s90")
            A(f"s_cmp_lt_u32 s94, {self.pad}"); A("s_cbranch_scc1 L_pad")
        A("s_cmp_lg_u32 s2, 0"); A("s_cbranch_scc1 L_C_exit")
        A("s_mov_b64 exec, 1")
        A("buffer_store_dword v129, v110, s[12:15], 0 offen")
        self.lab("L_C_exit")
        self.stamp(11)
        if self.stamps: A("s_sleep 127")
        self.stamp_out()
        self.lab("L_end")
        A("s_endpgm")
        self.lab("L_last")
        self.lab("L_S_y1")
        A(f"s_add_u32 s4, s4, {YD}")
        A(f"buffer_store_dwordx2 v[128:129], v110, s[12:15], s4 offen{pol}")
        A("s_branch L_S_y1r")
        self.lab("L_S_y2")
        A(f"s_add_u32 s46, s46, {YD}")
        A(f"buffer_store_dwordx2 {v2(SB+12)}, v{SB+11}, s[12:15], s46 offen{pol}")
        A("s_branch L_S_x")
        def puby():
            A(f"s_add_u32 s3, s46, {YD}")
            A(f"buffer_store_dwordx2 v[164:165], v127, s[12:15], s3 offen{pol}")
            A("s_mov_b32 s63, 1")
        self.lab("L_puby2")
        puby()
        A("s_branch L_vd")
        self.lab("L_slow")
        A("s_cmp_lg_u32 s63, 0"); A("s_cbranch_scc1 L_slow2")
        A(f"ds_write_b32 v110, v111 offset:{L_F+16}")
        puby()
        self.lab("L_slow2")
        A(f"v_add_u32 v9, {YD}, v127")
        for l in qg("v9"): A(l)
        A("v_and_b32 v9, 1, v0"); A("v_mul_u32_u24 v9, 15, v9"); A("v_or_b32 v9, 0xf0, v9")
        A("s_waitcnt vmcnt(0)")
        A("v_xor_b32 v8, v166, v24"); A("v_xor_b32 v10, v167, v25")
        for r in range(26, 32): A(f"v_bitop3_b32 v{8 + 2*(r & 1)}, v{r}, v{166 + (r & 1)}, v{8 + 2*(r & 1)} bitop3:0xbe")
        A("v_and_b32 v10, 0xff, v10"); A("v_and_or_b32 v9, v8, v9, v10"); A("v_and_b32 v10, 15, v8")
        A("s_mov_b32 s38, 0")
        A("v_cmp_ne_u32 vcc, 0, v9"); A("s_cmp_eq_u64 vcc, 0"); A("s_cbranch_scc1 L_slow3")
        A("s_sleep 8")
        A("s_sub_u32 s62, s62, 1"); A("s_cbranch_scc0 L_qf")
        self.lab("L_slow3")
        for r in range(24, 32): A(f"v_and_b32 v{r}, 0xffffff00, v{r}")
        A("v_cmp_ne_u32 vcc, 0, v10"); A("s_cmp_lg_u64 vcc, 0")
        A("s_cselect_b32 s3, 1, 0"); A("v_mov_b32 v18, s3")
        A(f"s_mul_i32 s3, s33, {QH}"); A("v_lshl_add_u32 v16, v0, 2, s3")
        A("v_lshlrev_b32 v1, 11, v4"); A("v_lshl_add_u32 v1, v3, 4, v1")
        A("s_lshl_b32 s48, s44, 17"); A("s_lshl_b32 s3, s33, 15"); A("s_add_u32 s48, s48, s3")
        A("s_lshl_b32 s3, s32, 8"); A("s_add_u32 s48, s48, s3")
        A("s_waitcnt lgkmcnt(0)")
        A("s_branch L_qok")
        L.append('.section .rodata,"a"'); L.append(".p2align 6"); L.append(f".amdhsa_kernel {KN}")
        L.append("  .amdhsa_next_free_vgpr 168"); L.append("  .amdhsa_next_free_sgpr 96"); L.append("  .amdhsa_accum_offset 168")
        L.append("  .amdhsa_group_segment_fixed_size 0"); L.append("  .amdhsa_kernarg_size 112"); L.append("  .amdhsa_user_sgpr_count 2")
        L.append("  .amdhsa_user_sgpr_kernarg_segment_ptr 1"); L.append("  .amdhsa_system_sgpr_workgroup_id_x 1")
        L.append("  .amdhsa_float_denorm_mode_32 3")
        L.append(".end_amdhsa_kernel")
        return "\n".join(L) + "\n"

if __name__ == "__main__":
    out = sys.argv[1]
    kw = {}
    for a in sys.argv[2:]:
        k, v = a.split("=")
        kw[k] = v.replace("+", " ") if k in ("pol", "pat", "pat2", "amp", "only", "xst") else int(v)
    open(out, "w").write(G(**kw).gen())
```

```python
import sys
KN = "gated_mix__sliding_block_cached__sliding_block_cached__decode_kernel"
HDR = open("gated_mix__sliding_block_cached__sliding_block_cached__decode.s.ref").read().split("; Override launch")[0]

FL = 0x1000
YD = 0x400000
OP = 0x100000
SP = 0xC0000
EP = 0xD0000
QP = 0x100000
FP = 0x180000
WS_BYTES = 0x600000
STAMP_OFF = 0x4000000
L_Q = 0
QH = 272
L_M = 1280
L_L = 1408
L_F = 1536
L_O = 2048
OH, OW = 544, 2176
RU, RB, RW = 144, 576, 2304
L_R = L_O + 8*OW
LDS_BYTES = L_R + 4*RW
LOG2E = 0x3fb8aa3b
SCALE = 0x3db504f3
NS = 16

class G:
    def __init__(self, **kw):
        d = dict(padk=-1, pad=0, stamps=0, nt=1, pol="sc1", spin=1 << 16, pf=1, wo_early=0, qsleep=12, forcey=0, pretouch=0,
                 n0=8, qdepth=4, lsplit=1, osleep=0, fsleep=0, b4spin=0, fdelay=0, eta=1, edly=0, tx=0, rm=2, N=3, rot=1, lan=1, qpos=3, wj=31, pat='x0x11x', cw=3, up=99, wo1=0, wj2=-1, wa=8, th1=8, th2=16, opos=3, pr=0, tlbs=0, tlbv=0, lean=1, xdirty=0, qwt=0, owt=0, xperm=0, b0late=0, ed=1, es=4, early=0, ldly=0, ssleep=8, ovl=1, pat2='', lup=99, wbl=0, wqr=0, er=1, dbg=0, amp='', ampf=10, only='', xst='', nos=0, skew=0, alt=0)
        d.update(kw)
        self.__dict__.update(d)
        self.L = []
        self.nt = " nt" if self.nt else ""
        self.pol = " " + self.pol
    def A(self, s): self.L.append("    " + s)
    def lab(self, s): self.L.append(s + ":")
    def nop(self, n):
        while n > 0:
            k = min(n, 16); self.A(f"s_nop {k-1}"); n -= k
    def xs(self, name):
        d = dict(a.split(":") for a in self.xst.split(",")) if self.xst else {}
        if name in d: self.A(f"s_memrealtime s[{64+2*int(d[name])}:{65+2*int(d[name])}]")
    def stamp(self, i):
        if self.only and i not in [0] + [int(a) for a in self.only.split(",")]: return
        if self.amp and i not in [0] + [int(a[1:]) for a in self.amp.split(',')]: return
        if self.padk == i: self.A("s_memrealtime s[92:93]")
        if self.stamps: self.A(f"s_memrealtime s[{64+2*i}:{65+2*i}]")
    def stamp_out(self, cls="C"):
        if not self.stamps: return
        A = self.A
        if self.amp:
            parts = self.amp.split(",")
            anyS = any(a[0].upper() == "S" for a in parts)
            A("s_load_dwordx2 s[62:63], s[0:1], 96")
            A("s_waitcnt lgkmcnt(0)")
            A("s_mov_b64 exec, 1"); A("v_mov_b32 v4, 0"); A("v_mov_b32 v3, 1")
            if cls == "C":
                A("s_not_b32 s60, s64"); A("v_mov_b32 v2, s60"); A("global_atomic_umax v4, v2, s[62:63]")
            for j, a in enumerate(parts):
                if a[0].upper() == cls:
                    A(f"v_mov_b32 v2, s{64+2*int(a[1:])}"); A(f"global_atomic_{'add' if a[0].islower() else 'umax'} v4, v2, s[62:63] offset:{64+4*j}"); A("s_nop 1")
            if cls == "C" or anyS:
                A("s_waitcnt vmcnt(0)"); A("global_atomic_add v4, v3, s[62:63] offset:128")
            if cls == "C":
                n = 1024 + (2048 if anyS else 0)
                A("s_or_b32 s60, s2, s33"); A("s_cmp_lg_u32 s60, 0"); A("s_cbranch_scc1 L_amp_x")
                A("s_mov_b32 s38, 100000")
                self.lab("L_amp_p")
                A("s_sleep 32"); A("global_load_dword v2, v4, s[62:63] offset:128 sc1"); A("s_waitcnt vmcnt(0)"); A("v_readfirstlane_b32 s60, v2")
                A("s_sub_u32 s38, s38, 1"); A("s_cbranch_scc1 L_amp_x")
                A(f"s_cmp_lt_u32 s60, {n}"); A("s_cbranch_scc1 L_amp_p")
                A("global_load_dword v2, v4, s[62:63] sc1"); A("global_load_dwordx2 v[6:7], v4, s[62:63] offset:64 sc1"); A("s_waitcnt vmcnt(0)")
                A("v_readfirstlane_b32 s60, v2"); A("v_readfirstlane_b32 s56, v6"); A("v_readfirstlane_b32 s57, v7"); A("s_not_b32 s60, s60")
                for j, a in enumerate(parts):
                    r = f"s{56+j}"
                    if a[0].islower():
                        sh = 11 if a[0] == "s" else 10
                        A(f"s_lshl_b32 s59, s60, {sh}"); A(f"s_sub_u32 {r}, {r}, s59"); A(f"s_mul_i32 {r}, {r}, {self.ampf}"); A(f"s_lshr_b32 {r}, {r}, {sh}")
                    else:
                        A(f"s_sub_u32 {r}, {r}, s60"); A(f"s_mul_i32 {r}, {r}, {self.ampf}")
                if len(parts) == 2: A("s_sub_u32 s56, s56, s57")
                A("s_add_u32 s61, s56, 15000"); A("s_min_u32 s61, s61, 100000")
                self.lab("L_amp_s")
                A("s_memrealtime s[58:59]"); A("s_waitcnt lgkmcnt(0)"); A("s_sub_u32 s58, s58, s60"); A("s_cmp_lt_u32 s58, s61"); A("s_cbranch_scc1 L_amp_s")
                self.lab("L_amp_x")
            return
        if self.dbg:
            A("s_load_dwordx2 s[62:63], s[0:1], 96")
            A("s_waitcnt lgkmcnt(0)")
            A("s_mov_b64 exec, 1"); A("v_mov_b32 v4, 0")
            A("s_not_b32 s60, s64"); A("v_mov_b32 v2, s60"); A("global_atomic_umax v4, v2, s[62:63]")
            m = {"C": {0: 15, 2: 2, 4: 3, 7: 10, 8: 11, 9: 12, 12: 13, 10: 14}, "S": {1: 1, 2: 4, 3: 5, 7: 6, 9: 7, 10: 8, 11: 9}}[cls]
            for k, d in m.items():
                A(f"v_mov_b32 v2, s{64+2*k}"); A(f"global_atomic_umax v4, v2, s[62:63] offset:{4*d}"); A("s_nop 1")
            if self.dbg == 2:
                m2 = {"C": {7: 16, 0: 17}, "S": {9: 18, 1: 19}}[cls]
                for k, d in m2.items():
                    A(f"v_mov_b32 v2, s{64+2*k}"); A(f"global_atomic_add v4, v2, s[62:63] offset:{4*d}"); A("s_nop 1")
            return
        A("s_waitcnt lgkmcnt(0)")
        A("s_mul_i32 s60, s2, 12"); A("s_add_u32 s60, s60, s33"); A(f"s_mul_i32 s60, s60, {NS*8}")
        A(f"s_add_u32 s60, s60, {STAMP_OFF}")
        A("s_add_u32 s62, s12, s60"); A("s_addc_u32 s63, s13, 0")
        A("s_mov_b64 exec, 1"); A("v_mov_b32 v4, 0")
        for i in range(NS):
            A(f"v_mov_b32 v2, s{64+2*i}"); A(f"v_mov_b32 v3, s{65+2*i}")
            A(f"global_store_dwordx2 v4, v[2:3], s[62:63] offset:{i*8}"); A("s_nop 1")
    def v4(self, r): return f"v[{r}:{r+3}]"
    def v2(self, r): return f"v[{r}:{r+1}]"
    def perms(self, dst, src, pairs=(0, 1, 2, 3)):
        for q in pairs:
            for w in range(4):
                for hh in range(2):
                    j = 2*w + hh
                    self.A(f"v_perm_b32 v{dst+4*j+q}, v{src+4*(2*q+1)+w}, v{src+4*(2*q)+w}, s{36+hh}")
    def allred_rows(self, op, v, t):
        A = self.A
        A(f"v_mov_b32 v{t}, v{v}"); self.nop(2)
        A(f"v_permlane32_swap_b32 v{v}, v{t}")
        A(f"{op} v{v}, v{v}, v{t}")
        A(f"v_mov_b32 v{t}, v{v}"); self.nop(2)
        A(f"v_permlane16_swap_b32 v{v}, v{t}")
        A(f"{op} v{v}, v{v}, v{t}")
    def masks(self, m, bank):
        for i in range(4):
            self.A(f"v_cmp_eq_u32 vcc, {i}, v{bank}"); self.A(f"v_cndmask_b32 v{m+i}, 0, -1, vcc")
    def dpp(self, op, d, a, b, ctl):
        self.A(f"{op}_dpp v{d}, v{a}, v{b} {ctl} row_mask:0xf bank_mask:0xf")
    def poll(self, name, loads, tagregs, acc, first_issued=False, sleep=0, tv=None):
        A = self.A
        A(f"s_mov_b32 s38, {self.spin}")
        if first_issued: A(f"s_branch L_chk_{name}")
        elif sleep: A(f"s_branch L_ld_{name}")
        self.lab(f"L_poll_{name}")
        if sleep: A(f"s_sleep {sleep}")
        self.lab(f"L_ld_{name}")
        for l in loads: A(l)
        self.lab(f"L_chk_{name}")
        A("s_waitcnt vmcnt(0)")
        if tv is None:
            A(f"v_xor_b32 v{acc}, s34, v{tagregs[0]}")
            for r in tagregs[1:]:
                A(f"v_bitop3_b32 v{acc}, v{r}, s34, v{acc} bitop3:0xbe")
        else: self.untag(tagregs[0], tv, acc)
        A("s_sub_u32 s38, s38, 1")
        A(f"v_cmp_ne_u32 vcc, 0, v{acc}")
        A("s_cselect_b64 s[50:51], 0, -1")
        if tv is not None: A("s_wqm_b64 vcc, vcc")
        A("s_and_b64 exec, vcc, s[50:51]")
        A(f"s_cbranch_scc1 L_poll_{name}")
        A("s_mov_b64 exec, -1")
    def untag(self, r0, tv, acc):
        A = self.A
        for r in range(r0, r0 + 8): A(f"v_xor_b32 v{r}, v{tv + (r & 1)}, v{r}")
        A(f"v_or3_b32 v{acc}, v{r0}, v{r0+1}, v{r0+2}"); A(f"v_or3_b32 v{acc+1}, v{r0+3}, v{r0+4}, v{r0+5}")
        A(f"v_or3_b32 v{acc}, v{acc}, v{r0+6}, v{r0+7}")
        A(f"v_bitop3_b32 v{acc}, v{acc}, v{acc+1}, s11 bitop3:0xa8")
    def ldsspin(self, name, off, target, reads, sleep=1):
        A = self.A
        A(f"s_mov_b32 s38, {self.spin * 16}")
        if sleep: A(f"s_branch L_spl_{name}")
        self.lab(f"L_sp_{name}")
        if sleep: A(f"s_sleep {sleep}")
        self.lab(f"L_spl_{name}")
        A(f"ds_read_b32 v2, {self.vz} offset:{L_F+off}")
        for r in reads: A(r)
        A("s_sub_u32 s38, s38, 1")
        A("s_cselect_b32 s3, 0, -1")
        A("s_waitcnt lgkmcnt(0)")
        A("v_readfirstlane_b32 s40, v2")
        A("s_orn2_b32 s40, s40, s3")
        A(f"s_cmp_lt_u32 s40, {target}")
        A(f"s_cbranch_scc1 L_sp_{name}")
    def cnt(self, off, one):
        A = self.A
        A("s_mov_b64 exec, 1")
        A(f"ds_add_u32 {self.vz}, {one} offset:{L_F+off}")
    def vissue(self, VB, p):
        for T in (2*p, 2*p+1):
            for e in range(4):
                self.A(f"buffer_load_dwordx4 {self.v4(VB+16*T+4*e)}, v5, s[8:11], s35 offen offset:{256*e}{self.nt}")
            if T < 3: self.A("s_add_u32 s35, s35, 16384")
    def mspin(self, name, B, d):
        A = self.A
        self.ldsspin(name, 8, 8, [f"ds_read_b128 {self.v4(B)}, v6 offset:{L_M}", f"ds_read_b128 {self.v4(B+4)}, v6 offset:{L_M+16}"], sleep=2)
        A(f"v_max3_f32 v{B}, v{B}, v{B+1}, v{B+2}")
        A(f"v_max3_f32 v{B+3}, v{B+3}, v{B+4}, v{B+5}")
        A(f"v_max3_f32 v{B}, v{B}, v{B+6}, v{B+7}")
        A(f"v_max_f32 v{d}, v{B}, v{B+3}")

    def gen(self):
        A = self.A; nt = self.nt; pol = self.pol; v4 = self.v4; v2 = self.v2
        OP = 0x100000 if self.ovl else 0x40000
        L = self.L
        L.append(HDR.rstrip("\n"))
        L.append(f"; @launch grid=(256,1,1) block=(768,1,1) lds={LDS_BYTES}")
        L.append('.amdgcn_target "amdgcn-amd-amdhsa--gfx950"')
        L.append(".text"); L.append(f".globl {KN}"); L.append(".p2align 12"); L.append(".p2align 8"); L.append(f".type {KN},@function"); L.append(f"{KN}:")
        self.stamp(0)
        if self.pad: A("s_memrealtime s[90:91]")
        if self.stamps:
            for i in range(1, NS): A(f"s_mov_b64 s[{64+2*i}:{65+2*i}], 0")
        if self.xperm == 1:
            A("s_lshr_b32 s3, s2, 3"); A("s_and_b32 s29, s2, 7"); A("s_lshl_b32 s29, s29, 5"); A("s_or_b32 s2, s3, s29")
        if self.xperm == 2:
            A("s_xor_b32 s3, s2, 1"); A("s_and_b32 s29, s2, 0xf8"); A("s_cmp_eq_u32 s29, 0x48"); A("s_cselect_b32 s2, s3, s2")
        if self.skew:
            A("s_and_b32 s3, s2, 7"); A("s_mul_i32 s3, s3, 5"); A("s_and_b32 s3, s3, 7")
            self.lab("L_skew")
            A("s_sub_u32 s3, s3, 1"); A("s_cbranch_scc1 L_skew2"); A(f"s_sleep {self.skew}"); A("s_branch L_skew")
            self.lab("L_skew2")
        A("s_bfe_u32 s29, s2, 0x10002")
        A("s_mul_i32 s3, s29, 40")
        A("s_cmp_ge_u32 s2, 256"); A("s_cbranch_scc1 L_end")
        A("s_load_dwordx2 s[16:17], s[0:1], s3 offset:24")
        A("s_load_dwordx2 s[24:25], s[0:1], 0")
        A("s_load_dwordx2 s[4:5], s[0:1], s3 offset:8")
        A("s_load_dwordx2 s[8:9], s[0:1], s3 offset:16")
        A("s_load_dwordx2 s[12:13], s[0:1], 104")
        A("v_lshrrev_b32 v1, 6, v0")
        A("s_lshr_b32 s30, s2, 3")
        if self.tx: A(f"s_xor_b32 s30, s30, {self.tx}")
        A("v_readfirstlane_b32 s33, v1")
        A("s_and_b32 s28, s2, 3"); A("s_lshl_b32 s28, s28, 1"); A("s_lshr_b32 s31, s30, 4"); A("s_or_b32 s28, s28, s31")
        A("s_bfe_u32 s31, s30, 0x20002"); A("s_and_b32 s32, s30, 3")
        A("v_and_b32 v0, 63, v0")
        A("v_and_b32 v3, 15, v0")
        A("v_lshrrev_b32 v4, 4, v0")
        A("v_bfe_u32 v5, v0, 2, 2")
        A("v_and_b32 v6, 3, v0")
        A("s_cmp_ge_u32 s33, 4"); A("s_cbranch_scc1 L_S")
        WB, PB, DB, XB, XM, CK = 8, 40, 72, 104, 80, 96
        A("s_setprio 3")
        if self.pf:
            A("s_getpc_b64 s[42:43]")
            if self.lean:
                A("s_mul_i32 s3, s33, 2176"); A("v_lshl_add_u32 v12, v0, 7, s3"); A("s_mov_b64 exec, 0x1ffff")
            else: A("v_lshlrev_b32 v12, 7, v0")
            A("v_min_u32 v12, L_last-L_pfbase, v12")
            self.lab("L_pfbase")
            A("global_load_dword v108, v12, s[42:43]")
            if self.lean: A("s_mov_b64 exec, -1"); A("s_mul_i32 s3, s29, 40")
        A("s_mov_b32 s18, 0x400000"); A("s_mov_b32 s19, 0x20000")
        A("s_mov_b32 s26, 4096"); A("s_mov_b32 s27, 0x20000")
        A("v_lshlrev_b32 v1, 16, v4"); A("v_lshl_add_u32 v1, v3, 4, v1")
        if self.wqr:
            A("v_lshl_add_u32 v1, v4, 13, v1")
            for e in range(1, self.cw): A(f"v_xor_b32 v{64+e}, {e << 13}, v1")
        def wql(e):
            if self.wqr:
                if e >= self.cw: A(f"v_xor_b32 v{64+e}, {e << 13}, v1")
                A(f"buffer_load_dwordx4 {v4(WB+4*e)}, v{64+e if e else 1}, s[16:19], s35 offen{nt}")
            else:
                A(f"buffer_load_dwordx4 {v4(WB+4*e)}, v1, s[16:19], s35 offen{nt}")
                if e < 7: A("s_add_u32 s35, s35, 8192")
        A("v_lshlrev_b32 v2, 10, v5"); A("v_lshl_add_u32 v2, v4, 4, v2"); A("v_lshl_add_u32 v2, v6, 2, v2")
        A("s_lshl_b32 s44, s28, 2"); A("s_add_u32 s44, s44, s31")
        A("s_lshl_b32 s39, s32, 2"); A("s_add_u32 s39, s39, s33")
        A("s_lshl_b32 s35, s39, 18"); A("s_lshl_b32 s45, s44, 8"); A("s_add_u32 s35, s35, s45")
        A("s_lshl_b32 s39, s39, 6")
        A("s_waitcnt lgkmcnt(0)")
        self.stamp(1)
        A(f"buffer_load_dword v{XB}, v2, s[24:27], s39 offen")
        for e in range(self.cw): wql(e)
        A("v_mov_b32 v112, 0"); A("v_mov_b32 v113, 0"); A("v_mov_b32 v114, 0"); A("v_mov_b32 v115, 0")
        A(f"ds_write_b128 v112, v[112:115] offset:{L_F}")
        A(f"ds_write_b128 v112, v[112:115] offset:{L_F+16}")
        A("s_waitcnt lgkmcnt(0)")
        A("s_barrier")
        A("s_branch L_C")
        self.lab("L_S")
        KB, VB, QB, SB = 8, 72, 136, 152
        self.vz = "v7"
        esh = 10 if self.lan else 8
        A("s_setprio 1")
        A("s_mov_b32 s6, 0x4000000"); A("s_mov_b32 s7, 0x20000")
        A("s_mov_b32 s10, 0x4000000"); A("s_mov_b32 s11, 0x20000")
        A("s_lshl_b32 s35, s31, 3"); A("s_add_u32 s35, s35, s28"); A("s_lshl_b32 s35, s35, 4"); A("s_add_u32 s35, s35, s32")
        A("s_lshl_b32 s35, s35, 5"); A("s_add_u32 s35, s35, s33")
        A("s_lshl_b32 s35, s35, 12"); A(f"s_add_u32 s35, s35, {0x180000 - 4*4096}")
        if self.rot & 1: A(f"s_lshl_b32 s3, s32, {esh}"); A("s_add_u32 s35, s35, s3")
        if self.rot & 2: A("s_and_b32 s3, s2, 7"); A("s_lshl_b32 s3, s3, 12"); A("s_xor_b32 s35, s35, s3")
        A(f"v_lshlrev_b32 v1, {18-esh}, v5"); A("v_lshl_add_u32 v1, v4, 6, v1"); A("v_lshl_add_u32 v1, v6, 4, v1")
        A(f"v_mul_u32_u24 v2, {QH}, v6"); A("v_lshl_add_u32 v2, v4, 6, v2"); A(f"v_lshl_add_u32 v{QB+12}, v5, 4, v2")
        A("v_lshlrev_b32 v5, 4, v3"); A(f"v_lshl_add_u32 v5, v4, {18-esh}, v5")
        if self.pr == 1:
            A("s_cmp_lt_u32 s33, 8"); A("s_cbranch_scc1 L_pr1"); A("s_setprio 2"); self.lab("L_pr1")
        if not self.b0late: A("s_barrier")
        A("s_waitcnt lgkmcnt(0)")
        self.stamp(1)
        st = dict(i=0)
        def trig(i):
            if i in (self.wj, self.wj2):
                self.cnt(24, f"v{QB+15}"); A("s_mov_b64 exec, -1")
        def nxt(k=1):
            for _ in range(k):
                i = st["i"]; st["i"] += 1
                n = self.N + (1 if i >= self.up else 0) + (1 if self.alt and i % self.alt == 0 else 0)
                wt = lambda p: (None if p[i] == "x" else int(p[i])) if i < len(p) else (n - 1 if i >= n else None)
                w1 = wt(self.pat); w2 = wt(self.pat2) if self.pat2 else w1
                if i == self.lup: w2 = n
                if w1 == w2:
                    if w1 is not None: A(f"s_waitcnt vmcnt({w1})")
                else:
                    A("s_cmp_ge_u32 s33, 8"); A(f"s_cbranch_scc1 L_p{i}")
                    if w1 is not None: A(f"s_waitcnt vmcnt({w1})")
                    if w2 is not None and (w1 is None or w2 < w1):
                        A(f"s_branch L_q{i}"); self.lab(f"L_p{i}"); A(f"s_waitcnt vmcnt({w2})"); self.lab(f"L_q{i}")
                    else:
                        self.lab(f"L_p{i}")
                        if w2 is not None: A(f"s_waitcnt vmcnt({w2})")
                if self.pr == 2: A(f"s_setprio {2 - i % 3}")
                if self.pr == 3: A(f"s_setprio {1 - i % 2}")
                T, e = (i >> 2) & 3, i & 3
                so = "s35"
                if T or e: A(f"s_xor_b32 s39, s35, {T*32768 + (e << esh)}"); so = "s39"
                if i < 16: A(f"buffer_load_dwordx4 {v4(KB+4*i)}, v1, s[4:7], {so} offen{nt}")
                else: A(f"buffer_load_dwordx4 {v4(VB+4*(i-16))}, v5, s[8:11], {so} offen{nt}")
                trig(i)
                if self.xdirty and i == 8:
                    A("s_mov_b32 s14, 0x4000000")
                    A("s_lshl_b32 s46, s2, 3"); A("s_add_u32 s46, s46, s33"); A(f"s_mul_i32 s46, s46, {self.xdirty*1024}"); A("s_add_u32 s46, s46, 0x800000")
                    A(f"v_lshlrev_b32 v{SB}, 4, v0")
                    for k in range(self.xdirty): A(f"buffer_store_dwordx4 v[0:3], v{SB}, s[12:15], s46 offen offset:{1024*k}")
        def upto(j):
            while st["i"] <= j: nxt()
        nxt(len(self.pat) - len(self.pat.lstrip("x")) if self.pat else self.N)
        A("s_load_dword s34, s[12:13], 0")
        A(f"s_mov_b32 s14, {WS_BYTES}"); A("s_mov_b32 s15, 0x20000")
        A("s_mov_b32 s36, 0x05040100"); A("s_mov_b32 s37, 0x07060302")
        A("v_mov_b32 v7, 0")
        A(f"v_mov_b32 v{QB+15}, 1")
        A("v_lshlrev_b32 v6, 5, v6"); A("s_lshl_b32 s3, s33, 2"); A("s_sub_u32 s3, s3, 16"); A("v_add_u32 v3, s3, v6")
        A(f"v_and_b32 v{QB+13}, 3, v0"); A(f"v_mul_u32_u24 v{QB+13}, {OH}, v{QB+13}"); A(f"v_lshl_add_u32 v{QB+13}, v4, 7, v{QB+13}")
        A(f"v_bfe_u32 v{QB+14}, v0, 2, 2"); A(f"v_lshl_add_u32 v{QB+13}, v{QB+14}, 4, v{QB+13}")
        A(f"s_mul_i32 s3, s33, {OW}"); A(f"s_add_u32 s3, s3, {L_O - 4*OW}"); A(f"v_add_u32 v{QB+13}, s3, v{QB+13}")
        if self.b0late: A("s_barrier")
        upto(15)
        self.stamp(2)
        upto(15 + self.qpos)
        A(f"s_waitcnt vmcnt({self.qpos})")
        self.stamp(3)
        self.ldsspin("q", 4, 4, [f"ds_read_b128 {v4(QB)}, v{QB+12} offset:{L_Q}"], sleep=4)
        self.stamp(4)
        Dj = lambda j: (QB + 4 + 4*j) if j < 2 else (KB + 4*(j-2))
        for j in range(16):
            A(f"v_mfma_f32_16x16x32_bf16 {v4(Dj(j))}, {v4(KB+4*j)}, {v4(QB)}, 0")
        A(f"s_mov_b32 s40, {SCALE}"); A(f"s_mov_b32 s41, {LOG2E}")
        A("s_mul_i32 s34, s34, 1664525"); A("s_add_u32 s34, s34, 1013904223")
        nxt()
        for j in range(16): self.dpp("v_add_f32", SB+j, Dj(j)+1, Dj(j), "row_ror:12")
        for j in range(16): self.dpp("v_add_f32", SB+j, Dj(j)+2, SB+j, "row_ror:8")
        for j in range(16): self.dpp("v_add_f32", SB+j, Dj(j)+3, SB+j, "row_ror:4")
        for i in range(8):
            A(f"v_cvt_pk_bf16_f32 v{QB+i}, v{SB+2*i}, v{SB+2*i+1}")
        for i in range(8):
            A(f"v_lshlrev_b32 v{SB+2*i}, 16, v{QB+i}"); A(f"v_and_b32 v{SB+2*i+1}, 0xffff0000, v{QB+i}")
        nxt()
        for i in range(8):
            A(f"v_pk_mul_f32 {v2(SB+2*i)}, {v2(SB+2*i)}, s[40:41] op_sel_hi:[1,0]")
        for i in range(8):
            A(f"v_cvt_pk_bf16_f32 v{QB+i}, v{SB+2*i}, v{SB+2*i+1}")
        for i in range(8):
            A(f"v_lshlrev_b32 v{SB+2*i}, 16, v{QB+i}"); A(f"v_and_b32 v{SB+2*i+1}, 0xffff0000, v{QB+i}")
        A(f"v_max3_f32 v1, v{SB}, v{SB+1}, v{SB+2}")
        A(f"v_max3_f32 v2, v{SB+3}, v{SB+4}, v{SB+5}")
        A(f"v_max3_f32 v1, v1, v{SB+6}, v{SB+7}")
        A(f"v_max3_f32 v2, v2, v{SB+8}, v{SB+9}")
        A(f"v_max3_f32 v1, v1, v{SB+10}, v{SB+11}")
        A(f"v_max3_f32 v2, v2, v{SB+12}, v{SB+13}")
        A(f"v_max3_f32 v1, v1, v{SB+14}, v{SB+15}")
        A("v_max_f32 v1, v1, v2")
        self.allred_rows("v_max_f32", 1, 2)
        A("v_mul_f32 v1, s41, v1")
        A("s_mov_b64 exec, 15")
        A(f"ds_write_b32 v3, v1 offset:{L_M}")
        self.cnt(8, f"v{QB+15}")
        A("s_mov_b64 exec, -1")
        self.stamp(5)
        nxt()
        self.stamp(6)
        self.mspin("m", QB, 1)
        for i in range(16):
            A(f"v_fma_f32 v{SB+i}, v{SB+i}, s41, -v1")
        for i in range(16):
            A(f"v_exp_f32 v{SB+i}, v{SB+i}")
        nxt()
        for i in range(8):
            A(f"v_cvt_pk_bf16_f32 v{QB+i}, v{SB+2*i}, v{SB+2*i+1}")
        for i in range(4):
            A(f"v_pk_add_f32 {v2(SB+2*i)}, {v2(SB+2*i)}, {v2(SB+8+2*i)}")
        for i in range(2):
            A(f"v_pk_add_f32 {v2(SB+2*i)}, {v2(SB+2*i)}, {v2(SB+4+2*i)}")
        A(f"v_pk_add_f32 {v2(SB)}, {v2(SB)}, {v2(SB+2)}")
        A(f"v_add_f32 v{SB+8}, v{SB}, v{SB+1}")
        self.allred_rows("v_add_f32", SB+8, SB)
        OB, P0, P1 = 8, 40, 72
        A("s_mov_b64 exec, 15")
        A(f"ds_write_b32 v3, v{SB+8} offset:{L_L}")
        self.cnt(20, f"v{QB+15}")
        A("s_mov_b64 exec, -1")
        self.stamp(7)
        def need(j):
            upto(min(31, j + self.N + (1 if j + self.N + 1 >= self.up else 0)))
            A(f"s_waitcnt vmcnt({st['i'] - 1 - j})")
        BM0, BM1, MK = 16, 40, 32
        def spread(dst, src):
            for i in range(4):
                for q in range(4):
                    if i == 0: A(f"v_and_b32 v{dst+q}, v{src+q}, v{MK}")
                    else: self.dpp("v_and_b32", dst+4*i+q, src+q, MK+i, f"row_ror:{4*i}")
        JO = (0, 4, 1, 5, 2, 6, 3, 7)
        self.masks(MK, QB+14)
        if st["i"] < 24: nxt()
        spread(BM0, QB)
        need(23)
        self.perms(P0, VB, pairs=(0, 1))
        if st["i"] < 32: nxt()
        self.perms(P0, VB, pairs=(2, 3))
        for j in JO:
            A(f"v_mfma_f32_16x16x32_bf16 {v4(OB+4*(j>>2))}, {v4(P0+4*j)}, {v4(BM0+4*(j&3))}, {v4(OB+4*(j>>2)) if j & 3 else 0}")
        self.stamp(8)
        need(25)
        self.perms(P1, VB+32, pairs=(0,))
        spread(BM1, QB+4)
        A("s_cmp_ge_u32 s33, 8"); A("s_cbranch_scc1 L_S_nr")
        A(f"s_mul_i32 s3, s33, {OH}"); A(f"s_add_u32 s3, s3, {L_O - 4*OH}")
        A(f"v_lshl_add_u32 v{SB+9}, v0, 3, s3")
        A("s_lshl_b32 s3, s33, 5"); A("s_sub_u32 s3, s3, 128"); A(f"v_mov_b32 v{SB+10}, s3")
        A("s_lshl_b32 s3, s29, 3"); A("s_add_u32 s3, s3, s28"); A("s_lshl_b32 s3, s3, 2"); A("s_add_u32 s3, s3, s33"); A("s_sub_u32 s3, s3, 4")
        A("s_lshl_b32 s3, s3, 2"); A("s_add_u32 s3, s3, s32"); A("s_lshl_b32 s3, s3, 2"); A("s_add_u32 s3, s3, s31")
        A("s_lshl_b32 s46, s3, 9"); A(f"s_add_u32 s46, s46, {OP}")
        A(f"v_lshlrev_b32 v{SB+11}, 3, v0")
        A(f"v_mov_b32 v{SB+13}, s34")
        self.ldsspin("l", 20, 8, [f"ds_read_b128 {v4(SB)}, v{SB+10} offset:{L_L}", f"ds_read_b128 {v4(SB+4)}, v{SB+10} offset:{L_L+16}",
                                  f"ds_read_b32 v1, v7 offset:{L_F+12}"], sleep=2)
        A("v_readfirstlane_b32 s45, v1")
        A(f"v_pk_add_f32 {v2(SB)}, {v2(SB)}, {v2(SB+4)}"); A(f"v_pk_add_f32 {v2(SB+2)}, {v2(SB+2)}, {v2(SB+6)}")
        A(f"v_pk_add_f32 {v2(SB)}, {v2(SB)}, {v2(SB+2)}")
        A(f"v_add_f32 v{SB+14}, v{SB}, v{SB+1}")
        A(f"v_rcp_f32 v{SB+14}, v{SB+14}")
        self.lab("L_S_nr")
        for q in range(1, 4):
            if q == 3 and 33 in (self.wj, self.wj2):
                need(30); trig(33)
            need(25 + 2*q)
            if q == 2: trig(32)
            if q == 2: A("s_setprio 3")
            if q == 3: trig(34); self.stamp(9)
            else: self.perms(P1, VB+32, pairs=(q,))
        for k in range(11):
            if k < 8:
                j = JO[k]; A(f"v_perm_b32 v{P1+4*j+3}, v{VB+32+28+(j>>1)}, v{VB+32+24+(j>>1)}, s{36+(j&1)}")
            if k >= 2 and k < 10:
                j = JO[k-2]; A(f"v_mfma_f32_16x16x32_bf16 {v4(OB+4*(j>>2))}, {v4(P1+4*j)}, {v4(BM1+4*(j&3))}, {v4(OB+4*(j>>2))}")
        self.xs("sm")
        A("s_cmp_ge_u32 s33, 8")
        self.nop(7)
        A(f"ds_write_b128 v{QB+13}, {v4(OB)}")
        A(f"ds_write_b128 v{QB+13}, {v4(OB+4)} offset:64")
        self.xs("sw")
        A("s_waitcnt lgkmcnt(0)")
        self.xs("sd")
        A("s_barrier")
        self.stamp(10)
        A("s_cbranch_scc1 L_S_x")
        for w in range(8): A(f"ds_read_b64 {v2(8+2*w)}, v{SB+9} offset:{OW*w}")
        A("s_cmp_lg_u32 s45, 0")
        A("s_waitcnt lgkmcnt(4)")
        A("v_pk_add_f32 v[8:9], v[8:9], v[10:11]"); A("v_pk_add_f32 v[12:13], v[12:13], v[14:15]")
        A("s_waitcnt lgkmcnt(2)")
        A("v_pk_add_f32 v[16:17], v[16:17], v[18:19]"); A("v_pk_add_f32 v[8:9], v[8:9], v[12:13]")
        A("s_waitcnt lgkmcnt(0)")
        self.xs("sr")
        A("v_pk_add_f32 v[20:21], v[20:21], v[22:23]"); A("v_pk_add_f32 v[8:9], v[8:9], v[16:17]")
        A("v_pk_add_f32 v[8:9], v[8:9], v[20:21]")
        A(f"v_pk_mul_f32 v[8:9], v[8:9], {v2(SB+14)} op_sel_hi:[1,0]")
        A(f"v_cvt_pk_bf16_f32 v{SB+12}, v8, v9")
        A("s_cbranch_scc1 L_S_y2")
        A(f"buffer_store_dwordx2 {v2(SB+12)}, v{SB+11}, s[12:15], s46 offen" + ["", " sc1", " nt", " sc0 sc1"][self.owt])
        self.lab("L_S_x")
        self.stamp(11)
        if self.stamps and not self.nos:
            A("s_sleep 127"); A("s_sleep 127")
            self.stamp_out("S")
        A("s_endpgm")
        self.lab("L_C")
        self.vz = "v110"
        A("s_load_dword s34, s[12:13], 0")
        A("s_load_dwordx2 s[20:21], s[0:1], s3 offset:32")
        A("s_load_dwordx2 s[52:53], s[0:1], 80")
        A("s_load_dwordx2 s[56:57], s[0:1], 88")
        A(f"s_mov_b32 s14, {WS_BYTES}"); A("s_mov_b32 s15, 0x20000")
        A("s_mov_b32 s22, 0x400000"); A("s_mov_b32 s23, 0x20000")
        A("s_mov_b32 s36, 0x05040100"); A("s_mov_b32 s37, 0x07060302")
        A("s_mov_b32 s54, 1024"); A("s_mov_b32 s55, 0x20000")
        A("s_mov_b32 s58, 4096"); A("s_mov_b32 s59, 0x20000")
        A("s_lshl_b32 s45, s29, 1"); A("s_lshr_b32 s3, s28, 2"); A("s_add_u32 s45, s45, s3")
        A("v_lshlrev_b32 v109, 4, v0")
        A("s_lshl_b32 s3, s29, 5"); A("s_add_u32 s47, s44, s3")
        A("v_mov_b32 v110, 0"); A("v_mov_b32 v111, 1"); A("v_mov_b32 v133, 1024")
        A("v_lshlrev_b32 v127, 3, v0")
        A(f"v_mul_u32_u24 v122, {RU}, v4")
        A(f"v_mul_u32_u24 v7, {RB}, v5"); A("v_add_u32 v7, v7, v122"); A("v_lshl_add_u32 v7, v6, 4, v7")
        A(f"s_mul_i32 s3, s33, {RW}"); A(f"s_add_u32 s3, s3, {L_R}"); A("v_add_u32 v7, s3, v7")
        A("v_lshl_add_u32 v122, v6, 5, v122"); A("v_lshl_add_u32 v122, v5, 2, v122")
        A(f"s_mul_i32 s3, s33, {RB}"); A(f"s_add_u32 s3, s3, {L_R}"); A("v_add_u32 v122, s3, v122")
        A(f"v_add_u32 v123, {RW}, v122"); A(f"v_add_u32 v124, {2*RW}, v122"); A(f"v_add_u32 v125, {3*RW}, v122")
        self.masks(CK, 6)
        A("s_lshl_b32 s46, s47, 2"); A("s_add_u32 s46, s46, s32"); A("s_lshl_b32 s46, s46, 2"); A("s_add_u32 s46, s46, s33")
        A("s_lshl_b32 s46, s46, 9"); A(f"s_add_u32 s46, s46, {QP}")
        A("s_lshl_b32 s4, s29, 3"); A("s_add_u32 s4, s4, s28"); A("s_lshl_b32 s4, s4, 2"); A("s_add_u32 s4, s4, s33")
        A("s_lshl_b32 s4, s4, 2"); A("s_add_u32 s4, s4, s31"); A("s_lshl_b32 s4, s4, 2"); A("s_add_u32 s4, s4, s32")
        A("s_lshl_b32 s4, s4, 3"); A(f"s_add_u32 s4, s4, {SP}")
        if self.rm >= 0:
            A("s_sub_u32 s3, s32, s31"); A("s_add_u32 s44, s44, s3"); A("s_add_u32 s47, s47, s3")
            A(f"s_add_u32 s32, s31, {self.rm}"); A("s_and_b32 s32, s32, 3")
        A("s_mov_b32 s41, 0")
        A("s_getreg_b32 s30, hwreg(HW_REG_XCC_ID, 0, 4)")
        if self.forcey: A("s_lshr_b32 s30, s2, 3"); A("s_and_b32 s30, s30, 1")
        A("s_lshl_b32 s3, s45, 10")
        A("s_waitcnt lgkmcnt(0)")
        if self.lean: A("s_cmp_eq_u32 s33, 0"); A("s_cselect_b64 exec, -1, 1")
        A("buffer_load_dwordx4 v[112:115], v109, s[24:27], s3 offen")
        A("buffer_load_dwordx4 v[116:119], v109, s[52:55], 0 offen")
        if self.lean: A("s_mov_b64 exec, -1")
        for e in range(self.cw, 8):
            A(f"s_waitcnt vmcnt({self.cw-1 + (2 if e < 2*self.cw else 0)})")
            wql(e)
        if self.wqr:
            A("s_mov_b32 s3, 0x02020202"); A("v_mul_lo_u32 v140, v4, s3"); A("v_xor_b32 v140, 0x03020100, v140")
            for q in range(4): A(f"v_perm_b32 v{XB+q}, v{136 + (q ^ 1)}, v{136 + q}, v140")
        A("s_mul_i32 s34, s34, 1664525"); A("s_add_u32 s34, s34, 1013904223")
        A("v_mov_b32 v129, s34")
        A("s_and_b32 s3, s34, -16"); A("s_or_b32 s30, s30, s3")
        A("v_and_b32 v160, 1, v0"); A("v_lshlrev_b32 v160, 4, v160")
        A("v_lshrrev_b32 v166, v160, s30"); A("v_lshrrev_b32 v160, v160, s34")
        A("v_bfe_u32 v167, v166, 8, 8"); A("v_bfe_u32 v161, v160, 8, 8")
        A("v_and_b32 v166, 0xff, v166"); A("v_and_b32 v160, 0xff, v160")
        A("s_movk_i32 s11, 0xff"); A("s_and_b32 s30, s30, 0xffff"); A("s_mov_b32 s10, 0x0c0c0400")
        SG = 136
        CF = 144
        OG = 152
        ol = [f"buffer_load_dwordx2 {v2(OG+2*s)}, v1, s[12:15], s{39 if s < 2 else 48} offen offset:{2048*(s&1)}{pol}" for s in range(4)]
        stl = [f"buffer_load_dwordx4 {v4(SG+4*s)}, v57, s[12:15], s35 offen offset:{16*s}{pol}" for s in range(2)]
        self.lab("L_tile")
        for q in range(3):
            A(f"s_waitcnt vmcnt({6-2*q})")
            self.perms(PB, WB, pairs=(q,))
        A("s_cmp_eq_u32 s41, 0"); A("s_cbranch_scc0 L_t1")
        A("s_waitcnt vmcnt(0)")
        self.perms(PB, WB, pairs=(3,))
        self.stamp(2); A("s_branch L_mm")
        self.lab("L_t1")
        for l in ol: A(l)
        A(f"s_mov_b32 s38, {self.spin}")
        A("s_waitcnt vmcnt(4)")
        self.perms(PB, WB, pairs=(3,))
        self.stamp(7)
        A("s_branch L_og")
        self.lab("L_ogr")
        self.xs("or")
        if self.osleep: A(f"s_sleep {self.osleep}")
        for l in ol: A(l)
        self.lab("L_og")
        A("s_waitcnt vmcnt(0)")
        self.xs("ow")
        A(f"v_xor_b32 v20, s34, v{OG+1}")
        for s in range(1, 4): A(f"v_bitop3_b32 v20, v{OG+1+2*s}, s34, v20 bitop3:0xbe")
        A("s_sub_u32 s38, s38, 1")
        A("v_cmp_ne_u32 vcc, 0, v20")
        A("s_cbranch_scc1 L_ogd")
        A("s_cbranch_vccnz L_ogr")
        self.lab("L_ogd")
        if "oc" in self.xst: A(f"s_sub_u32 s80, {self.spin}, s38"); A("s_mov_b32 s81, 0")
        A("s_mov_b64 exec, s[6:7]")
        A(f"buffer_store_dword v129, v135, s[12:15], 0 offen{pol}")
        A("s_mov_b64 exec, -1")
        for s in (0, 2, 1, 3):
            A(f"v_lshlrev_b32 v{24+2*s}, 16, v{OG+2*s}"); A(f"v_and_b32 v{25+2*s}, 0xffff0000, v{OG+2*s}")
        self.stamp(8)
        A(f"v_pk_mul_f32 v[24:25], v[24:25], {v2(CF)} op_sel_hi:[1,0]")
        A(f"v_pk_mul_f32 v[28:29], v[28:29], {v2(CF+4)} op_sel_hi:[1,0]")
        A(f"v_pk_fma_f32 v[24:25], v[26:27], {v2(CF+2)}, v[24:25] op_sel_hi:[1,0,1]")
        A(f"v_pk_fma_f32 v[28:29], v[30:31], {v2(CF+6)}, v[28:29] op_sel_hi:[1,0,1]")
        A(f"v_pk_add_f32 v[24:25], v[24:25], v[28:29]")
        A(f"v_cvt_pk_bf16_f32 v{XB}, v24, v25"); self.nop(2)
        self.lab("L_mm")
        self.xs("mm")
        sp = [(i, q) for i in range(4) for q in range(4)]
        def spr(n):
            for _ in range(n):
                if sp:
                    i, q = sp.pop(0); self.dpp("v_and_b32", XM+4*i+q, XB, CK+i, f"quad_perm:[{q},{q},{q},{q}]")
        spr(6)
        for j in (0, 4, 1, 5, 2, 6, 3, 7):
            A(f"v_mfma_f32_16x16x32_bf16 {v4(DB+4*(j>>2))}, {v4(PB+4*j)}, {v4(XM+4*(j&3))}, {v4(DB+4*(j>>2)) if j & 3 else 0}")
            spr(2)
        self.xs("mf")
        A("s_cmp_eq_u32 s41, 0")
        self.nop(7)
        A(f"ds_write_b128 v7, {v4(DB)}")
        A(f"ds_write_b128 v7, {v4(DB+4)} offset:64")
        A("s_cbranch_scc0 L_fin")
        self.cnt(0, "v111")
        A("s_mov_b64 exec, -1")
        rd = [f"ds_read2_b32 {v2(12+2*i)}, v{122+i} offset0:0 offset1:4" for i in range(4)]
        self.ldsspin("c", 0, 4, rd, sleep=0)
        A("v_pk_add_f32 v[12:13], v[12:13], v[14:15]"); A("v_pk_add_f32 v[16:17], v[16:17], v[18:19]")
        A("v_pk_add_f32 v[12:13], v[12:13], v[16:17]")
        A("v_bfi_b32 v164, s11, v166, v12"); A("v_bfi_b32 v165, s11, v167, v13")
        A("buffer_store_dwordx2 v[164:165], v127, s[12:15], s46 offen" + ["", " sc1", " nt", " sc0 sc1"][self.qwt])
        self.stamp(3)
        if self.pretouch:
            A("s_lshl_b32 s3, s32, 2"); A("s_add_u32 s3, s3, s33"); A("s_lshl_b32 s3, s3, 9")
            A("s_lshl_b32 s40, s47, 13"); A("s_add_u32 s3, s3, s40"); A(f"s_add_u32 s3, s3, {OP}")
            A("s_or_b32 s40, s32, s33"); A("s_cbranch_scc1 L_pt")
            A("s_lshl_b32 s40, s47, 7"); A(f"s_add_u32 s40, s40, {SP}")
            A("s_load_dword s49, s[12:13], s40")
            self.lab("L_pt")
            for i in range(4): A(f"s_load_dword s49, s[12:13], s3 offset:{128*i}")
        for i in range(4):
            A(f"v_lshlrev_b32 v{24+2*i}, 16, v{112+i}"); A(f"v_and_b32 v{25+2*i}, 0xffff0000, v{112+i}")
            A(f"v_lshlrev_b32 v{32+2*i}, 16, v{116+i}"); A(f"v_and_b32 v{33+2*i}, 0xffff0000, v{116+i}")
        for i in range(4):
            A(f"v_pk_mul_f32 {v2(24+2*i)}, {v2(24+2*i)}, {v2(32+2*i)}")
        for i in range(4):
            A(f"v_cvt_pk_bf16_f32 v{32+i}, v{24+2*i}, v{25+2*i}")
        for i in range(4):
            A(f"v_lshlrev_b32 v{24+2*i}, 16, v{32+i}"); A(f"v_and_b32 v{25+2*i}, 0xffff0000, v{32+i}")
        A("v_pk_add_f32 v[24:25], v[24:25], v[28:29]"); A("v_pk_add_f32 v[26:27], v[26:27], v[30:31]")
        A("v_pk_add_f32 v[24:25], v[24:25], v[26:27]"); A("v_add_f32 v8, v24, v25")
        for ror in (8, 4, 2, 1):
            self.nop(2); self.dpp("v_add_f32", 8, 8, 8, f"row_ror:{ror}")
        self.allred_rows("v_add_f32", 8, 9)
        A("v_cvt_pk_bf16_f32 v8, v8, v8"); A("v_lshlrev_b32 v8, 16, v8")
        A(f"v_mul_f32 v8, {0xbfb8aa3b}, v8"); A("v_exp_f32 v8, v8"); self.nop(1)
        A("v_add_f32 v8, 1.0, v8"); A("v_rcp_f32 v8, v8"); self.nop(1)
        A("v_cvt_pk_bf16_f32 v8, v8, v8"); A("v_lshlrev_b32 v8, 16, v8")
        A("v_sub_f32 v9, 1.0, v8"); A("v_cvt_pk_bf16_f32 v9, v9, v9"); A("v_lshlrev_b32 v9, 16, v9")
        A("v_cmp_gt_u32 vcc, 32, v0")
        A("s_lshl_b32 s39, s29, 3"); A("s_add_u32 s39, s39, s28"); A("s_lshl_b32 s39, s39, 2"); A("s_add_u32 s39, s39, s33")
        A("v_cndmask_b32 v120, v9, v8, vcc")
        A("s_lshl_b32 s39, s39, 4"); A("s_add_u32 s39, s39, s31"); A("s_lshl_b32 s39, s39, 9"); A(f"s_add_u32 s39, s39, {QP}")
        A("s_add_u32 s60, s39, 4096")
        A("s_mov_b32 s63, 0")
        A("v_mov_b32 v18, 0")
        A("v_lshlrev_b32 v19, 11, v6")
        A(f"s_mov_b32 s38, {self.n0}"); A(f"s_mov_b32 s62, {self.spin}")
        self.stamp(13)
        D = self.qdepth
        ld = lambda i: A(f"buffer_load_dwordx2 {v2(40+2*i)}, v19, s[12:15], s39 offen{pol}")
        qg = lambda vo: [f"buffer_load_dwordx2 {v2(24+2*i)}, {vo}, s[12:15], s{39 if i < 2 else 60} offen offset:{2048*(i&1)}{pol}" for i in range(4)]
        for i in range(D - 1):
            ld(i); A(f"s_sleep {self.qsleep}")
        self.lab("L_qf")
        for i in range(D):
            ld((i + D - 1) % D)
            A(f"s_waitcnt vmcnt({D-1})")
            A(f"v_perm_b32 v20, v{41+2*i}, v{40+2*i}, s10")
            A("v_cmp_ne_u32 vcc, s30, v20")
            A("s_cmp_eq_u64 vcc, 0"); A("s_cbranch_scc1 L_qfd")
        self.lab("L_qfr")
        A("s_sub_u32 s38, s38, 1")
        A("s_cbranch_scc0 L_qf")
        A("s_branch L_slow")
        self.lab("L_qfd")
        self.stamp(14)
        for l in qg("v127"): A(l)
        A(f"s_mul_i32 s3, s33, {QH}"); A("v_lshl_add_u32 v16, v0, 2, s3")
        A("v_lshlrev_b32 v1, 11, v4"); A("v_lshl_add_u32 v1, v3, 4, v1")
        A("s_lshl_b32 s48, s44, 17"); A("s_lshl_b32 s3, s33, 15"); A("s_add_u32 s48, s48, s3")
        A("s_lshl_b32 s3, s32, 8"); A("s_add_u32 s48, s48, s3")
        A("s_waitcnt vmcnt(0) lgkmcnt(0)")
        self.untag(24, 166, 8)
        A("v_cmp_ne_u32 vcc, 0, v8"); A("s_cmp_eq_u64 vcc, 0"); A("s_cbranch_scc0 L_qfr")
        self.lab("L_qok")
        A("v_pk_add_f32 v[24:25], v[24:25], v[26:27]"); A("v_pk_add_f32 v[28:29], v[28:29], v[30:31]")
        A("v_pk_add_f32 v[24:25], v[24:25], v[28:29]")
        A("v_cvt_pk_bf16_f32 v17, v24, v25")
        A(f"ds_write_b32 v16, v17 offset:{L_Q}")
        self.cnt(12, "v18")
        A(f"ds_add_u32 v110, v111 offset:{L_F+4}")
        A("s_mov_b64 exec, -1")
        self.stamp(4)
        self.lab("L_vd")
        A(f"ds_read_b32 v2, v110 offset:{L_F+4}")
        A(f"ds_read2_b32 v[134:135], v133 offset0:{(L_F+12)//4 - 256} offset1:{(L_F+16)//4 - 256}")
        A("s_waitcnt lgkmcnt(0)")
        A("v_readfirstlane_b32 s40, v2"); A("v_readfirstlane_b32 s3, v135"); A("v_readfirstlane_b32 s49, v134")
        A("s_andn2_b32 s3, s3, s63"); A("s_cbranch_scc1 L_puby2")
        A("s_cmp_ge_u32 s40, 4"); A("s_cbranch_scc1 L_vdd")
        A("s_sleep 2"); A("s_sub_u32 s62, s62, 1"); A("s_cbranch_scc0 L_vd")
        self.lab("L_vdd")
        A("s_lshl_b32 s3, s33, 5"); A("v_mov_b32 v56, s3")
        self.ldsspin("l2", 20, 8, [f"ds_read_b128 v[40:43], v56 offset:{L_M}", f"ds_read_b128 v[44:47], v56 offset:{L_M+16}",
                                   f"ds_read_b128 v[48:51], v56 offset:{L_L}", f"ds_read_b128 v[52:55], v56 offset:{L_L+16}"], sleep=4)
        A("v_max3_f32 v40, v40, v41, v42"); A("v_max3_f32 v43, v43, v44, v45"); A("v_max3_f32 v40, v40, v46, v47")
        A("v_pk_add_f32 v[48:49], v[48:49], v[52:53]"); A("v_pk_add_f32 v[50:51], v[50:51], v[54:55]")
        A("v_pk_add_f32 v[48:49], v[48:49], v[50:51]"); A("v_add_f32 v48, v48, v49")
        A("v_log_f32 v48, v48"); A("v_max_f32 v40, v40, v43")
        A("s_cmp_lg_u32 s49, 0")
        A("v_add_f32 v128, v40, v48")
        A("s_mov_b64 exec, 1")
        A("s_cbranch_scc1 L_S_y1")
        A("buffer_store_dwordx2 v[128:129], v110, s[12:15], s4 offen")
        self.lab("L_S_y1r")
        A("s_mov_b64 exec, -1")
        A("s_cmp_lg_u32 s49, 0"); A(f"s_cselect_b32 s49, {YD}, 0")
        A("s_lshl_b32 s35, s47, 7"); A(f"s_add_u32 s35, s35, {SP}"); A("s_add_u32 s35, s35, s49")
        A("v_lshlrev_b32 v57, 5, v5")
        self.poll("s", stl, [SG+1, SG+3, SG+5, SG+7], 20, sleep=self.ssleep)
        self.stamp(15)
        A(f"v_max3_f32 v20, v{SG}, v{SG+2}, v{SG+4}"); A(f"v_max_f32 v20, v20, v{SG+6}")
        for s in range(4): A(f"v_sub_f32 v{CF+2*s}, v{SG+2*s}, v20")
        for s in range(4): A(f"v_exp_f32 v{CF+2*s}, v{CF+2*s}")
        self.nop(1)
        A(f"v_add_f32 v20, v{CF}, v{CF+2}"); A(f"v_add_f32 v21, v{CF+4}, v{CF+6}"); A("v_add_f32 v20, v20, v21")
        A("v_rcp_f32 v20, v20"); self.nop(1)
        for s in range(4): A(f"v_mul_f32 v{CF+2*s}, v{CF+2*s}, v20")
        for e in range(8):
            if e == self.wo1: self.ldsspin("w", 24, self.th1, [], sleep=2)
            if e == self.wa: self.ldsspin("w2", 24, self.th2, [], sleep=1)
            if e == self.wo_early: A("s_setprio 0")
            A(f"buffer_load_dwordx4 {v4(WB+4*e)}, v1, s[20:23], s48 offen offset:{1024*(e>>2)}{nt}")
            if e == 3: A("s_sub_u32 s48, s48, 24576")
            elif e < 7: A("s_add_u32 s48, s48, 8192")
        A("s_setprio 3")
        self.stamp(5)
        A("s_lshl_b32 s39, s47, 13"); A("s_lshl_b32 s3, s33, 7"); A("s_add_u32 s39, s39, s3"); A(f"s_add_u32 s39, s39, {OP}")
        A("s_add_u32 s39, s39, s49"); A("s_add_u32 s48, s39, 4096")
        A("v_lshlrev_b32 v1, 9, v5"); A("v_lshl_add_u32 v1, v4, 5, v1"); A("v_lshl_add_u32 v1, v6, 3, v1")
        A("s_lshl_b32 s63, s32, 17"); A(f"s_add_u32 s63, s63, {FP}")
        A("s_lshl_b32 s3, s47, 11"); A("s_add_u32 s46, s63, s3"); A("s_lshl_b32 s3, s33, 9"); A("s_add_u32 s46, s46, s3")
        A("v_lshrrev_b32 v121, 2, v0"); A("v_lshlrev_b32 v121, 11, v121"); A("v_lshl_add_u32 v121, v6, 3, v121")
        A("s_lshl_b32 s3, s47, 5"); A("s_add_u32 s63, s63, s3")
        A("s_add_u32 s60, s63, 0x8000"); A("s_add_u32 s61, s63, 0x10000"); A("s_add_u32 s62, s63, 0x18000")
        A("s_lshl_b32 s45, s45, 10"); A("s_lshl_b32 s3, s32, 8"); A("s_add_u32 s45, s45, s3")
        A("s_and_b32 s3, s47, 15"); A("s_lshl_b32 s3, s3, 4"); A("s_add_u32 s45, s45, s3")
        A("v_lshlrev_b32 v126, 2, v6"); A("v_lshl_add_u32 v126, v4, 1, v126")
        A("s_mov_b32 s41, 1")
        A("s_and_b32 s49, s44, 3"); A("s_or_b32 s49, s49, s32"); A("s_or_b32 s49, s49, s33")
        A(f"s_cselect_b64 s[6:7], 0, {(1 << self.er) - 1}")
        A("s_lshr_b32 s3, s47, 2"); A("s_lshl_b32 s3, s3, 10"); A(f"s_add_u32 s3, s3, {EP}"); A("v_lshl_add_u32 v135, v0, 7, s3")
        A("v_lshlrev_b32 v134, 10, v3"); A(f"v_add_u32 v134, {EP}, v134")
        if self.er > self.ed:
            A(f"s_lshr_b32 s3, s2, 3"); A(f"s_and_b32 s3, s3, {self.er // self.ed - 1}"); A(f"s_mul_i32 s3, s3, {128 * self.ed}"); A("v_add_u32 v134, s3, v134")
        A("s_barrier")
        self.stamp(6)
        A("s_branch L_tile")
        self.lab("L_fin")
        self.xs("wr")
        if self.b4spin:
            self.cnt(28, "v111")
            A("s_mov_b64 exec, -1")
            self.ldsspin("c2", 28, 4, rd, sleep=0)
        else:
            A("s_mov_b64 exec, -1")
            A("s_waitcnt lgkmcnt(0)")
            self.xs("wd")
            A("s_barrier")
            self.xs("bar")
            for r in rd: A(r)
            A("s_waitcnt lgkmcnt(2)")
        A("v_pk_add_f32 v[12:13], v[12:13], v[14:15]")
        A("s_waitcnt lgkmcnt(0)")
        A("v_pk_add_f32 v[16:17], v[16:17], v[18:19]")
        self.xs("rd")
        A("v_pk_add_f32 v[12:13], v[12:13], v[16:17]")
        A("v_bfi_b32 v12, s11, v160, v12"); A("v_bfi_b32 v13, s11, v161, v13")
        A(f"buffer_store_dwordx2 v[12:13], v127, s[12:15], s46 offen{pol}")
        self.stamp(9)
        if self.wbl == 1:
            A("s_lshr_b32 s3, s2, 3"); A("s_lshl_b32 s3, s3, 2"); A("s_add_u32 s5, s3, s33"); A("s_cmp_eq_u32 s5, 1"); A("s_cbranch_scc1 L_wb1")
        if self.wbl == 2:
            A("s_lshr_b32 s3, s2, 3"); A("s_lshl_b32 s3, s3, 2"); A("s_add_u32 s5, s3, s33"); A("s_cmp_eq_u32 s5, 1"); A("s_cbranch_scc0 L_wb1")
            A("buffer_wbl2 sc1")
            self.lab("L_wb1")
        A("s_cmp_lg_u32 s33, 0"); A("s_cbranch_scc1 L_C_exit")
        if self.wbl == 1: self.lab("L_wb1")
        if self.fdelay: A(f"s_sleep {self.fdelay}")
        if self.eta:
            if self.ed == 1:
                self.poll("e", [f"buffer_load_dword v41, v134, s[12:15], 0 offen{pol}"], [41], 40)
            else:
                D = self.ed
                A("s_mov_b64 exec, 0xffff")
                el = lambda i: A(f"buffer_load_dword v{41+i}, v134, s[12:15], 0 offen offset:{128 * (i % self.er)}{pol}")
                A(f"s_mov_b32 s38, {self.spin}")
                for i in range(D - 1):
                    el(i); A(f"s_sleep {self.es}")
                self.lab("L_ep")
                for i in range(D):
                    el((i + D - 1) % D)
                    A(f"s_waitcnt vmcnt({D-1})")
                    A(f"v_cmp_ne_u32 vcc, s34, v{41+i}")
                    A("s_cmp_eq_u64 vcc, 0"); A("s_cbranch_scc1 L_epd")
                A("s_sub_u32 s38, s38, 1"); A("s_cbranch_scc0 L_ep")
                self.lab("L_epd")
                A("s_mov_b64 exec, -1")
            self.stamp(12)
            if self.wbl == 1:
                A("s_cmp_eq_u32 s33, 0"); A("s_cbranch_scc1 L_wb2")
                A("buffer_wbl2 sc1"); A("s_branch L_C_exit")
                self.lab("L_wb2")
            if self.edly: A(f"s_sleep {self.edly}")
            self.lab("L_eok")
        self.poll("f", [f"buffer_load_dwordx2 {v2(24+2*i)}, v121, s[12:15], s{(63,60,61,62)[i]} offen{pol}" for i in range(4)],
                  list(range(24, 32)), 40, sleep=self.fsleep, tv=160)
        self.stamp(10)
        if self.stamps and not self.amp and not self.xst: A(f"s_sub_u32 s66, {self.spin}, s38"); A("s_mov_b32 s67, 0")
        A("v_pk_add_f32 v[24:25], v[24:25], v[26:27]"); A("v_pk_add_f32 v[28:29], v[28:29], v[30:31]")
        self.nop(2)
        A("v_permlane32_swap_b32 v24, v28"); A("v_permlane32_swap_b32 v25, v29")
        A("v_pk_add_f32 v[24:25], v[24:25], v[28:29]"); self.nop(2)
        A("v_permlane16_swap_b32 v24, v25")
        A("v_add_f32 v24, v24, v25"); self.nop(2)
        self.dpp("v_add_f32", 24, 24, 24, "row_ror:4"); self.nop(2)
        self.dpp("v_add_f32", 24, 24, 24, "row_ror:8")
        A("v_cvt_pk_bf16_f32 v24, v24, v24"); A("v_lshlrev_b32 v24, 16, v24")
        A("v_mul_f32 v24, v24, v120")
        A("v_cvt_pk_bf16_f32 v24, v24, v24"); A("v_lshlrev_b32 v24, 16, v24")
        A("v_mov_b32 v25, v24"); self.nop(2)
        A("v_permlane32_swap_b32 v24, v25")
        A("v_add_f32 v24, v24, v25")
        A("v_cvt_pk_bf16_f32 v24, v24, v24")
        A("s_mov_b64 exec, 0x000f000f")
        A("buffer_store_short v24, v126, s[56:59], s45 offen")
        self.xs("fo")
        if self.pad:
            if self.padk >= 0:
                A("s_waitcnt lgkmcnt(0)"); A("s_mov_b32 s90, s92")
            self.lab("L_pad")
            A("s_memrealtime s[94:95]"); A("s_waitcnt lgkmcnt(0)"); A("s_sub_u32 s94, s94, s90")
            A(f"s_cmp_lt_u32 s94, {self.pad}"); A("s_cbranch_scc1 L_pad")
        A("s_cmp_lg_u32 s2, 0"); A("s_cbranch_scc1 L_C_exit")
        A("s_mov_b64 exec, 1")
        A("buffer_store_dword v129, v110, s[12:15], 0 offen")
        self.lab("L_C_exit")
        self.stamp(11)
        if self.stamps: A("s_sleep 127")
        self.stamp_out()
        self.lab("L_end")
        A("s_endpgm")
        self.lab("L_last")
        self.lab("L_S_y1")
        A(f"s_add_u32 s4, s4, {YD}")
        A(f"buffer_store_dwordx2 v[128:129], v110, s[12:15], s4 offen{pol}")
        A("s_branch L_S_y1r")
        self.lab("L_S_y2")
        A(f"s_add_u32 s46, s46, {YD}")
        A(f"buffer_store_dwordx2 {v2(SB+12)}, v{SB+11}, s[12:15], s46 offen{pol}")
        A("s_branch L_S_x")
        def puby():
            A(f"s_add_u32 s3, s46, {YD}")
            A(f"buffer_store_dwordx2 v[164:165], v127, s[12:15], s3 offen{pol}")
            A("s_mov_b32 s63, 1")
        self.lab("L_puby2")
        puby()
        A("s_branch L_vd")
        self.lab("L_slow")
        A("s_cmp_lg_u32 s63, 0"); A("s_cbranch_scc1 L_slow2")
        A(f"ds_write_b32 v110, v111 offset:{L_F+16}")
        puby()
        self.lab("L_slow2")
        A(f"v_add_u32 v9, {YD}, v127")
        for l in qg("v9"): A(l)
        A("v_and_b32 v9, 1, v0"); A("v_mul_u32_u24 v9, 15, v9"); A("v_or_b32 v9, 0xf0, v9")
        A("s_waitcnt vmcnt(0)")
        A("v_xor_b32 v8, v166, v24"); A("v_xor_b32 v10, v167, v25")
        for r in range(26, 32): A(f"v_bitop3_b32 v{8 + 2*(r & 1)}, v{r}, v{166 + (r & 1)}, v{8 + 2*(r & 1)} bitop3:0xbe")
        A("v_and_b32 v10, 0xff, v10"); A("v_and_or_b32 v9, v8, v9, v10"); A("v_and_b32 v10, 15, v8")
        A("s_mov_b32 s38, 0")
        A("v_cmp_ne_u32 vcc, 0, v9"); A("s_cmp_eq_u64 vcc, 0"); A("s_cbranch_scc1 L_slow3")
        A("s_sleep 8")
        A("s_sub_u32 s62, s62, 1"); A("s_cbranch_scc0 L_qf")
        self.lab("L_slow3")
        for r in range(24, 32): A(f"v_and_b32 v{r}, 0xffffff00, v{r}")
        A("v_cmp_ne_u32 vcc, 0, v10"); A("s_cmp_lg_u64 vcc, 0")
        A("s_cselect_b32 s3, 1, 0"); A("v_mov_b32 v18, s3")
        A(f"s_mul_i32 s3, s33, {QH}"); A("v_lshl_add_u32 v16, v0, 2, s3")
        A("v_lshlrev_b32 v1, 11, v4"); A("v_lshl_add_u32 v1, v3, 4, v1")
        A("s_lshl_b32 s48, s44, 17"); A("s_lshl_b32 s3, s33, 15"); A("s_add_u32 s48, s48, s3")
        A("s_lshl_b32 s3, s32, 8"); A("s_add_u32 s48, s48, s3")
        A("s_waitcnt lgkmcnt(0)")
        A("s_branch L_qok")
        L.append('.section .rodata,"a"'); L.append(".p2align 6"); L.append(f".amdhsa_kernel {KN}")
        L.append("  .amdhsa_next_free_vgpr 168"); L.append("  .amdhsa_next_free_sgpr 96"); L.append("  .amdhsa_accum_offset 168")
        L.append("  .amdhsa_group_segment_fixed_size 0"); L.append("  .amdhsa_kernarg_size 112"); L.append("  .amdhsa_user_sgpr_count 2")
        L.append("  .amdhsa_user_sgpr_kernarg_segment_ptr 1"); L.append("  .amdhsa_system_sgpr_workgroup_id_x 1")
        L.append("  .amdhsa_float_denorm_mode_32 3")
        L.append(".end_amdhsa_kernel")
        return "\n".join(L) + "\n"

if __name__ == "__main__":
    out = sys.argv[1]
    kw = {}
    for a in sys.argv[2:]:
        k, v = a.split("=")
        kw[k] = v.replace("+", " ") if k in ("pol", "pat", "pat2", "amp", "only", "xst") else int(v)
    open(out, "w").write(G(**kw).gen())
```

```python
import sys
KN = "gated_mix__sliding_block_cached__sliding_block_cached__decode_kernel"
HDR = open("gated_mix__sliding_block_cached__sliding_block_cached__decode.s.ref").read().split("; Override launch")[0]

FL = 0x1000
YD = 0x400000
OP = 0x100000
SP = 0xC0000
EP = 0xD0000
QP = 0x100000
FP = 0x180000
WS_BYTES = 0x600000
STAMP_OFF = 0x4000000
L_Q = 0
QH = 272
L_M = 1280
L_L = 1408
L_F = 1536
L_O = 2048
OH, OW = 544, 2176
RU, RB, RW = 144, 576, 2304
L_R = L_O + 8*OW
LDS_BYTES = L_R + 4*RW
LOG2E = 0x3fb8aa3b
SCALE = 0x3db504f3
NS = 16

class G:
    def __init__(self, **kw):
        d = dict(padk=-1, pad=0, stamps=0, nt=1, pol="sc1", spin=1 << 16, pf=1, wo_early=0, qsleep=12, forcey=0, pretouch=0,
                 n0=8, qdepth=4, lsplit=1, osleep=0, fsleep=0, b4spin=0, fdelay=0, eta=1, edly=0, tx=0, rm=2, N=3, rot=1, lan=1, qpos=3, wj=31, pat='x0x11x', cw=3, up=99, wo1=0, wj2=-1, wa=8, th1=8, th2=16, opos=4, pr=0, tlbs=0, tlbv=0, lean=1, xdirty=0, qwt=0, owt=0, xperm=0, b0late=0, ed=1, es=4, early=0, ldly=0, ssleep=8, ovl=1, pat2='', lup=99, wbl=0, wqr=0, er=1, dbg=0, amp='', ampf=10, only='', xst='', nos=0, skew=0, alt=0)
        d.update(kw)
        self.__dict__.update(d)
        self.L = []
        self.nt = " nt" if self.nt else ""
        self.pol = " " + self.pol
    def A(self, s): self.L.append("    " + s)
    def lab(self, s): self.L.append(s + ":")
    def nop(self, n):
        while n > 0:
            k = min(n, 16); self.A(f"s_nop {k-1}"); n -= k
    def xs(self, name):
        d = dict(a.split(":") for a in self.xst.split(",")) if self.xst else {}
        if name in d: self.A(f"s_memrealtime s[{64+2*int(d[name])}:{65+2*int(d[name])}]")
    def stamp(self, i):
        if self.only and i not in [0] + [int(a) for a in self.only.split(",")]: return
        if self.amp and i not in [0] + [int(a[1:]) for a in self.amp.split(',')]: return
        if self.padk == i: self.A("s_memrealtime s[92:93]")
        if self.stamps: self.A(f"s_memrealtime s[{64+2*i}:{65+2*i}]")
    def stamp_out(self, cls="C"):
        if not self.stamps: return
        A = self.A
        if self.amp:
            parts = self.amp.split(",")
            anyS = any(a[0].upper() == "S" for a in parts)
            A("s_load_dwordx2 s[62:63], s[0:1], 96")
            A("s_waitcnt lgkmcnt(0)")
            A("s_mov_b64 exec, 1"); A("v_mov_b32 v4, 0"); A("v_mov_b32 v3, 1")
            if cls == "C":
                A("s_not_b32 s60, s64"); A("v_mov_b32 v2, s60"); A("global_atomic_umax v4, v2, s[62:63]")
            for j, a in enumerate(parts):
                if a[0].upper() == cls:
                    A(f"v_mov_b32 v2, s{64+2*int(a[1:])}"); A(f"global_atomic_{'add' if a[0].islower() else 'umax'} v4, v2, s[62:63] offset:{64+4*j}"); A("s_nop 1")
            if cls == "C" or anyS:
                A("s_waitcnt vmcnt(0)"); A("global_atomic_add v4, v3, s[62:63] offset:128")
            if cls == "C":
                n = 1024 + (2048 if anyS else 0)
                A("s_or_b32 s60, s2, s33"); A("s_cmp_lg_u32 s60, 0"); A("s_cbranch_scc1 L_amp_x")
                A("s_mov_b32 s38, 100000")
                self.lab("L_amp_p")
                A("s_sleep 32"); A("global_load_dword v2, v4, s[62:63] offset:128 sc1"); A("s_waitcnt vmcnt(0)"); A("v_readfirstlane_b32 s60, v2")
                A("s_sub_u32 s38, s38, 1"); A("s_cbranch_scc1 L_amp_x")
                A(f"s_cmp_lt_u32 s60, {n}"); A("s_cbranch_scc1 L_amp_p")
                A("global_load_dword v2, v4, s[62:63] sc1"); A("global_load_dwordx2 v[6:7], v4, s[62:63] offset:64 sc1"); A("s_waitcnt vmcnt(0)")
                A("v_readfirstlane_b32 s60, v2"); A("v_readfirstlane_b32 s56, v6"); A("v_readfirstlane_b32 s57, v7"); A("s_not_b32 s60, s60")
                for j, a in enumerate(parts):
                    r = f"s{56+j}"
                    if a[0].islower():
                        sh = 11 if a[0] == "s" else 10
                        A(f"s_lshl_b32 s59, s60, {sh}"); A(f"s_sub_u32 {r}, {r}, s59"); A(f"s_mul_i32 {r}, {r}, {self.ampf}"); A(f"s_lshr_b32 {r}, {r}, {sh}")
                    else:
                        A(f"s_sub_u32 {r}, {r}, s60"); A(f"s_mul_i32 {r}, {r}, {self.ampf}")
                if len(parts) == 2: A("s_sub_u32 s56, s56, s57")
                A("s_add_u32 s61, s56, 15000"); A("s_min_u32 s61, s61, 100000")
                self.lab("L_amp_s")
                A("s_memrealtime s[58:59]"); A("s_waitcnt lgkmcnt(0)"); A("s_sub_u32 s58, s58, s60"); A("s_cmp_lt_u32 s58, s61"); A("s_cbranch_scc1 L_amp_s")
                self.lab("L_amp_x")
            return
        if self.dbg:
            A("s_load_dwordx2 s[62:63], s[0:1], 96")
            A("s_waitcnt lgkmcnt(0)")
            A("s_mov_b64 exec, 1"); A("v_mov_b32 v4, 0")
            A("s_not_b32 s60, s64"); A("v_mov_b32 v2, s60"); A("global_atomic_umax v4, v2, s[62:63]")
            m = {"C": {0: 15, 2: 2, 4: 3, 7: 10, 8: 11, 9: 12, 12: 13, 10: 14}, "S": {1: 1, 2: 4, 3: 5, 7: 6, 9: 7, 10: 8, 11: 9}}[cls]
            for k, d in m.items():
                A(f"v_mov_b32 v2, s{64+2*k}"); A(f"global_atomic_umax v4, v2, s[62:63] offset:{4*d}"); A("s_nop 1")
            if self.dbg == 2:
                m2 = {"C": {7: 16, 0: 17}, "S": {9: 18, 1: 19}}[cls]
                for k, d in m2.items():
                    A(f"v_mov_b32 v2, s{64+2*k}"); A(f"global_atomic_add v4, v2, s[62:63] offset:{4*d}"); A("s_nop 1")
            return
        A("s_waitcnt lgkmcnt(0)")
        A("s_mul_i32 s60, s2, 12"); A("s_add_u32 s60, s60, s33"); A(f"s_mul_i32 s60, s60, {NS*8}")
        A(f"s_add_u32 s60, s60, {STAMP_OFF}")
        A("s_add_u32 s62, s12, s60"); A("s_addc_u32 s63, s13, 0")
        A("s_mov_b64 exec, 1"); A("v_mov_b32 v4, 0")
        for i in range(NS):
            A(f"v_mov_b32 v2, s{64+2*i}"); A(f"v_mov_b32 v3, s{65+2*i}")
            A(f"global_store_dwordx2 v4, v[2:3], s[62:63] offset:{i*8}"); A("s_nop 1")
    def v4(self, r): return f"v[{r}:{r+3}]"
    def v2(self, r): return f"v[{r}:{r+1}]"
    def perms(self, dst, src, pairs=(0, 1, 2, 3)):
        for q in pairs:
            for w in range(4):
                for hh in range(2):
                    j = 2*w + hh
                    self.A(f"v_perm_b32 v{dst+4*j+q}, v{src+4*(2*q+1)+w}, v{src+4*(2*q)+w}, s{36+hh}")
    def allred_rows(self, op, v, t):
        A = self.A
        A(f"v_mov_b32 v{t}, v{v}"); self.nop(2)
        A(f"v_permlane32_swap_b32 v{v}, v{t}")
        A(f"{op} v{v}, v{v}, v{t}")
        A(f"v_mov_b32 v{t}, v{v}"); self.nop(2)
        A(f"v_permlane16_swap_b32 v{v}, v{t}")
        A(f"{op} v{v}, v{v}, v{t}")
    def masks(self, m, bank):
        for i in range(4):
            self.A(f"v_cmp_eq_u32 vcc, {i}, v{bank}"); self.A(f"v_cndmask_b32 v{m+i}, 0, -1, vcc")
    def dpp(self, op, d, a, b, ctl):
        self.A(f"{op}_dpp v{d}, v{a}, v{b} {ctl} row_mask:0xf bank_mask:0xf")
    def poll(self, name, loads, tagregs, acc, first_issued=False, sleep=0, tv=None):
        A = self.A
        A(f"s_mov_b32 s38, {self.spin}")
        if first_issued: A(f"s_branch L_chk_{name}")
        elif sleep: A(f"s_branch L_ld_{name}")
        self.lab(f"L_poll_{name}")
        if sleep: A(f"s_sleep {sleep}")
        self.lab(f"L_ld_{name}")
        for l in loads: A(l)
        self.lab(f"L_chk_{name}")
        A("s_waitcnt vmcnt(0)")
        if tv is None:
            A(f"v_xor_b32 v{acc}, s34, v{tagregs[0]}")
            for r in tagregs[1:]:
                A(f"v_bitop3_b32 v{acc}, v{r}, s34, v{acc} bitop3:0xbe")
        else: self.untag(tagregs[0], tv, acc)
        A("s_sub_u32 s38, s38, 1")
        A(f"v_cmp_ne_u32 vcc, 0, v{acc}")
        A("s_cselect_b64 s[50:51], 0, -1")
        if tv is not None: A("s_wqm_b64 vcc, vcc")
        A("s_and_b64 exec, vcc, s[50:51]")
        A(f"s_cbranch_scc1 L_poll_{name}")
        A("s_mov_b64 exec, -1")
    def untag(self, r0, tv, acc):
        A = self.A
        for r in range(r0, r0 + 8): A(f"v_xor_b32 v{r}, v{tv + (r & 1)}, v{r}")
        A(f"v_or3_b32 v{acc}, v{r0}, v{r0+1}, v{r0+2}"); A(f"v_or3_b32 v{acc+1}, v{r0+3}, v{r0+4}, v{r0+5}")
        A(f"v_or3_b32 v{acc}, v{acc}, v{r0+6}, v{r0+7}")
        A(f"v_bitop3_b32 v{acc}, v{acc}, v{acc+1}, s11 bitop3:0xa8")
    def ldsspin(self, name, off, target, reads, sleep=1):
        A = self.A
        A(f"s_mov_b32 s38, {self.spin * 16}")
        if sleep: A(f"s_branch L_spl_{name}")
        self.lab(f"L_sp_{name}")
        if sleep: A(f"s_sleep {sleep}")
        self.lab(f"L_spl_{name}")
        A(f"ds_read_b32 v2, {self.vz} offset:{L_F+off}")
        for r in reads: A(r)
        A("s_sub_u32 s38, s38, 1")
        A("s_cselect_b32 s3, 0, -1")
        A("s_waitcnt lgkmcnt(0)")
        A("v_readfirstlane_b32 s40, v2")
        A("s_orn2_b32 s40, s40, s3")
        A(f"s_cmp_lt_u32 s40, {target}")
        A(f"s_cbranch_scc1 L_sp_{name}")
    def cnt(self, off, one):
        A = self.A
        A("s_mov_b64 exec, 1")
        A(f"ds_add_u32 {self.vz}, {one} offset:{L_F+off}")
    def vissue(self, VB, p):
        for T in (2*p, 2*p+1):
            for e in range(4):
                self.A(f"buffer_load_dwordx4 {self.v4(VB+16*T+4*e)}, v5, s[8:11], s35 offen offset:{256*e}{self.nt}")
            if T < 3: self.A("s_add_u32 s35, s35, 16384")
    def mspin(self, name, B, d):
        A = self.A
        self.ldsspin(name, 8, 8, [f"ds_read_b128 {self.v4(B)}, v6 offset:{L_M}", f"ds_read_b128 {self.v4(B+4)}, v6 offset:{L_M+16}"], sleep=2)
        A(f"v_max3_f32 v{B}, v{B}, v{B+1}, v{B+2}")
        A(f"v_max3_f32 v{B+3}, v{B+3}, v{B+4}, v{B+5}")
        A(f"v_max3_f32 v{B}, v{B}, v{B+6}, v{B+7}")
        A(f"v_max_f32 v{d}, v{B}, v{B+3}")

    def gen(self):
        A = self.A; nt = self.nt; pol = self.pol; v4 = self.v4; v2 = self.v2
        OP = 0x100000 if self.ovl else 0x40000
        L = self.L
        L.append(HDR.rstrip("\n"))
        L.append(f"; @launch grid=(256,1,1) block=(768,1,1) lds={LDS_BYTES}")
        L.append('.amdgcn_target "amdgcn-amd-amdhsa--gfx950"')
        L.append(".text"); L.append(f".globl {KN}"); L.append(".p2align 12"); L.append(".p2align 8"); L.append(f".type {KN},@function"); L.append(f"{KN}:")
        self.stamp(0)
        if self.pad: A("s_memrealtime s[90:91]")
        if self.stamps:
            for i in range(1, NS): A(f"s_mov_b64 s[{64+2*i}:{65+2*i}], 0")
        if self.xperm == 1:
            A("s_lshr_b32 s3, s2, 3"); A("s_and_b32 s29, s2, 7"); A("s_lshl_b32 s29, s29, 5"); A("s_or_b32 s2, s3, s29")
        if self.xperm == 2:
            A("s_xor_b32 s3, s2, 1"); A("s_and_b32 s29, s2, 0xf8"); A("s_cmp_eq_u32 s29, 0x48"); A("s_cselect_b32 s2, s3, s2")
        if self.skew:
            A("s_and_b32 s3, s2, 7"); A("s_mul_i32 s3, s3, 5"); A("s_and_b32 s3, s3, 7")
            self.lab("L_skew")
            A("s_sub_u32 s3, s3, 1"); A("s_cbranch_scc1 L_skew2"); A(f"s_sleep {self.skew}"); A("s_branch L_skew")
            self.lab("L_skew2")
        A("s_bfe_u32 s29, s2, 0x10002")
        A("s_mul_i32 s3, s29, 40")
        A("s_cmp_ge_u32 s2, 256"); A("s_cbranch_scc1 L_end")
        A("s_load_dwordx2 s[16:17], s[0:1], s3 offset:24")
        A("s_load_dwordx2 s[24:25], s[0:1], 0")
        A("s_load_dwordx2 s[4:5], s[0:1], s3 offset:8")
        A("s_load_dwordx2 s[8:9], s[0:1], s3 offset:16")
        A("s_load_dwordx2 s[12:13], s[0:1], 104")
        A("v_lshrrev_b32 v1, 6, v0")
        A("s_lshr_b32 s30, s2, 3")
        if self.tx: A(f"s_xor_b32 s30, s30, {self.tx}")
        A("v_readfirstlane_b32 s33, v1")
        A("s_and_b32 s28, s2, 3"); A("s_lshl_b32 s28, s28, 1"); A("s_lshr_b32 s31, s30, 4"); A("s_or_b32 s28, s28, s31")
        A("s_bfe_u32 s31, s30, 0x20002"); A("s_and_b32 s32, s30, 3")
        A("v_and_b32 v0, 63, v0")
        A("v_and_b32 v3, 15, v0")
        A("v_lshrrev_b32 v4, 4, v0")
        A("v_bfe_u32 v5, v0, 2, 2")
        A("v_and_b32 v6, 3, v0")
        A("s_cmp_ge_u32 s33, 4"); A("s_cbranch_scc1 L_S")
        WB, PB, DB, XB, XM, CK = 8, 40, 72, 104, 80, 96
        A("s_setprio 3")
        if self.pf:
            A("s_getpc_b64 s[42:43]")
            if self.lean:
                A("s_mul_i32 s3, s33, 2176"); A("v_lshl_add_u32 v12, v0, 7, s3"); A("s_mov_b64 exec, 0x1ffff")
            else: A("v_lshlrev_b32 v12, 7, v0")
            A("v_min_u32 v12, L_last-L_pfbase, v12")
            self.lab("L_pfbase")
            A("global_load_dword v108, v12, s[42:43]")
            if self.lean: A("s_mov_b64 exec, -1"); A("s_mul_i32 s3, s29, 40")
        A("s_mov_b32 s18, 0x400000"); A("s_mov_b32 s19, 0x20000")
        A("s_mov_b32 s26, 4096"); A("s_mov_b32 s27, 0x20000")
        A("v_lshlrev_b32 v1, 16, v4"); A("v_lshl_add_u32 v1, v3, 4, v1")
        if self.wqr:
            A("v_lshl_add_u32 v1, v4, 13, v1")
            for e in range(1, self.cw): A(f"v_xor_b32 v{64+e}, {e << 13}, v1")
        def wql(e):
            if self.wqr:
                if e >= self.cw: A(f"v_xor_b32 v{64+e}, {e << 13}, v1")
                A(f"buffer_load_dwordx4 {v4(WB+4*e)}, v{64+e if e else 1}, s[16:19], s35 offen{nt}")
            else:
                A(f"buffer_load_dwordx4 {v4(WB+4*e)}, v1, s[16:19], s35 offen{nt}")
                if e < 7: A("s_add_u32 s35, s35, 8192")
        A("v_lshlrev_b32 v2, 10, v5"); A("v_lshl_add_u32 v2, v4, 4, v2"); A("v_lshl_add_u32 v2, v6, 2, v2")
        A("s_lshl_b32 s44, s28, 2"); A("s_add_u32 s44, s44, s31")
        A("s_lshl_b32 s39, s32, 2"); A("s_add_u32 s39, s39, s33")
        A("s_lshl_b32 s35, s39, 18"); A("s_lshl_b32 s45, s44, 8"); A("s_add_u32 s35, s35, s45")
        A("s_lshl_b32 s39, s39, 6")
        A("s_waitcnt lgkmcnt(0)")
        self.stamp(1)
        A(f"buffer_load_dword v{XB}, v2, s[24:27], s39 offen")
        for e in range(self.cw): wql(e)
        A("v_mov_b32 v112, 0"); A("v_mov_b32 v113, 0"); A("v_mov_b32 v114, 0"); A("v_mov_b32 v115, 0")
        A(f"ds_write_b128 v112, v[112:115] offset:{L_F}")
        A(f"ds_write_b128 v112, v[112:115] offset:{L_F+16}")
        A("s_waitcnt lgkmcnt(0)")
        A("s_barrier")
        A("s_branch L_C")
        self.lab("L_S")
        KB, VB, QB, SB = 8, 72, 136, 152
        self.vz = "v7"
        esh = 10 if self.lan else 8
        A("s_setprio 1")
        A("s_mov_b32 s6, 0x4000000"); A("s_mov_b32 s7, 0x20000")
        A("s_mov_b32 s10, 0x4000000"); A("s_mov_b32 s11, 0x20000")
        A("s_lshl_b32 s35, s31, 3"); A("s_add_u32 s35, s35, s28"); A("s_lshl_b32 s35, s35, 4"); A("s_add_u32 s35, s35, s32")
        A("s_lshl_b32 s35, s35, 5"); A("s_add_u32 s35, s35, s33")
        A("s_lshl_b32 s35, s35, 12"); A(f"s_add_u32 s35, s35, {0x180000 - 4*4096}")
        if self.rot & 1: A(f"s_lshl_b32 s3, s32, {esh}"); A("s_add_u32 s35, s35, s3")
        if self.rot & 2: A("s_and_b32 s3, s2, 7"); A("s_lshl_b32 s3, s3, 12"); A("s_xor_b32 s35, s35, s3")
        A(f"v_lshlrev_b32 v1, {18-esh}, v5"); A("v_lshl_add_u32 v1, v4, 6, v1"); A("v_lshl_add_u32 v1, v6, 4, v1")
        A(f"v_mul_u32_u24 v2, {QH}, v6"); A("v_lshl_add_u32 v2, v4, 6, v2"); A(f"v_lshl_add_u32 v{QB+12}, v5, 4, v2")
        A("v_lshlrev_b32 v5, 4, v3"); A(f"v_lshl_add_u32 v5, v4, {18-esh}, v5")
        if self.pr == 1:
            A("s_cmp_lt_u32 s33, 8"); A("s_cbranch_scc1 L_pr1"); A("s_setprio 2"); self.lab("L_pr1")
        if not self.b0late: A("s_barrier")
        A("s_waitcnt lgkmcnt(0)")
        self.stamp(1)
        st = dict(i=0)
        def trig(i):
            if i in (self.wj, self.wj2):
                self.cnt(24, f"v{QB+15}"); A("s_mov_b64 exec, -1")
        def nxt(k=1):
            for _ in range(k):
                i = st["i"]; st["i"] += 1
                n = self.N + (1 if i >= self.up else 0) + (1 if self.alt and i % self.alt == 0 else 0)
                wt = lambda p: (None if p[i] == "x" else int(p[i])) if i < len(p) else (n - 1 if i >= n else None)
                w1 = wt(self.pat); w2 = wt(self.pat2) if self.pat2 else w1
                if i == self.lup: w2 = n
                if w1 == w2:
                    if w1 is not None: A(f"s_waitcnt vmcnt({w1})")
                else:
                    A("s_cmp_ge_u32 s33, 8"); A(f"s_cbranch_scc1 L_p{i}")
                    if w1 is not None: A(f"s_waitcnt vmcnt({w1})")
                    if w2 is not None and (w1 is None or w2 < w1):
                        A(f"s_branch L_q{i}"); self.lab(f"L_p{i}"); A(f"s_waitcnt vmcnt({w2})"); self.lab(f"L_q{i}")
                    else:
                        self.lab(f"L_p{i}")
                        if w2 is not None: A(f"s_waitcnt vmcnt({w2})")
                if self.pr == 2: A(f"s_setprio {2 - i % 3}")
                if self.pr == 3: A(f"s_setprio {1 - i % 2}")
                T, e = (i >> 2) & 3, i & 3
                so = "s35"
                if T or e: A(f"s_xor_b32 s39, s35, {T*32768 + (e << esh)}"); so = "s39"
                if i < 16: A(f"buffer_load_dwordx4 {v4(KB+4*i)}, v1, s[4:7], {so} offen{nt}")
                else: A(f"buffer_load_dwordx4 {v4(VB+4*(i-16))}, v5, s[8:11], {so} offen{nt}")
                trig(i)
                if self.xdirty and i == 8:
                    A("s_mov_b32 s14, 0x4000000")
                    A("s_lshl_b32 s46, s2, 3"); A("s_add_u32 s46, s46, s33"); A(f"s_mul_i32 s46, s46, {self.xdirty*1024}"); A("s_add_u32 s46, s46, 0x800000")
                    A(f"v_lshlrev_b32 v{SB}, 4, v0")
                    for k in range(self.xdirty): A(f"buffer_store_dwordx4 v[0:3], v{SB}, s[12:15], s46 offen offset:{1024*k}")
        def upto(j):
            while st["i"] <= j: nxt()
        nxt(len(self.pat) - len(self.pat.lstrip("x")) if self.pat else self.N)
        A("s_load_dword s34, s[12:13], 0")
        A(f"s_mov_b32 s14, {WS_BYTES}"); A("s_mov_b32 s15, 0x20000")
        A("s_mov_b32 s36, 0x05040100"); A("s_mov_b32 s37, 0x07060302")
        A("v_mov_b32 v7, 0")
        A(f"v_mov_b32 v{QB+15}, 1")
        A("v_lshlrev_b32 v6, 5, v6"); A("s_lshl_b32 s3, s33, 2"); A("s_sub_u32 s3, s3, 16"); A("v_add_u32 v3, s3, v6")
        A(f"v_and_b32 v{QB+13}, 3, v0"); A(f"v_mul_u32_u24 v{QB+13}, {OH}, v{QB+13}"); A(f"v_lshl_add_u32 v{QB+13}, v4, 7, v{QB+13}")
        A(f"v_bfe_u32 v{QB+14}, v0, 2, 2"); A(f"v_lshl_add_u32 v{QB+13}, v{QB+14}, 4, v{QB+13}")
        A(f"s_mul_i32 s3, s33, {OW}"); A(f"s_add_u32 s3, s3, {L_O - 4*OW}"); A(f"v_add_u32 v{QB+13}, s3, v{QB+13}")
        if self.b0late: A("s_barrier")
        upto(15)
        self.stamp(2)
        upto(15 + self.qpos)
        A(f"s_waitcnt vmcnt({self.qpos})")
        self.stamp(3)
        self.ldsspin("q", 4, 4, [f"ds_read_b128 {v4(QB)}, v{QB+12} offset:{L_Q}"], sleep=4)
        self.stamp(4)
        Dj = lambda j: (QB + 4 + 4*j) if j < 2 else (KB + 4*(j-2))
        for j in range(16):
            A(f"v_mfma_f32_16x16x32_bf16 {v4(Dj(j))}, {v4(KB+4*j)}, {v4(QB)}, 0")
        A(f"s_mov_b32 s40, {SCALE}"); A(f"s_mov_b32 s41, {LOG2E}")
        A("s_mul_i32 s34, s34, 1664525"); A("s_add_u32 s34, s34, 1013904223")
        nxt()
        for j in range(16): self.dpp("v_add_f32", SB+j, Dj(j)+1, Dj(j), "row_ror:12")
        for j in range(16): self.dpp("v_add_f32", SB+j, Dj(j)+2, SB+j, "row_ror:8")
        for j in range(16): self.dpp("v_add_f32", SB+j, Dj(j)+3, SB+j, "row_ror:4")
        for i in range(8):
            A(f"v_cvt_pk_bf16_f32 v{QB+i}, v{SB+2*i}, v{SB+2*i+1}")
        for i in range(8):
            A(f"v_lshlrev_b32 v{SB+2*i}, 16, v{QB+i}"); A(f"v_and_b32 v{SB+2*i+1}, 0xffff0000, v{QB+i}")
        nxt()
        for i in range(8):
            A(f"v_pk_mul_f32 {v2(SB+2*i)}, {v2(SB+2*i)}, s[40:41] op_sel_hi:[1,0]")
        for i in range(8):
            A(f"v_cvt_pk_bf16_f32 v{QB+i}, v{SB+2*i}, v{SB+2*i+1}")
        for i in range(8):
            A(f"v_lshlrev_b32 v{SB+2*i}, 16, v{QB+i}"); A(f"v_and_b32 v{SB+2*i+1}, 0xffff0000, v{QB+i}")
        A(f"v_max3_f32 v1, v{SB}, v{SB+1}, v{SB+2}")
        A(f"v_max3_f32 v2, v{SB+3}, v{SB+4}, v{SB+5}")
        A(f"v_max3_f32 v1, v1, v{SB+6}, v{SB+7}")
        A(f"v_max3_f32 v2, v2, v{SB+8}, v{SB+9}")
        A(f"v_max3_f32 v1, v1, v{SB+10}, v{SB+11}")
        A(f"v_max3_f32 v2, v2, v{SB+12}, v{SB+13}")
        A(f"v_max3_f32 v1, v1, v{SB+14}, v{SB+15}")
        A("v_max_f32 v1, v1, v2")
        self.allred_rows("v_max_f32", 1, 2)
        A("v_mul_f32 v1, s41, v1")
        A("s_mov_b64 exec, 15")
        A(f"ds_write_b32 v3, v1 offset:{L_M}")
        self.cnt(8, f"v{QB+15}")
        A("s_mov_b64 exec, -1")
        self.stamp(5)
        nxt()
        self.stamp(6)
        self.mspin("m", QB, 1)
        for i in range(16):
            A(f"v_fma_f32 v{SB+i}, v{SB+i}, s41, -v1")
        for i in range(16):
            A(f"v_exp_f32 v{SB+i}, v{SB+i}")
        nxt()
        for i in range(8):
            A(f"v_cvt_pk_bf16_f32 v{QB+i}, v{SB+2*i}, v{SB+2*i+1}")
        for i in range(4):
            A(f"v_pk_add_f32 {v2(SB+2*i)}, {v2(SB+2*i)}, {v2(SB+8+2*i)}")
        for i in range(2):
            A(f"v_pk_add_f32 {v2(SB+2*i)}, {v2(SB+2*i)}, {v2(SB+4+2*i)}")
        A(f"v_pk_add_f32 {v2(SB)}, {v2(SB)}, {v2(SB+2)}")
        A(f"v_add_f32 v{SB+8}, v{SB}, v{SB+1}")
        self.allred_rows("v_add_f32", SB+8, SB)
        OB, P0, P1 = 8, 40, 72
        A("s_mov_b64 exec, 15")
        A(f"ds_write_b32 v3, v{SB+8} offset:{L_L}")
        self.cnt(20, f"v{QB+15}")
        A("s_mov_b64 exec, -1")
        self.stamp(7)
        def need(j):
            upto(min(31, j + self.N + (1 if j + self.N + 1 >= self.up else 0)))
            A(f"s_waitcnt vmcnt({st['i'] - 1 - j})")
        BM0, BM1, MK = 16, 40, 32
        def spread(dst, src):
            for i in range(4):
                for q in range(4):
                    if i == 0: A(f"v_and_b32 v{dst+q}, v{src+q}, v{MK}")
                    else: self.dpp("v_and_b32", dst+4*i+q, src+q, MK+i, f"row_ror:{4*i}")
        JO = (0, 4, 1, 5, 2, 6, 3, 7)
        self.masks(MK, QB+14)
        if st["i"] < 24: nxt()
        spread(BM0, QB)
        need(23)
        self.perms(P0, VB, pairs=(0, 1))
        if st["i"] < 32: nxt()
        self.perms(P0, VB, pairs=(2, 3))
        for j in JO:
            A(f"v_mfma_f32_16x16x32_bf16 {v4(OB+4*(j>>2))}, {v4(P0+4*j)}, {v4(BM0+4*(j&3))}, {v4(OB+4*(j>>2)) if j & 3 else 0}")
        self.stamp(8)
        need(25)
        self.perms(P1, VB+32, pairs=(0,))
        spread(BM1, QB+4)
        A("s_cmp_ge_u32 s33, 8"); A("s_cbranch_scc1 L_S_nr")
        A(f"s_mul_i32 s3, s33, {OH}"); A(f"s_add_u32 s3, s3, {L_O - 4*OH}")
        A(f"v_lshl_add_u32 v{SB+9}, v0, 3, s3")
        A("s_lshl_b32 s3, s33, 5"); A("s_sub_u32 s3, s3, 128"); A(f"v_mov_b32 v{SB+10}, s3")
        A("s_lshl_b32 s3, s29, 3"); A("s_add_u32 s3, s3, s28"); A("s_lshl_b32 s3, s3, 2"); A("s_add_u32 s3, s3, s33"); A("s_sub_u32 s3, s3, 4")
        A("s_lshl_b32 s3, s3, 2"); A("s_add_u32 s3, s3, s32"); A("s_lshl_b32 s3, s3, 2"); A("s_add_u32 s3, s3, s31")
        A("s_lshl_b32 s46, s3, 9"); A(f"s_add_u32 s46, s46, {OP}")
        A(f"v_lshlrev_b32 v{SB+11}, 3, v0")
        A(f"v_mov_b32 v{SB+13}, s34")
        self.ldsspin("l", 20, 8, [f"ds_read_b128 {v4(SB)}, v{SB+10} offset:{L_L}", f"ds_read_b128 {v4(SB+4)}, v{SB+10} offset:{L_L+16}",
                                  f"ds_read_b32 v1, v7 offset:{L_F+12}"], sleep=2)
        A("v_readfirstlane_b32 s45, v1")
        A(f"v_pk_add_f32 {v2(SB)}, {v2(SB)}, {v2(SB+4)}"); A(f"v_pk_add_f32 {v2(SB+2)}, {v2(SB+2)}, {v2(SB+6)}")
        A(f"v_pk_add_f32 {v2(SB)}, {v2(SB)}, {v2(SB+2)}")
        A(f"v_add_f32 v{SB+14}, v{SB}, v{SB+1}")
        A(f"v_rcp_f32 v{SB+14}, v{SB+14}")
        self.lab("L_S_nr")
        for q in range(1, 4):
            if q == 3 and 33 in (self.wj, self.wj2):
                need(30); trig(33)
            need(25 + 2*q)
            if q == 2: trig(32)
            if q == 2: A("s_setprio 3")
            if q == 3: trig(34); self.stamp(9)
            else: self.perms(P1, VB+32, pairs=(q,))
        for k in range(11):
            if k < 8:
                j = JO[k]; A(f"v_perm_b32 v{P1+4*j+3}, v{VB+32+28+(j>>1)}, v{VB+32+24+(j>>1)}, s{36+(j&1)}")
            if k >= 2 and k < 10:
                j = JO[k-2]; A(f"v_mfma_f32_16x16x32_bf16 {v4(OB+4*(j>>2))}, {v4(P1+4*j)}, {v4(BM1+4*(j&3))}, {v4(OB+4*(j>>2))}")
        self.xs("sm")
        A("s_cmp_ge_u32 s33, 8")
        self.nop(7)
        A(f"ds_write_b128 v{QB+13}, {v4(OB)}")
        A(f"ds_write_b128 v{QB+13}, {v4(OB+4)} offset:64")
        self.xs("sw")
        A("s_waitcnt lgkmcnt(0)")
        self.xs("sd")
        A("s_barrier")
        self.stamp(10)
        A("s_cbranch_scc1 L_S_x")
        for w in range(8): A(f"ds_read_b64 {v2(8+2*w)}, v{SB+9} offset:{OW*w}")
        A("s_cmp_lg_u32 s45, 0")
        A("s_waitcnt lgkmcnt(4)")
        A("v_pk_add_f32 v[8:9], v[8:9], v[10:11]"); A("v_pk_add_f32 v[12:13], v[12:13], v[14:15]")
        A("s_waitcnt lgkmcnt(2)")
        A("v_pk_add_f32 v[16:17], v[16:17], v[18:19]"); A("v_pk_add_f32 v[8:9], v[8:9], v[12:13]")
        A("s_waitcnt lgkmcnt(0)")
        self.xs("sr")
        A("v_pk_add_f32 v[20:21], v[20:21], v[22:23]"); A("v_pk_add_f32 v[8:9], v[8:9], v[16:17]")
        A("v_pk_add_f32 v[8:9], v[8:9], v[20:21]")
        A(f"v_pk_mul_f32 v[8:9], v[8:9], {v2(SB+14)} op_sel_hi:[1,0]")
        A(f"v_cvt_pk_bf16_f32 v{SB+12}, v8, v9")
        A("s_cbranch_scc1 L_S_y2")
        A(f"buffer_store_dwordx2 {v2(SB+12)}, v{SB+11}, s[12:15], s46 offen" + ["", " sc1", " nt", " sc0 sc1"][self.owt])
        self.lab("L_S_x")
        self.stamp(11)
        if self.stamps and not self.nos:
            A("s_sleep 127"); A("s_sleep 127")
            self.stamp_out("S")
        A("s_endpgm")
        self.lab("L_C")
        self.vz = "v110"
        A("s_load_dword s34, s[12:13], 0")
        A("s_load_dwordx2 s[20:21], s[0:1], s3 offset:32")
        A("s_load_dwordx2 s[52:53], s[0:1], 80")
        A("s_load_dwordx2 s[56:57], s[0:1], 88")
        A(f"s_mov_b32 s14, {WS_BYTES}"); A("s_mov_b32 s15, 0x20000")
        A("s_mov_b32 s22, 0x400000"); A("s_mov_b32 s23, 0x20000")
        A("s_mov_b32 s36, 0x05040100"); A("s_mov_b32 s37, 0x07060302")
        A("s_mov_b32 s54, 1024"); A("s_mov_b32 s55, 0x20000")
        A("s_mov_b32 s58, 4096"); A("s_mov_b32 s59, 0x20000")
        A("s_lshl_b32 s45, s29, 1"); A("s_lshr_b32 s3, s28, 2"); A("s_add_u32 s45, s45, s3")
        A("v_lshlrev_b32 v109, 4, v0")
        A("s_lshl_b32 s3, s29, 5"); A("s_add_u32 s47, s44, s3")
        A("v_mov_b32 v110, 0"); A("v_mov_b32 v111, 1"); A("v_mov_b32 v133, 1024")
        A("v_lshlrev_b32 v127, 3, v0")
        A(f"v_mul_u32_u24 v122, {RU}, v4")
        A(f"v_mul_u32_u24 v7, {RB}, v5"); A("v_add_u32 v7, v7, v122"); A("v_lshl_add_u32 v7, v6, 4, v7")
        A(f"s_mul_i32 s3, s33, {RW}"); A(f"s_add_u32 s3, s3, {L_R}"); A("v_add_u32 v7, s3, v7")
        A("v_lshl_add_u32 v122, v6, 5, v122"); A("v_lshl_add_u32 v122, v5, 2, v122")
        A(f"s_mul_i32 s3, s33, {RB}"); A(f"s_add_u32 s3, s3, {L_R}"); A("v_add_u32 v122, s3, v122")
        A(f"v_add_u32 v123, {RW}, v122"); A(f"v_add_u32 v124, {2*RW}, v122"); A(f"v_add_u32 v125, {3*RW}, v122")
        self.masks(CK, 6)
        A("s_lshl_b32 s46, s47, 2"); A("s_add_u32 s46, s46, s32"); A("s_lshl_b32 s46, s46, 2"); A("s_add_u32 s46, s46, s33")
        A("s_lshl_b32 s46, s46, 9"); A(f"s_add_u32 s46, s46, {QP}")
        A("s_lshl_b32 s4, s29, 3"); A("s_add_u32 s4, s4, s28"); A("s_lshl_b32 s4, s4, 2"); A("s_add_u32 s4, s4, s33")
        A("s_lshl_b32 s4, s4, 2"); A("s_add_u32 s4, s4, s31"); A("s_lshl_b32 s4, s4, 2"); A("s_add_u32 s4, s4, s32")
        A("s_lshl_b32 s4, s4, 3"); A(f"s_add_u32 s4, s4, {SP}")
        if self.rm >= 0:
            A("s_sub_u32 s3, s32, s31"); A("s_add_u32 s44, s44, s3"); A("s_add_u32 s47, s47, s3")
            A(f"s_add_u32 s32, s31, {self.rm}"); A("s_and_b32 s32, s32, 3")
        A("s_mov_b32 s41, 0")
        A("s_getreg_b32 s30, hwreg(HW_REG_XCC_ID, 0, 4)")
        if self.forcey: A("s_lshr_b32 s30, s2, 3"); A("s_and_b32 s30, s30, 1")
        A("s_lshl_b32 s3, s45, 10")
        A("s_waitcnt lgkmcnt(0)")
        if self.lean: A("s_cmp_eq_u32 s33, 0"); A("s_cselect_b64 exec, -1, 1")
        A("buffer_load_dwordx4 v[112:115], v109, s[24:27], s3 offen")
        A("buffer_load_dwordx4 v[116:119], v109, s[52:55], 0 offen")
        if self.lean: A("s_mov_b64 exec, -1")
        for e in range(self.cw, 8):
            A(f"s_waitcnt vmcnt({self.cw-1 + (2 if e < 2*self.cw else 0)})")
            wql(e)
        if self.wqr:
            A("s_mov_b32 s3, 0x02020202"); A("v_mul_lo_u32 v140, v4, s3"); A("v_xor_b32 v140, 0x03020100, v140")
            for q in range(4): A(f"v_perm_b32 v{XB+q}, v{136 + (q ^ 1)}, v{136 + q}, v140")
        A("s_mul_i32 s34, s34, 1664525"); A("s_add_u32 s34, s34, 1013904223")
        A("v_mov_b32 v129, s34")
        A("s_and_b32 s3, s34, -16"); A("s_or_b32 s30, s30, s3")
        A("v_and_b32 v160, 1, v0"); A("v_lshlrev_b32 v160, 4, v160")
        A("v_lshrrev_b32 v166, v160, s30"); A("v_lshrrev_b32 v160, v160, s34")
        A("v_bfe_u32 v167, v166, 8, 8"); A("v_bfe_u32 v161, v160, 8, 8")
        A("v_and_b32 v166, 0xff, v166"); A("v_and_b32 v160, 0xff, v160")
        A("s_movk_i32 s11, 0xff"); A("s_and_b32 s30, s30, 0xffff"); A("s_mov_b32 s10, 0x0c0c0400")
        SG = 136
        CF = 144
        OG = 152
        ol = [f"buffer_load_dwordx2 {v2(OG+2*s)}, v1, s[12:15], s{39 if s < 2 else 48} offen offset:{2048*(s&1)}{pol}" for s in range(4)]
        stl = [f"buffer_load_dwordx4 {v4(SG+4*s)}, v57, s[12:15], s35 offen offset:{16*s}{pol}" for s in range(2)]
        self.lab("L_tile")
        for q in range(3):
            A(f"s_waitcnt vmcnt({6-2*q})")
            self.perms(PB, WB, pairs=(q,))
        A("s_cmp_eq_u32 s41, 0"); A("s_cbranch_scc0 L_t1")
        A("s_waitcnt vmcnt(0)")
        self.perms(PB, WB, pairs=(3,))
        self.stamp(2); A("s_branch L_mm")
        self.lab("L_t1")
        A(f"s_mov_b32 s38, {self.spin}")
        if self.opos == 3:
            for l in ol: A(l)
            A("s_waitcnt vmcnt(4)")
        elif self.opos == 5:
            A("s_waitcnt vmcnt(1)")
            for l in ol: A(l)
            A("s_waitcnt vmcnt(4)")
        else:
            A("s_waitcnt vmcnt(0)")
            if self.opos == 4:
                for l in ol: A(l)
        self.perms(PB, WB, pairs=(3,))
        if self.opos == 6:
            for l in ol: A(l)
        self.stamp(7)
        A("s_branch L_og")
        self.lab("L_ogr")
        self.xs("or")
        if self.osleep: A(f"s_sleep {self.osleep}")
        for l in ol: A(l)
        self.lab("L_og")
        A("s_waitcnt vmcnt(0)")
        self.xs("ow")
        A(f"v_xor_b32 v20, s34, v{OG+1}")
        for s in range(1, 4): A(f"v_bitop3_b32 v20, v{OG+1+2*s}, s34, v20 bitop3:0xbe")
        A("s_sub_u32 s38, s38, 1")
        A("v_cmp_ne_u32 vcc, 0, v20")
        A("s_cbranch_scc1 L_ogd")
        A("s_cbranch_vccnz L_ogr")
        self.lab("L_ogd")
        if "oc" in self.xst: A(f"s_sub_u32 s80, {self.spin}, s38"); A("s_mov_b32 s81, 0")
        A("s_mov_b64 exec, s[6:7]")
        A(f"buffer_store_dword v129, v135, s[12:15], 0 offen{pol}")
        A("s_mov_b64 exec, -1")
        for s in (0, 2, 1, 3):
            A(f"v_lshlrev_b32 v{24+2*s}, 16, v{OG+2*s}"); A(f"v_and_b32 v{25+2*s}, 0xffff0000, v{OG+2*s}")
        self.stamp(8)
        A(f"v_pk_mul_f32 v[24:25], v[24:25], {v2(CF)} op_sel_hi:[1,0]")
        A(f"v_pk_mul_f32 v[28:29], v[28:29], {v2(CF+4)} op_sel_hi:[1,0]")
        A(f"v_pk_fma_f32 v[24:25], v[26:27], {v2(CF+2)}, v[24:25] op_sel_hi:[1,0,1]")
        A(f"v_pk_fma_f32 v[28:29], v[30:31], {v2(CF+6)}, v[28:29] op_sel_hi:[1,0,1]")
        A(f"v_pk_add_f32 v[24:25], v[24:25], v[28:29]")
        A(f"v_cvt_pk_bf16_f32 v{XB}, v24, v25"); self.nop(2)
        self.lab("L_mm")
        self.xs("mm")
        sp = [(i, q) for i in range(4) for q in range(4)]
        def spr(n):
            for _ in range(n):
                if sp:
                    i, q = sp.pop(0); self.dpp("v_and_b32", XM+4*i+q, XB, CK+i, f"quad_perm:[{q},{q},{q},{q}]")
        spr(6)
        for j in (0, 4, 1, 5, 2, 6, 3, 7):
            A(f"v_mfma_f32_16x16x32_bf16 {v4(DB+4*(j>>2))}, {v4(PB+4*j)}, {v4(XM+4*(j&3))}, {v4(DB+4*(j>>2)) if j & 3 else 0}")
            spr(2)
        self.xs("mf")
        A("s_cmp_eq_u32 s41, 0")
        self.nop(7)
        A(f"ds_write_b128 v7, {v4(DB)}")
        A(f"ds_write_b128 v7, {v4(DB+4)} offset:64")
        A("s_cbranch_scc0 L_fin")
        self.cnt(0, "v111")
        A("s_mov_b64 exec, -1")
        rd = [f"ds_read2_b32 {v2(12+2*i)}, v{122+i} offset0:0 offset1:4" for i in range(4)]
        self.ldsspin("c", 0, 4, rd, sleep=0)
        A("v_pk_add_f32 v[12:13], v[12:13], v[14:15]"); A("v_pk_add_f32 v[16:17], v[16:17], v[18:19]")
        A("v_pk_add_f32 v[12:13], v[12:13], v[16:17]")
        A("v_bfi_b32 v164, s11, v166, v12"); A("v_bfi_b32 v165, s11, v167, v13")
        A("buffer_store_dwordx2 v[164:165], v127, s[12:15], s46 offen" + ["", " sc1", " nt", " sc0 sc1"][self.qwt])
        self.stamp(3)
        if self.pretouch:
            A("s_lshl_b32 s3, s32, 2"); A("s_add_u32 s3, s3, s33"); A("s_lshl_b32 s3, s3, 9")
            A("s_lshl_b32 s40, s47, 13"); A("s_add_u32 s3, s3, s40"); A(f"s_add_u32 s3, s3, {OP}")
            A("s_or_b32 s40, s32, s33"); A("s_cbranch_scc1 L_pt")
            A("s_lshl_b32 s40, s47, 7"); A(f"s_add_u32 s40, s40, {SP}")
            A("s_load_dword s49, s[12:13], s40")
            self.lab("L_pt")
            for i in range(4): A(f"s_load_dword s49, s[12:13], s3 offset:{128*i}")
        for i in range(4):
            A(f"v_lshlrev_b32 v{24+2*i}, 16, v{112+i}"); A(f"v_and_b32 v{25+2*i}, 0xffff0000, v{112+i}")
            A(f"v_lshlrev_b32 v{32+2*i}, 16, v{116+i}"); A(f"v_and_b32 v{33+2*i}, 0xffff0000, v{116+i}")
        for i in range(4):
            A(f"v_pk_mul_f32 {v2(24+2*i)}, {v2(24+2*i)}, {v2(32+2*i)}")
        for i in range(4):
            A(f"v_cvt_pk_bf16_f32 v{32+i}, v{24+2*i}, v{25+2*i}")
        for i in range(4):
            A(f"v_lshlrev_b32 v{24+2*i}, 16, v{32+i}"); A(f"v_and_b32 v{25+2*i}, 0xffff0000, v{32+i}")
        A("v_pk_add_f32 v[24:25], v[24:25], v[28:29]"); A("v_pk_add_f32 v[26:27], v[26:27], v[30:31]")
        A("v_pk_add_f32 v[24:25], v[24:25], v[26:27]"); A("v_add_f32 v8, v24, v25")
        for ror in (8, 4, 2, 1):
            self.nop(2); self.dpp("v_add_f32", 8, 8, 8, f"row_ror:{ror}")
        self.allred_rows("v_add_f32", 8, 9)
        A("v_cvt_pk_bf16_f32 v8, v8, v8"); A("v_lshlrev_b32 v8, 16, v8")
        A(f"v_mul_f32 v8, {0xbfb8aa3b}, v8"); A("v_exp_f32 v8, v8"); self.nop(1)
        A("v_add_f32 v8, 1.0, v8"); A("v_rcp_f32 v8, v8"); self.nop(1)
        A("v_cvt_pk_bf16_f32 v8, v8, v8"); A("v_lshlrev_b32 v8, 16, v8")
        A("v_sub_f32 v9, 1.0, v8"); A("v_cvt_pk_bf16_f32 v9, v9, v9"); A("v_lshlrev_b32 v9, 16, v9")
        A("v_cmp_gt_u32 vcc, 32, v0")
        A("s_lshl_b32 s39, s29, 3"); A("s_add_u32 s39, s39, s28"); A("s_lshl_b32 s39, s39, 2"); A("s_add_u32 s39, s39, s33")
        A("v_cndmask_b32 v120, v9, v8, vcc")
        A("s_lshl_b32 s39, s39, 4"); A("s_add_u32 s39, s39, s31"); A("s_lshl_b32 s39, s39, 9"); A(f"s_add_u32 s39, s39, {QP}")
        A("s_add_u32 s60, s39, 4096")
        A("s_mov_b32 s63, 0")
        A("v_mov_b32 v18, 0")
        A("v_lshlrev_b32 v19, 11, v6")
        A(f"s_mov_b32 s38, {self.n0}"); A(f"s_mov_b32 s62, {self.spin}")
        self.stamp(13)
        D = self.qdepth
        ld = lambda i: A(f"buffer_load_dwordx2 {v2(40+2*i)}, v19, s[12:15], s39 offen{pol}")
        qg = lambda vo: [f"buffer_load_dwordx2 {v2(24+2*i)}, {vo}, s[12:15], s{39 if i < 2 else 60} offen offset:{2048*(i&1)}{pol}" for i in range(4)]
        for i in range(D - 1):
            ld(i); A(f"s_sleep {self.qsleep}")
        self.lab("L_qf")
        for i in range(D):
            ld((i + D - 1) % D)
            A(f"s_waitcnt vmcnt({D-1})")
            A(f"v_perm_b32 v20, v{41+2*i}, v{40+2*i}, s10")
            A("v_cmp_ne_u32 vcc, s30, v20")
            A("s_cmp_eq_u64 vcc, 0"); A("s_cbranch_scc1 L_qfd")
        self.lab("L_qfr")
        A("s_sub_u32 s38, s38, 1")
        A("s_cbranch_scc0 L_qf")
        A("s_branch L_slow")
        self.lab("L_qfd")
        self.stamp(14)
        for l in qg("v127"): A(l)
        A(f"s_mul_i32 s3, s33, {QH}"); A("v_lshl_add_u32 v16, v0, 2, s3")
        A("v_lshlrev_b32 v1, 11, v4"); A("v_lshl_add_u32 v1, v3, 4, v1")
        A("s_lshl_b32 s48, s44, 17"); A("s_lshl_b32 s3, s33, 15"); A("s_add_u32 s48, s48, s3")
        A("s_lshl_b32 s3, s32, 8"); A("s_add_u32 s48, s48, s3")
        A("s_waitcnt vmcnt(0) lgkmcnt(0)")
        self.untag(24, 166, 8)
        A("v_cmp_ne_u32 vcc, 0, v8"); A("s_cmp_eq_u64 vcc, 0"); A("s_cbranch_scc0 L_qfr")
        self.lab("L_qok")
        A("v_pk_add_f32 v[24:25], v[24:25], v[26:27]"); A("v_pk_add_f32 v[28:29], v[28:29], v[30:31]")
        A("v_pk_add_f32 v[24:25], v[24:25], v[28:29]")
        A("v_cvt_pk_bf16_f32 v17, v24, v25")
        A(f"ds_write_b32 v16, v17 offset:{L_Q}")
        self.cnt(12, "v18")
        A(f"ds_add_u32 v110, v111 offset:{L_F+4}")
        A("s_mov_b64 exec, -1")
        self.stamp(4)
        self.lab("L_vd")
        A(f"ds_read_b32 v2, v110 offset:{L_F+4}")
        A(f"ds_read2_b32 v[134:135], v133 offset0:{(L_F+12)//4 - 256} offset1:{(L_F+16)//4 - 256}")
        A("s_waitcnt lgkmcnt(0)")
        A("v_readfirstlane_b32 s40, v2"); A("v_readfirstlane_b32 s3, v135"); A("v_readfirstlane_b32 s49, v134")
        A("s_andn2_b32 s3, s3, s63"); A("s_cbranch_scc1 L_puby2")
        A("s_cmp_ge_u32 s40, 4"); A("s_cbranch_scc1 L_vdd")
        A("s_sleep 2"); A("s_sub_u32 s62, s62, 1"); A("s_cbranch_scc0 L_vd")
        self.lab("L_vdd")
        A("s_lshl_b32 s3, s33, 5"); A("v_mov_b32 v56, s3")
        self.ldsspin("l2", 20, 8, [f"ds_read_b128 v[40:43], v56 offset:{L_M}", f"ds_read_b128 v[44:47], v56 offset:{L_M+16}",
                                   f"ds_read_b128 v[48:51], v56 offset:{L_L}", f"ds_read_b128 v[52:55], v56 offset:{L_L+16}"], sleep=4)
        A("v_max3_f32 v40, v40, v41, v42"); A("v_max3_f32 v43, v43, v44, v45"); A("v_max3_f32 v40, v40, v46, v47")
        A("v_pk_add_f32 v[48:49], v[48:49], v[52:53]"); A("v_pk_add_f32 v[50:51], v[50:51], v[54:55]")
        A("v_pk_add_f32 v[48:49], v[48:49], v[50:51]"); A("v_add_f32 v48, v48, v49")
        A("v_log_f32 v48, v48"); A("v_max_f32 v40, v40, v43")
        A("s_cmp_lg_u32 s49, 0")
        A("v_add_f32 v128, v40, v48")
        A("s_mov_b64 exec, 1")
        A("s_cbranch_scc1 L_S_y1")
        A("buffer_store_dwordx2 v[128:129], v110, s[12:15], s4 offen")
        self.lab("L_S_y1r")
        A("s_mov_b64 exec, -1")
        A("s_cmp_lg_u32 s49, 0"); A(f"s_cselect_b32 s49, {YD}, 0")
        A("s_lshl_b32 s35, s47, 7"); A(f"s_add_u32 s35, s35, {SP}"); A("s_add_u32 s35, s35, s49")
        A("v_lshlrev_b32 v57, 5, v5")
        self.poll("s", stl, [SG+1, SG+3, SG+5, SG+7], 20, sleep=self.ssleep)
        self.stamp(15)
        A(f"v_max3_f32 v20, v{SG}, v{SG+2}, v{SG+4}"); A(f"v_max_f32 v20, v20, v{SG+6}")
        for s in range(4): A(f"v_sub_f32 v{CF+2*s}, v{SG+2*s}, v20")
        for s in range(4): A(f"v_exp_f32 v{CF+2*s}, v{CF+2*s}")
        self.nop(1)
        A(f"v_add_f32 v20, v{CF}, v{CF+2}"); A(f"v_add_f32 v21, v{CF+4}, v{CF+6}"); A("v_add_f32 v20, v20, v21")
        A("v_rcp_f32 v20, v20"); self.nop(1)
        for s in range(4): A(f"v_mul_f32 v{CF+2*s}, v{CF+2*s}, v20")
        for e in range(8):
            if e == self.wo1: self.ldsspin("w", 24, self.th1, [], sleep=2)
            if e == self.wa: self.ldsspin("w2", 24, self.th2, [], sleep=1)
            if e == self.wo_early: A("s_setprio 0")
            A(f"buffer_load_dwordx4 {v4(WB+4*e)}, v1, s[20:23], s48 offen offset:{1024*(e>>2)}{nt}")
            if e == 3: A("s_sub_u32 s48, s48, 24576")
            elif e < 7: A("s_add_u32 s48, s48, 8192")
        A("s_setprio 3")
        self.stamp(5)
        A("s_lshl_b32 s39, s47, 13"); A("s_lshl_b32 s3, s33, 7"); A("s_add_u32 s39, s39, s3"); A(f"s_add_u32 s39, s39, {OP}")
        A("s_add_u32 s39, s39, s49"); A("s_add_u32 s48, s39, 4096")
        A("v_lshlrev_b32 v1, 9, v5"); A("v_lshl_add_u32 v1, v4, 5, v1"); A("v_lshl_add_u32 v1, v6, 3, v1")
        A("s_lshl_b32 s63, s32, 17"); A(f"s_add_u32 s63, s63, {FP}")
        A("s_lshl_b32 s3, s47, 11"); A("s_add_u32 s46, s63, s3"); A("s_lshl_b32 s3, s33, 9"); A("s_add_u32 s46, s46, s3")
        A("v_lshrrev_b32 v121, 2, v0"); A("v_lshlrev_b32 v121, 11, v121"); A("v_lshl_add_u32 v121, v6, 3, v121")
        A("s_lshl_b32 s3, s47, 5"); A("s_add_u32 s63, s63, s3")
        A("s_add_u32 s60, s63, 0x8000"); A("s_add_u32 s61, s63, 0x10000"); A("s_add_u32 s62, s63, 0x18000")
        A("s_lshl_b32 s45, s45, 10"); A("s_lshl_b32 s3, s32, 8"); A("s_add_u32 s45, s45, s3")
        A("s_and_b32 s3, s47, 15"); A("s_lshl_b32 s3, s3, 4"); A("s_add_u32 s45, s45, s3")
        A("v_lshlrev_b32 v126, 2, v6"); A("v_lshl_add_u32 v126, v4, 1, v126")
        A("s_mov_b32 s41, 1")
        A("s_and_b32 s49, s44, 3"); A("s_or_b32 s49, s49, s32"); A("s_or_b32 s49, s49, s33")
        A(f"s_cselect_b64 s[6:7], 0, {(1 << self.er) - 1}")
        A("s_lshr_b32 s3, s47, 2"); A("s_lshl_b32 s3, s3, 10"); A(f"s_add_u32 s3, s3, {EP}"); A("v_lshl_add_u32 v135, v0, 7, s3")
        A("v_lshlrev_b32 v134, 10, v3"); A(f"v_add_u32 v134, {EP}, v134")
        if self.er > self.ed:
            A(f"s_lshr_b32 s3, s2, 3"); A(f"s_and_b32 s3, s3, {self.er // self.ed - 1}"); A(f"s_mul_i32 s3, s3, {128 * self.ed}"); A("v_add_u32 v134, s3, v134")
        A("s_barrier")
        self.stamp(6)
        A("s_branch L_tile")
        self.lab("L_fin")
        self.xs("wr")
        if self.b4spin:
            self.cnt(28, "v111")
            A("s_mov_b64 exec, -1")
            self.ldsspin("c2", 28, 4, rd, sleep=0)
        else:
            A("s_mov_b64 exec, -1")
            A("s_waitcnt lgkmcnt(0)")
            self.xs("wd")
            A("s_barrier")
            self.xs("bar")
            for r in rd: A(r)
            A("s_waitcnt lgkmcnt(2)")
        A("v_pk_add_f32 v[12:13], v[12:13], v[14:15]")
        A("s_waitcnt lgkmcnt(0)")
        A("v_pk_add_f32 v[16:17], v[16:17], v[18:19]")
        self.xs("rd")
        A("v_pk_add_f32 v[12:13], v[12:13], v[16:17]")
        A("v_bfi_b32 v12, s11, v160, v12"); A("v_bfi_b32 v13, s11, v161, v13")
        A(f"buffer_store_dwordx2 v[12:13], v127, s[12:15], s46 offen{pol}")
        self.stamp(9)
        if self.wbl == 1:
            A("s_lshr_b32 s3, s2, 3"); A("s_lshl_b32 s3, s3, 2"); A("s_add_u32 s5, s3, s33"); A("s_cmp_eq_u32 s5, 1"); A("s_cbranch_scc1 L_wb1")
        if self.wbl == 2:
            A("s_lshr_b32 s3, s2, 3"); A("s_lshl_b32 s3, s3, 2"); A("s_add_u32 s5, s3, s33"); A("s_cmp_eq_u32 s5, 1"); A("s_cbranch_scc0 L_wb1")
            A("buffer_wbl2 sc1")
            self.lab("L_wb1")
        A("s_cmp_lg_u32 s33, 0"); A("s_cbranch_scc1 L_C_exit")
        if self.wbl == 1: self.lab("L_wb1")
        if self.fdelay: A(f"s_sleep {self.fdelay}")
        if self.eta:
            if self.ed == 1:
                self.poll("e", [f"buffer_load_dword v41, v134, s[12:15], 0 offen{pol}"], [41], 40)
            else:
                D = self.ed
                A("s_mov_b64 exec, 0xffff")
                el = lambda i: A(f"buffer_load_dword v{41+i}, v134, s[12:15], 0 offen offset:{128 * (i % self.er)}{pol}")
                A(f"s_mov_b32 s38, {self.spin}")
                for i in range(D - 1):
                    el(i); A(f"s_sleep {self.es}")
                self.lab("L_ep")
                for i in range(D):
                    el((i + D - 1) % D)
                    A(f"s_waitcnt vmcnt({D-1})")
                    A(f"v_cmp_ne_u32 vcc, s34, v{41+i}")
                    A("s_cmp_eq_u64 vcc, 0"); A("s_cbranch_scc1 L_epd")
                A("s_sub_u32 s38, s38, 1"); A("s_cbranch_scc0 L_ep")
                self.lab("L_epd")
                A("s_mov_b64 exec, -1")
            self.stamp(12)
            if self.wbl == 1:
                A("s_cmp_eq_u32 s33, 0"); A("s_cbranch_scc1 L_wb2")
                A("buffer_wbl2 sc1"); A("s_branch L_C_exit")
                self.lab("L_wb2")
            if self.edly: A(f"s_sleep {self.edly}")
            self.lab("L_eok")
        self.poll("f", [f"buffer_load_dwordx2 {v2(24+2*i)}, v121, s[12:15], s{(63,60,61,62)[i]} offen{pol}" for i in range(4)],
                  list(range(24, 32)), 40, sleep=self.fsleep, tv=160)
        self.stamp(10)
        if self.stamps and not self.amp and not self.xst: A(f"s_sub_u32 s66, {self.spin}, s38"); A("s_mov_b32 s67, 0")
        A("v_pk_add_f32 v[24:25], v[24:25], v[26:27]"); A("v_pk_add_f32 v[28:29], v[28:29], v[30:31]")
        self.nop(2)
        A("v_permlane32_swap_b32 v24, v28"); A("v_permlane32_swap_b32 v25, v29")
        A("v_pk_add_f32 v[24:25], v[24:25], v[28:29]"); self.nop(2)
        A("v_permlane16_swap_b32 v24, v25")
        A("v_add_f32 v24, v24, v25"); self.nop(2)
        self.dpp("v_add_f32", 24, 24, 24, "row_ror:4"); self.nop(2)
        self.dpp("v_add_f32", 24, 24, 24, "row_ror:8")
        A("v_cvt_pk_bf16_f32 v24, v24, v24"); A("v_lshlrev_b32 v24, 16, v24")
        A("v_mul_f32 v24, v24, v120")
        A("v_cvt_pk_bf16_f32 v24, v24, v24"); A("v_lshlrev_b32 v24, 16, v24")
        A("v_mov_b32 v25, v24"); self.nop(2)
        A("v_permlane32_swap_b32 v24, v25")
        A("v_add_f32 v24, v24, v25")
        A("v_cvt_pk_bf16_f32 v24, v24, v24")
        A("s_mov_b64 exec, 0x000f000f")
        A("buffer_store_short v24, v126, s[56:59], s45 offen")
        self.xs("fo")
        if self.pad:
            if self.padk >= 0:
                A("s_waitcnt lgkmcnt(0)"); A("s_mov_b32 s90, s92")
            self.lab("L_pad")
            A("s_memrealtime s[94:95]"); A("s_waitcnt lgkmcnt(0)"); A("s_sub_u32 s94, s94, s90")
            A(f"s_cmp_lt_u32 s94, {self.pad}"); A("s_cbranch_scc1 L_pad")
        A("s_cmp_lg_u32 s2, 0"); A("s_cbranch_scc1 L_C_exit")
        A("s_mov_b64 exec, 1")
        A("buffer_store_dword v129, v110, s[12:15], 0 offen")
        self.lab("L_C_exit")
        self.stamp(11)
        if self.stamps: A("s_sleep 127")
        self.stamp_out()
        self.lab("L_end")
        A("s_endpgm")
        self.lab("L_last")
        self.lab("L_S_y1")
        A(f"s_add_u32 s4, s4, {YD}")
        A(f"buffer_store_dwordx2 v[128:129], v110, s[12:15], s4 offen{pol}")
        A("s_branch L_S_y1r")
        self.lab("L_S_y2")
        A(f"s_add_u32 s46, s46, {YD}")
        A(f"buffer_store_dwordx2 {v2(SB+12)}, v{SB+11}, s[12:15], s46 offen{pol}")
        A("s_branch L_S_x")
        def puby():
            A(f"s_add_u32 s3, s46, {YD}")
            A(f"buffer_store_dwordx2 v[164:165], v127, s[12:15], s3 offen{pol}")
            A("s_mov_b32 s63, 1")
        self.lab("L_puby2")
        puby()
        A("s_branch L_vd")
        self.lab("L_slow")
        A("s_cmp_lg_u32 s63, 0"); A("s_cbranch_scc1 L_slow2")
        A(f"ds_write_b32 v110, v111 offset:{L_F+16}")
        puby()
        self.lab("L_slow2")
        A(f"v_add_u32 v9, {YD}, v127")
        for l in qg("v9"): A(l)
        A("v_and_b32 v9, 1, v0"); A("v_mul_u32_u24 v9, 15, v9"); A("v_or_b32 v9, 0xf0, v9")
        A("s_waitcnt vmcnt(0)")
        A("v_xor_b32 v8, v166, v24"); A("v_xor_b32 v10, v167, v25")
        for r in range(26, 32): A(f"v_bitop3_b32 v{8 + 2*(r & 1)}, v{r}, v{166 + (r & 1)}, v{8 + 2*(r & 1)} bitop3:0xbe")
        A("v_and_b32 v10, 0xff, v10"); A("v_and_or_b32 v9, v8, v9, v10"); A("v_and_b32 v10, 15, v8")
        A("s_mov_b32 s38, 0")
        A("v_cmp_ne_u32 vcc, 0, v9"); A("s_cmp_eq_u64 vcc, 0"); A("s_cbranch_scc1 L_slow3")
        A("s_sleep 8")
        A("s_sub_u32 s62, s62, 1"); A("s_cbranch_scc0 L_qf")
        self.lab("L_slow3")
        for r in range(24, 32): A(f"v_and_b32 v{r}, 0xffffff00, v{r}")
        A("v_cmp_ne_u32 vcc, 0, v10"); A("s_cmp_lg_u64 vcc, 0")
        A("s_cselect_b32 s3, 1, 0"); A("v_mov_b32 v18, s3")
        A(f"s_mul_i32 s3, s33, {QH}"); A("v_lshl_add_u32 v16, v0, 2, s3")
        A("v_lshlrev_b32 v1, 11, v4"); A("v_lshl_add_u32 v1, v3, 4, v1")
        A("s_lshl_b32 s48, s44, 17"); A("s_lshl_b32 s3, s33, 15"); A("s_add_u32 s48, s48, s3")
        A("s_lshl_b32 s3, s32, 8"); A("s_add_u32 s48, s48, s3")
        A("s_waitcnt lgkmcnt(0)")
        A("s_branch L_qok")
        L.append('.section .rodata,"a"'); L.append(".p2align 6"); L.append(f".amdhsa_kernel {KN}")
        L.append("  .amdhsa_next_free_vgpr 168"); L.append("  .amdhsa_next_free_sgpr 96"); L.append("  .amdhsa_accum_offset 168")
        L.append("  .amdhsa_group_segment_fixed_size 0"); L.append("  .amdhsa_kernarg_size 112"); L.append("  .amdhsa_user_sgpr_count 2")
        L.append("  .amdhsa_user_sgpr_kernarg_segment_ptr 1"); L.append("  .amdhsa_system_sgpr_workgroup_id_x 1")
        L.append("  .amdhsa_float_denorm_mode_32 3")
        L.append(".end_amdhsa_kernel")
        return "\n".join(L) + "\n"

if __name__ == "__main__":
    out = sys.argv[1]
    kw = {}
    for a in sys.argv[2:]:
        k, v = a.split("=")
        kw[k] = v.replace("+", " ") if k in ("pol", "pat", "pat2", "amp", "only", "xst") else int(v)
    open(out, "w").write(G(**kw).gen())
```

```python
import sys
KN = "gated_mix__sliding_block_cached__sliding_block_cached__decode_kernel"
HDR = open("gated_mix__sliding_block_cached__sliding_block_cached__decode.s.ref").read().split("; Override launch")[0]

FL = 0x1000
YD = 0x400000
OP = 0x100000
SP = 0xC0000
EP = 0xD0000
QP = 0x100000
FP = 0x180000
WS_BYTES = 0x600000
STAMP_OFF = 0x4000000
L_Q = 0
QH = 272
L_M = 1280
L_L = 1408
L_F = 1536
L_O = 2048
OH, OW = 544, 2176
RU, RB, RW = 144, 576, 2304
L_R = L_O + 8*OW
LDS_BYTES = L_R + 4*RW
LOG2E = 0x3fb8aa3b
SCALE = 0x3db504f3
NS = 16

class G:
    def __init__(self, **kw):
        d = dict(padk=-1, pad=0, stamps=0, nt=1, pol="sc1", spin=1 << 16, pf=1, wo_early=0, qsleep=12, forcey=0, pretouch=0,
                 n0=8, qdepth=4, lsplit=1, osleep=0, fsleep=0, b4spin=0, fdelay=0, eta=1, edly=0, tx=0, rm=2, N=3, rot=1, lan=1, qpos=3, wj=31, pat='x0x11x', cw=3, up=99, wo1=0, wj2=-1, wa=8, th1=8, th2=16, opos=4, pr=0, tlbs=0, tlbv=0, lean=1, xdirty=0, qwt=0, owt=0, xperm=0, b0late=0, ed=1, es=4, early=0, ldly=0, ssleep=8, ovl=1, pat2='', lup=99, wbl=0, wqr=0, er=1, dbg=0, amp='', ampf=10, only='', xst='', nos=0, skew=0, alt=0, es1=0, epol='sc1', fpol='sc1', spol='sc1', anyof=0)
        d.update(kw)
        self.__dict__.update(d)
        self.L = []
        self.nt = " nt" if self.nt else ""
        self.pol = " " + self.pol
    def A(self, s): self.L.append("    " + s)
    def lab(self, s): self.L.append(s + ":")
    def nop(self, n):
        while n > 0:
            k = min(n, 16); self.A(f"s_nop {k-1}"); n -= k
    def xs(self, name):
        d = dict(a.split(":") for a in self.xst.split(",")) if self.xst else {}
        if name in d: self.A(f"s_memrealtime s[{64+2*int(d[name])}:{65+2*int(d[name])}]")
    def stamp(self, i):
        if self.only and i not in [0] + [int(a) for a in self.only.split(",")]: return
        if self.amp and i not in [0] + [int(a[1:]) for a in self.amp.split(',')]: return
        if self.padk == i: self.A("s_memrealtime s[92:93]")
        if self.stamps: self.A(f"s_memrealtime s[{64+2*i}:{65+2*i}]")
    def stamp_out(self, cls="C"):
        if not self.stamps: return
        A = self.A
        if self.amp:
            parts = self.amp.split(",")
            anyS = any(a[0].upper() == "S" for a in parts)
            A("s_load_dwordx2 s[62:63], s[0:1], 96")
            A("s_waitcnt lgkmcnt(0)")
            A("s_mov_b64 exec, 1"); A("v_mov_b32 v4, 0"); A("v_mov_b32 v3, 1")
            if cls == "C":
                A("s_not_b32 s60, s64"); A("v_mov_b32 v2, s60"); A("global_atomic_umax v4, v2, s[62:63]")
            for j, a in enumerate(parts):
                if a[0].upper() == cls:
                    A(f"v_mov_b32 v2, s{64+2*int(a[1:])}"); A(f"global_atomic_{'add' if a[0].islower() else 'umax'} v4, v2, s[62:63] offset:{64+4*j}"); A("s_nop 1")
            if cls == "C" or anyS:
                A("s_waitcnt vmcnt(0)"); A("global_atomic_add v4, v3, s[62:63] offset:128")
            if cls == "C":
                n = 1024 + (2048 if anyS else 0)
                A("s_or_b32 s60, s2, s33"); A("s_cmp_lg_u32 s60, 0"); A("s_cbranch_scc1 L_amp_x")
                A("s_mov_b32 s38, 100000")
                self.lab("L_amp_p")
                A("s_sleep 32"); A("global_load_dword v2, v4, s[62:63] offset:128 sc1"); A("s_waitcnt vmcnt(0)"); A("v_readfirstlane_b32 s60, v2")
                A("s_sub_u32 s38, s38, 1"); A("s_cbranch_scc1 L_amp_x")
                A(f"s_cmp_lt_u32 s60, {n}"); A("s_cbranch_scc1 L_amp_p")
                A("global_load_dword v2, v4, s[62:63] sc1"); A("global_load_dwordx2 v[6:7], v4, s[62:63] offset:64 sc1"); A("s_waitcnt vmcnt(0)")
                A("v_readfirstlane_b32 s60, v2"); A("v_readfirstlane_b32 s56, v6"); A("v_readfirstlane_b32 s57, v7"); A("s_not_b32 s60, s60")
                for j, a in enumerate(parts):
                    r = f"s{56+j}"
                    if a[0].islower():
                        sh = 11 if a[0] == "s" else 10
                        A(f"s_lshl_b32 s59, s60, {sh}"); A(f"s_sub_u32 {r}, {r}, s59"); A(f"s_mul_i32 {r}, {r}, {self.ampf}"); A(f"s_lshr_b32 {r}, {r}, {sh}")
                    else:
                        A(f"s_sub_u32 {r}, {r}, s60"); A(f"s_mul_i32 {r}, {r}, {self.ampf}")
                if len(parts) == 2: A("s_sub_u32 s56, s56, s57")
                A("s_add_u32 s61, s56, 15000"); A("s_min_u32 s61, s61, 100000")
                self.lab("L_amp_s")
                A("s_memrealtime s[58:59]"); A("s_waitcnt lgkmcnt(0)"); A("s_sub_u32 s58, s58, s60"); A("s_cmp_lt_u32 s58, s61"); A("s_cbranch_scc1 L_amp_s")
                self.lab("L_amp_x")
            return
        if self.dbg:
            A("s_load_dwordx2 s[62:63], s[0:1], 96")
            A("s_waitcnt lgkmcnt(0)")
            A("s_mov_b64 exec, 1"); A("v_mov_b32 v4, 0")
            A("s_not_b32 s60, s64"); A("v_mov_b32 v2, s60"); A("global_atomic_umax v4, v2, s[62:63]")
            m = {"C": {0: 15, 2: 2, 4: 3, 7: 10, 8: 11, 9: 12, 12: 13, 10: 14}, "S": {1: 1, 2: 4, 3: 5, 7: 6, 9: 7, 10: 8, 11: 9}}[cls]
            for k, d in m.items():
                A(f"v_mov_b32 v2, s{64+2*k}"); A(f"global_atomic_umax v4, v2, s[62:63] offset:{4*d}"); A("s_nop 1")
            if self.dbg == 2:
                m2 = {"C": {7: 16, 0: 17}, "S": {9: 18, 1: 19}}[cls]
                for k, d in m2.items():
                    A(f"v_mov_b32 v2, s{64+2*k}"); A(f"global_atomic_add v4, v2, s[62:63] offset:{4*d}"); A("s_nop 1")
            return
        A("s_waitcnt lgkmcnt(0)")
        A("s_mul_i32 s60, s2, 12"); A("s_add_u32 s60, s60, s33"); A(f"s_mul_i32 s60, s60, {NS*8}")
        A(f"s_add_u32 s60, s60, {STAMP_OFF}")
        A("s_add_u32 s62, s12, s60"); A("s_addc_u32 s63, s13, 0")
        A("s_mov_b64 exec, 1"); A("v_mov_b32 v4, 0")
        for i in range(NS):
            A(f"v_mov_b32 v2, s{64+2*i}"); A(f"v_mov_b32 v3, s{65+2*i}")
            A(f"global_store_dwordx2 v4, v[2:3], s[62:63] offset:{i*8}"); A("s_nop 1")
    def v4(self, r): return f"v[{r}:{r+3}]"
    def v2(self, r): return f"v[{r}:{r+1}]"
    def perms(self, dst, src, pairs=(0, 1, 2, 3)):
        for q in pairs:
            for w in range(4):
                for hh in range(2):
                    j = 2*w + hh
                    self.A(f"v_perm_b32 v{dst+4*j+q}, v{src+4*(2*q+1)+w}, v{src+4*(2*q)+w}, s{36+hh}")
    def allred_rows(self, op, v, t):
        A = self.A
        A(f"v_mov_b32 v{t}, v{v}"); self.nop(2)
        A(f"v_permlane32_swap_b32 v{v}, v{t}")
        A(f"{op} v{v}, v{v}, v{t}")
        A(f"v_mov_b32 v{t}, v{v}"); self.nop(2)
        A(f"v_permlane16_swap_b32 v{v}, v{t}")
        A(f"{op} v{v}, v{v}, v{t}")
    def masks(self, m, bank):
        for i in range(4):
            self.A(f"v_cmp_eq_u32 vcc, {i}, v{bank}"); self.A(f"v_cndmask_b32 v{m+i}, 0, -1, vcc")
    def dpp(self, op, d, a, b, ctl):
        self.A(f"{op}_dpp v{d}, v{a}, v{b} {ctl} row_mask:0xf bank_mask:0xf")
    def poll(self, name, loads, tagregs, acc, first_issued=False, sleep=0, tv=None):
        A = self.A
        A(f"s_mov_b32 s38, {self.spin}")
        if first_issued: A(f"s_branch L_chk_{name}")
        elif sleep: A(f"s_branch L_ld_{name}")
        self.lab(f"L_poll_{name}")
        if sleep: A(f"s_sleep {sleep}")
        self.lab(f"L_ld_{name}")
        for l in loads: A(l)
        self.lab(f"L_chk_{name}")
        A("s_waitcnt vmcnt(0)")
        if tv is None:
            A(f"v_xor_b32 v{acc}, s34, v{tagregs[0]}")
            for r in tagregs[1:]:
                A(f"v_bitop3_b32 v{acc}, v{r}, s34, v{acc} bitop3:0xbe")
        else: self.untag(tagregs[0], tv, acc)
        A("s_sub_u32 s38, s38, 1")
        A(f"v_cmp_ne_u32 vcc, 0, v{acc}")
        A("s_cselect_b64 s[50:51], 0, -1")
        if tv is not None: A("s_wqm_b64 vcc, vcc")
        A("s_and_b64 exec, vcc, s[50:51]")
        A(f"s_cbranch_scc1 L_poll_{name}")
        A("s_mov_b64 exec, -1")
    def untag(self, r0, tv, acc):
        A = self.A
        for r in range(r0, r0 + 8): A(f"v_xor_b32 v{r}, v{tv + (r & 1)}, v{r}")
        A(f"v_or3_b32 v{acc}, v{r0}, v{r0+1}, v{r0+2}"); A(f"v_or3_b32 v{acc+1}, v{r0+3}, v{r0+4}, v{r0+5}")
        A(f"v_or3_b32 v{acc}, v{acc}, v{r0+6}, v{r0+7}")
        A(f"v_bitop3_b32 v{acc}, v{acc}, v{acc+1}, s11 bitop3:0xa8")
    def ldsspin(self, name, off, target, reads, sleep=1):
        A = self.A
        A(f"s_mov_b32 s38, {self.spin * 16}")
        if sleep: A(f"s_branch L_spl_{name}")
        self.lab(f"L_sp_{name}")
        if sleep: A(f"s_sleep {sleep}")
        self.lab(f"L_spl_{name}")
        A(f"ds_read_b32 v2, {self.vz} offset:{L_F+off}")
        for r in reads: A(r)
        A("s_sub_u32 s38, s38, 1")
        A("s_cselect_b32 s3, 0, -1")
        A("s_waitcnt lgkmcnt(0)")
        A("v_readfirstlane_b32 s40, v2")
        A("s_orn2_b32 s40, s40, s3")
        A(f"s_cmp_lt_u32 s40, {target}")
        A(f"s_cbranch_scc1 L_sp_{name}")
    def cnt(self, off, one):
        A = self.A
        A("s_mov_b64 exec, 1")
        A(f"ds_add_u32 {self.vz}, {one} offset:{L_F+off}")
    def vissue(self, VB, p):
        for T in (2*p, 2*p+1):
            for e in range(4):
                self.A(f"buffer_load_dwordx4 {self.v4(VB+16*T+4*e)}, v5, s[8:11], s35 offen offset:{256*e}{self.nt}")
            if T < 3: self.A("s_add_u32 s35, s35, 16384")
    def mspin(self, name, B, d):
        A = self.A
        self.ldsspin(name, 8, 8, [f"ds_read_b128 {self.v4(B)}, v6 offset:{L_M}", f"ds_read_b128 {self.v4(B+4)}, v6 offset:{L_M+16}"], sleep=2)
        A(f"v_max3_f32 v{B}, v{B}, v{B+1}, v{B+2}")
        A(f"v_max3_f32 v{B+3}, v{B+3}, v{B+4}, v{B+5}")
        A(f"v_max3_f32 v{B}, v{B}, v{B+6}, v{B+7}")
        A(f"v_max_f32 v{d}, v{B}, v{B+3}")

    def gen(self):
        A = self.A; nt = self.nt; pol = self.pol; v4 = self.v4; v2 = self.v2
        OP = 0x100000 if self.ovl else 0x40000
        L = self.L
        L.append(HDR.rstrip("\n"))
        L.append(f"; @launch grid=(256,1,1) block=(768,1,1) lds={LDS_BYTES}")
        L.append('.amdgcn_target "amdgcn-amd-amdhsa--gfx950"')
        L.append(".text"); L.append(f".globl {KN}"); L.append(".p2align 12"); L.append(".p2align 8"); L.append(f".type {KN},@function"); L.append(f"{KN}:")
        self.stamp(0)
        if self.pad: A("s_memrealtime s[90:91]")
        if self.stamps:
            for i in range(1, NS): A(f"s_mov_b64 s[{64+2*i}:{65+2*i}], 0")
        if self.xperm == 1:
            A("s_lshr_b32 s3, s2, 3"); A("s_and_b32 s29, s2, 7"); A("s_lshl_b32 s29, s29, 5"); A("s_or_b32 s2, s3, s29")
        if self.xperm == 2:
            A("s_xor_b32 s3, s2, 1"); A("s_and_b32 s29, s2, 0xf8"); A("s_cmp_eq_u32 s29, 0x48"); A("s_cselect_b32 s2, s3, s2")
        if self.skew:
            A("s_and_b32 s3, s2, 7"); A("s_mul_i32 s3, s3, 5"); A("s_and_b32 s3, s3, 7")
            self.lab("L_skew")
            A("s_sub_u32 s3, s3, 1"); A("s_cbranch_scc1 L_skew2"); A(f"s_sleep {self.skew}"); A("s_branch L_skew")
            self.lab("L_skew2")
        A("s_bfe_u32 s29, s2, 0x10002")
        A("s_mul_i32 s3, s29, 40")
        A("s_cmp_ge_u32 s2, 256"); A("s_cbranch_scc1 L_end")
        A("s_load_dwordx2 s[16:17], s[0:1], s3 offset:24")
        A("s_load_dwordx2 s[24:25], s[0:1], 0")
        A("s_load_dwordx2 s[4:5], s[0:1], s3 offset:8")
        A("s_load_dwordx2 s[8:9], s[0:1], s3 offset:16")
        A("s_load_dwordx2 s[12:13], s[0:1], 104")
        A("v_lshrrev_b32 v1, 6, v0")
        A("s_lshr_b32 s30, s2, 3")
        if self.tx: A(f"s_xor_b32 s30, s30, {self.tx}")
        A("v_readfirstlane_b32 s33, v1")
        A("s_and_b32 s28, s2, 3"); A("s_lshl_b32 s28, s28, 1"); A("s_lshr_b32 s31, s30, 4"); A("s_or_b32 s28, s28, s31")
        A("s_bfe_u32 s31, s30, 0x20002"); A("s_and_b32 s32, s30, 3")
        A("v_and_b32 v0, 63, v0")
        A("v_and_b32 v3, 15, v0")
        A("v_lshrrev_b32 v4, 4, v0")
        A("v_bfe_u32 v5, v0, 2, 2")
        A("v_and_b32 v6, 3, v0")
        A("s_cmp_ge_u32 s33, 4"); A("s_cbranch_scc1 L_S")
        WB, PB, DB, XB, XM, CK = 8, 40, 72, 104, 80, 96
        A("s_setprio 3")
        if self.pf:
            A("s_getpc_b64 s[42:43]")
            if self.lean:
                A("s_mul_i32 s3, s33, 2176"); A("v_lshl_add_u32 v12, v0, 7, s3"); A("s_mov_b64 exec, 0x1ffff")
            else: A("v_lshlrev_b32 v12, 7, v0")
            A("v_min_u32 v12, L_last-L_pfbase, v12")
            self.lab("L_pfbase")
            A("global_load_dword v108, v12, s[42:43]")
            if self.lean: A("s_mov_b64 exec, -1"); A("s_mul_i32 s3, s29, 40")
        A("s_mov_b32 s18, 0x400000"); A("s_mov_b32 s19, 0x20000")
        A("s_mov_b32 s26, 4096"); A("s_mov_b32 s27, 0x20000")
        A("v_lshlrev_b32 v1, 16, v4"); A("v_lshl_add_u32 v1, v3, 4, v1")
        if self.wqr:
            A("v_lshl_add_u32 v1, v4, 13, v1")
            for e in range(1, self.cw): A(f"v_xor_b32 v{64+e}, {e << 13}, v1")
        def wql(e):
            if self.wqr:
                if e >= self.cw: A(f"v_xor_b32 v{64+e}, {e << 13}, v1")
                A(f"buffer_load_dwordx4 {v4(WB+4*e)}, v{64+e if e else 1}, s[16:19], s35 offen{nt}")
            else:
                A(f"buffer_load_dwordx4 {v4(WB+4*e)}, v1, s[16:19], s35 offen{nt}")
                if e < 7: A("s_add_u32 s35, s35, 8192")
        A("v_lshlrev_b32 v2, 10, v5"); A("v_lshl_add_u32 v2, v4, 4, v2"); A("v_lshl_add_u32 v2, v6, 2, v2")
        A("s_lshl_b32 s44, s28, 2"); A("s_add_u32 s44, s44, s31")
        A("s_lshl_b32 s39, s32, 2"); A("s_add_u32 s39, s39, s33")
        A("s_lshl_b32 s35, s39, 18"); A("s_lshl_b32 s45, s44, 8"); A("s_add_u32 s35, s35, s45")
        A("s_lshl_b32 s39, s39, 6")
        A("s_waitcnt lgkmcnt(0)")
        self.stamp(1)
        A(f"buffer_load_dword v{XB}, v2, s[24:27], s39 offen")
        for e in range(self.cw): wql(e)
        A("v_mov_b32 v112, 0"); A("v_mov_b32 v113, 0"); A("v_mov_b32 v114, 0"); A("v_mov_b32 v115, 0")
        A(f"ds_write_b128 v112, v[112:115] offset:{L_F}")
        A(f"ds_write_b128 v112, v[112:115] offset:{L_F+16}")
        A("s_waitcnt lgkmcnt(0)")
        A("s_barrier")
        A("s_branch L_C")
        self.lab("L_S")
        KB, VB, QB, SB = 8, 72, 136, 152
        self.vz = "v7"
        esh = 10 if self.lan else 8
        A("s_setprio 1")
        A("s_mov_b32 s6, 0x4000000"); A("s_mov_b32 s7, 0x20000")
        A("s_mov_b32 s10, 0x4000000"); A("s_mov_b32 s11, 0x20000")
        A("s_lshl_b32 s35, s31, 3"); A("s_add_u32 s35, s35, s28"); A("s_lshl_b32 s35, s35, 4"); A("s_add_u32 s35, s35, s32")
        A("s_lshl_b32 s35, s35, 5"); A("s_add_u32 s35, s35, s33")
        A("s_lshl_b32 s35, s35, 12"); A(f"s_add_u32 s35, s35, {0x180000 - 4*4096}")
        if self.rot & 1: A(f"s_lshl_b32 s3, s32, {esh}"); A("s_add_u32 s35, s35, s3")
        if self.rot & 2: A("s_and_b32 s3, s2, 7"); A("s_lshl_b32 s3, s3, 12"); A("s_xor_b32 s35, s35, s3")
        A(f"v_lshlrev_b32 v1, {18-esh}, v5"); A("v_lshl_add_u32 v1, v4, 6, v1"); A("v_lshl_add_u32 v1, v6, 4, v1")
        A(f"v_mul_u32_u24 v2, {QH}, v6"); A("v_lshl_add_u32 v2, v4, 6, v2"); A(f"v_lshl_add_u32 v{QB+12}, v5, 4, v2")
        A("v_lshlrev_b32 v5, 4, v3"); A(f"v_lshl_add_u32 v5, v4, {18-esh}, v5")
        if self.pr == 1:
            A("s_cmp_lt_u32 s33, 8"); A("s_cbranch_scc1 L_pr1"); A("s_setprio 2"); self.lab("L_pr1")
        if not self.b0late: A("s_barrier")
        A("s_waitcnt lgkmcnt(0)")
        self.stamp(1)
        st = dict(i=0)
        def trig(i):
            if i in (self.wj, self.wj2):
                self.cnt(24, f"v{QB+15}"); A("s_mov_b64 exec, -1")
        def nxt(k=1):
            for _ in range(k):
                i = st["i"]; st["i"] += 1
                n = self.N + (1 if i >= self.up else 0) + (1 if self.alt and i % self.alt == 0 else 0)
                wt = lambda p: (None if p[i] == "x" else int(p[i])) if i < len(p) else (n - 1 if i >= n else None)
                w1 = wt(self.pat); w2 = wt(self.pat2) if self.pat2 else w1
                if i == self.lup: w2 = n
                if w1 == w2:
                    if w1 is not None: A(f"s_waitcnt vmcnt({w1})")
                else:
                    A("s_cmp_ge_u32 s33, 8"); A(f"s_cbranch_scc1 L_p{i}")
                    if w1 is not None: A(f"s_waitcnt vmcnt({w1})")
                    if w2 is not None and (w1 is None or w2 < w1):
                        A(f"s_branch L_q{i}"); self.lab(f"L_p{i}"); A(f"s_waitcnt vmcnt({w2})"); self.lab(f"L_q{i}")
                    else:
                        self.lab(f"L_p{i}")
                        if w2 is not None: A(f"s_waitcnt vmcnt({w2})")
                if self.pr == 2: A(f"s_setprio {2 - i % 3}")
                if self.pr == 3: A(f"s_setprio {1 - i % 2}")
                T, e = (i >> 2) & 3, i & 3
                so = "s35"
                if T or e: A(f"s_xor_b32 s39, s35, {T*32768 + (e << esh)}"); so = "s39"
                if i < 16: A(f"buffer_load_dwordx4 {v4(KB+4*i)}, v1, s[4:7], {so} offen{nt}")
                else: A(f"buffer_load_dwordx4 {v4(VB+4*(i-16))}, v5, s[8:11], {so} offen{nt}")
                trig(i)
                if self.xdirty and i == 8:
                    A("s_mov_b32 s14, 0x4000000")
                    A("s_lshl_b32 s46, s2, 3"); A("s_add_u32 s46, s46, s33"); A(f"s_mul_i32 s46, s46, {self.xdirty*1024}"); A("s_add_u32 s46, s46, 0x800000")
                    A(f"v_lshlrev_b32 v{SB}, 4, v0")
                    for k in range(self.xdirty): A(f"buffer_store_dwordx4 v[0:3], v{SB}, s[12:15], s46 offen offset:{1024*k}")
        def upto(j):
            while st["i"] <= j: nxt()
        nxt(len(self.pat) - len(self.pat.lstrip("x")) if self.pat else self.N)
        A("s_load_dword s34, s[12:13], 0")
        A(f"s_mov_b32 s14, {WS_BYTES}"); A("s_mov_b32 s15, 0x20000")
        A("s_mov_b32 s36, 0x05040100"); A("s_mov_b32 s37, 0x07060302")
        A("v_mov_b32 v7, 0")
        A(f"v_mov_b32 v{QB+15}, 1")
        A("v_lshlrev_b32 v6, 5, v6"); A("s_lshl_b32 s3, s33, 2"); A("s_sub_u32 s3, s3, 16"); A("v_add_u32 v3, s3, v6")
        A(f"v_and_b32 v{QB+13}, 3, v0"); A(f"v_mul_u32_u24 v{QB+13}, {OH}, v{QB+13}"); A(f"v_lshl_add_u32 v{QB+13}, v4, 7, v{QB+13}")
        A(f"v_bfe_u32 v{QB+14}, v0, 2, 2"); A(f"v_lshl_add_u32 v{QB+13}, v{QB+14}, 4, v{QB+13}")
        A(f"s_mul_i32 s3, s33, {OW}"); A(f"s_add_u32 s3, s3, {L_O - 4*OW}"); A(f"v_add_u32 v{QB+13}, s3, v{QB+13}")
        if self.b0late: A("s_barrier")
        upto(15)
        self.stamp(2)
        upto(15 + self.qpos)
        A(f"s_waitcnt vmcnt({self.qpos})")
        self.stamp(3)
        self.ldsspin("q", 4, 4, [f"ds_read_b128 {v4(QB)}, v{QB+12} offset:{L_Q}"], sleep=4)
        self.stamp(4)
        Dj = lambda j: (QB + 4 + 4*j) if j < 2 else (KB + 4*(j-2))
        for j in range(16):
            A(f"v_mfma_f32_16x16x32_bf16 {v4(Dj(j))}, {v4(KB+4*j)}, {v4(QB)}, 0")
        A(f"s_mov_b32 s40, {SCALE}"); A(f"s_mov_b32 s41, {LOG2E}")
        A("s_mul_i32 s34, s34, 1664525"); A("s_add_u32 s34, s34, 1013904223")
        nxt()
        for j in range(16): self.dpp("v_add_f32", SB+j, Dj(j)+1, Dj(j), "row_ror:12")
        for j in range(16): self.dpp("v_add_f32", SB+j, Dj(j)+2, SB+j, "row_ror:8")
        for j in range(16): self.dpp("v_add_f32", SB+j, Dj(j)+3, SB+j, "row_ror:4")
        for i in range(8):
            A(f"v_cvt_pk_bf16_f32 v{QB+i}, v{SB+2*i}, v{SB+2*i+1}")
        for i in range(8):
            A(f"v_lshlrev_b32 v{SB+2*i}, 16, v{QB+i}"); A(f"v_and_b32 v{SB+2*i+1}, 0xffff0000, v{QB+i}")
        nxt()
        for i in range(8):
            A(f"v_pk_mul_f32 {v2(SB+2*i)}, {v2(SB+2*i)}, s[40:41] op_sel_hi:[1,0]")
        for i in range(8):
            A(f"v_cvt_pk_bf16_f32 v{QB+i}, v{SB+2*i}, v{SB+2*i+1}")
        for i in range(8):
            A(f"v_lshlrev_b32 v{SB+2*i}, 16, v{QB+i}"); A(f"v_and_b32 v{SB+2*i+1}, 0xffff0000, v{QB+i}")
        A(f"v_max3_f32 v1, v{SB}, v{SB+1}, v{SB+2}")
        A(f"v_max3_f32 v2, v{SB+3}, v{SB+4}, v{SB+5}")
        A(f"v_max3_f32 v1, v1, v{SB+6}, v{SB+7}")
        A(f"v_max3_f32 v2, v2, v{SB+8}, v{SB+9}")
        A(f"v_max3_f32 v1, v1, v{SB+10}, v{SB+11}")
        A(f"v_max3_f32 v2, v2, v{SB+12}, v{SB+13}")
        A(f"v_max3_f32 v1, v1, v{SB+14}, v{SB+15}")
        A("v_max_f32 v1, v1, v2")
        self.allred_rows("v_max_f32", 1, 2)
        A("v_mul_f32 v1, s41, v1")
        A("s_mov_b64 exec, 15")
        A(f"ds_write_b32 v3, v1 offset:{L_M}")
        self.cnt(8, f"v{QB+15}")
        A("s_mov_b64 exec, -1")
        self.stamp(5)
        nxt()
        self.stamp(6)
        self.mspin("m", QB, 1)
        for i in range(16):
            A(f"v_fma_f32 v{SB+i}, v{SB+i}, s41, -v1")
        for i in range(16):
            A(f"v_exp_f32 v{SB+i}, v{SB+i}")
        nxt()
        for i in range(8):
            A(f"v_cvt_pk_bf16_f32 v{QB+i}, v{SB+2*i}, v{SB+2*i+1}")
        for i in range(4):
            A(f"v_pk_add_f32 {v2(SB+2*i)}, {v2(SB+2*i)}, {v2(SB+8+2*i)}")
        for i in range(2):
            A(f"v_pk_add_f32 {v2(SB+2*i)}, {v2(SB+2*i)}, {v2(SB+4+2*i)}")
        A(f"v_pk_add_f32 {v2(SB)}, {v2(SB)}, {v2(SB+2)}")
        A(f"v_add_f32 v{SB+8}, v{SB}, v{SB+1}")
        self.allred_rows("v_add_f32", SB+8, SB)
        OB, P0, P1 = 8, 40, 72
        A("s_mov_b64 exec, 15")
        A(f"ds_write_b32 v3, v{SB+8} offset:{L_L}")
        self.cnt(20, f"v{QB+15}")
        A("s_mov_b64 exec, -1")
        self.stamp(7)
        def need(j):
            upto(min(31, j + self.N + (1 if j + self.N + 1 >= self.up else 0)))
            A(f"s_waitcnt vmcnt({st['i'] - 1 - j})")
        BM0, BM1, MK = 16, 40, 32
        def spread(dst, src):
            for i in range(4):
                for q in range(4):
                    if i == 0: A(f"v_and_b32 v{dst+q}, v{src+q}, v{MK}")
                    else: self.dpp("v_and_b32", dst+4*i+q, src+q, MK+i, f"row_ror:{4*i}")
        JO = (0, 4, 1, 5, 2, 6, 3, 7)
        self.masks(MK, QB+14)
        if st["i"] < 24: nxt()
        spread(BM0, QB)
        need(23)
        self.perms(P0, VB, pairs=(0, 1))
        if st["i"] < 32: nxt()
        self.perms(P0, VB, pairs=(2, 3))
        for j in JO:
            A(f"v_mfma_f32_16x16x32_bf16 {v4(OB+4*(j>>2))}, {v4(P0+4*j)}, {v4(BM0+4*(j&3))}, {v4(OB+4*(j>>2)) if j & 3 else 0}")
        self.stamp(8)
        need(25)
        self.perms(P1, VB+32, pairs=(0,))
        spread(BM1, QB+4)
        A("s_cmp_ge_u32 s33, 8"); A("s_cbranch_scc1 L_S_nr")
        A(f"s_mul_i32 s3, s33, {OH}"); A(f"s_add_u32 s3, s3, {L_O - 4*OH}")
        A(f"v_lshl_add_u32 v{SB+9}, v0, 3, s3")
        A("s_lshl_b32 s3, s33, 5"); A("s_sub_u32 s3, s3, 128"); A(f"v_mov_b32 v{SB+10}, s3")
        A("s_lshl_b32 s3, s29, 3"); A("s_add_u32 s3, s3, s28"); A("s_lshl_b32 s3, s3, 2"); A("s_add_u32 s3, s3, s33"); A("s_sub_u32 s3, s3, 4")
        A("s_lshl_b32 s3, s3, 2"); A("s_add_u32 s3, s3, s32"); A("s_lshl_b32 s3, s3, 2"); A("s_add_u32 s3, s3, s31")
        A("s_lshl_b32 s46, s3, 9"); A(f"s_add_u32 s46, s46, {OP}")
        A(f"v_lshlrev_b32 v{SB+11}, 3, v0")
        A(f"v_mov_b32 v{SB+13}, s34")
        self.ldsspin("l", 20, 8, [f"ds_read_b128 {v4(SB)}, v{SB+10} offset:{L_L}", f"ds_read_b128 {v4(SB+4)}, v{SB+10} offset:{L_L+16}",
                                  f"ds_read_b32 v1, v7 offset:{L_F+12}"], sleep=2)
        A("v_readfirstlane_b32 s45, v1")
        A(f"v_pk_add_f32 {v2(SB)}, {v2(SB)}, {v2(SB+4)}"); A(f"v_pk_add_f32 {v2(SB+2)}, {v2(SB+2)}, {v2(SB+6)}")
        A(f"v_pk_add_f32 {v2(SB)}, {v2(SB)}, {v2(SB+2)}")
        A(f"v_add_f32 v{SB+14}, v{SB}, v{SB+1}")
        A(f"v_rcp_f32 v{SB+14}, v{SB+14}")
        self.lab("L_S_nr")
        for q in range(1, 4):
            if q == 3 and 33 in (self.wj, self.wj2):
                need(30); trig(33)
            need(25 + 2*q)
            if q == 2: trig(32)
            if q == 2: A("s_setprio 3")
            if q == 3: trig(34); self.stamp(9)
            else: self.perms(P1, VB+32, pairs=(q,))
        for k in range(11):
            if k < 8:
                j = JO[k]; A(f"v_perm_b32 v{P1+4*j+3}, v{VB+32+28+(j>>1)}, v{VB+32+24+(j>>1)}, s{36+(j&1)}")
            if k >= 2 and k < 10:
                j = JO[k-2]; A(f"v_mfma_f32_16x16x32_bf16 {v4(OB+4*(j>>2))}, {v4(P1+4*j)}, {v4(BM1+4*(j&3))}, {v4(OB+4*(j>>2))}")
        self.xs("sm")
        A("s_cmp_ge_u32 s33, 8")
        self.nop(7)
        A(f"ds_write_b128 v{QB+13}, {v4(OB)}")
        A(f"ds_write_b128 v{QB+13}, {v4(OB+4)} offset:64")
        self.xs("sw")
        A("s_waitcnt lgkmcnt(0)")
        self.xs("sd")
        A("s_barrier")
        self.stamp(10)
        A("s_cbranch_scc1 L_S_x")
        for w in range(8): A(f"ds_read_b64 {v2(8+2*w)}, v{SB+9} offset:{OW*w}")
        A("s_cmp_lg_u32 s45, 0")
        A("s_waitcnt lgkmcnt(4)")
        A("v_pk_add_f32 v[8:9], v[8:9], v[10:11]"); A("v_pk_add_f32 v[12:13], v[12:13], v[14:15]")
        A("s_waitcnt lgkmcnt(2)")
        A("v_pk_add_f32 v[16:17], v[16:17], v[18:19]"); A("v_pk_add_f32 v[8:9], v[8:9], v[12:13]")
        A("s_waitcnt lgkmcnt(0)")
        self.xs("sr")
        A("v_pk_add_f32 v[20:21], v[20:21], v[22:23]"); A("v_pk_add_f32 v[8:9], v[8:9], v[16:17]")
        A("v_pk_add_f32 v[8:9], v[8:9], v[20:21]")
        A(f"v_pk_mul_f32 v[8:9], v[8:9], {v2(SB+14)} op_sel_hi:[1,0]")
        A(f"v_cvt_pk_bf16_f32 v{SB+12}, v8, v9")
        A("s_cbranch_scc1 L_S_y2")
        A(f"buffer_store_dwordx2 {v2(SB+12)}, v{SB+11}, s[12:15], s46 offen" + ["", " sc1", " nt", " sc0 sc1"][self.owt])
        self.lab("L_S_x")
        self.stamp(11)
        if self.stamps and not self.nos:
            A("s_sleep 127"); A("s_sleep 127")
            self.stamp_out("S")
        A("s_endpgm")
        self.lab("L_C")
        self.vz = "v110"
        A("s_load_dword s34, s[12:13], 0")
        A("s_load_dwordx2 s[20:21], s[0:1], s3 offset:32")
        A("s_load_dwordx2 s[52:53], s[0:1], 80")
        A("s_load_dwordx2 s[56:57], s[0:1], 88")
        A(f"s_mov_b32 s14, {WS_BYTES}"); A("s_mov_b32 s15, 0x20000")
        A("s_mov_b32 s22, 0x400000"); A("s_mov_b32 s23, 0x20000")
        A("s_mov_b32 s36, 0x05040100"); A("s_mov_b32 s37, 0x07060302")
        A("s_mov_b32 s54, 1024"); A("s_mov_b32 s55, 0x20000")
        A("s_mov_b32 s58, 4096"); A("s_mov_b32 s59, 0x20000")
        A("s_lshl_b32 s45, s29, 1"); A("s_lshr_b32 s3, s28, 2"); A("s_add_u32 s45, s45, s3")
        A("v_lshlrev_b32 v109, 4, v0")
        A("s_lshl_b32 s3, s29, 5"); A("s_add_u32 s47, s44, s3")
        A("v_mov_b32 v110, 0"); A("v_mov_b32 v111, 1"); A("v_mov_b32 v133, 1024")
        A("v_lshlrev_b32 v127, 3, v0")
        A(f"v_mul_u32_u24 v122, {RU}, v4")
        A(f"v_mul_u32_u24 v7, {RB}, v5"); A("v_add_u32 v7, v7, v122"); A("v_lshl_add_u32 v7, v6, 4, v7")
        A(f"s_mul_i32 s3, s33, {RW}"); A(f"s_add_u32 s3, s3, {L_R}"); A("v_add_u32 v7, s3, v7")
        A("v_lshl_add_u32 v122, v6, 5, v122"); A("v_lshl_add_u32 v122, v5, 2, v122")
        A(f"s_mul_i32 s3, s33, {RB}"); A(f"s_add_u32 s3, s3, {L_R}"); A("v_add_u32 v122, s3, v122")
        A(f"v_add_u32 v123, {RW}, v122"); A(f"v_add_u32 v124, {2*RW}, v122"); A(f"v_add_u32 v125, {3*RW}, v122")
        self.masks(CK, 6)
        A("s_lshl_b32 s46, s47, 2"); A("s_add_u32 s46, s46, s32"); A("s_lshl_b32 s46, s46, 2"); A("s_add_u32 s46, s46, s33")
        A("s_lshl_b32 s46, s46, 9"); A(f"s_add_u32 s46, s46, {QP}")
        A("s_lshl_b32 s4, s29, 3"); A("s_add_u32 s4, s4, s28"); A("s_lshl_b32 s4, s4, 2"); A("s_add_u32 s4, s4, s33")
        A("s_lshl_b32 s4, s4, 2"); A("s_add_u32 s4, s4, s31"); A("s_lshl_b32 s4, s4, 2"); A("s_add_u32 s4, s4, s32")
        A("s_lshl_b32 s4, s4, 3"); A(f"s_add_u32 s4, s4, {SP}")
        if self.rm >= 0:
            A("s_sub_u32 s3, s32, s31"); A("s_add_u32 s44, s44, s3"); A("s_add_u32 s47, s47, s3")
            A(f"s_add_u32 s32, s31, {self.rm}"); A("s_and_b32 s32, s32, 3")
        A("s_mov_b32 s41, 0")
        A("s_getreg_b32 s30, hwreg(HW_REG_XCC_ID, 0, 4)")
        if self.forcey: A("s_lshr_b32 s30, s2, 3"); A("s_and_b32 s30, s30, 1")
        A("s_lshl_b32 s3, s45, 10")
        A("s_waitcnt lgkmcnt(0)")
        if self.lean: A("s_cmp_eq_u32 s33, 0"); A("s_cselect_b64 exec, -1, 1")
        A("buffer_load_dwordx4 v[112:115], v109, s[24:27], s3 offen")
        A("buffer_load_dwordx4 v[116:119], v109, s[52:55], 0 offen")
        if self.lean: A("s_mov_b64 exec, -1")
        for e in range(self.cw, 8):
            A(f"s_waitcnt vmcnt({self.cw-1 + (2 if e < 2*self.cw else 0)})")
            wql(e)
        if self.wqr:
            A("s_mov_b32 s3, 0x02020202"); A("v_mul_lo_u32 v140, v4, s3"); A("v_xor_b32 v140, 0x03020100, v140")
            for q in range(4): A(f"v_perm_b32 v{XB+q}, v{136 + (q ^ 1)}, v{136 + q}, v140")
        A("s_mul_i32 s34, s34, 1664525"); A("s_add_u32 s34, s34, 1013904223")
        A("v_mov_b32 v129, s34")
        A("s_and_b32 s3, s34, -16"); A("s_or_b32 s30, s30, s3")
        A("v_and_b32 v160, 1, v0"); A("v_lshlrev_b32 v160, 4, v160")
        A("v_lshrrev_b32 v166, v160, s30"); A("v_lshrrev_b32 v160, v160, s34")
        A("v_bfe_u32 v167, v166, 8, 8"); A("v_bfe_u32 v161, v160, 8, 8")
        A("v_and_b32 v166, 0xff, v166"); A("v_and_b32 v160, 0xff, v160")
        A("s_movk_i32 s11, 0xff"); A("s_and_b32 s30, s30, 0xffff"); A("s_mov_b32 s10, 0x0c0c0400")
        SG = 136
        CF = 144
        OG = 152
        ol = [f"buffer_load_dwordx2 {v2(OG+2*s)}, v1, s[12:15], s{39 if s < 2 else 48} offen offset:{2048*(s&1)}{pol}" for s in range(4)]
        stl = [f"buffer_load_dwordx4 {v4(SG+4*s)}, v57, s[12:15], s35 offen offset:{16*s}{pol}" for s in range(2)]
        self.lab("L_tile")
        for q in range(3):
            A(f"s_waitcnt vmcnt({6-2*q})")
            self.perms(PB, WB, pairs=(q,))
        A("s_cmp_eq_u32 s41, 0"); A("s_cbranch_scc0 L_t1")
        A("s_waitcnt vmcnt(0)")
        self.perms(PB, WB, pairs=(3,))
        self.stamp(2); A("s_branch L_mm")
        self.lab("L_t1")
        A(f"s_mov_b32 s38, {self.spin}")
        if self.opos == 3:
            for l in ol: A(l)
            A("s_waitcnt vmcnt(4)")
        elif self.opos == 5:
            A("s_waitcnt vmcnt(1)")
            for l in ol: A(l)
            A("s_waitcnt vmcnt(4)")
        else:
            A("s_waitcnt vmcnt(0)")
            if self.opos == 4:
                for l in ol: A(l)
        self.perms(PB, WB, pairs=(3,))
        if self.opos == 6:
            for l in ol: A(l)
        self.stamp(7)
        A("s_branch L_og")
        self.lab("L_ogr")
        self.xs("or")
        if self.osleep: A(f"s_sleep {self.osleep}")
        for l in ol: A(l)
        self.lab("L_og")
        A("s_waitcnt vmcnt(0)")
        self.xs("ow")
        A(f"v_xor_b32 v20, s34, v{OG+1}")
        for s in range(1, 4): A(f"v_bitop3_b32 v20, v{OG+1+2*s}, s34, v20 bitop3:0xbe")
        A("s_sub_u32 s38, s38, 1")
        A("v_cmp_ne_u32 vcc, 0, v20")
        A("s_cbranch_scc1 L_ogd")
        A("s_cbranch_vccnz L_ogr")
        self.lab("L_ogd")
        if "oc" in self.xst: A(f"s_sub_u32 s80, {self.spin}, s38"); A("s_mov_b32 s81, 0")
        A("s_mov_b64 exec, s[6:7]")
        A(f"buffer_store_dword v129, v135, s[12:15], 0 offen {self.spol}")
        A("s_mov_b64 exec, -1")
        for s in (0, 2, 1, 3):
            A(f"v_lshlrev_b32 v{24+2*s}, 16, v{OG+2*s}"); A(f"v_and_b32 v{25+2*s}, 0xffff0000, v{OG+2*s}")
        self.stamp(8)
        A(f"v_pk_mul_f32 v[24:25], v[24:25], {v2(CF)} op_sel_hi:[1,0]")
        A(f"v_pk_mul_f32 v[28:29], v[28:29], {v2(CF+4)} op_sel_hi:[1,0]")
        A(f"v_pk_fma_f32 v[24:25], v[26:27], {v2(CF+2)}, v[24:25] op_sel_hi:[1,0,1]")
        A(f"v_pk_fma_f32 v[28:29], v[30:31], {v2(CF+6)}, v[28:29] op_sel_hi:[1,0,1]")
        A(f"v_pk_add_f32 v[24:25], v[24:25], v[28:29]")
        A(f"v_cvt_pk_bf16_f32 v{XB}, v24, v25"); self.nop(2)
        self.lab("L_mm")
        self.xs("mm")
        sp = [(i, q) for i in range(4) for q in range(4)]
        def spr(n):
            for _ in range(n):
                if sp:
                    i, q = sp.pop(0); self.dpp("v_and_b32", XM+4*i+q, XB, CK+i, f"quad_perm:[{q},{q},{q},{q}]")
        spr(6)
        for j in (0, 4, 1, 5, 2, 6, 3, 7):
            A(f"v_mfma_f32_16x16x32_bf16 {v4(DB+4*(j>>2))}, {v4(PB+4*j)}, {v4(XM+4*(j&3))}, {v4(DB+4*(j>>2)) if j & 3 else 0}")
            spr(2)
        self.xs("mf")
        A("s_cmp_eq_u32 s41, 0")
        self.nop(7)
        A(f"ds_write_b128 v7, {v4(DB)}")
        A(f"ds_write_b128 v7, {v4(DB+4)} offset:64")
        A("s_cbranch_scc0 L_fin")
        self.cnt(0, "v111")
        A("s_mov_b64 exec, -1")
        rd = [f"ds_read2_b32 {v2(12+2*i)}, v{122+i} offset0:0 offset1:4" for i in range(4)]
        self.ldsspin("c", 0, 4, rd, sleep=0)
        A("v_pk_add_f32 v[12:13], v[12:13], v[14:15]"); A("v_pk_add_f32 v[16:17], v[16:17], v[18:19]")
        A("v_pk_add_f32 v[12:13], v[12:13], v[16:17]")
        A("v_bfi_b32 v164, s11, v166, v12"); A("v_bfi_b32 v165, s11, v167, v13")
        A("buffer_store_dwordx2 v[164:165], v127, s[12:15], s46 offen" + ["", " sc1", " nt", " sc0 sc1"][self.qwt])
        self.stamp(3)
        if self.pretouch:
            A("s_lshl_b32 s3, s32, 2"); A("s_add_u32 s3, s3, s33"); A("s_lshl_b32 s3, s3, 9")
            A("s_lshl_b32 s40, s47, 13"); A("s_add_u32 s3, s3, s40"); A(f"s_add_u32 s3, s3, {OP}")
            A("s_or_b32 s40, s32, s33"); A("s_cbranch_scc1 L_pt")
            A("s_lshl_b32 s40, s47, 7"); A(f"s_add_u32 s40, s40, {SP}")
            A("s_load_dword s49, s[12:13], s40")
            self.lab("L_pt")
            for i in range(4): A(f"s_load_dword s49, s[12:13], s3 offset:{128*i}")
        for i in range(4):
            A(f"v_lshlrev_b32 v{24+2*i}, 16, v{112+i}"); A(f"v_and_b32 v{25+2*i}, 0xffff0000, v{112+i}")
            A(f"v_lshlrev_b32 v{32+2*i}, 16, v{116+i}"); A(f"v_and_b32 v{33+2*i}, 0xffff0000, v{116+i}")
        for i in range(4):
            A(f"v_pk_mul_f32 {v2(24+2*i)}, {v2(24+2*i)}, {v2(32+2*i)}")
        for i in range(4):
            A(f"v_cvt_pk_bf16_f32 v{32+i}, v{24+2*i}, v{25+2*i}")
        for i in range(4):
            A(f"v_lshlrev_b32 v{24+2*i}, 16, v{32+i}"); A(f"v_and_b32 v{25+2*i}, 0xffff0000, v{32+i}")
        A("v_pk_add_f32 v[24:25], v[24:25], v[28:29]"); A("v_pk_add_f32 v[26:27], v[26:27], v[30:31]")
        A("v_pk_add_f32 v[24:25], v[24:25], v[26:27]"); A("v_add_f32 v8, v24, v25")
        for ror in (8, 4, 2, 1):
            self.nop(2); self.dpp("v_add_f32", 8, 8, 8, f"row_ror:{ror}")
        self.allred_rows("v_add_f32", 8, 9)
        A("v_cvt_pk_bf16_f32 v8, v8, v8"); A("v_lshlrev_b32 v8, 16, v8")
        A(f"v_mul_f32 v8, {0xbfb8aa3b}, v8"); A("v_exp_f32 v8, v8"); self.nop(1)
        A("v_add_f32 v8, 1.0, v8"); A("v_rcp_f32 v8, v8"); self.nop(1)
        A("v_cvt_pk_bf16_f32 v8, v8, v8"); A("v_lshlrev_b32 v8, 16, v8")
        A("v_sub_f32 v9, 1.0, v8"); A("v_cvt_pk_bf16_f32 v9, v9, v9"); A("v_lshlrev_b32 v9, 16, v9")
        A("v_cmp_gt_u32 vcc, 32, v0")
        A("s_lshl_b32 s39, s29, 3"); A("s_add_u32 s39, s39, s28"); A("s_lshl_b32 s39, s39, 2"); A("s_add_u32 s39, s39, s33")
        A("v_cndmask_b32 v120, v9, v8, vcc")
        A("s_lshl_b32 s39, s39, 4"); A("s_add_u32 s39, s39, s31"); A("s_lshl_b32 s39, s39, 9"); A(f"s_add_u32 s39, s39, {QP}")
        A("s_add_u32 s60, s39, 4096")
        A("s_mov_b32 s63, 0")
        A("v_mov_b32 v18, 0")
        A("v_lshlrev_b32 v19, 11, v6")
        A(f"s_mov_b32 s38, {self.n0}"); A(f"s_mov_b32 s62, {self.spin}")
        self.stamp(13)
        D = self.qdepth
        ld = lambda i: A(f"buffer_load_dwordx2 {v2(40+2*i)}, v19, s[12:15], s39 offen{pol}")
        qg = lambda vo: [f"buffer_load_dwordx2 {v2(24+2*i)}, {vo}, s[12:15], s{39 if i < 2 else 60} offen offset:{2048*(i&1)}{pol}" for i in range(4)]
        for i in range(D - 1):
            ld(i); A(f"s_sleep {self.qsleep}")
        self.lab("L_qf")
        for i in range(D):
            ld((i + D - 1) % D)
            A(f"s_waitcnt vmcnt({D-1})")
            A(f"v_perm_b32 v20, v{41+2*i}, v{40+2*i}, s10")
            A("v_cmp_ne_u32 vcc, s30, v20")
            A("s_cmp_eq_u64 vcc, 0"); A("s_cbranch_scc1 L_qfd")
        self.lab("L_qfr")
        A("s_sub_u32 s38, s38, 1")
        A("s_cbranch_scc0 L_qf")
        A("s_branch L_slow")
        self.lab("L_qfd")
        self.stamp(14)
        for l in qg("v127"): A(l)
        A(f"s_mul_i32 s3, s33, {QH}"); A("v_lshl_add_u32 v16, v0, 2, s3")
        A("v_lshlrev_b32 v1, 11, v4"); A("v_lshl_add_u32 v1, v3, 4, v1")
        A("s_lshl_b32 s48, s44, 17"); A("s_lshl_b32 s3, s33, 15"); A("s_add_u32 s48, s48, s3")
        A("s_lshl_b32 s3, s32, 8"); A("s_add_u32 s48, s48, s3")
        A("s_waitcnt vmcnt(0) lgkmcnt(0)")
        self.untag(24, 166, 8)
        A("v_cmp_ne_u32 vcc, 0, v8"); A("s_cmp_eq_u64 vcc, 0"); A("s_cbranch_scc0 L_qfr")
        self.lab("L_qok")
        A("v_pk_add_f32 v[24:25], v[24:25], v[26:27]"); A("v_pk_add_f32 v[28:29], v[28:29], v[30:31]")
        A("v_pk_add_f32 v[24:25], v[24:25], v[28:29]")
        A("v_cvt_pk_bf16_f32 v17, v24, v25")
        A(f"ds_write_b32 v16, v17 offset:{L_Q}")
        self.cnt(12, "v18")
        A(f"ds_add_u32 v110, v111 offset:{L_F+4}")
        A("s_mov_b64 exec, -1")
        self.stamp(4)
        self.lab("L_vd")
        A(f"ds_read_b32 v2, v110 offset:{L_F+4}")
        A(f"ds_read2_b32 v[134:135], v133 offset0:{(L_F+12)//4 - 256} offset1:{(L_F+16)//4 - 256}")
        A("s_waitcnt lgkmcnt(0)")
        A("v_readfirstlane_b32 s40, v2"); A("v_readfirstlane_b32 s3, v135"); A("v_readfirstlane_b32 s49, v134")
        A("s_andn2_b32 s3, s3, s63"); A("s_cbranch_scc1 L_puby2")
        A("s_cmp_ge_u32 s40, 4"); A("s_cbranch_scc1 L_vdd")
        A("s_sleep 2"); A("s_sub_u32 s62, s62, 1"); A("s_cbranch_scc0 L_vd")
        self.lab("L_vdd")
        A("s_lshl_b32 s3, s33, 5"); A("v_mov_b32 v56, s3")
        self.ldsspin("l2", 20, 8, [f"ds_read_b128 v[40:43], v56 offset:{L_M}", f"ds_read_b128 v[44:47], v56 offset:{L_M+16}",
                                   f"ds_read_b128 v[48:51], v56 offset:{L_L}", f"ds_read_b128 v[52:55], v56 offset:{L_L+16}"], sleep=4)
        A("v_max3_f32 v40, v40, v41, v42"); A("v_max3_f32 v43, v43, v44, v45"); A("v_max3_f32 v40, v40, v46, v47")
        A("v_pk_add_f32 v[48:49], v[48:49], v[52:53]"); A("v_pk_add_f32 v[50:51], v[50:51], v[54:55]")
        A("v_pk_add_f32 v[48:49], v[48:49], v[50:51]"); A("v_add_f32 v48, v48, v49")
        A("v_log_f32 v48, v48"); A("v_max_f32 v40, v40, v43")
        A("s_cmp_lg_u32 s49, 0")
        A("v_add_f32 v128, v40, v48")
        A("s_mov_b64 exec, 1")
        A("s_cbranch_scc1 L_S_y1")
        A("buffer_store_dwordx2 v[128:129], v110, s[12:15], s4 offen")
        self.lab("L_S_y1r")
        A("s_mov_b64 exec, -1")
        A("s_cmp_lg_u32 s49, 0"); A(f"s_cselect_b32 s49, {YD}, 0")
        A("s_lshl_b32 s35, s47, 7"); A(f"s_add_u32 s35, s35, {SP}"); A("s_add_u32 s35, s35, s49")
        A("v_lshlrev_b32 v57, 5, v5")
        self.poll("s", stl, [SG+1, SG+3, SG+5, SG+7], 20, sleep=self.ssleep)
        self.stamp(15)
        A(f"v_max3_f32 v20, v{SG}, v{SG+2}, v{SG+4}"); A(f"v_max_f32 v20, v20, v{SG+6}")
        for s in range(4): A(f"v_sub_f32 v{CF+2*s}, v{SG+2*s}, v20")
        for s in range(4): A(f"v_exp_f32 v{CF+2*s}, v{CF+2*s}")
        self.nop(1)
        A(f"v_add_f32 v20, v{CF}, v{CF+2}"); A(f"v_add_f32 v21, v{CF+4}, v{CF+6}"); A("v_add_f32 v20, v20, v21")
        A("v_rcp_f32 v20, v20"); self.nop(1)
        for s in range(4): A(f"v_mul_f32 v{CF+2*s}, v{CF+2*s}, v20")
        for e in range(8):
            if e == self.wo1: self.ldsspin("w", 24, self.th1, [], sleep=2)
            if e == self.wa: self.ldsspin("w2", 24, self.th2, [], sleep=1)
            if e == self.wo_early: A("s_setprio 0")
            A(f"buffer_load_dwordx4 {v4(WB+4*e)}, v1, s[20:23], s48 offen offset:{1024*(e>>2)}{nt}")
            if e == 3: A("s_sub_u32 s48, s48, 24576")
            elif e < 7: A("s_add_u32 s48, s48, 8192")
        A("s_setprio 3")
        self.stamp(5)
        A("s_lshl_b32 s39, s47, 13"); A("s_lshl_b32 s3, s33, 7"); A("s_add_u32 s39, s39, s3"); A(f"s_add_u32 s39, s39, {OP}")
        A("s_add_u32 s39, s39, s49"); A("s_add_u32 s48, s39, 4096")
        A("v_lshlrev_b32 v1, 9, v5"); A("v_lshl_add_u32 v1, v4, 5, v1"); A("v_lshl_add_u32 v1, v6, 3, v1")
        A("s_lshl_b32 s63, s32, 17"); A(f"s_add_u32 s63, s63, {FP}")
        A("s_lshl_b32 s3, s47, 11"); A("s_add_u32 s46, s63, s3"); A("s_lshl_b32 s3, s33, 9"); A("s_add_u32 s46, s46, s3")
        A("v_lshrrev_b32 v121, 2, v0"); A("v_lshlrev_b32 v121, 11, v121"); A("v_lshl_add_u32 v121, v6, 3, v121")
        A("s_lshl_b32 s3, s47, 5"); A("s_add_u32 s63, s63, s3")
        A("s_add_u32 s60, s63, 0x8000"); A("s_add_u32 s61, s63, 0x10000"); A("s_add_u32 s62, s63, 0x18000")
        A("s_lshl_b32 s45, s45, 10"); A("s_lshl_b32 s3, s32, 8"); A("s_add_u32 s45, s45, s3")
        A("s_and_b32 s3, s47, 15"); A("s_lshl_b32 s3, s3, 4"); A("s_add_u32 s45, s45, s3")
        A("v_lshlrev_b32 v126, 2, v6"); A("v_lshl_add_u32 v126, v4, 1, v126")
        A("s_mov_b32 s41, 1")
        if self.anyof:
            if self.anyof == 1: A("s_or_b32 s49, s32, s33")
            else: A("s_and_b32 s49, s44, 3"); A("s_or_b32 s49, s49, s32")
            A("s_cselect_b64 s[6:7], 0, 1")
            A("s_lshr_b32 s3, s47, 2"); A("s_lshl_b32 s3, s3, 3")
            if self.anyof == 1: A("s_and_b32 s49, s44, 3"); A("s_add_u32 s3, s3, s49")
            else: A("s_add_u32 s3, s3, s33")
            A("s_lshl_b32 s3, s3, 7"); A(f"s_add_u32 s3, s3, {EP}"); A("v_mov_b32 v135, s3")
            A("v_lshrrev_b32 v134, 2, v0"); A("v_lshlrev_b32 v134, 10, v134"); A("v_lshl_add_u32 v134, v6, 7, v134"); A(f"v_add_u32 v134, {EP}, v134")
        else:
            A("s_and_b32 s49, s44, 3"); A("s_or_b32 s49, s49, s32"); A("s_or_b32 s49, s49, s33")
            A(f"s_cselect_b64 s[6:7], 0, {(1 << self.er) - 1}")
            A("s_lshr_b32 s3, s47, 2"); A("s_lshl_b32 s3, s3, 10"); A(f"s_add_u32 s3, s3, {EP}"); A("v_lshl_add_u32 v135, v0, 7, s3")
            A("v_lshlrev_b32 v134, 10, v3"); A(f"v_add_u32 v134, {EP}, v134")
            if self.er > self.ed:
                A(f"s_lshr_b32 s3, s2, 3"); A(f"s_and_b32 s3, s3, {self.er // self.ed - 1}"); A(f"s_mul_i32 s3, s3, {128 * self.ed}"); A("v_add_u32 v134, s3, v134")
        A("s_barrier")
        self.stamp(6)
        A("s_branch L_tile")
        self.lab("L_fin")
        self.xs("wr")
        if self.b4spin:
            self.cnt(28, "v111")
            A("s_mov_b64 exec, -1")
            self.ldsspin("c2", 28, 4, rd, sleep=0)
        else:
            A("s_mov_b64 exec, -1")
            A("s_waitcnt lgkmcnt(0)")
            self.xs("wd")
            A("s_barrier")
            self.xs("bar")
            for r in rd: A(r)
            A("s_waitcnt lgkmcnt(2)")
        A("v_pk_add_f32 v[12:13], v[12:13], v[14:15]")
        A("s_waitcnt lgkmcnt(0)")
        A("v_pk_add_f32 v[16:17], v[16:17], v[18:19]")
        self.xs("rd")
        A("v_pk_add_f32 v[12:13], v[12:13], v[16:17]")
        A("v_bfi_b32 v12, s11, v160, v12"); A("v_bfi_b32 v13, s11, v161, v13")
        A(f"buffer_store_dwordx2 v[12:13], v127, s[12:15], s46 offen {self.spol}")
        self.stamp(9)
        if self.wbl == 1:
            A("s_lshr_b32 s3, s2, 3"); A("s_lshl_b32 s3, s3, 2"); A("s_add_u32 s5, s3, s33"); A("s_cmp_eq_u32 s5, 1"); A("s_cbranch_scc1 L_wb1")
        if self.wbl == 2:
            A("s_lshr_b32 s3, s2, 3"); A("s_lshl_b32 s3, s3, 2"); A("s_add_u32 s5, s3, s33"); A("s_cmp_eq_u32 s5, 1"); A("s_cbranch_scc0 L_wb1")
            A("buffer_wbl2 sc1")
            self.lab("L_wb1")
        A("s_cmp_lg_u32 s33, 0"); A("s_cbranch_scc1 L_C_exit")
        if self.wbl == 1: self.lab("L_wb1")
        if self.fdelay: A(f"s_sleep {self.fdelay}")
        if self.eta:
            if self.anyof:
                A(f"s_mov_b32 s38, {self.spin}")
                self.lab("L_ea")
                A(f"buffer_load_dword v41, v134, s[12:15], 0 offen{pol}")
                A("s_sub_u32 s38, s38, 1"); A("s_cbranch_scc1 L_eb")
                A("s_waitcnt vmcnt(0)")
                A("v_cmp_eq_u32 vcc, s34, v41")
                A("s_wqm_b64 vcc, vcc")
                A("s_andn2_b64 exec, exec, vcc")
                A("s_cbranch_scc1 L_ea")
                self.lab("L_eb")
                A("s_mov_b64 exec, -1")
            elif self.ed == 1:
                self.poll("e", [f"buffer_load_dword v41, v134, s[12:15], 0 offen {self.epol}"], [41], 40, sleep=self.es1)
            else:
                D = self.ed
                A("s_mov_b64 exec, 0xffff")
                el = lambda i: A(f"buffer_load_dword v{41+i}, v134, s[12:15], 0 offen offset:{128 * (i % self.er)}{pol}")
                A(f"s_mov_b32 s38, {self.spin}")
                for i in range(D - 1):
                    el(i); A(f"s_sleep {self.es}")
                self.lab("L_ep")
                for i in range(D):
                    el((i + D - 1) % D)
                    A(f"s_waitcnt vmcnt({D-1})")
                    A(f"v_cmp_ne_u32 vcc, s34, v{41+i}")
                    A("s_cmp_eq_u64 vcc, 0"); A("s_cbranch_scc1 L_epd")
                A("s_sub_u32 s38, s38, 1"); A("s_cbranch_scc0 L_ep")
                self.lab("L_epd")
                A("s_mov_b64 exec, -1")
            self.stamp(12)
            if self.wbl == 1:
                A("s_cmp_eq_u32 s33, 0"); A("s_cbranch_scc1 L_wb2")
                A("buffer_wbl2 sc1"); A("s_branch L_C_exit")
                self.lab("L_wb2")
            if self.edly: A(f"s_sleep {self.edly}")
            self.lab("L_eok")
        self.poll("f", [f"buffer_load_dwordx2 {v2(24+2*i)}, v121, s[12:15], s{(63,60,61,62)[i]} offen {self.fpol}" for i in range(4)],
                  list(range(24, 32)), 40, sleep=self.fsleep, tv=160)
        self.stamp(10)
        if self.stamps and not self.amp and not self.xst: A(f"s_sub_u32 s66, {self.spin}, s38"); A("s_mov_b32 s67, 0")
        A("v_pk_add_f32 v[24:25], v[24:25], v[26:27]"); A("v_pk_add_f32 v[28:29], v[28:29], v[30:31]")
        self.nop(2)
        A("v_permlane32_swap_b32 v24, v28"); A("v_permlane32_swap_b32 v25, v29")
        A("v_pk_add_f32 v[24:25], v[24:25], v[28:29]"); self.nop(2)
        A("v_permlane16_swap_b32 v24, v25")
        A("v_add_f32 v24, v24, v25"); self.nop(2)
        self.dpp("v_add_f32", 24, 24, 24, "row_ror:4"); self.nop(2)
        self.dpp("v_add_f32", 24, 24, 24, "row_ror:8")
        A("v_cvt_pk_bf16_f32 v24, v24, v24"); A("v_lshlrev_b32 v24, 16, v24")
        A("v_mul_f32 v24, v24, v120")
        A("v_cvt_pk_bf16_f32 v24, v24, v24"); A("v_lshlrev_b32 v24, 16, v24")
        A("v_mov_b32 v25, v24"); self.nop(2)
        A("v_permlane32_swap_b32 v24, v25")
        A("v_add_f32 v24, v24, v25")
        A("v_cvt_pk_bf16_f32 v24, v24, v24")
        A("s_mov_b64 exec, 0x000f000f")
        A("buffer_store_short v24, v126, s[56:59], s45 offen")
        self.xs("fo")
        if self.pad:
            if self.padk >= 0:
                A("s_waitcnt lgkmcnt(0)"); A("s_mov_b32 s90, s92")
            self.lab("L_pad")
            A("s_memrealtime s[94:95]"); A("s_waitcnt lgkmcnt(0)"); A("s_sub_u32 s94, s94, s90")
            A(f"s_cmp_lt_u32 s94, {self.pad}"); A("s_cbranch_scc1 L_pad")
        A("s_cmp_lg_u32 s2, 0"); A("s_cbranch_scc1 L_C_exit")
        A("s_mov_b64 exec, 1")
        A("buffer_store_dword v129, v110, s[12:15], 0 offen")
        self.lab("L_C_exit")
        self.stamp(11)
        if self.stamps: A("s_sleep 127")
        self.stamp_out()
        self.lab("L_end")
        A("s_endpgm")
        self.lab("L_last")
        self.lab("L_S_y1")
        A(f"s_add_u32 s4, s4, {YD}")
        A(f"buffer_store_dwordx2 v[128:129], v110, s[12:15], s4 offen{pol}")
        A("s_branch L_S_y1r")
        self.lab("L_S_y2")
        A(f"s_add_u32 s46, s46, {YD}")
        A(f"buffer_store_dwordx2 {v2(SB+12)}, v{SB+11}, s[12:15], s46 offen{pol}")
        A("s_branch L_S_x")
        def puby():
            A(f"s_add_u32 s3, s46, {YD}")
            A(f"buffer_store_dwordx2 v[164:165], v127, s[12:15], s3 offen{pol}")
            A("s_mov_b32 s63, 1")
        self.lab("L_puby2")
        puby()
        A("s_branch L_vd")
        self.lab("L_slow")
        A("s_cmp_lg_u32 s63, 0"); A("s_cbranch_scc1 L_slow2")
        A(f"ds_write_b32 v110, v111 offset:{L_F+16}")
        puby()
        self.lab("L_slow2")
        A(f"v_add_u32 v9, {YD}, v127")
        for l in qg("v9"): A(l)
        A("v_and_b32 v9, 1, v0"); A("v_mul_u32_u24 v9, 15, v9"); A("v_or_b32 v9, 0xf0, v9")
        A("s_waitcnt vmcnt(0)")
        A("v_xor_b32 v8, v166, v24"); A("v_xor_b32 v10, v167, v25")
        for r in range(26, 32): A(f"v_bitop3_b32 v{8 + 2*(r & 1)}, v{r}, v{166 + (r & 1)}, v{8 + 2*(r & 1)} bitop3:0xbe")
        A("v_and_b32 v10, 0xff, v10"); A("v_and_or_b32 v9, v8, v9, v10"); A("v_and_b32 v10, 15, v8")
        A("s_mov_b32 s38, 0")
        A("v_cmp_ne_u32 vcc, 0, v9"); A("s_cmp_eq_u64 vcc, 0"); A("s_cbranch_scc1 L_slow3")
        A("s_sleep 8")
        A("s_sub_u32 s62, s62, 1"); A("s_cbranch_scc0 L_qf")
        self.lab("L_slow3")
        for r in range(24, 32): A(f"v_and_b32 v{r}, 0xffffff00, v{r}")
        A("v_cmp_ne_u32 vcc, 0, v10"); A("s_cmp_lg_u64 vcc, 0")
        A("s_cselect_b32 s3, 1, 0"); A("v_mov_b32 v18, s3")
        A(f"s_mul_i32 s3, s33, {QH}"); A("v_lshl_add_u32 v16, v0, 2, s3")
        A("v_lshlrev_b32 v1, 11, v4"); A("v_lshl_add_u32 v1, v3, 4, v1")
        A("s_lshl_b32 s48, s44, 17"); A("s_lshl_b32 s3, s33, 15"); A("s_add_u32 s48, s48, s3")
        A("s_lshl_b32 s3, s32, 8"); A("s_add_u32 s48, s48, s3")
        A("s_waitcnt lgkmcnt(0)")
        A("s_branch L_qok")
        L.append('.section .rodata,"a"'); L.append(".p2align 6"); L.append(f".amdhsa_kernel {KN}")
        L.append("  .amdhsa_next_free_vgpr 168"); L.append("  .amdhsa_next_free_sgpr 96"); L.append("  .amdhsa_accum_offset 168")
        L.append("  .amdhsa_group_segment_fixed_size 0"); L.append("  .amdhsa_kernarg_size 112"); L.append("  .amdhsa_user_sgpr_count 2")
        L.append("  .amdhsa_user_sgpr_kernarg_segment_ptr 1"); L.append("  .amdhsa_system_sgpr_workgroup_id_x 1")
        L.append("  .amdhsa_float_denorm_mode_32 3")
        L.append(".end_amdhsa_kernel")
        return "\n".join(L) + "\n"

if __name__ == "__main__":
    out = sys.argv[1]
    kw = {}
    for a in sys.argv[2:]:
        k, v = a.split("=")
        kw[k] = v.replace("+", " ") if k in ("pol", "pat", "pat2", "amp", "only", "xst", "epol", "fpol", "spol") else int(v)
    open(out, "w").write(G(**kw).gen())
```
